```python
import torch

def _softmax(x, axis=-1):
    return torch.softmax(x, dim=axis)

def _gelu(x):
    return torch.nn.functional.gelu(x, approximate='tanh')

def _silu(x):
    return torch.nn.functional.silu(x)

def _sigmoid(x):
    return torch.sigmoid(x)

def _layernorm(x, axis=-1, eps=1e-05):
    m = x.mean(dim=axis, keepdim=True)
    v = x.var(dim=axis, keepdim=True, unbiased=False)
    return (x - m) / torch.sqrt(v + eps)

def _scatter_add(tgt, idx, src, axis=0):
    return tgt.clone().index_add_(axis, idx, src)

def _segment_sum(src, seg, n):
    out = torch.zeros((n,) + src.shape[1:], dtype=src.dtype)
    return out.index_add_(0, seg, src)

def _pad(x, pw):
    flat = tuple((v for pair in reversed(pw) for v in pair))
    return torch.nn.functional.pad(x, flat)
kernel_name = 'gated_mix__memory_aug_recurrent_mem_tr__ssm_conv_s4__prompt'

def setup_inputs():

    _w = lambda a: (lambda t: t.to(torch.bfloat16) if t.is_floating_point() else t)(torch.as_tensor(a))

    def _A_setup():
        B, S, Dm = (1, 2048, 512)
        H, Dh = (32, 128)
        M, seg = (8, 32)
        seg = min(seg, S)
        S = S // seg * seg
        return {'x': _w((lambda *s: torch.randn(*s, dtype=torch.bfloat16) * 0.05)(B, S, Dm)), 'mem0': _w((lambda *s: torch.randn(*s, dtype=torch.bfloat16) * 0.4)(B, M, Dm)), 'Wq': _w((lambda *s: torch.randn(*s, dtype=torch.bfloat16) * 6.4)(Dm, H, Dh) * Dm ** (-0.5)), 'Wk': _w((lambda *s: torch.randn(*s, dtype=torch.bfloat16) * 6.4)(Dm, H, Dh) * Dm ** (-0.5)), 'Wv': _w((lambda *s: torch.randn(*s, dtype=torch.bfloat16) * 0.4)(Dm, H, Dh) * Dm ** (-0.5)), 'Wo': _w((lambda *s: torch.randn(*s, dtype=torch.bfloat16) * 0.4)(H, Dh, Dm) * (H * Dh) ** (-0.5)), 'seg_len': seg}
    _A_in = _A_setup()

    def _B_setup():
        B, L, D, N = (1, 2048, 512, 128)
        A_re = -(lambda _x: torch.exp(torch.as_tensor(_x)))((lambda *s: torch.randn(*s, dtype=torch.bfloat16) * 6.4)(D, N))
        A_im = torch.pi * (lambda *s: torch.randn(*s, dtype=torch.bfloat16) * 0.05)(D, N)
        B_re = (lambda *s: torch.randn(*s, dtype=torch.bfloat16) * 0.1)(D, N)
        B_im = (lambda *s: torch.randn(*s, dtype=torch.bfloat16) * 0.1)(D, N)
        C_re = (lambda *s: torch.randn(*s, dtype=torch.bfloat16) * 0.1)(D, N)
        C_im = (lambda *s: torch.randn(*s, dtype=torch.bfloat16) * 0.1)(D, N)
        log_dt = (lambda *s: torch.randn(*s, dtype=torch.bfloat16) * 0.05)(D) * 0.5 - 4.0
        Dskip = (lambda *s: torch.randn(*s, dtype=torch.bfloat16) * 0.05)(D)
        return {'u': _w((lambda *s: torch.randn(*s, dtype=torch.bfloat16) * 0.05)(B, L, D)), 'A_re': _w(A_re), 'A_im': _w(A_im), 'B_re': _w(B_re), 'B_im': _w(B_im), 'C_re': _w(C_re), 'C_im': _w(C_im), 'log_dt': _w(log_dt), 'Dskip': _w(Dskip)}
    _B_in = _B_setup()
    return {'A_x': _A_in['x'], 'A_mem0': _A_in['mem0'], 'A_Wq': _A_in['Wq'], 'A_Wk': _A_in['Wk'], 'A_Wv': _A_in['Wv'], 'A_Wo': _A_in['Wo'], 'A_seg_len': _A_in['seg_len'], 'B_u': _B_in['u'], 'B_A_re': _B_in['A_re'], 'B_A_im': _B_in['A_im'], 'B_B_re': _B_in['B_re'], 'B_B_im': _B_in['B_im'], 'B_C_re': _B_in['C_re'], 'B_C_im': _B_in['C_im'], 'B_log_dt': _B_in['log_dt'], 'B_Dskip': _B_in['Dskip'], 'gate_w': _w((lambda *s: torch.randn(*s, dtype=torch.bfloat16) * 0.05)(512) * 16.0)}

def reference(A_x, A_mem0, A_Wq, A_Wk, A_Wv, A_Wo, A_seg_len, B_u, B_A_re, B_A_im, B_B_re, B_B_im, B_C_re, B_C_im, B_log_dt, B_Dskip, gate_w):

    def _A_ref(x, mem0, Wq, Wk, Wv, Wo, seg_len):
        B, S, Dm = x.shape
        H, Dh = (Wq.shape[1], Wq.shape[2])
        M = mem0.shape[1]
        scale = Dh ** (-0.5)
        n_seg = S // seg_len
        L = M + seg_len
        idx = torch.arange(L)
        mask = (idx[:, None] < M) | (idx[:, None] >= idx[None, :])
        mem = mem0
        outs = []
        for s in range(n_seg):
            xs = x[:, s * seg_len:(s + 1) * seg_len, :].clone()
            h = torch.concatenate([mem, xs], axis=1)
            q = torch.einsum('btd,dhe->bhte', h, Wq)
            k = torch.einsum('btd,dhe->bhte', h, Wk)
            v = torch.einsum('btd,dhe->bhte', h, Wv)
            scores = torch.einsum('bhqe,bhke->bhqk', q, k) * scale
            scores = torch.where(mask[None, None], scores, -1000000000.0)
            p = _softmax(scores, axis=-1)
            o = torch.einsum('bhqk,bhke->bhqe', p, v)
            o = torch.einsum('bhte,hed->btd', o, Wo)
            mem = o[:, :M, :].clone()
            outs.append(o[:, M:, :])
        return torch.concatenate(outs, axis=1)

    def _B_ref(u, A_re, A_im, B_re, B_im, C_re, C_im, log_dt, Dskip):
        Bsz, L, D = u.shape
        dt = torch.exp(log_dt)[:, None]
        A = A_re + 1j * A_im
        Bc = B_re + 1j * B_im
        Cc = C_re + 1j * C_im
        logdA = dt * A
        dB = dt * Bc
        l = (lambda x, dt: x.to(dt))(torch.arange(L), A_re.dtype)
        P = torch.exp(logdA[:, :, None] * l[None, None, :])
        K = torch.einsum('dn,dnl,dn->dl', Cc, P, dB).real
        L2 = 2 * L
        Kp = _pad(K, ((0, 0), (0, L)))
        up = (lambda x, *d: x.permute(*d))(u, 0, 2, 1)
        up = _pad(up, ((0, 0), (0, 0), (0, L)))
        Kf = (lambda x, axes=(-2, -1): torch.fft.rfft2(x.float(), dim=axes))(Kp[:, None, :], axes=(-2, -1))
        Uf = (lambda x, axes=(-2, -1): torch.fft.rfft2(x.float(), dim=axes))(up[:, :, None, :], axes=(-2, -1))
        Yf = Uf * Kf[None, :, :, :]
        y = (lambda x, s, axes=(-2, -1): torch.fft.irfft2(x, s=s, dim=axes).to(torch.bfloat16))(Yf, (1, L2), axes=(-2, -1))[:, :, 0, :L]
        y = (lambda x, *d: x.permute(*d))(y, 0, 2, 1) + u * Dskip[None, None, :]
        return y
    x = A_x
    g = _sigmoid((x * gate_w).sum(-1, keepdims=True))
    a = _A_ref(x, A_mem0, A_Wq, A_Wk, A_Wv, A_Wo, A_seg_len)
    b = _B_ref(x, B_A_re, B_A_im, B_B_re, B_B_im, B_C_re, B_C_im, B_log_dt, B_Dskip)
    return g * a + (1 - g) * b
```

```python
class Asm:
    def __init__(self):
        self.lines = []
        self.uid = 0
    def __call__(self, s):
        for ln in s.strip('\n').split('\n'):
            self.lines.append('    ' + ln.strip())
    def label(self, name):
        self.lines.append(name + ':')
    def raw(self, s):
        self.lines.append(s)
    def newlabel(self, base):
        self.uid += 1
        return f'L_{base}_{self.uid}'
    def text(self):
        return '\n'.join(self.lines) + '\n'

def vr(a, n=1):
    return f'v{a}' if n == 1 else f'v[{a}:{a+n-1}]'
def ar(a, n=1):
    return f'a{a}' if n == 1 else f'a[{a}:{a+n-1}]'
def sr(a, n=1):
    return f's{a}' if n == 1 else f's[{a}:{a+n-1}]'

def kernel_header(A, name):
    A.raw(f'.globl {name}')
    A.raw('.p2align 8')
    A.raw(f'.type {name},@function')
    A.label(name)

def kernel_desc(name, vgpr, sgpr, accum):
    return f'''.amdhsa_kernel {name}
  .amdhsa_next_free_vgpr {vgpr}
  .amdhsa_next_free_sgpr {sgpr}
  .amdhsa_accum_offset {accum}
  .amdhsa_group_segment_fixed_size 0
  .amdhsa_kernarg_size 160
  .amdhsa_user_sgpr_count 2
  .amdhsa_user_sgpr_kernarg_segment_ptr 1
  .amdhsa_system_sgpr_workgroup_id_x 1
  .amdhsa_float_denorm_mode_32 3
.end_amdhsa_kernel
'''

def srd(A, d, base, nbytes):
    A(f'''s_mov_b32 s{d}, s{base}
s_and_b32 s{d+1}, s{base+1}, 0xffff
s_mov_b32 s{d+2}, {hex(nbytes)}
s_mov_b32 s{d+3}, 0x00020000''')

WS_Q   = 0x0000000
WS_K   = 0x1000000
WS_VT  = 0x2000000
WS_KM  = 0x3000000
WS_VMT = 0x3400000
WS_P   = 0x3800000
WS_M   = 0x3900000
WS_O   = 0x4000000
WS_Y   = 0x5000000
WS_KD  = 0x5400000
WS_QF  = 0x5810000
WS_FR  = 0xA000000
WS_SIZE = 0x10000000
KA_X=0; KA_MEM0=8; KA_WQ=16; KA_WK=24; KA_WV=32; KA_WO=40
KA_ARE=64; KA_AIM=72; KA_BRE=80; KA_BIM=88; KA_CRE=96; KA_CIM=104; KA_LOGDT=112; KA_DSKIP=120; KA_GW=128
KA_OUT=136; KA_DBG=144; KA_WS=152
```

```python
from asmlib import *

L_W  = 0
L_MA = 131072
L_QK = 139264
L_O  = 139264 + 16*288
L_MISC = L_O + 16*288
L_KX = L_MISC + 1024
L_VM = L_KX + 8192
QS = 288
V_LANE16 = 1
V_IDX = 2
V_PST = 3
V_PLD = 4
V_MST = 5
V_T16 = 6
V_QKW = 7
V_QKR = 8
V_OW = 9
V_OR = 10
V_KXA = 11
V_VXA = 12
V_PUBK = 13
V_PUBV = 14
V_KXR = 15
V_MA = 16
V_KX = 48
V_VX = 80
V_STG = 88
V_ACC = 104
V_MB = 0
V_WO = 128
V_MBR = 124

SC = 0.08838834764831845*1.4426950408889634

SPINBOUND = True
DRY = False
PDELAY = 0
NOKV = False
NOPST = False
NOWARM = False
def spin(A, Lexit):
    if SPINBOUND:
        A(f'''s_add_u32 s48, s48, 1
s_cmp_gt_u32 s48, 0x100000
s_cbranch_scc1 {Lexit}''')

STAMPS = True
TRACE = False
def stamp(A, i, timing):
    if timing and TRACE:
        L = A.newlabel('tr')
        A(f'''s_cmp_lg_u32 s34, {31 if i >= 7 else 30}
s_cbranch_scc1 {L}
s_memrealtime s[64:65]
s_waitcnt lgkmcnt(0)
s_mov_b32 s{70+i}, s64''')
        A.label(L)
    elif timing and STAMPS:
        A(f'''s_memtime s[{64}:{65}]
s_waitcnt lgkmcnt(0)
s_sub_u32 s66, s64, s67
s_add_u32 s{70+i}, s{70+i}, s66
s_mov_b32 s67, s64''')

def emit_elect(A, Lexit, role_sreg=15):
    Lw = A.newlabel('el_wait'); Lnc = A.newlabel('el_nocas'); Lrd = A.newlabel('el_rdone'); Lsp = A.newlabel('el_spin')
    A(f'''s_getreg_b32 s16, hwreg(HW_REG_XCC_ID)
s_and_b32 s16, s16, 7
s_cmp_lg_u32 s14, 0
s_cbranch_scc1 {Lw}
v_mov_b32 v20, 1
s_lshl_b32 s17, s16, 2
v_mov_b32 v21, s17
s_mov_b64 s[20:21], exec
s_mov_b64 exec, 1
global_atomic_add v22, v21, v20, s[12:13] sc0
s_waitcnt vmcnt(0)
v_readfirstlane_b32 s18, v22
s_cmp_lg_u32 s18, 31
s_cbranch_scc1 {Lnc}
s_add_u32 s19, s16, 1
v_mov_b32 v24, s19
v_mov_b32 v25, 0
v_mov_b32 v21, 32
global_atomic_cmpswap v21, v[24:25], s[12:13]
s_waitcnt vmcnt(0)''')
    A.label(Lnc)
    A(f'''s_mov_b32 s15, 0xffff
s_cmp_ge_u32 s18, 32
s_cbranch_scc1 {Lrd}
v_mov_b32 v21, 32''')
    A.label(Lsp)
    A(f'''global_load_dword v22, v21, s[12:13] sc1
s_waitcnt vmcnt(0)
v_readfirstlane_b32 s19, v22
s_cmp_eq_u32 s19, 0
s_cbranch_scc1 {Lsp}
s_sub_u32 s19, s19, 1
s_cmp_lg_u32 s19, s16
s_cbranch_scc1 {Lrd}
s_mov_b32 s15, s18''')
    A.label(Lrd)
    A(f'''v_mov_b32 v22, s15
v_mov_b32 v21, {L_MISC}
ds_write_b32 v21, v22
s_mov_b64 exec, s[20:21]
s_waitcnt lgkmcnt(0)''')
    A.label(Lw)
    A(f'''s_barrier
v_mov_b32 v21, {L_MISC}
ds_read_b32 v22, v21
s_waitcnt lgkmcnt(0)
v_readfirstlane_b32 s15, v22
s_barrier''')

def emit_chain_kernel(A, name='chain_kernel', timing=False):
    kernel_header(A, name)
    Lend = A.newlabel('ch_end')
    A(f'''s_cmp_ge_u32 s2, 256
s_cbranch_scc1 {Lend}
s_load_dwordx2 s[22:23], s[0:1], {KA_WS}
s_load_dwordx2 s[12:13], s[0:1], {KA_DBG}
v_lshrrev_b32 v16, 6, v0
s_nop 0
v_readfirstlane_b32 s14, v16
s_waitcnt lgkmcnt(0)''')
    srd(A, 4, 22, WS_SIZE)
    if DRY:
        A(f'''s_mov_b32 s15, s2
s_cmp_ge_u32 s15, 1
s_cbranch_scc1 {Lend}''')
    else:
        emit_elect(A, Lend)
        A(f'''s_cmp_ge_u32 s15, 32
s_cbranch_scc1 {Lend}''')
    emit_chain_body(A, timing)
    A.label(Lend)
    A('s_endpgm')

def emit_chain_body(A, timing=False):
    A(f'''v_and_b32 v16, 63, v0
v_and_b32 v17, 15, v16
v_lshrrev_b32 v18, 4, v16
v_and_b32 v19, 1, v18
v_lshrrev_b32 v20, 1, v18
v_lshlrev_b32 v{V_LANE16}, 4, v16
v_lshlrev_b32 v{V_T16}, 4, v0
s_mov_b32 s30, 0x05040100
s_mov_b32 s31, 0x07060302''')
    A(f'''s_lshl_b32 s16, s15, 13
s_add_u32 s16, s16, {hex(WS_P)}
v_mov_b32 v24, 1
v_mov_b32 v25, 1
v_mov_b32 v26, 1
v_mov_b32 v27, 1''')
    for ring in range(2):
        for i in range(2):
            A(f'''s_add_u32 s17, s16, {ring*0x40000+i*4096}
buffer_store_dwordx4 v[24:27], v{V_T16}, s[4:7], s17 offen''')
    A(f'''s_and_b32 s17, s15, 7
s_lshl_b32 s17, s17, 10
s_lshr_b32 s18, s15, 3
s_lshl_b32 s18, s18, 8
s_add_u32 s17, s17, s18
s_add_u32 s17, s17, {hex(WS_M)}
v_mov_b32 v24, -1
v_lshlrev_b32 v25, 2, v16''')
    for sl in range(3):
        A(f'''s_add_u32 s18, s17, {sl*8192}
buffer_store_dword v24, v25, s[4:7], s18 offen''')
    A(f'''v_mov_b32 v24, 0x4444
v_mov_b32 v25, 0xeeee
v_and_b32 v26, 1, v17
v_cmp_eq_u32 vcc, 0, v26
s_nop 1
v_cndmask_b32 v{V_IDX}, v25, v24, vcc''')
    A(f'''s_lshl_b32 s18, s14, 16
s_lshl_b32 s19, s15, 8
s_add_u32 s18, s18, s19
s_add_u32 s18, s18, {hex(WS_P)}
v_and_b32 v24, 3, v17
v_lshl_add_u32 v24, v18, 2, v24
v_lshlrev_b32 v24, 4, v24
v_lshrrev_b32 v25, 2, v17
v_lshl_add_u32 v24, v25, 13, v24
v_add_u32 v{V_PST}, s18, v24''')
    A(f's_sub_u32 s59, s16, {L_MA}')
    A(f'''v_and_b32 v24, 1, v17
v_lshlrev_b32 v24, 4, v24
v_mov_b32 v25, 0x3f80
v_lshlrev_b32 v{V_PLD}, v24, v25''')
    A(f'''v_lshrrev_b32 v24, 2, v17
v_lshl_add_u32 v24, v24, 1, v18
v_bfe_u32 v25, v17, 1, 1
v_lshl_add_u32 v24, v24, 1, v25
v_lshlrev_b32 v24, 4, v24
v_and_b32 v25, 1, v17
v_lshl_add_u32 v24, v25, 3, v24
v_add_u32 v{V_MST}, s17, v24''')
    A(f'''s_lshr_b32 s18, s14, 1
s_lshl_b32 s18, s18, 3
v_lshlrev_b32 v24, 1, v18
v_add_u32 v24, s18, v24            ; row
v_mul_u32_u24 v25, {QS}, v24
s_and_b32 s18, s14, 1
s_lshl_b32 s18, s18, 7
s_add_u32 s18, s18, {L_QK}
v_lshl_add_u32 v25, v17, 3, v25
v_add_u32 v{V_QKW}, s18, v25''')
    A(f'''s_lshl_b32 s18, s14, 2
s_add_u32 s18, s18, 8
v_add_u32 v24, s18, v18
v_mul_u32_u24 v24, {QS}, v24
v_lshl_add_u32 v24, v17, 4, v24
v_add_u32 v24, {L_QK}, v24
s_lshl_b32 s18, s14, 10
s_add_u32 s18, s18, {L_VM-2048}
v_add_u32 v25, s18, v{V_LANE16}
s_cmp_lt_u32 s14, 2
s_cselect_b64 vcc, -1, 0
v_cndmask_b32 v{V_PUBK}, v25, v24, vcc''')
    A(f'''s_lshl_b32 s19, s15, 11
s_and_b32 s18, s14, 1
s_lshl_b32 s18, s18, 10
s_add_u32 s18, s18, s19
s_cmp_lt_u32 s14, 2
s_mov_b32 s57, {hex(WS_VMT-L_MA)}
s_cselect_b32 s57, {hex(WS_KM-L_MA)}, s57
s_add_u32 s57, s57, s18''')
    A(f'''v_lshlrev_b32 v24, 2, v18
v_lshl_add_u32 v24, v17, 5, v24
s_lshl_b32 s18, s14, 9
s_add_u32 s18, s18, {L_VM}
v_add_u32 v{V_PUBV}, s18, v24''')
    A(f'''v_lshrrev_b32 v24, 1, v17
v_mul_u32_u24 v24, {QS}, v24
v_lshl_add_u32 v24, v18, 4, v24
v_add_u32 v{V_QKR}, {L_QK}, v24''')
    A(f'''v_lshrrev_b32 v24, 1, v17
v_and_b32 v25, 1, v17
v_lshl_add_u32 v24, v25, 3, v24
v_mul_u32_u24 v24, {QS}, v24
v_lshl_add_u32 v24, v18, 4, v24
s_lshl_b32 s18, s14, 6
s_add_u32 s18, s18, {L_O}
v_add_u32 v{V_OW}, s18, v24''')
    A(f'''v_lshrrev_b32 v24, 1, v17
v_mul_u32_u24 v24, {QS}, v24
v_lshl_add_u32 v24, v18, 5, v24
v_and_b32 v25, 1, v17
v_lshl_add_u32 v24, v25, 4, v24
v_add_u32 v{V_OR}, {L_O}, v24''')
    A(f'''v_lshlrev_b32 v24, 1, v18
v_xor_b32 v24, v24, v17
v_lshlrev_b32 v24, 4, v24
v_lshl_add_u32 v24, v18, 8, v24
s_lshl_b32 s18, s15, 19
s_and_b32 s19, s14, 1
s_lshl_b32 s19, s19, 12
s_add_u32 s18, s18, s19
s_add_u32 s18, s18, {hex(WS_K)}
v_add_u32 v{V_KXA}, s18, v24''')
    A(f'''v_and_b32 v24, 3, v17
v_lshrrev_b32 v25, 3, v17
v_lshl_add_u32 v24, v25, 2, v24
v_lshlrev_b32 v24, 1, v24
v_xor_b32 v24, v24, v18
v_lshlrev_b32 v24, 4, v24
v_lshl_add_u32 v24, v17, 8, v24
v_add_u32 v{V_KXR}, {L_KX}, v24''')
    A(f'''v_lshlrev_b32 v24, 7, v17
v_lshl_add_u32 v24, v18, 4, v24
s_lshl_b32 s18, s15, 13
s_lshl_b32 s19, s14, 11
s_add_u32 s18, s18, s19
s_add_u32 s18, s18, {hex(WS_VT)}
v_add_u32 v{V_VXA}, s18, v24''')
    CP = [0,1,8,9,2,3,10,11]
    def drow(kap, eta, j):
        return 256*eta + 32*(kap%4) + 4*(kap//4) + 8*(CP[j]>>2) + (CP[j]&3)
    T0 = V_MA
    TL = 48
    A(f'''s_lshr_b32 s18, s14, 1
s_lshl_b32 s18, s18, 3
s_add_u32 s18, s18, {KA_WQ}
s_load_dwordx2 s[24:25], s[0:1], s18
s_load_dwordx2 s[26:27], s[0:1], {KA_WV}
s_load_dwordx2 s[28:29], s[0:1], {KA_WO}
s_load_dwordx2 s[32:33], s[0:1], {KA_MEM0}
v_lshlrev_b32 v24, 20, v20         ; 128*(g/2)*8192
v_lshl_add_u32 v24, v19, 16, v24   ; + 8b*8192
s_lshl_b32 s19, s15, 8
v_add_u32 v24, s19, v24            ; + h*256
s_and_b32 s18, s14, 1
s_lshl_b32 s18, s18, 7
v_lshl_add_u32 v21, v17, 3, v24
v_add_u32 v21, s18, v21
s_lshl_b32 s18, s14, 6
v_lshl_add_u32 v22, v17, 2, v24
v_add_u32 v22, s18, v22            ; v22: v voffset
s_lshl_b32 s18, s14, 15
v_add_u32 v23, s18, v{V_LANE16}
s_waitcnt lgkmcnt(0)''')
    srd(A, 8, 24, 4*1024*1024)
    for kap in range(8):
        for eta in range(2):
            for j in range(8):
                A(f'''s_mov_b32 s18, {drow(kap,eta,j)*8192}
buffer_load_dwordx2 {vr(TL+(eta*8+j)*2,2)}, v21, s[8:11], s18 offen''')
        A('s_waitcnt vmcnt(0)')
        for eta in range(2):
            for T in range(4):
                for p in range(4):
                    hi = TL+(eta*8+2*p+1)*2+T//2; lo = TL+(eta*8+2*p)*2+T//2
                    sel = 's31' if T%2 else 's30'
                    A(f'v_perm_b32 v{TL+32+p}, v{hi}, v{lo}, {sel}')
                    if T < 3:
                        A(f'v_accvgpr_write_b32 a{(T*8+kap)*8+eta*4+p}, v{TL+32+p}')
                if T == 3:
                    A(f'ds_write_b128 v23, {vr(TL+32,4)} offset:{kap*2048+eta*1024}')
                    A('s_waitcnt lgkmcnt(0)')
    srd(A, 8, 26, 4*1024*1024)
    for kp in range(4):
        for kk in range(2):
            kap = kp*2+kk
            for eta in range(2):
                for j in range(8):
                    A(f'''s_mov_b32 s18, {drow(kap,eta,j)*8192}
buffer_load_dword v{TL+kk*16+eta*8+j}, v22, s[8:11], s18 offen''')
        A('s_waitcnt vmcnt(0)')
        for kk in range(2):
            kap = kp*2+kk
            for eta in range(2):
                for T in range(2):
                    for p in range(4):
                        hi = TL+kk*16+eta*8+2*p+1; lo = TL+kk*16+eta*8+2*p
                        sel = 's31' if T else 's30'
                        A(f'v_perm_b32 v{TL+32+p}, v{hi}, v{lo}, {sel}')
                        if T == 0:
                            A(f'v_accvgpr_write_b32 a{192+kap*8+eta*4+p}, v{TL+32+p}')
                    if T == 1:
                        A(f'ds_write_b128 v23, {vr(TL+32,4)} offset:{16384+kap*2048+eta*1024}')
                        A('s_waitcnt lgkmcnt(0)')
    srd(A, 8, 28, 4*1024*1024)
    A(f'''v_lshlrev_b32 v24, 14, v20
v_lshl_add_u32 v24, v19, 12, v24
v_lshl_add_u32 v24, v17, 4, v24
s_lshl_b32 s18, s15, 17
s_lshl_b32 s19, s14, 8
s_add_u32 s18, s18, s19
v_add_u32 v21, s18, v24''')
    for kp in range(2):
        for eta in range(2):
            for j in range(8):
                A(f'''s_mov_b32 s18, {(64*kp+32*eta+CP[j])*1024}
buffer_load_dwordx4 {vr(TL+j*4,4)}, v21, s[8:11], s18 offen''')
            A('s_waitcnt vmcnt(0)')
            for t in range(8):
                for p in range(4):
                    hi = TL+(2*p+1)*4+t//2; lo = TL+(2*p)*4+t//2
                    sel = 's31' if t%2 else 's30'
                    A(f'v_perm_b32 v{V_WO+(t*2+kp)*8+eta*4+p}, v{hi}, v{lo}, {sel}')
    srd(A, 8, 32, 8192)
    A(f'''v_lshrrev_b32 v24, 1, v17
v_lshlrev_b32 v24, 10, v24
v_lshl_add_u32 v24, v18, 8, v24
v_and_b32 v25, 1, v17
v_lshl_add_u32 v24, v25, 5, v24
s_and_b32 s18, s14, 1
s_lshl_b32 s18, s18, 7             ; 32*2(w%2)*2 bytes
s_lshr_b32 s19, s14, 1
s_lshl_b32 s19, s19, 3             ; 4*(w/2)*2 bytes
s_add_u32 s18, s18, s19
v_add_u32 v24, s18, v24''')
    for kk in range(2):
        for pos in range(8):
            A(f'buffer_load_ushort v{TL+kk*8+pos}, v24, s[8:11], 0 offen offset:{(32*kk+8*(pos>>2)+(pos&3))*2}')
    A(f'''s_waitcnt vmcnt(0)
s_lshl_b32 s18, s14, 11
v_add_u32 v25, s18, v{V_LANE16}''')
    for kk in range(2):
        for p in range(4):
            A(f'v_lshl_or_b32 v{TL+32+p}, v{TL+kk*8+2*p+1}, 16, v{TL+kk*8+2*p}')
        A(f'ds_write_b128 v25, {vr(TL+32,4)} offset:{L_MA-65536*2 if False else 0}' if False else f'v_add_u32 v26, {L_MA+kk*1024}, v25\nds_write_b128 v26, {vr(TL+32,4)}')
        A('s_waitcnt lgkmcnt(0)')
    A(f"""s_and_b32 s53, s14, 1
s_lshl_b32 s53, s53, 12
s_add_u32 s53, s53, {L_KX}""")
    def dma_k(sreg, tmp):
        if NOKV and sreg != 's18': return
        A(f"""s_mov_b32 m0, s53
v_xor_b32 v{tmp}, 128, v{V_KXA}
buffer_load_dwordx4 v{V_KXA}, s[4:7], {sreg} offen lds
buffer_load_dwordx4 v{V_KXA}, s[4:7], {sreg} offen offset:1024 lds
buffer_load_dwordx4 v{tmp}, s[4:7], {sreg} offen offset:2048 lds
buffer_load_dwordx4 v{tmp}, s[4:7], {sreg} offen offset:3072 lds""")
    def load_v(sreg_v):
        if NOKV and sreg_v != 's18': return
        for T in range(2):
            A(f'buffer_load_dwordx4 {vr(V_VX+T*4,4)}, v{V_VXA}, s[4:7], {sreg_v} offen offset:{T*64}')
    A("s_mov_b32 s18, 0")
    Ld0 = A.newlabel('ch_d0')
    A(f's_cmp_lt_u32 s14, 2\ns_cbranch_scc1 {Ld0}')
    dma_k('s18', 24)
    A.label(Ld0)
    load_v('s18')
    for i in range(12):
        A(f'v_mov_b64 {vr(V_ACC+2*i,2)}, 0')
    A(f"""v_mov_b32 v0, v23
v_add_u32 v{V_LANE16}, {L_MA}, v{V_LANE16}
v_add_u32 v{V_T16}, {L_MA}, v{V_T16}
s_waitcnt vmcnt(0)
s_barrier""")
    Lcw = A.newlabel('cb_wait'); Lcs = A.newlabel('cb_spin')
    A(f"""s_cmp_lg_u32 s14, 0
s_cbranch_scc1 {Lcw}
s_mov_b64 s[20:21], exec
s_mov_b64 exec, 1
v_mov_b32 v16, 1
v_mov_b32 v17, 36
global_atomic_add v17, v16, s[12:13]""")
    A.label(Lcs)
    A(f"""global_load_dword v16, v17, s[12:13] sc1
s_waitcnt vmcnt(0)
v_readfirstlane_b32 s18, v16
s_cmp_lt_u32 s18, {0 if DRY else 32}
s_cbranch_scc1 {Lcs}
s_mov_b64 exec, s[20:21]""")
    A.label(Lcw)
    A('s_barrier')
    A(f"""s_mov_b32 s34, 0
s_mov_b32 s35, 8192
s_mov_b32 s36, 0
s_mov_b32 s44, 0x3e02939f
s_mov_b32 s45, 0x3e02939f
s_mov_b32 s48, 0
s_lshl_b32 s50, s15, 19
s_add_u32 s50, s50, {hex(WS_K - L_MA*4)}
s_lshl_b32 s51, s15, 13
s_add_u32 s51, s51, {hex(WS_VT - L_MA*4)}
s_cmp_lt_u32 s14, 2
s_cselect_b32 s49, 13, 18
s_cselect_b32 s50, s50, s51
s_and_b32 s51, s14, 1
s_lshl_b32 s51, s51, 12
s_add_u32 s50, s50, s51
s_mov_b32 s55, 63
s_mov_b32 s46, -1
s_mov_b32 s47, 0""")
    for kap in range(6):
        for eta in range(2):
            A(f'ds_read_b128 {vr([V_STG, V_STG+8, V_KX, V_KX+8, V_KX+16, V_KX+24][kap]+eta*4,4)}, v0 offset:{kap*2048+eta*1024}')
    A('s_waitcnt lgkmcnt(0)')
    if timing:
        A('s_memtime s[60:61]\ns_waitcnt lgkmcnt(0)\ns_mov_b32 s67, s60')
        for i in range(10): A(f's_mov_b32 s{70+i}, 0')
    Lloop = A.newlabel('ch_loop'); Lexit = A.newlabel('ch_exit')
    A.label(Lloop)
    def smf(acc, a, b, isagpr):
        bs = ar(b,8) if isagpr else vr(b,8)
        A(f'v_smfmac_f32_16x16x64_bf16 {vr(acc,4)}, {vr(a,4)}, {bs}, v{V_IDX}')
    def rdA(k0, k1):
        for kap in range(k0, k1):
            A(f'ds_read_b128 {vr(V_MA+kap*4,4)}, v{V_LANE16} offset:{kap*1024}')
    def rdW(which, kap, st):
        for eta in range(2):
            A(f'ds_read_b128 {vr(V_STG+st*8+eta*4,4)}, v0 offset:{which*16384+kap*2048+eta*1024}')
    SET = [V_STG, V_STG+8, V_KX, V_KX+8, V_KX+16, V_KX+24]
    def rdS_l(which, kap, st):
        return [f'ds_read_b128 {vr(SET[st]+eta*4,4)}, v0 offset:{which*16384+kap*2048+eta*1024}' for eta in range(2)]
    def smf_s(acc, a, b, isagpr):
        bs = ar(b,8) if isagpr else vr(b,8)
        return f'v_smfmac_f32_16x16x64_bf16 {vr(acc,4)}, {vr(a,4)}, {bs}, v{V_IDX}'
    def weave(mf, fill):
        fill = list(fill)
        for m in mf:
            A(m)
            if fill: A(fill.pop(0))
        for f in fill: A(f)
    def p1(kap):
        return [smf_s(V_ACC+T*4, V_MA+kap*4, (T*8+kap)*8, True) for T in range(3)] + [smf_s(V_ACC+12, V_MA+kap*4, SET[kap%6], False)]
    VSET = [2,3,4,5,0,1,0,1]
    def p2(kap):
        return [smf_s(V_ACC+16, V_MA+kap*4, 192+kap*8, True), smf_s(V_ACC+20, V_MA+kap*4, SET[VSET[kap]], False)]
    def rdK_l(t, ks):
        dst = V_KX+(t*4+ks)*4
        if ks == 0: return [f'ds_read_b128 {vr(dst,4)}, v{V_KXR} offset:{4096*t}']
        return [f'v_xor_b32 v{dst}, {ks*64}, v{V_KXR}', f'ds_read_b128 {vr(dst,4)}, v{dst} offset:{4096*t}']
    rdA(0, 4)
    A(f"""s_lshl_b32 s39, s34, 16
s_and_b32 s37, s34, 1
s_lshl_b32 s37, s37, 18
s_bfe_u32 s38, s34, 0x10001
s_add_u32 s52, s37, s59
s_lshl_b32 s42, s34, 13
s_lshl_b32 s43, s34, 18
s_add_u32 s41, s34, 1
s_lshl_b32 s41, s41, s49
s_add_u32 s54, s41, s50
s_waitcnt lgkmcnt(3)""")
    weave(p1(0), ['s_nop 0','s_nop 0','s_waitcnt lgkmcnt(2)'])
    Lpb = A.newlabel('ch_pollB'); Lok = A.newlabel('ch_okB'); Lnob = A.newlabel('ch_nob')
    weave(p1(1), rdS_l(0,6,0) + ['s_cmp_eq_u32 s34, 0', f's_cbranch_scc1 {Lnob}'])
    A.label(Lpb)
    A(f"""s_waitcnt vmcnt(0)
v_max3_u32 v{V_ACC+16}, v{V_MBR}, v{V_MBR+1}, v{V_MBR+2}
v_max_u32 v{V_ACC+16}, v{V_ACC+16}, v{V_MBR+3}
v_cmp_eq_u32 vcc, -1, v{V_ACC+16}
{'s_branch' if DRY else 's_cbranch_vccz'} {Lok}""")
    spin(A, Lexit)
    A(f"""buffer_load_dwordx4 {vr(V_MBR,4)}, v{V_T16}, s[4:7], s40 offen sc1
s_branch {Lpb}""")
    A.label(Lok)
    A(f"""ds_write_b128 v{V_T16}, {vr(V_MBR,4)} offset:4096""")
    Lnk2 = A.newlabel('ch_nok2')
    A(f"""s_cmp_lt_u32 s14, 2
s_cbranch_scc1 {Lnk2}""")
    dma_k('s42', V_ACC+16)
    A.label(Lnk2)
    load_v('s43')
    A.label(Lnob)
    A('s_waitcnt lgkmcnt(3)')
    weave(p1(2), rdS_l(0,7,1) + [f'v_mov_b32 v{V_ACC+16}, 0'])
    A("""s_waitcnt lgkmcnt(0)
s_barrier""")
    rdA(4, 8)
    weave(p1(3), rdS_l(1,0,2) + [f'v_lshlrev_b32 v{V_MBR}, 2, v{V_LANE16}', f's_mov_b32 m0, {L_MISC+256}'])
    Lnw = A.newlabel('ch_nowarm')
    A(f"""s_cmp_gt_u32 s55, s34
s_cbranch_scc0 {Lnw}
{'s_nop 0' if NOWARM else f'buffer_load_dword v{V_MBR}, s[4:7], s54 offen lds'}""")
    A.label(Lnw)
    A('s_waitcnt lgkmcnt(2)')
    weave(p1(4), [f'ds_read_b128 {vr(V_MBR,4)}, v{V_PUBK}'] + rdS_l(1,1,3) + ['s_add_u32 s58, s39, s57'])
    weave(p1(5), rdS_l(1,2,4) + ['s_sub_u32 s58, s58, 0x10000', 's_cmp_eq_u32 s34, 0'])
    Lnp = A.newlabel('ch_nopub')
    A(f"""s_waitcnt lgkmcnt(4)
s_cbranch_scc1 {Lnp}
buffer_store_dwordx4 {vr(V_MBR,4)}, v{V_LANE16}, s[4:7], s58 offen""")
    A.label(Lnp)
    weave(p1(6), rdS_l(1,3,5))
    weave(p1(7), rdS_l(1,4,0) + [f'v_mov_b64 {vr(V_MBR,2)}, 0', f'v_mov_b64 {vr(V_MBR+2,2)}, 0'])
    stamp(A, 0, timing)
    A('s_waitcnt lgkmcnt(6)')
    weave(p2(0), rdS_l(1,5,1))
    for T in range(4):
        a = V_ACC+T*4
        A(f'v_add_f32 v{a}, v{a}, v{a+1}\nv_add_f32 v{a+2}, v{a+2}, v{a+3}')
    A(f"""v_cvt_pk_bf16_f32 v{V_ACC+0}, v{V_ACC+0}, v{V_ACC+4}
v_cvt_pk_bf16_f32 v{V_ACC+1}, v{V_ACC+8}, v{V_ACC+12}
v_cvt_pk_bf16_f32 v{V_ACC+2}, v{V_ACC+2}, v{V_ACC+6}
v_cvt_pk_bf16_f32 v{V_ACC+3}, v{V_ACC+10}, v{V_ACC+14}
ds_write_b64 v{V_QKW}, {vr(V_ACC+0,2)}
ds_write_b64 v{V_QKW}, {vr(V_ACC+2,2)} offset:{QS}
s_waitcnt lgkmcnt(6)""")
    weave(p2(1), [])
    A(f"""s_waitcnt vmcnt(2) lgkmcnt(0)
s_barrier""")
    stamp(A, 1, timing)
    S = V_MA
    def rdQK_l(ks, b):
        return [f'ds_read_b128 {vr(b,4)}, v{V_QKR} offset:{ks*64}', f'ds_read_b128 {vr(b+4,4)}, v{V_QKR} offset:{8*QS+ks*64}']
    def smm_l(ks, b):
        r = []
        for t in range(3):
            a = vr(b+4,4) if t == 0 else vr(V_KX+((t-1)*4+ks)*4,4)
            c = '0' if ks == 0 else vr(S+t*4,4)
            r.append(f'v_mfma_f32_16x16x32_bf16 {vr(S+t*4,4)}, {a}, {vr(b,4)}, {c}')
        return r
    B0 = V_ACC+8; B1 = V_ACC+0
    for x in rdQK_l(0, B0) + rdK_l(0,0) + rdK_l(0,1) + rdQK_l(1, B1): A(x)
    weave(p2(2) + p2(3), rdK_l(0,2) + ['s_nop 0'] + rdK_l(1,0))
    weave(p2(4) + p2(5), rdK_l(1,1) + rdK_l(0,3))
    for x in rdK_l(1,2) + rdK_l(1,3) + rdS_l(1,6,0) + rdS_l(1,7,1): A(x)
    A('s_waitcnt lgkmcnt(7)')
    weave(smm_l(0, B0), [])
    for x in rdQK_l(2, B0): A(x)
    weave(smm_l(1, B1), [])
    for x in rdQK_l(3, B1): A(x)
    A('s_waitcnt lgkmcnt(4)')
    weave(p2(6) + p2(7), [])
    A('s_waitcnt lgkmcnt(2)')
    weave(smm_l(2, B0), [])
    A('s_waitcnt lgkmcnt(0)')
    weave(smm_l(3, B1), [])
    VM = V_ACC+8; PX = V_ACC; PM = V_ACC+4
    for T in range(2):
        a = V_ACC+16+T*4
        A(f"""v_cvt_pk_bf16_f32 v{VM+2*T}, v{a}, v{a+1}
v_cvt_pk_bf16_f32 v{VM+2*T+1}, v{a+2}, v{a+3}""")
    def vpub():
        for T in range(2):
            a = V_ACC+16+T*4
            A(f"""v_add_f32 v{a}, v{a}, v{a+1}
v_add_f32 v{a+2}, v{a+2}, v{a+3}
v_cvt_pk_bf16_f32 v{a}, v{a}, v{a+2}
ds_write_b32 v{V_PUBV}, v{a} offset:{16*T}""")
    D = V_KX
    zi = [0]
    def z(n=1):
        for _ in range(n):
            if zi[0] < 16:
                A(f'v_mov_b64 {vr(D+2*zi[0],2)}, 0'); zi[0] += 1
    M = S+12; T1 = S+13; L = S+14; T2 = S+15
    Lfin = A.newlabel('ch_fin')
    A(f"""s_cmp_eq_u32 s34, 63
s_cbranch_scc1 {Lfin}""")
    z(2)
    A(f"""v_max3_f32 v{M}, v{S}, v{S+1}, v{S+2}
v_max3_f32 v{T1}, v{S+3}, v{S+4}, v{S+5}
v_max3_f32 v{M}, v{M}, v{S+6}, v{S+7}
v_max3_f32 v{T1}, v{T1}, v{S+8}, v{S+9}
v_max3_f32 v{M}, v{M}, v{S+10}, v{S+11}
v_max_f32 v{M}, v{M}, v{T1}
v_mov_b32 v{T1}, v{M}""")
    z(2)
    A(f"""v_permlane32_swap_b32 v{T1}, v{M}
v_max_f32 v{M}, v{M}, v{T1}
v_mov_b32 v{T1}, v{M}""")
    z(2)
    A(f"""v_permlane16_swap_b32 v{T1}, v{M}
v_max_f32 v{M}, v{M}, v{T1}
v_mul_f32 v{M}, s44, v{M}""")
    for i in [2,3,4,5,0,1]:
        A(f'v_pk_fma_f32 {vr(S+2*i,2)}, {vr(S+2*i,2)}, s[44:45], {vr(M,2)} op_sel_hi:[1,1,0] neg_lo:[0,0,1] neg_hi:[0,0,1]')
    for i in [4,5,6,7,8,9,10,11,0,2]:
        A(f'v_exp_f32 v{S+i}, v{S+i}')
    A(f"""v_cvt_pk_bf16_f32 v{PX}, v{S+4}, v{S+5}
v_cvt_pk_bf16_f32 v{PX+1}, v{S+6}, v{S+7}
v_cvt_pk_bf16_f32 v{PX+2}, v{S+8}, v{S+9}
v_cvt_pk_bf16_f32 v{PX+3}, v{S+10}, v{S+11}
v_cvt_pk_bf16_f32 v{PM}, v{S}, v{S}
v_cvt_pk_bf16_f32 v{PM+1}, v{S+2}, v{S+2}""")
    O = V_STG+8
    pv = [f'v_mfma_f32_16x16x32_bf16 {vr(O+T*4,4)}, {vr(V_VX+T*4,4)}, {vr(PX,4)}, 0' for T in range(2)] + \
         [f'v_mfma_f32_16x16x16_bf16 {vr(O+T*4,4)}, {vr(VM+T*2,2)}, {vr(PM,2)}, {vr(O+T*4,4)}' for T in range(2)]
    weave(pv, [f'v_add_f32 v{L}, v{S}, v{S+2}', f'v_add_f32 v{T1}, v{S+4}, v{S+5}', f'v_add_f32 v{T2}, v{S+6}, v{S+7}', f'v_add_f32 v{M}, v{S+8}, v{S+9}'])
    A(f"""v_add_f32 v{L}, v{L}, v{T1}
v_add_f32 v{T1}, v{S+10}, v{S+11}
v_add_f32 v{T2}, v{T2}, v{M}
v_add_f32 v{L}, v{L}, v{T1}
v_add_f32 v{L}, v{L}, v{T2}
v_mov_b32 v{T1}, v{L}""")
    z(2)
    A(f"""v_permlane32_swap_b32 v{T1}, v{L}
v_add_f32 v{L}, v{L}, v{T1}
v_mov_b32 v{T1}, v{L}""")
    z(2)
    A(f"""v_permlane16_swap_b32 v{T1}, v{L}
v_add_f32 v{L}, v{L}, v{T1}
v_rcp_f32 v{L}, v{L}""")
    z(1)
    for i in range(4):
        A(f'v_pk_mul_f32 {vr(O+2*i,2)}, {vr(O+2*i,2)}, {vr(L,2)} op_sel_hi:[1,0]')
    for r in range(4):
        A(f'v_cvt_pk_bf16_f32 v{S+r}, v{O+r}, v{O+4+r}')
    A(f'ds_write_b128 v{V_OW}, {vr(S,4)}')
    stamp(A, 2, timing)
    vpub()
    z(5)
    A("""s_waitcnt lgkmcnt(0)
s_barrier""")
    stamp(A, 3, timing)
    OA = V_STG
    A(f"""ds_read_b128 {vr(OA,4)}, v{V_OR}
ds_read_b128 {vr(OA+4,4)}, v{V_OR} offset:128
s_mov_b32 s41, s37""")
    A('s_waitcnt lgkmcnt(0)')
    def dpost_l(tq):
        a = D+tq*16
        r = []
        for t in range(4):
            r += [f'v_add_f32 v{a+4*t}, v{a+4*t}, v{a+4*t+1}', f'v_add_f32 v{a+4*t+2}, v{a+4*t+2}, v{a+4*t+3}']
        r += [f'v_cvt_pk_bf16_f32 v{a}, v{a}, v{a+4}', f'v_cvt_pk_bf16_f32 v{a+1}, v{a+8}, v{a+12}',
              f'v_cvt_pk_bf16_f32 v{a+2}, v{a+2}, v{a+6}', f'v_cvt_pk_bf16_f32 v{a+3}, v{a+10}, v{a+14}',
              f'v_and_or_b32 v{a}, v{a}, -2, s38',
              ('s_nop 0' if NOPST else f'buffer_store_dwordx4 {vr(a,4)}, v{V_PST}, s[4:7], s41 offen')]
        return r
    def pd(t):
        return [smf_s(D+t*4, OA, V_WO+(t*2+0)*8, False), smf_s(D+t*4, OA+4, V_WO+(t*2+1)*8, False)]
    weave(pd(0)+pd(1)+pd(2)+pd(3)+pd(4), [])
    weave(pd(5)+pd(6)+pd(7), dpost_l(0) + ['s_add_u32 s41, s41, 32768'])
    for x in dpost_l(1): A(x)
    stamp(A, 4, timing)
    PP = V_MA
    X = V_ACC
    Lw0 = A.newlabel('ch_w0'); Ljoin = A.newlabel('ch_join'); Lnk2 = A.newlabel('ch_nok2')
    def preload():
        for kap in range(6):
            for x in rdS_l(0, kap, kap): A(x)
    A(f"""s_add_u32 s40, s35, {hex(WS_M - L_MA)}
s_add_u32 s51, s52, 4096""")
    preload()
    A(f"""s_cmp_eq_u32 s14, 0
s_cbranch_scc0 {Ljoin}""")
    LpP = A.newlabel('ch_pollP'); LokP = A.newlabel('ch_okP')
    def ldP():
        for i in range(4):
            A(f'buffer_load_dwordx4 {vr(PP+i*4,4)}, v{V_LANE16}, s[4:7], s52 offen offset:{i*1024} sc1')
        for i in range(4):
            A(f'buffer_load_dwordx4 {vr(PP+16+i*4,4)}, v{V_LANE16}, s[4:7], s51 offen offset:{i*1024} sc1')
    A(f"""v_bfe_u32 v{X+8}, v{V_LANE16}, 5, 3
v_mov_b32 v{X+10}, -1
v_mov_b32 v{X+11}, -1""")
    for p in range(4):
        A(f"""v_cmp_eq_u32 vcc, {p}, v{X+8}
s_nop 1
v_cndmask_b32 v{X+p}, 0, v{V_PLD}, vcc""")
    if PDELAY: A(f's_sleep {PDELAY}')
    ldP()
    A.label(LpP)
    A(f"""s_waitcnt vmcnt(0)
v_xor_b32 v{X+8}, v{PP}, v{PP+4}
v_xor_b32 v{X+9}, v{PP+8}, v{PP+12}
v_xor_b32 v{X+12}, v{PP+16}, v{PP+20}
v_xor_b32 v{X+13}, v{PP+24}, v{PP+28}
v_xor_b32 v{X+14}, v{PP}, v{PP+8}
v_xor_b32 v{X+15}, v{PP+16}, v{PP+24}
v_or3_b32 v{X+8}, v{X+8}, v{X+9}, v{X+12}
v_or3_b32 v{X+13}, v{X+13}, v{X+14}, v{X+15}
v_xor_b32 v{X+9}, v{PP}, v{PP+16}
v_xor_b32 v{X+12}, s38, v{PP}
v_or3_b32 v{X+8}, v{X+8}, v{X+9}, v{X+12}
v_or_b32 v{X+8}, v{X+8}, v{X+13}
v_and_b32 v{X+8}, 1, v{X+8}
v_cmp_ne_u32 vcc, 0, v{X+8}
{'s_branch' if DRY else 's_cbranch_vccz'} {LokP}""")
    spin(A, Lexit)
    ldP()
    A(f's_branch {LpP}')
    A.label(LokP)
    stamp(A, 5, timing)
    for i in range(8):
        A(f'v_mfma_f32_16x16x32_bf16 {vr(X+4,4)}, {vr(X,4)}, {vr(PP+4*i,4)}, {"0" if i==0 else vr(X+4,4)}')
    A(f"""s_mov_b64 exec, s[46:47]
s_nop 6
v_cvt_pk_bf16_f32 v{X+8}, v{X+4}, v{X+5}
v_cvt_pk_bf16_f32 v{X+9}, v{X+6}, v{X+7}
v_min_u32 v{X+8}, -2, v{X+8}
v_min_u32 v{X+9}, -2, v{X+9}
buffer_store_dwordx2 {vr(X+8,2)}, v{V_MST}, s[4:7], s35 offen
buffer_store_dwordx2 {vr(X+10,2)}, v{V_MST}, s[4:7], s36 offen
s_mov_b64 exec, -1""")
    stamp(A, 6, timing)
    A.label(Ljoin)
    A('s_barrier')
    LpM = A.newlabel('ch_pollM'); LokM = A.newlabel('ch_okM')
    MAp = V_MA+4
    A(f"""buffer_load_dwordx4 {vr(MAp,4)}, v{V_T16}, s[4:7], s40 offen sc1
s_mov_b32 s36, s35
s_add_u32 s35, s35, 8192
s_cmp_eq_u32 s35, 24576
s_cselect_b32 s35, 0, s35
s_add_u32 s34, s34, 1
s_add_u32 s56, s40, 4096""")
    for i in range(12):
        A(f'v_mov_b64 {vr(V_ACC+2*i,2)}, 0')
    A.label(LpM)
    A(f"""s_waitcnt vmcnt(0)
v_max3_u32 v{V_MA}, v{MAp}, v{MAp+1}, v{MAp+2}
v_max_u32 v{V_MA}, v{V_MA}, v{MAp+3}
v_cmp_eq_u32 vcc, -1, v{V_MA}
{'s_branch' if DRY else 's_cbranch_vccz'} {LokM}""")
    spin(A, Lexit)
    A(f"""buffer_load_dwordx4 {vr(MAp,4)}, v{V_T16}, s[4:7], s40 offen sc1
s_branch {LpM}""")
    A.label(LokM)
    stamp(A, 7, timing)
    A(f"""ds_write_b128 v{V_T16}, {vr(MAp,4)}
buffer_load_dwordx4 {vr(V_MBR,4)}, v{V_T16}, s[4:7], s56 offen sc1
s_mov_b32 s40, s56
s_waitcnt lgkmcnt(0)
s_barrier""")
    stamp(A, 8, timing)
    A(f's_branch {Lloop}')
    A.label(Lfin)
    A('s_nop 4')
    vpub()
    A(f"""s_waitcnt lgkmcnt(0)
s_barrier
ds_read_b128 {vr(V_MA,4)}, v{V_PUBK}
s_add_u32 s58, s39, s57
s_waitcnt lgkmcnt(0)
buffer_store_dwordx4 {vr(V_MA,4)}, v{V_LANE16}, s[4:7], s58 offen""")
    A.label(Lexit)
    if timing:
        A(f"""s_memtime s[62:63]
s_waitcnt lgkmcnt(0)
s_sub_u32 s62, s62, s60
v_mov_b32 v16, s62
s_lshl_b32 s18, s15, 2
s_add_u32 s18, s18, 64
v_mov_b32 v17, s18
s_mov_b64 exec, 1
global_store_dword v17, v16, s[12:13]""")
        A(f"""s_lshl_b32 s18, s15, 2
s_add_u32 s18, s18, s14
s_lshl_b32 s18, s18, 6
s_add_u32 s18, s18, {hex(WS_KD)}
v_mov_b32 v17, 0""")
        for i in range(10):
            A(f"""v_mov_b32 v16, s{70+i}
buffer_store_dword v16, v17, s[4:7], s18 offen offset:{4*i}""")
    A('s_waitcnt vmcnt(0)')
```

```python
from asmlib import *

def emit_qkv(A, name='qkv_kernel', nwg=192):
    kernel_header(A, name)
    Lend = A.newlabel('qkv_end')
    A(f'''s_cmp_ge_u32 s2, {nwg}
s_cbranch_scc1 {Lend}
s_lshr_b32 s3, s2, 1          ; ct
s_and_b32 s4, s2, 1           ; par
s_lshr_b32 s5, s3, 5          ; mat
s_and_b32 s6, s3, 31          ; h
s_lshl_b32 s7, s5, 3
s_add_u32 s7, s7, {KA_WQ}
s_load_dwordx2 s[8:9], s[0:1], {KA_X}
s_load_dwordx2 s[10:11], s[0:1], s7
s_load_dwordx2 s[12:13], s[0:1], {KA_WS}
v_and_b32 v1, 63, v0          ; lane
v_lshrrev_b32 v2, 6, v0
v_and_b32 v3, 15, v1          ; c
v_lshrrev_b32 v4, 4, v1       ; g
v_readfirstlane_b32 s14, v2   ; w
s_waitcnt lgkmcnt(0)''')
    srd(A, 16, 8, 2048*1024)
    srd(A, 20, 10, 4*1024*1024)
    srd(A, 24, 12, WS_SIZE)
    emit_qkv_body(A)
    A.label(Lend)
    A('s_endpgm')

VW = 128
VACC = 64
VX = 80
VT = 96
VDMA = 8
VRD = 16
VST = 20
VPK = 24

def emit_qkv_body(A, seg_start='s4', seg_step=2, nseg=32, done_hook=None):
    A(f'''v_lshlrev_b32 v5, 16, v4          ; 8g*8192 = g<<16
s_lshl_b32 s28, s6, 8             ; h*256
s_lshl_b32 s29, s14, 6            ; w*64 bytes
s_add_u32 s28, s28, s29
v_lshl_add_u32 v5, v3, 2, v5      ; + c*4
v_add_u32 v5, s28, v5
s_mov_b32 s30, 0x05040100
s_mov_b32 s31, 0x07060302''')
    A(f's_lshl_b32 s32, s14, 3            ; 8w')
    for rr in range(8):
        A(f'''s_add_u32 s33, s32, {rr}
s_and_b32 s33, s33, 15
v_xor_b32 v{VDMA+rr}, s33, v1
v_lshlrev_b32 v{VDMA+rr}, 4, v{VDMA+rr}''')
    for q in range(4):
        A(f'''v_add_u32 v6, {4*q}, v4
v_xor_b32 v6, v6, v3
v_lshlrev_b32 v6, 4, v6
v_lshl_add_u32 v{VRD+q}, v3, 10, v6''')
    A(f'''s_mov_b32 s34, {seg_start}
s_lshl_b32 s36, s32, 10''')
    def dma(buf, segreg):
        A(f'''s_lshl_b32 s35, {segreg}, 15
s_add_u32 s35, s35, s36''')
        for rr in range(8):
            A(f'''s_add_u32 m0, s36, {buf*32768 + rr*1024}
s_add_u32 s37, s35, {rr*1024}
buffer_load_dwordx4 v{VDMA+rr}, s[16:19], s37 offen lds''')
    dma(0, 's34')
    A('s_mov_b32 s38, 0')
    for b in range(4):
        for ii in range(4):
            for j in range(8):
                A(f'''buffer_load_dword v{VT+ii*8+j}, v5, s[20:23], s38 offen
s_add_u32 s38, s38, {8192 if j<7 else 8192*25}''')
        A('s_waitcnt vmcnt(0)')
        for ii in range(4):
            i = b*4+ii
            for p in range(4):
                A(f'''v_perm_b32 v{VW+(i*2+0)*4+p}, v{VT+ii*8+2*p+1}, v{VT+ii*8+2*p}, s30
v_perm_b32 v{VW+(i*2+1)*4+p}, v{VT+ii*8+2*p+1}, v{VT+ii*8+2*p}, s31''')
    Lv = A.newlabel('qkv_v'); Ldone = A.newlabel('qkv_done')
    A(f'''s_cmp_eq_u32 s5, 2
s_cbranch_scc1 {Lv}''')
    for isv in (0, 1):
        if isv == 0:
            A(f'''s_lshl_b32 s39, s5, 24
s_lshl_b32 s40, s6, 19
s_add_u32 s39, s39, s40
s_add_u32 s39, s39, s29
v_lshlrev_b32 v{VST}, 8, v3
v_lshl_add_u32 v{VST}, v4, 4, v{VST}
v_add_u32 v{VST}, s39, v{VST}''')
        else:
            A.label(Lv)
            A(f'''s_lshl_b32 s39, s6, 13
s_lshl_b32 s40, s14, 11
s_add_u32 s39, s39, s40
s_add_u32 s39, s39, {hex(WS_VT)}
v_lshlrev_b32 v{VST}, 7, v3
v_lshl_add_u32 v{VST}, v4, 4, v{VST}
v_add_u32 v{VST}, s39, v{VST}''')
        Lloop = A.newlabel('qkv_loop')
        A('s_mov_b32 s41, 0')
        A.label(Lloop)
        for buf in (0, 1):
            A('''s_waitcnt vmcnt(2)
s_barrier''')
            A(f's_add_u32 s42, s34, {seg_step}')
            Lskip = A.newlabel('qkv_skipdma')
            if buf == 1:
                A(f'''s_cmp_eq_u32 s41, {nseg//2-1}
s_cbranch_scc1 {Lskip}''')
            dma(1-buf, 's42')
            if buf == 1:
                A.label(Lskip)
            def rd(i, st):
                for mt in range(2):
                    A(f'ds_read_b128 {vr(VX+st*8+mt*4,4)}, v{VRD+i%4} offset:{(i//4)*256+mt*16384+buf*32768}')
            rd(0, 0)
            for i in range(16):
                st = i % 2
                if i < 15:
                    rd(i+1, 1-st)
                    A('s_waitcnt lgkmcnt(2)')
                else:
                    A('s_waitcnt lgkmcnt(0)')
                for mt in range(2):
                    for T in range(2):
                        acc = vr(VACC+(mt*2+T)*4, 4)
                        c = '0' if i == 0 else acc
                        wf = vr(VW+(i*2+T)*4, 4); xf = vr(VX+st*8+mt*4, 4)
                        if isv: A(f'v_mfma_f32_16x16x32_bf16 {acc}, {xf}, {wf}, {c}')
                        else:   A(f'v_mfma_f32_16x16x32_bf16 {acc}, {wf}, {xf}, {c}')
            A('s_nop 7')
            if isv == 0:
                A('s_lshl_b32 s43, s34, 13')
                for mt in range(2):
                    for r in range(4):
                        A(f'v_cvt_pk_bf16_f32 v{VPK+mt*4+r}, v{VACC+(mt*2+0)*4+r}, v{VACC+(mt*2+1)*4+r}')
                    A(f'buffer_store_dwordx4 {vr(VPK+mt*4,4)}, v{VST}, s[24:27], s43 offen offset:{mt*4096 if mt==0 else 0}' if mt == 0 else
                      f's_add_u32 s43, s43, 4096\nbuffer_store_dwordx4 {vr(VPK+mt*4,4)}, v{VST}, s[24:27], s43 offen')
            else:
                A('s_lshl_b32 s43, s34, 18')
                for T in range(2):
                    for mt in range(2):
                        for rp in range(2):
                            A(f'v_cvt_pk_bf16_f32 v{VPK+T*4+mt*2+rp}, v{VACC+(mt*2+T)*4+2*rp}, v{VACC+(mt*2+T)*4+2*rp+1}')
                    A(f'buffer_store_dwordx4 {vr(VPK+T*4,4)}, v{VST}, s[24:27], s43 offen offset:{T*64}')
            if done_hook: done_hook(A)
            A('s_mov_b32 s34, s42')
        A(f'''s_add_u32 s41, s41, 1
s_cmp_lt_u32 s41, {nseg//2}
s_cbranch_scc1 {Lloop}''')
        if isv == 0:
            A(f's_branch {Ldone}')
    A.label(Ldone)
    A('s_waitcnt vmcnt(0)')
```

```python
from asmlib import *
UB = 80
S_U = 0
S_T = 7680
S_R = 7680+8448
RQ = 1040
WR = S_R + 4*RQ*4
S_Y = 4*WR
assert WR == 32768

def emit_ssm_kernel(A, name='ssm_kernel'):
    kernel_header(A, name)
    Lend = A.newlabel('ss_end')
    A(f'''s_cmp_ge_u32 s2, 128
s_cbranch_scc1 {Lend}
s_load_dwordx2 s[22:23], s[0:1], {KA_WS}
v_lshrrev_b32 v16, 6, v0
s_nop 0
v_readfirstlane_b32 s14, v16
s_mov_b32 s15, s2
s_waitcnt lgkmcnt(0)''')
    srd(A, 4, 22, WS_SIZE)
    emit_ssm_body(A)
    A.label(Lend)
    A('s_endpgm')

def emit_ssm_body(A, st=''):
    A(f'''s_load_dwordx2 s[24:25], s[0:1], {KA_X}
s_load_dwordx4 s[28:31], s[0:1], {KA_ARE}
s_load_dwordx4 s[32:35], s[0:1], {KA_BRE}
s_load_dwordx4 s[36:39], s[0:1], {KA_CRE}
s_load_dwordx2 s[40:41], s[0:1], {KA_LOGDT}
v_and_b32 v1, 63, v0
v_and_b32 v2, 15, v1          ; c
v_lshrrev_b32 v3, 4, v1       ; g
s_lshl_b32 s16, s14, 15
s_lshl_b32 s17, s15, 2
s_add_u32 s17, s17, s14       ; channel d
s_waitcnt lgkmcnt(0)''')
    srd(A, 8, 24, 2048*1024)
    A(f'''v_lshlrev_b32 v4, 10, v0
s_lshl_b32 s18, s15, 3''')
    for i in range(8):
        A(f'''s_add_u32 s19, s18, {i*256*1024}
buffer_load_dwordx2 {vr(16+2*i,2)}, v4, s[8:11], s19 offen''')
    A(f'''s_lshl_b32 s19, s17, 8
v_lshlrev_b32 v5, 2, v1
v_add_u32 v5, s19, v5
global_load_dword v32, v5, s[28:29]
global_load_dword v33, v5, s[30:31]
global_load_dword v34, v5, s[32:33]
global_load_dword v35, v5, s[34:35]
global_load_dword v36, v5, s[36:37]
global_load_dword v37, v5, s[38:39]
s_lshl_b32 s19, s17, 1
v_mov_b32 v6, s19
global_load_ushort v38, v6, s[40:41]''')
    A(f'''v_mov_b32 v7, 0
v_lshlrev_b32 v8, 2, v1
v_add_u32 v8, s16, v8''')
    for i in range(10):
        A(f'ds_write_b32 v8, v7 offset:{i*256}')
    A(f'''v_lshrrev_b32 v8, 5, v0
v_mul_u32_u24 v8, {UB}, v8
v_and_b32 v9, 31, v0
v_lshl_add_u32 v8, v9, 1, v8
v_add_u32 v8, {32*UB}, v8
v_add_u32 v9, {2*WR}, v8
s_waitcnt vmcnt(7)''')
    for i in range(8):
        o = i*8*UB
        A(f'''ds_write_b16 v8, v{16+2*i} offset:{o}
ds_write_b16_d16_hi v8, v{16+2*i} offset:{o+WR}
ds_write_b16 v9, v{17+2*i} offset:{o}
ds_write_b16_d16_hi v9, v{17+2*i} offset:{o+WR}''')
    A(f'''s_waitcnt vmcnt(0)
v_lshlrev_b32 v38, 16, v38
v_mul_f32 v38, 0x3fb8aa3b, v38
v_exp_f32 v38, v38
s_nop 0
v_cvt_pk_bf16_f32 v38, v38, v38
v_lshlrev_b32 v38, 16, v38        ; dt
v_lshlrev_b32 v8, 6, v1           ; lane*64 (2 n x 32B)
v_add_u32 v8, s16, v8''')
    for hh in range(2):
        ex = (lambda r: f'v_lshlrev_b32 v{40+r-32}, 16, v{r}') if hh == 0 else (lambda r: f'v_and_b32 v{40+r-32}, 0xffff0000, v{r}')
        for r in range(32, 38): A(ex(r))
        A(f'''v_mul_f32 v40, v38, v40
v_mul_f32 v41, v38, v41
v_mul_f32 v42, v38, v42
v_mul_f32 v43, v38, v43
v_mul_f32 v48, 0x3fb8aa3b, v40        ; a'
v_mul_f32 v49, 0.15915494, v41        ; b'
v_mul_f32 v46, v44, v42
v_fma_f32 v46, -v45, v43, v46         ; Wr
v_mul_f32 v47, v44, v43
v_fma_f32 v47, v45, v42, v47          ; Wi
v_mov_b32 v50, v46
v_sub_f32 v51, 0, v47
v_mov_b32 v52, v48
v_mov_b32 v53, v49
v_sub_f32 v54, 0, v47
v_sub_f32 v55, 0, v46
ds_write_b128 v8, v[48:51] offset:{S_T+hh*32}
ds_write_b128 v8, v[52:55] offset:{S_T+hh*32+16}
s_waitcnt lgkmcnt(0)''')
    A(f'''v_lshlrev_b32 v10, 3, v2
v_cvt_f32_u32 v10, v10                ; lo
v_and_b32 v11, 1, v3
v_cvt_f32_u32 v11, v11
v_mul_f32 v11, -0.25, v11             ; hmm literal''' .replace('v_mul_f32 v11, -0.25, v11             ; hmm literal','v_mul_f32 v11, 0xbe800000, v11'))
    A(f'''v_lshrrev_b32 v12, 3, v2
v_lshlrev_b32 v12, 7, v12
v_and_b32 v13, 7, v2
v_add_u32 v12, v12, v13               ; H0 int
v_bfe_u32 v13, v2, 2, 1
v_lshlrev_b32 v13, 7, v13
v_and_b32 v14, 3, v2
v_lshl_add_u32 v13, v14, 1, v13
v_add_u32 v13, 256, v13               ; c<8 variant
v_bfe_u32 v14, v2, 1, 2
v_lshlrev_b32 v14, 7, v14
v_and_b32 v15, 1, v2
v_lshl_add_u32 v14, v15, 2, v14
v_add_u32 v14, 0x200, v14             ; c>=8 variant
v_cmp_gt_u32 vcc, 8, v2
s_nop 1
v_cndmask_b32 v13, v14, v13, vcc      ; H1 int
v_lshlrev_b32 v14, 7, v2
v_add_u32 v14, 0x400, v14
v_cmp_gt_u32 vcc, 9, v2
s_nop 1
v_cndmask_b32 v14, 0, v14, vcc        ; H2 int
v_cvt_f32_u32 v16, v12
v_cvt_f32_u32 v17, v13
v_cvt_f32_u32 v18, v14
v_lshlrev_b32 v8, 4, v3               ; g*16 : entry (n=2i+g/2, part=g%2) -> (2i)*32 + g*16
v_add_u32 v8, s16, v8
s_mov_b32 s20, 0''')
    for i in range(12): A(f'v_mov_b32 v{64+i}, 0')
    Lk = A.newlabel('ss_kgen')
    A.label(Lk)
    A(f'''ds_read_b128 v[20:23], v8 offset:{S_T}
v_add_u32 v8, 64, v8
s_waitcnt lgkmcnt(0)
v_mul_f32 v24, v20, v10
v_fma_f32 v25, v21, v10, v11
v_exp_f32 v24, v24
v_fract_f32 v25, v25
v_cos_f32 v25, v25''')
    for t in range(3):
        A(f'''v_mul_f32 v{26+4*t}, v20, v{16+t}
v_mul_f32 v{27+4*t}, v21, v{16+t}
v_exp_f32 v{26+4*t}, v{26+4*t}
v_fract_f32 v{27+4*t}, v{27+4*t}
v_cos_f32 v{28+4*t}, v{27+4*t}
v_sin_f32 v{27+4*t}, v{27+4*t}''')
    A('v_mul_f32 v24, v24, v25')
    for t in range(3):
        A(f'''v_mul_f32 v{28+4*t}, v22, v{28+4*t}
v_fma_f32 v{28+4*t}, v23, v{27+4*t}, v{28+4*t}
v_mul_f32 v{28+4*t}, v{26+4*t}, v{28+4*t}''')
    A('s_add_u32 s20, s20, 1\ns_cmp_lt_u32 s20, 64')
    for t in range(3):
        A(f'v_mfma_f32_16x16x4_f32 {vr(64+4*t,4)}, v{28+4*t}, v24, {vr(64+4*t,4)}')
    A(f's_cbranch_scc1 {Lk}')
    A(f'''s_nop 7
s_nop 7
v_lshlrev_b32 v20, 4, v3
v_lshlrev_b32 v21, 5, v2              ; 8c*4
v_add_u32 v21, s16, v21''')
    for t in range(3):
        for r in range(4):
            A(f'''v_add_u32 v22, {4*r}, v20
ds_bpermute_b32 v23, v22, v{12+t}
s_waitcnt lgkmcnt(0)
v_lshl_add_u32 v23, v23, 2, v21''')
            if t == 2:
                A(f'''v_lshlrev_b32 v24, 2, v3
v_add_u32 v24, {r}, v24               ; m
v_lshl_add_u32 v25, v24, 4, v2        ; m*16 + c
v_cmp_gt_u32 vcc, 129, v25
s_and_saveexec_b64 s[44:45], vcc
ds_write_b32 v23, v{64+4*t+r} offset:{S_T}
s_mov_b64 exec, s[44:45]''')
            else:
                A(f'ds_write_b32 v23, v{64+4*t+r} offset:{S_T}')
    A('s_waitcnt lgkmcnt(0)')
    Le = A.newlabel('ss_exp')
    A(f'''v_mov_b32 v20, v1               ; q
s_mov_b32 s20, 0''')
    A.label(Le)
    A(f'''v_lshlrev_b32 v21, 1, v20
v_sub_u32 v21, 0x7ff, v21             ; k0 = 2047-2q''')
    for j in range(3):
        A(f'''v_subrev_u32 v22, {j}, v21
v_max_i32 v23, 0, v22
v_cvt_f32_u32 v23, v23
v_cvt_pk_bf16_f32 v23, v23, v23
v_lshlrev_b32 v23, 16, v23
v_cvt_u32_f32 v23, v23
v_lshlrev_b32 v23, 2, v23
v_add_u32 v23, s16, v23
ds_read_b32 v{24+j}, v23 offset:{S_T}
v_cmp_le_i32 s[{46+2*j}:{47+2*j}], 0, v22''')
    A('s_waitcnt lgkmcnt(0)')
    for j in range(3):
        A(f'v_cndmask_b32 v{24+j}, 0, v{24+j}, s[{46+2*j}:{47+2*j}]')
    A(f'''v_cvt_pk_bf16_f32 v28, v24, v25       ; hi c0
v_cvt_pk_bf16_f32 v29, v25, v26       ; hi c1
v_lshlrev_b32 v30, 16, v28
v_and_b32 v31, 0xffff0000, v28
v_and_b32 v32, 0xffff0000, v29
v_sub_f32 v24, v24, v30
v_sub_f32 v25, v25, v31
v_sub_f32 v26, v26, v32
v_cvt_pk_bf16_f32 v30, v24, v25       ; lo c0
v_cvt_pk_bf16_f32 v31, v25, v26       ; lo c1
v_lshlrev_b32 v23, 2, v20
v_add_u32 v23, s16, v23
v_cmp_gt_u32 vcc, {RQ}, v20
s_and_saveexec_b64 s[44:45], vcc
ds_write_b32 v23, v28 offset:{S_R}
ds_write_b32 v23, v29 offset:{S_R+RQ*4}
ds_write_b32 v23, v30 offset:{S_R+2*RQ*4}
ds_write_b32 v23, v31 offset:{S_R+3*RQ*4}
s_mov_b64 exec, s[44:45]
v_add_u32 v20, 64, v20
s_add_u32 s20, s20, 1
s_cmp_lt_u32 s20, 17
s_cbranch_scc1 {Le}
s_waitcnt lgkmcnt(0)
s_barrier''')
    A(f'''v_and_b32 v20, 31, v1
v_lshrrev_b32 v21, 5, v1
v_lshlrev_b32 v22, 3, v21
v_sub_u32 v22, v22, v20
v_add_u32 v22, 0x7ff, v22             ; i0(c=0,ks=0)
v_and_b32 v23, 1, v22
v_mul_u32_u24 v23, {RQ*4}, v23
v_lshrrev_b32 v22, 1, v22
v_lshl_add_u32 v22, v22, 2, v23
v_add_u32 v22, s16, v22
v_add_u32 v22, {S_R}, v22
v_add_u32 v23, {2*RQ*4}, v22
v_mul_u32_u24 v24, {UB}, v20
v_lshl_add_u32 v24, v21, 4, v24
v_add_u32 v24, s16, v24
v_add_u32 v24, {32*UB}, v24
v_add_u32 v25, {32*UB}, v24           ; nu=1
s_mov_b32 s20, 0''')
    for i in range(32): A(f'v_mov_b32 v{64+i}, 0')
    def conv_iter(both):
        for ks in range(2):
            A(f'''ds_read2_b32 {vr(28+ks*8,2)}, v22 offset0:{8*ks} offset1:{8*ks+1}
ds_read2_b32 {vr(30+ks*8,2)}, v22 offset0:{8*ks+2} offset1:{8*ks+3}
ds_read2_b32 {vr(32+ks*8,2)}, v23 offset0:{8*ks} offset1:{8*ks+1}
ds_read2_b32 {vr(34+ks*8,2)}, v23 offset0:{8*ks+2} offset1:{8*ks+3}
ds_read_b128 {vr(44+ks*4,4)}, v25 offset:{32*ks}''')
            if both: A(f'ds_read_b128 {vr(52+ks*4,4)}, v24 offset:{32*ks}')
        A(f'''v_subrev_u32 v22, 64, v22
v_subrev_u32 v23, 64, v23
v_subrev_u32 v25, {UB}, v25
s_add_u32 s20, s20, 1''')
        if both: A(f'v_subrev_u32 v24, {UB}, v24')
        for ks in range(2):
            A(f's_waitcnt lgkmcnt({(6 if both else 5) if ks==0 else 0})')
            for hl in range(2):
                A(f'v_mfma_f32_32x32x16_bf16 v[80:95], {vr(28+ks*8+hl*4,4)}, {vr(44+ks*4,4)}, v[80:95]')
                if both: A(f'v_mfma_f32_32x32x16_bf16 v[64:79], {vr(28+ks*8+hl*4,4)}, {vr(52+ks*4,4)}, v[64:79]')
    Lc1 = A.newlabel('ss_c1'); Lc2 = A.newlabel('ss_c2')
    A.label(Lc1)
    conv_iter(True)
    A(f's_cmp_lt_u32 s20, 32\ns_cbranch_scc1 {Lc1}')
    A.label(Lc2)
    conv_iter(False)
    A(f's_cmp_lt_u32 s20, 64\ns_cbranch_scc1 {Lc2}')
    A(f'''s_nop 15
v_lshlrev_b32 v22, 8, v20             ; n*32*8
v_lshl_add_u32 v22, v21, 5, v22       ; + 4gg*8
s_lshl_b32 s20, s14, 1
s_add_u32 s20, s20, {S_Y}
v_add_u32 v22, s20, v22''')
    for nu in range(2):
        for i in range(0, 16, 2):
            o = nu*8192 + (8*(i//4) + i%4)*8
            A(f'''v_cvt_pk_bf16_f32 v24, v{64+16*nu+i}, v{64+16*nu+i+1}
ds_write_b16 v22, v24 offset:{o}
ds_write_b16_d16_hi v22, v24 offset:{o+8}''')
    A(f'''s_waitcnt lgkmcnt(0)
s_barrier
v_lshlrev_b32 v22, 3, v0
v_add_u32 v22, {S_Y}, v22
s_add_u32 s18, s18, {hex(WS_Y)}''')
    for i in range(8):
        A(f'ds_read_b64 {vr(24+2*i,2)}, v22 offset:{i*2048}')
    for i in range(8):
        A(f'''s_waitcnt lgkmcnt({7-i})
s_add_u32 s19, s18, {i*256*1024}
buffer_store_dwordx2 {vr(24+2*i,2)}, v4, s[4:7], s19 offen{st}''')
    A('s_waitcnt vmcnt(0)\ns_barrier')
```

```python
from asmlib import *
WS_P2 = 0x6000000
WS_FLAG = 0x5800000
NSET = 7
T_K = 0
T_Q = 8192
T_O = 16384
OS = 272
T_G = T_O + 32*OS
W0 = 128
ACC = 64
KF = 16

def emit_tail_kernel(A, name='tail_kernel'):
    kernel_header(A, name)
    Lend = A.newlabel('tl_end')
    A(f'''s_cmp_ge_u32 s2, {NSET*32}
s_cbranch_scc1 {Lend}
s_load_dwordx2 s[22:23], s[0:1], {KA_WS}
s_load_dwordx2 s[12:13], s[0:1], {KA_DBG}
v_lshrrev_b32 v16, 6, v0
s_nop 0
v_readfirstlane_b32 s14, v16
s_mov_b32 s15, s2
s_waitcnt lgkmcnt(0)''')
    srd(A, 4, 22, WS_SIZE)
    emit_tail_body(A, standalone=True)
    A.label(Lend)
    A('s_endpgm')

def emit_tail_body(A, standalone=False, wait_hook=None):
    A(f'''s_lshr_b32 s16, s15, 5           ; set
s_and_b32 s17, s15, 31           ; h
s_load_dwordx2 s[24:25], s[0:1], {KA_WO}
s_load_dwordx2 s[26:27], s[0:1], {KA_X}
s_load_dwordx2 s[28:29], s[0:1], {KA_GW}
s_load_dwordx2 s[32:33], s[0:1], {KA_DSKIP}
s_load_dwordx2 s[34:35], s[0:1], {KA_OUT}
v_and_b32 v1, 63, v0             ; lane
v_and_b32 v2, 15, v1             ; c
v_lshrrev_b32 v3, 4, v1          ; g
s_mov_b32 s30, 0x05040100
s_mov_b32 s31, 0x07060302
s_waitcnt lgkmcnt(0)''')
    srd(A, 8, 24, 4*1024*1024)
    srd(A, 36, 26, 2048*1024)
    srd(A, 40, 34, 2048*1024)
    srd(A, 44, 28, 1024)
    srd(A, 48, 32, 1024)
    A(f'''v_lshlrev_b32 v4, 13, v3
v_lshl_add_u32 v4, v2, 4, v4
s_lshl_b32 s18, s17, 17
s_lshl_b32 s19, s14, 8
s_add_u32 s18, s18, s19
v_add_u32 v4, s18, v4''')
    for ks in range(4):
        for j in range(8):
            A(f'''s_mov_b32 s18, {(32*ks+j)*1024}
buffer_load_dwordx4 {vr(KF+j*4,4)}, v4, s[8:11], s18 offen''')
        A('s_waitcnt vmcnt(0)')
        for t in range(8):
            for p in range(4):
                A(f'v_perm_b32 v{W0+(t*4+ks)*4+p}, v{KF+(2*p+1)*4+t//2}, v{KF+(2*p)*4+t//2}, {"s31" if t%2 else "s30"}')
    A(f'''s_and_b32 s18, s14, 1
s_lshl_b32 s18, s18, 2
v_add_u32 v4, s18, v3
v_lshlrev_b32 v4, 1, v4
v_xor_b32 v4, v4, v2
v_lshlrev_b32 v4, 4, v4
v_lshl_add_u32 v4, v3, 8, v4
s_lshl_b32 s18, s17, 19
s_lshl_b32 s19, s14, 11
s_add_u32 s18, s18, s19
v_add_u32 v4, s18, v4''')
    A(f'''v_and_b32 v5, 3, v2
v_lshrrev_b32 v6, 3, v2
v_lshl_add_u32 v5, v6, 2, v5
v_lshlrev_b32 v5, 1, v5
v_xor_b32 v5, v5, v3
v_lshlrev_b32 v5, 4, v5
v_lshl_add_u32 v5, v2, 8, v5''')
    A(f'''v_lshlrev_b32 v6, 7, v2
v_lshl_add_u32 v6, v3, 4, v6
s_lshl_b32 s18, s17, 13
s_lshr_b32 s19, s14, 1
s_lshl_b32 s20, s19, 12
s_add_u32 s18, s18, s20
s_add_u32 s18, s18, {hex(WS_VT)}
v_add_u32 v6, s18, v6''')
    A(f'''v_and_b32 v7, 7, v2
v_lshlrev_b32 v7, 8, v7
v_lshl_add_u32 v7, v3, 4, v7
s_lshl_b32 s18, s17, 11
s_add_u32 s18, s18, {hex(WS_KM)}
v_add_u32 v7, s18, v7''')
    A(f'''v_and_b32 v8, 1, v3
v_lshlrev_b32 v8, 3, v8
v_lshl_add_u32 v8, v2, 5, v8
s_lshl_b32 s18, s17, 11
s_lshl_b32 s20, s19, 10
s_add_u32 s18, s18, s20
s_add_u32 s18, s18, {hex(WS_VMT)}
v_add_u32 v8, s18, v8''')
    A(f'''s_and_b32 s20, s14, 1
s_lshl_b32 s20, s20, 4
v_add_u32 v9, s20, v2
v_mul_u32_u24 v9, {OS}, v9
v_lshl_add_u32 v9, v3, 4, v9
s_lshl_b32 s18, s19, 7
s_add_u32 s18, s18, {T_O}
v_add_u32 v9, s18, v9''')
    A(f'''v_mul_u32_u24 v10, {OS}, v2
v_lshl_add_u32 v10, v3, 4, v10
v_add_u32 v10, {T_O}, v10''')
    A(f'''v_lshlrev_b32 v11, 17, v3
v_lshl_add_u32 v11, v2, 4, v11
s_lshl_b32 s18, s14, 13
s_lshl_b32 s20, s17, 8
s_add_u32 s18, s18, s20
s_add_u32 s18, s18, {hex(WS_P2)}
v_add_u32 v11, s18, v11''')
    A(f'''s_and_b32 s20, s14, 1
s_lshl_b32 s20, s20, 4
v_add_u32 v12, s20, v2
v_lshlrev_b32 v13, 2, v3
v_sub_u32 v12, v12, v13
v_lshlrev_b32 v13, 4, v1         ; v13 = lane*16
v_and_b32 v14, 1, v2
v_lshlrev_b32 v14, 4, v14
v_mov_b32 v15, 0x3f80
v_lshlrev_b32 v14, v14, v15
s_mov_b32 s52, 0x3e02939f        ; SC
s_mov_b32 s53, 0xff800000        ; -inf
s_lshl_b32 s54, s14, 11
s_and_b32 s55, s14, 1
s_lshl_b32 s55, s55, 12          ; qt*4096
s_mov_b32 s56, s16               ; segment
s_mov_b32 s57, 0''')
    Lloop = A.newlabel('tl_loop'); Ldone = A.newlabel('tl_done')
    A.label(Lloop)
    if wait_hook: wait_hook(A)
    A(f'''s_lshl_b32 s58, s56, 13          ; s*8192
s_add_u32 s59, s58, {hex(WS_K)}
s_mov_b32 m0, s54
s_lshl_b32 s60, s56, 18          ; s*262144
buffer_load_dwordx4 v4, s[4:7], s59 offen lds
buffer_load_dwordx4 v4, s[4:7], s59 offen offset:1024 lds
s_add_u32 m0, s54, {T_Q}
s_lshl_b32 s61, s56, 16          ; s*65536
buffer_load_dwordx4 v4, s[4:7], s58 offen lds
buffer_load_dwordx4 v4, s[4:7], s58 offen offset:1024 lds''')
    KM = KF; VX = KF+16; VMf = KF+32
    LD = ' sc1' if not standalone else ''
    for ks in range(4):
        A(f'buffer_load_dwordx4 {vr(KM+ks*4,4)}, v7, s[4:7], s61 offen offset:{ks*64}{LD}')
    for et in range(2):
        for T in range(2):
            A(f'buffer_load_dwordx4 {vr(VX+(et*2+T)*4,4)}, v6, s[4:7], s60 offen offset:{et*2048+T*64}')
    for et in range(2):
        for T in range(2):
            A(f'buffer_load_dwordx2 {vr(VMf+(et*2+T)*2,2)}, v8, s[4:7], s61 offen offset:{et*512+T*16}{LD}')
    A('''s_waitcnt vmcnt(12)
s_barrier''')
    S = ACC; QF = ACC+16; KX = ACC+32
    A(f'v_add_u32 v56, s55, v5')
    for ks in range(4):
        if ks:
            A(f'v_xor_b32 v57, {ks*64}, v5\nv_xor_b32 v58, {ks*64}, v56')
        ak = 'v57' if ks else 'v5'; aq = 'v58' if ks else 'v56'
        A(f'''ds_read_b128 {vr(QF+ks*4,4)}, {aq} offset:{T_Q}
ds_read_b128 {vr(KX+ks*4,4)}, {ak} offset:{T_K}
ds_read_b128 {vr(KX+16+ks*4,4)}, {ak} offset:{T_K+4096}''')
    A('s_waitcnt vmcnt(8)')
    for ks in range(4):
        A(f's_waitcnt lgkmcnt({9-3*ks})')
        for t in range(3):
            a = vr(KM+ks*4,4) if t == 0 else vr(KX+(t-1)*16+ks*4,4)
            A(f'v_mfma_f32_16x16x32_bf16 {vr(S+t*4,4)}, {a}, {vr(QF+ks*4,4)}, {"0" if ks==0 else vr(S+t*4,4)}')
    A('s_nop 7')
    A(f'''v_mov_b32 v57, s53
v_cmp_gt_u32 vcc, 2, v3
s_nop 1''')
    for r in range(4):
        A(f'v_cndmask_b32 v{S+r}, v57, v{S+r}, vcc')
    for kt in range(2):
        for r in range(4):
            A(f'''v_cmp_le_i32 vcc, {16*kt+r}, v12
s_nop 1
v_cndmask_b32 v{S+4+4*kt+r}, v57, v{S+4+4*kt+r}, vcc''')
    M = S+12; T1 = S+13; L = S+14; T2 = S+15
    A(f'''v_max3_f32 v{M}, v{S}, v{S+1}, v{S+2}
v_max3_f32 v{T1}, v{S+3}, v{S+4}, v{S+5}
v_max3_f32 v{M}, v{M}, v{S+6}, v{S+7}
v_max3_f32 v{T1}, v{T1}, v{S+8}, v{S+9}
v_max3_f32 v{M}, v{M}, v{S+10}, v{S+11}
v_max_f32 v{M}, v{M}, v{T1}
v_mov_b32 v{T1}, v{M}
s_nop 1
v_permlane32_swap_b32 v{T1}, v{M}
v_max_f32 v{M}, v{M}, v{T1}
v_mov_b32 v{T1}, v{M}
s_nop 1
v_permlane16_swap_b32 v{T1}, v{M}
v_max_f32 v{M}, v{M}, v{T1}
v_mul_f32 v{M}, s52, v{M}''')
    for i in range(12):
        A(f'v_fma_f32 v{S+i}, v{S+i}, s52, -v{M}')
    for i in range(12):
        A(f'v_exp_f32 v{S+i}, v{S+i}')
    A(f'''s_nop 0
v_add_f32 v{L}, v{S}, v{S+1}
v_add_f32 v{T1}, v{S+2}, v{S+3}
v_add_f32 v{T2}, v{S+4}, v{S+5}
v_add_f32 v{M}, v{S+6}, v{S+7}
v_add_f32 v{L}, v{L}, v{T1}
v_add_f32 v{T1}, v{S+8}, v{S+9}
v_add_f32 v{T2}, v{T2}, v{M}
v_add_f32 v{M}, v{S+10}, v{S+11}
v_add_f32 v{L}, v{L}, v{T1}
v_add_f32 v{T2}, v{T2}, v{M}
v_add_f32 v{L}, v{L}, v{T2}
v_mov_b32 v{T1}, v{L}
s_nop 1
v_permlane32_swap_b32 v{T1}, v{L}
v_add_f32 v{L}, v{L}, v{T1}
v_mov_b32 v{T1}, v{L}
s_nop 1
v_permlane16_swap_b32 v{T1}, v{L}
v_add_f32 v{L}, v{L}, v{T1}
v_rcp_f32 v{L}, v{L}
s_nop 0''')
    for i in range(12):
        A(f'v_mul_f32 v{S+i}, v{S+i}, v{L}')
    PX = QF; PM = QF+4; O = KX
    A(f'''v_cvt_pk_bf16_f32 v{PX}, v{S+4}, v{S+5}
v_cvt_pk_bf16_f32 v{PX+1}, v{S+6}, v{S+7}
v_cvt_pk_bf16_f32 v{PX+2}, v{S+8}, v{S+9}
v_cvt_pk_bf16_f32 v{PX+3}, v{S+10}, v{S+11}
v_cvt_pk_bf16_f32 v{PM}, v{S}, v{S+1}
v_cvt_pk_bf16_f32 v{PM+1}, v{S+2}, v{S+3}
s_waitcnt vmcnt(0)''')
    for i in range(4):
        A(f'v_mfma_f32_16x16x32_bf16 {vr(O+i*4,4)}, {vr(VX+i*4,4)}, {vr(PX,4)}, 0')
    for i in range(4):
        A(f'v_mfma_f32_16x16x16_bf16 {vr(O+i*4,4)}, {vr(VMf+i*2,2)}, {vr(PM,2)}, {vr(O+i*4,4)}')
    A('s_nop 7')
    for et in range(2):
        for r in range(4):
            A(f'v_cvt_pk_bf16_f32 v{S+et*4+r}, v{O+et*8+r}, v{O+et*8+4+r}')
        A(f'ds_write_b128 v9, {vr(S+et*4,4)} offset:{et*64}')
    A('''s_waitcnt lgkmcnt(0)
s_barrier''')
    for mt in range(2):
        for ks in range(4):
            A(f'ds_read_b128 {vr(KF+(mt*4+ks)*4,4)}, v10 offset:{mt*16*OS+ks*64}')
    A(f's_lshl_b32 s62, s56, 20')
    for mt in range(2):
        for ks in range(4):
            A(f's_waitcnt lgkmcnt({7-(mt*4+ks)})')
            for t in range(8):
                acc = vr(ACC+(mt*8+t)*4,4)
                A(f'v_mfma_f32_16x16x32_bf16 {acc}, {vr(KF+(mt*4+ks)*4,4)}, {vr(W0+(t*4+ks)*4,4)}, {"0" if ks==0 else acc}')
    A('s_nop 7')
    for mt in range(2):
        for r in range(4):
            b = KF + ((mt*4+r)%8)*4
            for p in range(4):
                A(f'v_cvt_pk_bf16_f32 v{b+p}, v{ACC+(mt*8+2*p)*4+r}, v{ACC+(mt*8+2*p+1)*4+r}')
            A(f'''s_add_u32 s63, s62, {(16*mt+r)*32768}
buffer_store_dwordx4 {vr(b,4)}, v11, s[4:7], s63 offen sc1''')
    A(f'''s_add_u32 s57, s57, 1
s_waitcnt vmcnt(0)
s_barrier''')
    Lnp = A.newlabel('tl_np')
    A(f'''s_cmp_lg_u32 s14, 0
s_cbranch_scc1 {Lnp}
s_mov_b64 exec, 1
v_mov_b32 v56, s57
v_mov_b32 v57, s15''')
    if standalone:
        A('global_store_byte v57, v56, s[12:13] sc1')
    else:
        A(f's_mov_b32 s63, {hex(WS_FLAG)}\nbuffer_store_byte v56, v57, s[4:7], s63 offen sc1')
    A('s_mov_b64 exec, -1')
    A.label(Lnp)
    Lsp = A.newlabel('tl_spin')
    A(f'''s_lshl_b32 s63, s16, 5
v_and_b32 v56, 31, v1
v_add_u32 v56, s63, v56''')
    A.label(Lsp)
    if standalone:
        A('global_load_ubyte v57, v56, s[12:13] sc1')
    else:
        A(f's_mov_b32 s63, {hex(WS_FLAG)}\nbuffer_load_ubyte v57, v56, s[4:7], s63 offen sc1')
    A(f'''s_waitcnt vmcnt(0)
v_cmp_gt_u32 vcc, s57, v57
s_cbranch_vccnz {Lsp}''')
    A(f'''s_lshl_b32 s63, s17, 15
s_add_u32 s63, s63, s62
s_lshl_b32 s64, s14, 13
s_add_u32 s63, s63, s64
s_add_u32 s63, s63, {hex(WS_P2)}
s_add_u32 s64, s63, 4096''')
    PP = ACC
    for i in range(4):
        A(f'buffer_load_dwordx4 {vr(PP+i*4,4)}, v13, s[4:7], s63 offen offset:{i*1024} sc1')
    for i in range(4):
        A(f'buffer_load_dwordx4 {vr(PP+16+i*4,4)}, v13, s[4:7], s64 offen offset:{i*1024} sc1')
    XR = KF; GW = KF+4; XC = KF+8; YC = KF+10; DS = KF+12; SEL = KF+16; DD = KF+20; TT = KF+24
    A(f'''s_lshl_b32 s65, s56, 5
s_add_u32 s65, s65, s17
s_lshl_b32 s65, s65, 10          ; token*1024
buffer_load_dwordx4 {vr(XR,4)}, v13, s[36:39], s65 offen
buffer_load_dwordx4 {vr(GW,4)}, v13, s[44:47], 0 offen
v_and_b32 v56, 1, v3
v_lshlrev_b32 v56, 3, v56
v_lshl_add_u32 v56, v2, 4, v56
s_lshl_b32 s66, s14, 8
v_add_u32 v56, s66, v56
buffer_load_dwordx2 {vr(XC,2)}, v56, s[36:39], s65 offen
s_add_u32 s66, s65, {hex(WS_Y)}
buffer_load_dwordx2 {vr(YC,2)}, v56, s[4:7], s66 offen{LD}
buffer_load_dwordx2 {vr(DS,2)}, v56, s[48:51], 0 offen
v_lshrrev_b32 v57, 1, v2''')
    for p in range(4):
        A(f'''v_cmp_eq_u32 vcc, {p}, v57
s_nop 1
v_cndmask_b32 v{SEL+p}, 0, v14, vcc''')
    A('s_waitcnt vmcnt(5)')
    for i in range(8):
        A(f'v_mfma_f32_16x16x32_bf16 {vr(DD,4)}, {vr(SEL,4)}, {vr(PP+4*i,4)}, {"0" if i==0 else vr(DD,4)}')
    A('s_waitcnt vmcnt(3)')
    for i in range(4):
        A(f'''v_lshlrev_b32 v{TT}, 16, v{XR+i}
v_and_b32 v{TT+1}, 0xffff0000, v{XR+i}
v_lshlrev_b32 v{TT+2}, 16, v{GW+i}
v_and_b32 v{TT+3}, 0xffff0000, v{GW+i}
v_mul_f32 v{TT}, v{TT}, v{TT+2}
v_mul_f32 v{TT+1}, v{TT+1}, v{TT+3}
v_cvt_pk_bf16_f32 v{TT}, v{TT}, v{TT+1}
v_lshlrev_b32 v{TT+1}, 16, v{TT}
v_and_b32 v{TT}, 0xffff0000, v{TT}
v_add_f32 v{TT}, v{TT}, v{TT+1}''')
        A(f'v_mov_b32 v{TT+4}, v{TT}' if i == 0 else f'v_add_f32 v{TT+4}, v{TT+4}, v{TT}')
    G = TT+4
    A(f'''s_nop 1
v_add_f32_dpp v{G}, v{G}, v{G} quad_perm:[1,0,3,2] row_mask:0xf bank_mask:0xf
s_nop 1
v_add_f32_dpp v{G}, v{G}, v{G} quad_perm:[2,3,0,1] row_mask:0xf bank_mask:0xf
s_nop 1
v_add_f32_dpp v{G}, v{G}, v{G} row_ror:4 row_mask:0xf bank_mask:0xf
s_nop 1
v_add_f32_dpp v{G}, v{G}, v{G} row_ror:8 row_mask:0xf bank_mask:0xf
v_mov_b32 v{TT}, v{G}
s_nop 1
v_permlane32_swap_b32 v{TT}, v{G}
v_add_f32 v{G}, v{G}, v{TT}
v_mov_b32 v{TT}, v{G}
s_nop 1
v_permlane16_swap_b32 v{TT}, v{G}
v_add_f32 v{G}, v{G}, v{TT}
v_cvt_pk_bf16_f32 v{G}, v{G}, v{G}
v_lshlrev_b32 v{G}, 16, v{G}
v_mul_f32 v{G}, 0xbfb8aa3b, v{G}         ; -z*log2e
v_exp_f32 v{G}, v{G}
s_nop 0
v_add_f32 v{G}, 1.0, v{G}
v_rcp_f32 v{G}, v{G}
s_nop 0
v_cvt_pk_bf16_f32 v{G}, v{G}, v{G}
v_lshlrev_b32 v{G}, 16, v{G}             ; g bf16
v_sub_f32 v{G+1}, 1.0, v{G}
v_cvt_pk_bf16_f32 v{G+1}, v{G+1}, v{G+1}
v_lshlrev_b32 v{G+1}, 16, v{G+1}         ; 1-g bf16
s_waitcnt vmcnt(0)''')
    for i in range(2):
        A(f'''v_cvt_pk_bf16_f32 v{TT}, v{DD+2*i}, v{DD+2*i+1}
v_lshlrev_b32 v{TT+1}, 16, v{TT}
v_and_b32 v{TT}, 0xffff0000, v{TT}
v_mul_f32 v{TT+1}, v{G}, v{TT+1}
v_mul_f32 v{TT}, v{G}, v{TT}
v_cvt_pk_bf16_f32 v{DD+2*i}, v{TT+1}, v{TT}             ; g*a pair
v_lshlrev_b32 v{TT}, 16, v{XC+i}
v_and_b32 v{TT+1}, 0xffff0000, v{XC+i}
v_lshlrev_b32 v{TT+2}, 16, v{DS+i}
v_and_b32 v{TT+3}, 0xffff0000, v{DS+i}
v_mul_f32 v{TT}, v{TT}, v{TT+2}
v_mul_f32 v{TT+1}, v{TT+1}, v{TT+3}
v_cvt_pk_bf16_f32 v{TT}, v{TT}, v{TT+1}                 ; u*D pair
v_lshlrev_b32 v{TT+1}, 16, v{TT}
v_and_b32 v{TT}, 0xffff0000, v{TT}
v_lshlrev_b32 v{TT+2}, 16, v{YC+i}
v_and_b32 v{TT+3}, 0xffff0000, v{YC+i}
v_add_f32 v{TT+1}, v{TT+1}, v{TT+2}
v_add_f32 v{TT}, v{TT}, v{TT+3}
v_cvt_pk_bf16_f32 v{TT}, v{TT+1}, v{TT}                 ; b pair
v_lshlrev_b32 v{TT+1}, 16, v{TT}
v_and_b32 v{TT}, 0xffff0000, v{TT}
v_mul_f32 v{TT+1}, v{G+1}, v{TT+1}
v_mul_f32 v{TT}, v{G+1}, v{TT}
v_cvt_pk_bf16_f32 v{TT}, v{TT+1}, v{TT}                 ; (1-g)*b pair
v_lshlrev_b32 v{TT+1}, 16, v{TT}
v_and_b32 v{TT}, 0xffff0000, v{TT}
v_lshlrev_b32 v{TT+2}, 16, v{DD+2*i}
v_and_b32 v{TT+3}, 0xffff0000, v{DD+2*i}
v_add_f32 v{TT+1}, v{TT+1}, v{TT+2}
v_add_f32 v{TT}, v{TT}, v{TT+3}
v_cvt_pk_bf16_f32 v{XR+i}, v{TT+1}, v{TT}''')
    A(f'''s_mov_b32 exec_hi, 0
buffer_store_dwordx2 {vr(XR,2)}, v56, s[40:43], s65 offen
s_mov_b32 exec_hi, -1
s_add_u32 s56, s56, {NSET}
s_cmp_lt_u32 s56, 64
s_cbranch_scc1 {Lloop}
s_waitcnt vmcnt(0)''')
```

```python
import sys
sys.path.insert(0, 'gen')
from asmlib import *
import k_qkv
HDR = open('gated_mix__memory_aug_recurrent_mem_tr__ssm_conv_s4__prompt.s.ref').read().split('; Override launch')[0]
def build(kernels, out):
    A = Asm()
    s = HDR
    for k in kernels:
        s += f'; @launch kernel={k[0]} grid=({k[2]},1,1) block=({k[3]},1,1) lds={k[4]}\n'
    s += '.amdgcn_target "amdgcn-amd-amdhsa--gfx950"\n.text\n'
    seen = set()
    for k in kernels:
        if k[0] in seen: continue
        seen.add(k[0]); k[1](A)
    s += A.text()
    s += '.section .rodata,"a"\n'
    seen = set()
    for k in kernels:
        if k[0] in seen: continue
        seen.add(k[0])
        s += '.p2align 6\n' + kernel_desc(k[0], k[5], k[6], k[7])
    open(out, 'w').write(s)
if __name__ == '__main__':
    build([('qkv_kernel', k_qkv.emit_qkv, 192, 256, 65536, 256, 64, 256)], 'k1.s')
    import k_chain
    build([('qkv_kernel', k_qkv.emit_qkv, 192, 256, 65536, 256, 64, 256),
           ('chain_kernel', lambda A: k_chain.emit_chain_kernel(A, timing=True), 256, 256, 163840, 512, 96, 256)], 'k2.s')
    k_chain.STAMPS = False
    build([('qkv_kernel', k_qkv.emit_qkv, 192, 256, 65536, 256, 64, 256),
           ('chain_kernel', lambda A: k_chain.emit_chain_kernel(A, timing=True), 256, 256, 163840, 512, 96, 256)], 'k2n.s')
    k_chain.STAMPS = True; k_chain.DRY = True
    build([('chain_kernel', lambda A: k_chain.emit_chain_kernel(A, timing=True), 256, 256, 163840, 512, 96, 256)], 'k2d.s')
    k_chain.NOKV = True
    build([('chain_kernel', lambda A: k_chain.emit_chain_kernel(A, timing=True), 256, 256, 163840, 512, 96, 256)], 'k2d1.s')
    k_chain.NOPST = True
    build([('chain_kernel', lambda A: k_chain.emit_chain_kernel(A, timing=True), 256, 256, 163840, 512, 96, 256)], 'k2d2.s')
    k_chain.NOWARM = True
    build([('chain_kernel', lambda A: k_chain.emit_chain_kernel(A, timing=True), 256, 256, 163840, 512, 96, 256)], 'k2d3.s')
    k_chain.NOKV = False; k_chain.NOPST = False; k_chain.NOWARM = False; k_chain.DRY = False; k_chain.TRACE = True
    build([('qkv_kernel', k_qkv.emit_qkv, 192, 256, 65536, 256, 64, 256),
           ('chain_kernel', lambda A: k_chain.emit_chain_kernel(A, timing=True), 256, 256, 163840, 512, 96, 256)], 'k2t.s')
    import k_tail
    k_chain.TRACE = False; k_chain.STAMPS = False
    build([('qkv_kernel', k_qkv.emit_qkv, 192, 256, 65536, 256, 64, 256),
           ('chain_kernel', lambda A: k_chain.emit_chain_kernel(A, timing=False), 256, 256, 163840, 512, 96, 256),
           ('tail_kernel', k_tail.emit_tail_kernel, 224, 256, 163840, 256, 96, 256)], 'k3.s')
    import k_ssm
    build([('ssm_kernel', k_ssm.emit_ssm_kernel, 128, 256, 163840, 128, 96, 128)], 'k4.s')
    build([('qkv_kernel', k_qkv.emit_qkv, 192, 256, 65536, 256, 64, 256),
           ('ssm_kernel', k_ssm.emit_ssm_kernel, 128, 256, 163840, 128, 96, 128),
           ('chain_kernel', lambda A: k_chain.emit_chain_kernel(A, timing=False), 256, 256, 163840, 512, 96, 256),
           ('tail_kernel', k_tail.emit_tail_kernel, 224, 256, 163840, 256, 96, 256)], 'k5.s')
```

```python
from asmlib import *

L_W  = 0
L_MA = 131072
L_QK = 139264
L_O  = 139264 + 16*288
L_MISC = L_O + 16*288
L_KX = L_MISC + 1024
L_VM = L_KX + 8192
QS = 288
V_LANE16 = 1
V_IDX = 2
V_PST = 3
V_PLD = 4
V_MST = 5
V_T16 = 6
V_QKW = 7
V_QKR = 8
V_OW = 9
V_OR = 10
V_KXA = 11
V_VXA = 12
V_PUBK = 13
V_PUBV = 14
V_KXR = 15
V_MA = 16
V_KX = 48
V_VX = 80
V_STG = 88
V_ACC = 104
V_MB = 0
V_WO = 128
V_MBR = 124

SC = 0.08838834764831845*1.4426950408889634

SPINBOUND = True
DRY = False
MERGED = False
ALIGNPAD = 0
MARK = None
WS_FLAG = 0x5800000
PDELAY = 0
NOKV = False
NOPST = False
NOWARM = False
def spin(A, Lexit):
    if SPINBOUND:
        A(f'''s_add_u32 s48, s48, 1
s_cmp_gt_u32 s48, 0x100000
s_cbranch_scc1 {Lexit}''')

STAMPS = True
TRACE = False
def stamp(A, i, timing):
    if timing and TRACE:
        L = A.newlabel('tr')
        A(f'''s_cmp_lg_u32 s34, {31 if i >= 7 else 30}
s_cbranch_scc1 {L}
s_memrealtime s[64:65]
s_waitcnt lgkmcnt(0)
s_mov_b32 s{70+i}, s64''')
        A.label(L)
    elif timing and STAMPS:
        A(f'''s_memtime s[{64}:{65}]
s_waitcnt lgkmcnt(0)
s_sub_u32 s66, s64, s67
s_add_u32 s{70+i}, s{70+i}, s66
s_mov_b32 s67, s64''')

def kv_ready(A, target, t0, Lexit):
    Lc = A.newlabel('kv_chk'); Lo = A.newlabel('kv_ok')
    A.label(Lc)
    A(f"""s_cmp_gt_u32 s80, {target}
s_cbranch_scc1 {Lo}
v_mov_b32 v{t0}, s81
buffer_load_ushort v{t0+1}, v{t0}, s[4:7], 0 offen offset:2 sc1
buffer_load_ushort v{t0+2}, v{t0}, s[4:7], 0 offen offset:4 sc1
s_waitcnt vmcnt(0)
v_readfirstlane_b32 s82, v{t0+1}
v_readfirstlane_b32 s83, v{t0+2}
s_and_b32 s84, s82, 0xff
s_and_b32 s85, s83, 0xff
s_min_u32 s84, s84, s85
s_lshl_b32 s84, s84, 1
s_lshr_b32 s82, s82, 8
s_lshr_b32 s83, s83, 8
s_min_u32 s82, s82, s83
s_lshl_b32 s82, s82, 1
s_add_u32 s82, s82, 1
s_min_u32 s80, s84, s82
s_cmp_gt_u32 s80, {target}
s_cbranch_scc1 {Lo}
s_sleep 4
s_add_u32 s88, s88, 1
s_cmp_lt_u32 s88, 0x80000
s_cbranch_scc1 {Lc}""")
    A.label(Lo)

def emit_elect(A, Lexit, role_sreg=15):
    Lw = A.newlabel('el_wait'); Lnc = A.newlabel('el_nocas'); Lrd = A.newlabel('el_rdone'); Lsp = A.newlabel('el_spin')
    A(f'''s_getreg_b32 s16, hwreg(HW_REG_XCC_ID)
s_and_b32 s16, s16, 7
s_cmp_lg_u32 s14, 0
s_cbranch_scc1 {Lw}
v_mov_b32 v20, 1
s_lshl_b32 s17, s16, 2
v_mov_b32 v21, s17
s_mov_b64 s[20:21], exec
s_mov_b64 exec, 1
global_atomic_add v22, v21, v20, s[12:13] sc0
s_waitcnt vmcnt(0)
v_readfirstlane_b32 s18, v22
s_cmp_lg_u32 s18, 31
s_cbranch_scc1 {Lnc}
s_add_u32 s19, s16, 1
v_mov_b32 v24, s19
v_mov_b32 v25, 0
v_mov_b32 v21, 32
global_atomic_cmpswap v21, v[24:25], s[12:13]
s_waitcnt vmcnt(0)''')
    A.label(Lnc)
    A(f'''s_mov_b32 s15, 0xffff
s_cmp_ge_u32 s18, 32
s_cbranch_scc1 {Lrd}
v_mov_b32 v21, 32''')
    A.label(Lsp)
    A(f'''global_load_dword v22, v21, s[12:13] sc1
s_waitcnt vmcnt(0)
v_readfirstlane_b32 s19, v22
s_cmp_eq_u32 s19, 0
s_cbranch_scc1 {Lsp}
s_sub_u32 s19, s19, 1
s_cmp_lg_u32 s19, s16
s_cbranch_scc1 {Lrd}
s_mov_b32 s15, s18''')
    A.label(Lrd)
    A(f'''v_mov_b32 v22, s15
v_mov_b32 v21, {L_MISC}
ds_write_b32 v21, v22
s_mov_b64 exec, s[20:21]
s_waitcnt lgkmcnt(0)''')
    A.label(Lw)
    A(f'''s_barrier
v_mov_b32 v21, {L_MISC}
ds_read_b32 v22, v21
s_waitcnt lgkmcnt(0)
v_readfirstlane_b32 s15, v22
s_barrier''')

def emit_chain_kernel(A, name='chain_kernel', timing=False):
    kernel_header(A, name)
    Lend = A.newlabel('ch_end')
    A(f'''s_cmp_ge_u32 s2, 256
s_cbranch_scc1 {Lend}
s_load_dwordx2 s[22:23], s[0:1], {KA_WS}
s_load_dwordx2 s[12:13], s[0:1], {KA_DBG}
v_lshrrev_b32 v16, 6, v0
s_nop 0
v_readfirstlane_b32 s14, v16
s_waitcnt lgkmcnt(0)''')
    srd(A, 4, 22, WS_SIZE)
    if DRY:
        A(f'''s_mov_b32 s15, s2
s_cmp_ge_u32 s15, 1
s_cbranch_scc1 {Lend}''')
    else:
        emit_elect(A, Lend)
        A(f'''s_cmp_ge_u32 s15, 32
s_cbranch_scc1 {Lend}''')
    emit_chain_body(A, timing)
    A.label(Lend)
    A('s_endpgm')

def emit_chain_body(A, timing=False):
    A(f'''v_and_b32 v16, 63, v0
v_and_b32 v17, 15, v16
v_lshrrev_b32 v18, 4, v16
v_and_b32 v19, 1, v18
v_lshrrev_b32 v20, 1, v18
v_lshlrev_b32 v{V_LANE16}, 4, v16
v_lshlrev_b32 v{V_T16}, 4, v0
s_mov_b32 s30, 0x05040100
s_mov_b32 s31, 0x07060302''')
    if MERGED:
        Lq0 = A.newlabel('ch_q0')
        A(f'''s_cmp_lg_u32 s14, 0
s_cbranch_scc1 {Lq0}
s_lshl_b32 s18, s15, 7
s_add_u32 s18, s18, {hex(WS_QF)}
s_mov_b64 exec, 1
v_mov_b32 v24, 0
v_mov_b32 v25, 0
buffer_store_dwordx2 v[24:25], v24, s[4:7], s18 offen sc1
s_waitcnt vmcnt(0)
v_mov_b32 v25, 1
v_mov_b32 v24, 56
global_atomic_add v24, v25, s[12:13]
s_mov_b64 exec, -1''')
        A.label(Lq0)
    A(f'''s_lshl_b32 s16, s15, 13
s_add_u32 s16, s16, {hex(WS_P)}
v_mov_b32 v24, 1
v_mov_b32 v25, 1
v_mov_b32 v26, 1
v_mov_b32 v27, 1''')
    for ring in range(2):
        for i in range(2):
            A(f'''s_add_u32 s17, s16, {ring*0x40000+i*4096}
buffer_store_dwordx4 v[24:27], v{V_T16}, s[4:7], s17 offen''')
    A(f'''s_and_b32 s17, s15, 7
s_lshl_b32 s17, s17, 10
s_lshr_b32 s18, s15, 3
s_lshl_b32 s18, s18, 8
s_add_u32 s17, s17, s18
s_add_u32 s17, s17, {hex(WS_M)}
v_mov_b32 v24, -1
v_lshlrev_b32 v25, 2, v16''')
    for sl in range(3):
        A(f'''s_add_u32 s18, s17, {sl*8192}
buffer_store_dword v24, v25, s[4:7], s18 offen''')
    if MERGED:
        Lz = A.newlabel('ch_z')
        A(f'''s_mov_b32 s80, 0
s_mov_b32 s88, 0
s_lshl_b32 s81, s15, 7
s_add_u32 s81, s81, {hex(WS_QF)}
s_cmp_lg_u32 s15, 0
s_cbranch_scc1 {Lz}
v_mov_b32 v24, 0
s_mov_b32 s18, {hex(WS_FLAG)}
buffer_store_dword v24, v25, s[4:7], s18 offen sc1''')
        A.label(Lz)
    A(f'''v_mov_b32 v24, 0x4444
v_mov_b32 v25, 0xeeee
v_and_b32 v26, 1, v17
v_cmp_eq_u32 vcc, 0, v26
s_nop 1
v_cndmask_b32 v{V_IDX}, v25, v24, vcc''')
    A(f'''s_lshl_b32 s18, s14, 16
s_lshl_b32 s19, s15, 8
s_add_u32 s18, s18, s19
s_add_u32 s18, s18, {hex(WS_P)}
v_and_b32 v24, 3, v17
v_lshl_add_u32 v24, v18, 2, v24
v_lshlrev_b32 v24, 4, v24
v_lshrrev_b32 v25, 2, v17
v_lshl_add_u32 v24, v25, 13, v24
v_add_u32 v{V_PST}, s18, v24''')
    A(f's_sub_u32 s59, s16, {L_MA}')
    A(f'''v_and_b32 v24, 1, v17
v_lshlrev_b32 v24, 4, v24
v_mov_b32 v25, 0x3f80
v_lshlrev_b32 v{V_PLD}, v24, v25''')
    A(f'''v_lshrrev_b32 v24, 2, v17
v_lshl_add_u32 v24, v24, 1, v18
v_bfe_u32 v25, v17, 1, 1
v_lshl_add_u32 v24, v24, 1, v25
v_lshlrev_b32 v24, 4, v24
v_and_b32 v25, 1, v17
v_lshl_add_u32 v24, v25, 3, v24
v_add_u32 v{V_MST}, s17, v24''')
    A(f'''s_lshr_b32 s18, s14, 1
s_lshl_b32 s18, s18, 3
v_lshlrev_b32 v24, 1, v18
v_add_u32 v24, s18, v24            ; row
v_mul_u32_u24 v25, {QS}, v24
s_and_b32 s18, s14, 1
s_lshl_b32 s18, s18, 7
s_add_u32 s18, s18, {L_QK}
v_lshl_add_u32 v25, v17, 3, v25
v_add_u32 v{V_QKW}, s18, v25''')
    A(f'''s_lshl_b32 s18, s14, 2
s_add_u32 s18, s18, 8
v_add_u32 v24, s18, v18
v_mul_u32_u24 v24, {QS}, v24
v_lshl_add_u32 v24, v17, 4, v24
v_add_u32 v24, {L_QK}, v24
s_lshl_b32 s18, s14, 10
s_add_u32 s18, s18, {L_VM-2048}
v_add_u32 v25, s18, v{V_LANE16}
s_cmp_lt_u32 s14, 2
s_cselect_b64 vcc, -1, 0
v_cndmask_b32 v{V_PUBK}, v25, v24, vcc''')
    A(f'''s_lshl_b32 s19, s15, 11
s_and_b32 s18, s14, 1
s_lshl_b32 s18, s18, 10
s_add_u32 s18, s18, s19
s_cmp_lt_u32 s14, 2
s_mov_b32 s57, {hex(WS_VMT-L_MA)}
s_cselect_b32 s57, {hex(WS_KM-L_MA)}, s57
s_add_u32 s57, s57, s18''')
    A(f'''v_lshlrev_b32 v24, 2, v18
v_lshl_add_u32 v24, v17, 5, v24
s_lshl_b32 s18, s14, 9
s_add_u32 s18, s18, {L_VM}
v_add_u32 v{V_PUBV}, s18, v24''')
    A(f'''v_lshrrev_b32 v24, 1, v17
v_mul_u32_u24 v24, {QS}, v24
v_lshl_add_u32 v24, v18, 4, v24
v_add_u32 v{V_QKR}, {L_QK}, v24''')
    A(f'''v_lshrrev_b32 v24, 1, v17
v_and_b32 v25, 1, v17
v_lshl_add_u32 v24, v25, 3, v24
v_mul_u32_u24 v24, {QS}, v24
v_lshl_add_u32 v24, v18, 4, v24
s_lshl_b32 s18, s14, 6
s_add_u32 s18, s18, {L_O}
v_add_u32 v{V_OW}, s18, v24''')
    A(f'''v_lshrrev_b32 v24, 1, v17
v_mul_u32_u24 v24, {QS}, v24
v_lshl_add_u32 v24, v18, 5, v24
v_and_b32 v25, 1, v17
v_lshl_add_u32 v24, v25, 4, v24
v_add_u32 v{V_OR}, {L_O}, v24''')
    A(f'''v_lshlrev_b32 v24, 1, v18
v_xor_b32 v24, v24, v17
v_lshlrev_b32 v24, 4, v24
v_lshl_add_u32 v24, v18, 8, v24
s_lshl_b32 s18, s15, 19
s_and_b32 s19, s14, 1
s_lshl_b32 s19, s19, 12
s_add_u32 s18, s18, s19
s_add_u32 s18, s18, {hex(WS_K)}
v_add_u32 v{V_KXA}, s18, v24''')
    A(f'''v_and_b32 v24, 3, v17
v_lshrrev_b32 v25, 3, v17
v_lshl_add_u32 v24, v25, 2, v24
v_lshlrev_b32 v24, 1, v24
v_xor_b32 v24, v24, v18
v_lshlrev_b32 v24, 4, v24
v_lshl_add_u32 v24, v17, 8, v24
v_add_u32 v{V_KXR}, {L_KX}, v24''')
    A(f'''v_lshlrev_b32 v24, 7, v17
v_lshl_add_u32 v24, v18, 4, v24
s_lshl_b32 s18, s15, 13
s_lshl_b32 s19, s14, 11
s_add_u32 s18, s18, s19
s_add_u32 s18, s18, {hex(WS_VT)}
v_add_u32 v{V_VXA}, s18, v24''')
    CP = [0,1,8,9,2,3,10,11]
    def drow(kap, eta, j):
        return 256*eta + 32*(kap%4) + 4*(kap//4) + 8*(CP[j]>>2) + (CP[j]&3)
    T0 = V_MA
    TL = 48
    A(f'''s_lshr_b32 s18, s14, 1
s_lshl_b32 s18, s18, 3
s_add_u32 s18, s18, {KA_WQ}
s_load_dwordx2 s[24:25], s[0:1], s18
s_load_dwordx2 s[26:27], s[0:1], {KA_WV}
s_load_dwordx2 s[28:29], s[0:1], {KA_WO}
s_load_dwordx2 s[32:33], s[0:1], {KA_MEM0}
v_lshlrev_b32 v24, 20, v20         ; 128*(g/2)*8192
v_lshl_add_u32 v24, v19, 16, v24   ; + 8b*8192
s_lshl_b32 s19, s15, 8
v_add_u32 v24, s19, v24            ; + h*256
s_and_b32 s18, s14, 1
s_lshl_b32 s18, s18, 7
v_lshl_add_u32 v21, v17, 3, v24
v_add_u32 v21, s18, v21
s_lshl_b32 s18, s14, 6
v_lshl_add_u32 v22, v17, 2, v24
v_add_u32 v22, s18, v22            ; v22: v voffset
s_lshl_b32 s18, s14, 15
v_add_u32 v23, s18, v{V_LANE16}
s_waitcnt lgkmcnt(0)''')
    srd(A, 8, 24, 4*1024*1024)
    srd(A, 60, 26, 4*1024*1024)
    srd(A, 64, 28, 4*1024*1024)
    A(f"""v_lshlrev_b32 v24, 14, v20
v_lshl_add_u32 v24, v19, 12, v24
v_lshl_add_u32 v24, v17, 4, v24
s_lshl_b32 s18, s15, 17
s_lshl_b32 s19, s14, 8
s_add_u32 s18, s18, s19
v_add_u32 v25, s18, v24""")
    TP = 112
    batches = []
    for kap in range(8):
        buf = V_WO + (kap%3)*32
        def iss(kap=kap, buf=buf):
            for eta in range(2):
                for j in range(8):
                    A(f"""s_mov_b32 s18, {drow(kap,eta,j)*8192}
buffer_load_dwordx2 {vr(buf+(eta*8+j)*2,2)}, v21, s[8:11], s18 offen""")
        def proc(kap=kap, buf=buf):
            for eta in range(2):
                for T in range(4):
                    for p in range(4):
                        hi = buf+(eta*8+2*p+1)*2+T//2; lo = buf+(eta*8+2*p)*2+T//2
                        A(f'v_perm_b32 v{TP+p}, v{hi}, v{lo}, {"s31" if T%2 else "s30"}')
                        if T < 3: A(f'v_accvgpr_write_b32 a{(T*8+kap)*8+eta*4+p}, v{TP+p}')
                    if T == 3:
                        A(f'ds_write_b128 v23, {vr(TP,4)} offset:{kap*2048+eta*1024}\ns_nop 1')
        batches.append((iss, 16, proc))
    for kap in range(8):
        buf = V_WO + 96 + (kap%2)*16 if False else None
    for kap in range(8):
        buf = V_WO + ((kap+8)%3)*32
        def iss(kap=kap, buf=buf):
            for eta in range(2):
                for j in range(8):
                    A(f"""s_mov_b32 s18, {drow(kap,eta,j)*8192}
buffer_load_dword v{buf+eta*8+j}, v22, s[60:63], s18 offen""")
        def proc(kap=kap, buf=buf):
            for eta in range(2):
                for T in range(2):
                    for p in range(4):
                        A(f'v_perm_b32 v{TP+p}, v{buf+eta*8+2*p+1}, v{buf+eta*8+2*p}, {"s31" if T else "s30"}')
                        if T == 0: A(f'v_accvgpr_write_b32 a{192+kap*8+eta*4+p}, v{TP+p}')
                    if T == 1:
                        A(f'ds_write_b128 v23, {vr(TP,4)} offset:{16384+kap*2048+eta*1024}\ns_nop 1')
        batches.append((iss, 16, proc))
    for q in range(4):
        kp, eta = q//2, q%2
        buf = 48 + (q%2)*32
        def iss(kp=kp, eta=eta, buf=buf):
            for j in range(8):
                A(f"""s_mov_b32 s18, {(64*kp+32*eta+CP[j])*1024}
buffer_load_dwordx4 {vr(buf+j*4,4)}, v25, s[64:67], s18 offen""")
        def proc(kp=kp, eta=eta, buf=buf):
            for t in range(8):
                for p in range(4):
                    A(f'v_perm_b32 v{V_WO+(t*2+kp)*8+eta*4+p}, v{buf+(2*p+1)*4+t//2}, v{buf+(2*p)*4+t//2}, {"s31" if t%2 else "s30"}')
        batches.append((iss, 8, proc))
    n = len(batches)
    issued = 0
    order_issue = []
    def issue_upto(k):
        nonlocal issued
        while issued <= k and issued < n:
            batches[issued][0](); issued += 1
    issue_upto(2)
    for i in range(n):
        out_after = sum(batches[j][1] for j in range(i+1, issued))
        A(f's_waitcnt vmcnt({out_after})')
        batches[i][2]()
        nxt = i+3
        if nxt >= 18: nxt = i+2
        issue_upto(min(nxt, n-1))
    A('s_waitcnt lgkmcnt(0)')
    srd(A, 8, 32, 8192)
    A(f'''v_lshrrev_b32 v24, 1, v17
v_lshlrev_b32 v24, 10, v24
v_lshl_add_u32 v24, v18, 8, v24
v_and_b32 v25, 1, v17
v_lshl_add_u32 v24, v25, 5, v24
s_and_b32 s18, s14, 1
s_lshl_b32 s18, s18, 7             ; 32*2(w%2)*2 bytes
s_lshr_b32 s19, s14, 1
s_lshl_b32 s19, s19, 3             ; 4*(w/2)*2 bytes
s_add_u32 s18, s18, s19
v_add_u32 v24, s18, v24''')
    for kk in range(2):
        for pos in range(8):
            A(f'buffer_load_ushort v{TL+kk*8+pos}, v24, s[8:11], 0 offen offset:{(32*kk+8*(pos>>2)+(pos&3))*2}')
    A(f'''s_waitcnt vmcnt(0)
s_lshl_b32 s18, s14, 11
v_add_u32 v25, s18, v{V_LANE16}''')
    for kk in range(2):
        for p in range(4):
            A(f'v_lshl_or_b32 v{TL+32+p}, v{TL+kk*8+2*p+1}, 16, v{TL+kk*8+2*p}')
        A(f'ds_write_b128 v25, {vr(TL+32,4)} offset:{L_MA-65536*2 if False else 0}' if False else f'v_add_u32 v26, {L_MA+kk*1024}, v25\nds_write_b128 v26, {vr(TL+32,4)}')
        A('s_waitcnt lgkmcnt(0)')
    A(f"""s_and_b32 s53, s14, 1
s_lshl_b32 s53, s53, 12
s_add_u32 s53, s53, {L_KX}""")
    def dma_k(sreg, tmp):
        if NOKV and sreg != 's18': return
        A(f"""s_mov_b32 m0, s53
v_xor_b32 v{tmp}, 128, v{V_KXA}
buffer_load_dwordx4 v{V_KXA}, s[4:7], {sreg} offen lds
buffer_load_dwordx4 v{V_KXA}, s[4:7], {sreg} offen offset:1024 lds
buffer_load_dwordx4 v{tmp}, s[4:7], {sreg} offen offset:2048 lds
buffer_load_dwordx4 v{tmp}, s[4:7], {sreg} offen offset:3072 lds""")
    def load_v(sreg_v):
        if NOKV and sreg_v != 's18': return
        for T in range(2):
            A(f'buffer_load_dwordx4 {vr(V_VX+T*4,4)}, v{V_VXA}, s[4:7], {sreg_v} offen offset:{T*64}')
    if MARK: MARK(A, 5, 30)
    if MERGED: kv_ready(A, 0, 24, None)
    A("s_mov_b32 s18, 0")
    Ld0 = A.newlabel('ch_d0')
    A(f's_cmp_lt_u32 s14, 2\ns_cbranch_scc1 {Ld0}')
    dma_k('s18', 24)
    A.label(Ld0)
    load_v('s18')
    for i in range(12):
        A(f'v_mov_b64 {vr(V_ACC+2*i,2)}, 0')
    A(f"""v_mov_b32 v0, v23
v_add_u32 v{V_LANE16}, {L_MA}, v{V_LANE16}
v_add_u32 v{V_T16}, {L_MA}, v{V_T16}
s_waitcnt vmcnt(0)
s_barrier""")
    Lcw = A.newlabel('cb_wait'); Lcs = A.newlabel('cb_spin')
    A(f"""s_cmp_lg_u32 s14, 0
s_cbranch_scc1 {Lcw}
s_mov_b64 s[20:21], exec
s_mov_b64 exec, 1
v_mov_b32 v16, 1
v_mov_b32 v17, 36
global_atomic_add v17, v16, s[12:13]""")
    A.label(Lcs)
    A(f"""global_load_dword v16, v17, s[12:13] sc1
s_waitcnt vmcnt(0)
v_readfirstlane_b32 s18, v16
s_cmp_lt_u32 s18, {0 if DRY else 32}
s_cbranch_scc1 {Lcs}
s_mov_b64 exec, s[20:21]""")
    A.label(Lcw)
    A('s_barrier')
    A(f"""s_mov_b32 s34, 0
s_mov_b32 s35, 8192
s_mov_b32 s36, 0
s_mov_b32 s44, 0x3e02939f
s_mov_b32 s45, 0x3e02939f
s_mov_b32 s48, 0
s_lshl_b32 s50, s15, 19
s_add_u32 s50, s50, {hex(WS_K - L_MA*4)}
s_lshl_b32 s51, s15, 13
s_add_u32 s51, s51, {hex(WS_VT - L_MA*4)}
s_cmp_lt_u32 s14, 2
s_cselect_b32 s49, 13, 18
s_cselect_b32 s50, s50, s51
s_and_b32 s51, s14, 1
s_lshl_b32 s51, s51, 12
s_add_u32 s50, s50, s51
s_mov_b32 s55, 63
s_cmp_eq_u32 s14, 1
s_cselect_b32 s87, 2, 0x7fff
s_mov_b32 s46, -1
s_mov_b32 s47, 0""")
    for kap in range(6):
        for eta in range(2):
            A(f'ds_read_b128 {vr([V_STG, V_STG+8, V_KX, V_KX+8, V_KX+16, V_KX+24][kap]+eta*4,4)}, v0 offset:{kap*2048+eta*1024}')
    A('s_waitcnt lgkmcnt(0)')
    if timing:
        A('s_memtime s[60:61]\ns_waitcnt lgkmcnt(0)\ns_mov_b32 s67, s60')
        for i in range(10): A(f's_mov_b32 s{70+i}, 0')
    if MARK: MARK(A, 6, 16)
    Lloop = A.newlabel('ch_loop'); Lexit = A.newlabel('ch_exit')
    A.raw('.p2align 6')
    for _ in range(ALIGNPAD): A('s_nop 0')
    A.label(Lloop)
    def smf(acc, a, b, isagpr):
        bs = ar(b,8) if isagpr else vr(b,8)
        A(f'v_smfmac_f32_16x16x64_bf16 {vr(acc,4)}, {vr(a,4)}, {bs}, v{V_IDX}')
    def rdA(k0, k1):
        for kap in range(k0, k1):
            A(f'ds_read_b128 {vr(V_MA+kap*4,4)}, v{V_LANE16} offset:{kap*1024}')
    def rdW(which, kap, st):
        for eta in range(2):
            A(f'ds_read_b128 {vr(V_STG+st*8+eta*4,4)}, v0 offset:{which*16384+kap*2048+eta*1024}')
    SET = [V_STG, V_STG+8, V_KX, V_KX+8, V_KX+16, V_KX+24]
    def rdS_l(which, kap, st):
        return [f'ds_read_b128 {vr(SET[st]+eta*4,4)}, v0 offset:{which*16384+kap*2048+eta*1024}' for eta in range(2)]
    def smf_s(acc, a, b, isagpr):
        bs = ar(b,8) if isagpr else vr(b,8)
        return f'v_smfmac_f32_16x16x64_bf16 {vr(acc,4)}, {vr(a,4)}, {bs}, v{V_IDX}'
    def weave(mf, fill):
        fill = list(fill)
        for m in mf:
            A(m)
            if fill: A(fill.pop(0))
        for f in fill: A(f)
    def p1(kap):
        return [smf_s(V_ACC+T*4, V_MA+kap*4, (T*8+kap)*8, True) for T in range(3)] + [smf_s(V_ACC+12, V_MA+kap*4, SET[kap%6], False)]
    VSET = [2,3,4,5,0,1,0,1]
    def p2(kap):
        return [smf_s(V_ACC+16, V_MA+kap*4, 192+kap*8, True), smf_s(V_ACC+20, V_MA+kap*4, SET[VSET[kap]], False)]
    def rdK_l(t, ks):
        dst = V_KX+(t*4+ks)*4
        if ks == 0: return [f'ds_read_b128 {vr(dst,4)}, v{V_KXR} offset:{4096*t}']
        return [f'v_xor_b32 v{dst}, {ks*64}, v{V_KXR}', f'ds_read_b128 {vr(dst,4)}, v{dst} offset:{4096*t}']
    rdA(0, 4)
    A(f"""s_lshl_b32 s39, s34, 16
s_and_b32 s37, s34, 1
s_lshl_b32 s37, s37, 18
s_bfe_u32 s38, s34, 0x10001
s_add_u32 s52, s37, s59
s_lshl_b32 s42, s34, 13
s_lshl_b32 s43, s34, 18
s_add_u32 s41, s34, 1
s_lshl_b32 s41, s41, s49
s_add_u32 s54, s41, s50
s_waitcnt lgkmcnt(3)""")
    weave(p1(0), ['s_nop 0','s_nop 0','s_waitcnt lgkmcnt(2)'])
    Lpb = A.newlabel('ch_pollB'); Lok = A.newlabel('ch_okB'); Lnob = A.newlabel('ch_nob')
    weave(p1(1), rdS_l(0,6,0) + ['s_cmp_eq_u32 s34, 0', f's_cbranch_scc1 {Lnob}'])
    A.label(Lpb)
    A(f"""s_waitcnt vmcnt(0)
v_max3_u32 v{V_ACC+16}, v{V_MBR}, v{V_MBR+1}, v{V_MBR+2}
v_max_u32 v{V_ACC+16}, v{V_ACC+16}, v{V_MBR+3}
v_cmp_eq_u32 vcc, -1, v{V_ACC+16}
{'s_branch' if DRY else 's_cbranch_vccz'} {Lok}""")
    spin(A, Lexit)
    A(f"""buffer_load_dwordx4 {vr(V_MBR,4)}, v{V_T16}, s[4:7], s40 offen sc1
s_branch {Lpb}""")
    A.label(Lok)
    A(f"""ds_write_b128 v{V_T16}, {vr(V_MBR,4)} offset:4096""")
    Lnk2 = A.newlabel('ch_nok2')
    A(f"""s_cmp_lt_u32 s14, 2
s_cbranch_scc1 {Lnk2}""")
    dma_k('s42', V_ACC+16)
    A.label(Lnk2)
    load_v('s43')
    A.label(Lnob)
    A('s_waitcnt lgkmcnt(3)')
    weave(p1(2), rdS_l(0,7,1) + [f'ds_read_b128 {vr(V_ACC+16,4)}, v{V_PUBK}'])
    A("""s_waitcnt lgkmcnt(0)
s_barrier""")
    rdA(4, 8)
    weave(p1(3), rdS_l(1,0,2) + [f'v_lshlrev_b32 v{V_MBR}, 2, v{V_LANE16}', f's_mov_b32 m0, {L_MISC+256}'])
    Lnw = A.newlabel('ch_nowarm')
    A(f"""s_cmp_gt_u32 s55, s34
s_cbranch_scc0 {Lnw}""")
    if MERGED:
        A('s_add_u32 s86, s34, 1')
        kv_ready(A, 's86', V_MBR+1, Lexit)
    A(f"""{'s_nop 0' if NOWARM else f'buffer_load_dword v{V_MBR}, s[4:7], s54 offen lds'}""")
    A.label(Lnw)
    A('s_waitcnt lgkmcnt(2)')
    weave(p1(4), rdS_l(1,1,3) + ['s_add_u32 s58, s39, s57', 's_sub_u32 s58, s58, 0x10000'])
    Lnp = A.newlabel('ch_nopub')
    A(f"""s_cmp_eq_u32 s34, 0
s_cbranch_scc1 {Lnp}
buffer_store_dwordx4 {vr(V_ACC+16,4)}, v{V_LANE16}, s[4:7], s58 offen{' sc1' if MERGED else ''}""")
    A.label(Lnp)
    weave(p1(5), rdS_l(1,2,4) + [f'v_mov_b64 {vr(V_MBR,2)}, 0', f'v_mov_b64 {vr(V_MBR+2,2)}, 0'])
    weave(p1(6), rdS_l(1,3,5) + [f'v_mov_b64 {vr(V_ACC+16,2)}, 0', f'v_mov_b64 {vr(V_ACC+18,2)}, 0'])
    weave(p1(7), rdS_l(1,4,0))
    stamp(A, 0, timing)
    A('s_waitcnt lgkmcnt(6)')
    weave(p2(0), rdS_l(1,5,1))
    for T in range(4):
        a = V_ACC+T*4
        A(f'v_add_f32 v{a}, v{a}, v{a+1}\nv_add_f32 v{a+2}, v{a+2}, v{a+3}')
    A(f"""v_cvt_pk_bf16_f32 v{V_ACC+0}, v{V_ACC+0}, v{V_ACC+4}
v_cvt_pk_bf16_f32 v{V_ACC+1}, v{V_ACC+8}, v{V_ACC+12}
v_cvt_pk_bf16_f32 v{V_ACC+2}, v{V_ACC+2}, v{V_ACC+6}
v_cvt_pk_bf16_f32 v{V_ACC+3}, v{V_ACC+10}, v{V_ACC+14}
ds_write_b64 v{V_QKW}, {vr(V_ACC+0,2)}
ds_write_b64 v{V_QKW}, {vr(V_ACC+2,2)} offset:{QS}
s_waitcnt lgkmcnt(6)""")
    weave(p2(1), [])
    A(f"""s_waitcnt vmcnt(2) lgkmcnt(0)
s_barrier""")
    stamp(A, 1, timing)
    S = V_MA
    def rdQK_l(ks, b):
        return [f'ds_read_b128 {vr(b,4)}, v{V_QKR} offset:{ks*64}', f'ds_read_b128 {vr(b+4,4)}, v{V_QKR} offset:{8*QS+ks*64}']
    def smm_l(ks, b):
        r = []
        for t in range(3):
            a = vr(b+4,4) if t == 0 else vr(V_KX+((t-1)*4+ks)*4,4)
            c = '0' if ks == 0 else vr(S+t*4,4)
            r.append(f'v_mfma_f32_16x16x32_bf16 {vr(S+t*4,4)}, {a}, {vr(b,4)}, {c}')
        return r
    B0 = V_ACC+8; B1 = V_ACC+0
    if MERGED:
        Lpa = A.newlabel('ch_pa')
        A(f"""s_cmp_lt_u32 s34, s87
s_cbranch_scc1 {Lpa}
s_mov_b64 exec, 1
v_mov_b32 v{V_ACC+4}, 1
v_mov_b32 v{V_ACC+5}, 48
global_atomic_add v{V_ACC+5}, v{V_ACC+4}, s[12:13]
s_mov_b64 exec, -1""")
        A.label(Lpa)
    for x in rdQK_l(0, B0) + rdK_l(0,0) + rdK_l(0,1) + rdQK_l(1, B1): A(x)
    weave(p2(2) + p2(3), rdK_l(0,2) + ['s_nop 0'] + rdK_l(1,0))
    weave(p2(4) + p2(5), rdK_l(1,1) + rdK_l(0,3))
    for x in rdK_l(1,2) + rdK_l(1,3) + rdS_l(1,6,0) + rdS_l(1,7,1): A(x)
    A('s_waitcnt lgkmcnt(7)')
    weave(smm_l(0, B0), [])
    for x in rdQK_l(2, B0): A(x)
    weave(smm_l(1, B1), [])
    for x in rdQK_l(3, B1): A(x)
    A('s_waitcnt lgkmcnt(4)')
    weave(p2(6) + p2(7), [])
    A('s_waitcnt lgkmcnt(2)')
    weave(smm_l(2, B0), [])
    A('s_waitcnt lgkmcnt(0)')
    weave(smm_l(3, B1), [])
    VM = V_ACC+8; PX = V_ACC; PM = V_ACC+4
    for T in range(2):
        a = V_ACC+16+T*4
        A(f"""v_cvt_pk_bf16_f32 v{VM+2*T}, v{a}, v{a+1}
v_cvt_pk_bf16_f32 v{VM+2*T+1}, v{a+2}, v{a+3}""")
    def vpub():
        for T in range(2):
            a = V_ACC+16+T*4
            A(f"""v_add_f32 v{a}, v{a}, v{a+1}
v_add_f32 v{a+2}, v{a+2}, v{a+3}
v_cvt_pk_bf16_f32 v{a}, v{a}, v{a+2}
ds_write_b32 v{V_PUBV}, v{a} offset:{16*T}""")
    D = V_KX
    zi = [0]
    def z(n=1):
        for _ in range(n):
            if zi[0] < 16:
                A(f'v_mov_b64 {vr(D+2*zi[0],2)}, 0'); zi[0] += 1
    M = S+12; T1 = S+13; L = S+14; T2 = S+15
    Lfin = A.newlabel('ch_fin')
    A(f"""s_cmp_eq_u32 s34, 63
s_cbranch_scc1 {Lfin}""")
    z(2)
    A(f"""v_max3_f32 v{M}, v{S}, v{S+1}, v{S+2}
v_max3_f32 v{T1}, v{S+3}, v{S+4}, v{S+5}
v_max3_f32 v{M}, v{M}, v{S+6}, v{S+7}
v_max3_f32 v{T1}, v{T1}, v{S+8}, v{S+9}
v_max3_f32 v{M}, v{M}, v{S+10}, v{S+11}
v_max_f32 v{M}, v{M}, v{T1}
v_mov_b32 v{T1}, v{M}""")
    z(2)
    A(f"""v_permlane32_swap_b32 v{T1}, v{M}
v_max_f32 v{M}, v{M}, v{T1}
v_mov_b32 v{T1}, v{M}""")
    z(2)
    A(f"""v_permlane16_swap_b32 v{T1}, v{M}
v_max_f32 v{M}, v{M}, v{T1}
v_mul_f32 v{M}, s44, v{M}""")
    for i in [2,3,4,5,0,1]:
        A(f'v_pk_fma_f32 {vr(S+2*i,2)}, {vr(S+2*i,2)}, s[44:45], {vr(M,2)} op_sel_hi:[1,1,0] neg_lo:[0,0,1] neg_hi:[0,0,1]')
    for i in [4,5,6,7,8,9,10,11,0,2]:
        A(f'v_exp_f32 v{S+i}, v{S+i}')
    A(f"""v_cvt_pk_bf16_f32 v{PX}, v{S+4}, v{S+5}
v_cvt_pk_bf16_f32 v{PX+1}, v{S+6}, v{S+7}
v_cvt_pk_bf16_f32 v{PX+2}, v{S+8}, v{S+9}
v_cvt_pk_bf16_f32 v{PX+3}, v{S+10}, v{S+11}
v_cvt_pk_bf16_f32 v{PM}, v{S}, v{S}
v_cvt_pk_bf16_f32 v{PM+1}, v{S+2}, v{S+2}""")
    O = V_STG+8
    pv = [f'v_mfma_f32_16x16x32_bf16 {vr(O+T*4,4)}, {vr(V_VX+T*4,4)}, {vr(PX,4)}, 0' for T in range(2)] + \
         [f'v_mfma_f32_16x16x16_bf16 {vr(O+T*4,4)}, {vr(VM+T*2,2)}, {vr(PM,2)}, {vr(O+T*4,4)}' for T in range(2)]
    weave(pv, [f'v_add_f32 v{L}, v{S}, v{S+2}', f'v_add_f32 v{T1}, v{S+4}, v{S+5}', f'v_add_f32 v{T2}, v{S+6}, v{S+7}', f'v_add_f32 v{M}, v{S+8}, v{S+9}'])
    A(f"""v_add_f32 v{L}, v{L}, v{T1}
v_add_f32 v{T1}, v{S+10}, v{S+11}
v_add_f32 v{T2}, v{T2}, v{M}
v_add_f32 v{L}, v{L}, v{T1}
v_add_f32 v{L}, v{L}, v{T2}
v_mov_b32 v{T1}, v{L}""")
    z(2)
    A(f"""v_permlane32_swap_b32 v{T1}, v{L}
v_add_f32 v{L}, v{L}, v{T1}
v_mov_b32 v{T1}, v{L}""")
    z(2)
    A(f"""v_permlane16_swap_b32 v{T1}, v{L}
v_add_f32 v{L}, v{L}, v{T1}
v_rcp_f32 v{L}, v{L}""")
    z(1)
    for i in range(4):
        A(f'v_pk_mul_f32 {vr(O+2*i,2)}, {vr(O+2*i,2)}, {vr(L,2)} op_sel_hi:[1,0]')
    for r in range(4):
        A(f'v_cvt_pk_bf16_f32 v{S+r}, v{O+r}, v{O+4+r}')
    A(f'ds_write_b128 v{V_OW}, {vr(S,4)}')
    stamp(A, 2, timing)
    vpub()
    z(5)
    A("""s_waitcnt lgkmcnt(0)
s_barrier""")
    stamp(A, 3, timing)
    OA = V_STG
    A(f"""ds_read_b128 {vr(OA,4)}, v{V_OR}
ds_read_b128 {vr(OA+4,4)}, v{V_OR} offset:128
s_mov_b32 s41, s37""")
    A('s_waitcnt lgkmcnt(0)')
    def dpost_l(tq):
        a = D+tq*16
        r = []
        for t in range(4):
            r += [f'v_add_f32 v{a+4*t}, v{a+4*t}, v{a+4*t+1}', f'v_add_f32 v{a+4*t+2}, v{a+4*t+2}, v{a+4*t+3}']
        r += [f'v_cvt_pk_bf16_f32 v{a}, v{a}, v{a+4}', f'v_cvt_pk_bf16_f32 v{a+1}, v{a+8}, v{a+12}',
              f'v_cvt_pk_bf16_f32 v{a+2}, v{a+2}, v{a+6}', f'v_cvt_pk_bf16_f32 v{a+3}, v{a+10}, v{a+14}',
              f'v_and_or_b32 v{a}, v{a}, -2, s38',
              ('s_nop 0' if NOPST else f'buffer_store_dwordx4 {vr(a,4)}, v{V_PST}, s[4:7], s41 offen')]
        return r
    def pd(t):
        return [smf_s(D+t*4, OA, V_WO+(t*2+0)*8, False), smf_s(D+t*4, OA+4, V_WO+(t*2+1)*8, False)]
    weave(pd(0)+pd(1)+pd(2)+pd(3)+pd(4), [])
    weave(pd(5)+pd(6)+pd(7), dpost_l(0) + ['s_add_u32 s41, s41, 32768'])
    for x in dpost_l(1): A(x)
    stamp(A, 4, timing)
    PP = V_MA
    X = V_ACC
    Lw0 = A.newlabel('ch_w0'); Ljoin = A.newlabel('ch_join'); Lnk2 = A.newlabel('ch_nok2')
    def preload():
        for kap in range(6):
            for x in rdS_l(0, kap, kap): A(x)
    A(f"""s_add_u32 s40, s35, {hex(WS_M - L_MA)}
s_add_u32 s51, s52, 4096""")
    preload()
    A(f"""s_cmp_eq_u32 s14, 0
s_cbranch_scc0 {Ljoin}""")
    LpP = A.newlabel('ch_pollP'); LokP = A.newlabel('ch_okP')
    def ldP():
        for i in range(4):
            A(f'buffer_load_dwordx4 {vr(PP+i*4,4)}, v{V_LANE16}, s[4:7], s52 offen offset:{i*1024} sc1')
        for i in range(4):
            A(f'buffer_load_dwordx4 {vr(PP+16+i*4,4)}, v{V_LANE16}, s[4:7], s51 offen offset:{i*1024} sc1')
    A(f"""v_bfe_u32 v{X+8}, v{V_LANE16}, 5, 3
v_mov_b32 v{X+10}, -1
v_mov_b32 v{X+11}, -1""")
    for p in range(4):
        A(f"""v_cmp_eq_u32 vcc, {p}, v{X+8}
s_nop 1
v_cndmask_b32 v{X+p}, 0, v{V_PLD}, vcc""")
    if PDELAY: A(f's_sleep {PDELAY}')
    ldP()
    A.label(LpP)
    A(f"""s_waitcnt vmcnt(0)
v_xor_b32 v{X+8}, v{PP}, v{PP+4}
v_xor_b32 v{X+9}, v{PP+8}, v{PP+12}
v_xor_b32 v{X+12}, v{PP+16}, v{PP+20}
v_xor_b32 v{X+13}, v{PP+24}, v{PP+28}
v_xor_b32 v{X+14}, v{PP}, v{PP+8}
v_xor_b32 v{X+15}, v{PP+16}, v{PP+24}
v_or3_b32 v{X+8}, v{X+8}, v{X+9}, v{X+12}
v_or3_b32 v{X+13}, v{X+13}, v{X+14}, v{X+15}
v_xor_b32 v{X+9}, v{PP}, v{PP+16}
v_xor_b32 v{X+12}, s38, v{PP}
v_or3_b32 v{X+8}, v{X+8}, v{X+9}, v{X+12}
v_or_b32 v{X+8}, v{X+8}, v{X+13}
v_and_b32 v{X+8}, 1, v{X+8}
v_cmp_ne_u32 vcc, 0, v{X+8}
{'s_branch' if DRY else 's_cbranch_vccz'} {LokP}""")
    spin(A, Lexit)
    ldP()
    A(f's_branch {LpP}')
    A.label(LokP)
    stamp(A, 5, timing)
    for i in range(8):
        A(f'v_mfma_f32_16x16x32_bf16 {vr(X+4,4)}, {vr(X,4)}, {vr(PP+4*i,4)}, {"0" if i==0 else vr(X+4,4)}')
    A(f"""s_mov_b64 exec, s[46:47]
s_nop 6
v_cvt_pk_bf16_f32 v{X+8}, v{X+4}, v{X+5}
v_cvt_pk_bf16_f32 v{X+9}, v{X+6}, v{X+7}
v_min_u32 v{X+8}, -2, v{X+8}
v_min_u32 v{X+9}, -2, v{X+9}
buffer_store_dwordx2 {vr(X+8,2)}, v{V_MST}, s[4:7], s35 offen
buffer_store_dwordx2 {vr(X+10,2)}, v{V_MST}, s[4:7], s36 offen
s_mov_b64 exec, -1""")
    stamp(A, 6, timing)
    A.label(Ljoin)
    A('s_barrier')
    LpM = A.newlabel('ch_pollM'); LokM = A.newlabel('ch_okM')
    MAp = V_MA+4
    A(f"""buffer_load_dwordx4 {vr(MAp,4)}, v{V_T16}, s[4:7], s40 offen sc1
s_mov_b32 s36, s35
s_add_u32 s35, s35, 8192
s_cmp_eq_u32 s35, 24576
s_cselect_b32 s35, 0, s35
s_add_u32 s34, s34, 1
s_add_u32 s56, s40, 4096""")
    for i in range(12):
        A(f'v_mov_b64 {vr(V_ACC+2*i,2)}, 0')
    A.label(LpM)
    A(f"""s_waitcnt vmcnt(0)
v_max3_u32 v{V_MA}, v{MAp}, v{MAp+1}, v{MAp+2}
v_max_u32 v{V_MA}, v{V_MA}, v{MAp+3}
v_cmp_eq_u32 vcc, -1, v{V_MA}
{'s_branch' if DRY else 's_cbranch_vccz'} {LokM}""")
    spin(A, Lexit)
    A(f"""buffer_load_dwordx4 {vr(MAp,4)}, v{V_T16}, s[4:7], s40 offen sc1
s_branch {LpM}""")
    A.label(LokM)
    stamp(A, 7, timing)
    A(f"""ds_write_b128 v{V_T16}, {vr(MAp,4)}
buffer_load_dwordx4 {vr(V_MBR,4)}, v{V_T16}, s[4:7], s56 offen sc1
s_mov_b32 s40, s56
s_waitcnt lgkmcnt(0)
s_barrier""")
    stamp(A, 8, timing)
    A(f's_branch {Lloop}')
    A.label(Lfin)
    A('s_nop 4')
    vpub()
    A(f"""s_waitcnt lgkmcnt(0)
s_barrier
ds_read_b128 {vr(V_MA,4)}, v{V_PUBK}
s_add_u32 s58, s39, s57
s_waitcnt lgkmcnt(0)
buffer_store_dwordx4 {vr(V_MA,4)}, v{V_LANE16}, s[4:7], s58 offen{' sc1' if MERGED else ''}""")
    if MERGED:
        Lx = A.newlabel('ch_x')
        A(f"""s_waitcnt vmcnt(0)
s_barrier
s_cmp_lg_u32 s14, 1
s_cbranch_scc1 {Lx}
s_mov_b64 exec, 1
v_mov_b32 v16, 1
v_mov_b32 v17, 52
global_atomic_add v17, v16, s[12:13]
s_mov_b64 exec, -1""")
        A.label(Lx)
    A.label(Lexit)
    if timing:
        A(f"""s_memtime s[62:63]
s_waitcnt lgkmcnt(0)
s_sub_u32 s62, s62, s60
v_mov_b32 v16, s62
s_lshl_b32 s18, s15, 2
s_add_u32 s18, s18, 64
v_mov_b32 v17, s18
s_mov_b64 exec, 1
global_store_dword v17, v16, s[12:13]""")
        A(f"""s_lshl_b32 s18, s15, 2
s_add_u32 s18, s18, s14
s_lshl_b32 s18, s18, 6
s_add_u32 s18, s18, {hex(WS_KD)}
v_mov_b32 v17, 0""")
        for i in range(10):
            A(f"""v_mov_b32 v16, s{70+i}
buffer_store_dword v16, v17, s[4:7], s18 offen offset:{4*i}""")
    A('s_waitcnt vmcnt(0)')
```

```python
from asmlib import *
import k_chain, k_qkv2, k_ssm, k_tail2
PROF = False
def mark(A, i, t=250):
    if not PROF: return
    L = A.newlabel('mk')
    A(f"""s_cmp_lg_u32 s14, 0
s_cbranch_scc1 {L}
s_memrealtime s[94:95]
s_lshl_b32 s96, s2, 6
s_add_u32 s96, s96, {hex(WS_KD)}
s_waitcnt lgkmcnt(0)
s_mov_b64 exec, 1
v_mov_b32 v{t}, s94
v_mov_b32 v{t+1}, 0
buffer_store_dword v{t}, v{t+1}, s[4:7], s96 offen offset:{4*i}
s_waitcnt vmcnt(0)
s_mov_b64 exec, -1""")
    A.label(L)
def emit_mega(A, name='mega_kernel'):
    kernel_header(A, name)
    Lend = A.newlabel('mg_end'); Lworker = A.newlabel('mg_worker')
    A(f"""s_cmp_ge_u32 s2, 256
s_cbranch_scc1 {Lend}
s_load_dwordx2 s[22:23], s[0:1], {KA_WS}
s_load_dwordx2 s[12:13], s[0:1], {KA_DBG}
v_lshrrev_b32 v16, 6, v0
s_nop 0
v_readfirstlane_b32 s14, v16
s_waitcnt lgkmcnt(0)""")
    srd(A, 4, 22, WS_SIZE)
    k_chain.MERGED = True
    mark(A, 0)
    k_chain.MARK = mark
    k_chain.emit_elect(A, Lend)
    A(f"""s_cmp_ge_u32 s15, 32
s_cbranch_scc1 {Lworker}""")
    mark(A, 1)
    k_chain.emit_chain_body(A, False)
    mark(A, 7)
    A('s_endpgm')
    A.label(Lworker)
    Lw = A.newlabel('mg_tw')
    A(f"""s_cmp_lg_u32 s14, 0
s_cbranch_scc1 {Lw}
s_mov_b64 exec, 1
v_mov_b32 v20, 1
v_mov_b32 v21, 40
global_atomic_add v22, v21, v20, s[12:13] sc0
s_waitcnt vmcnt(0)
v_mov_b32 v21, {k_chain.L_MISC}
ds_write_b32 v21, v22
s_mov_b64 exec, -1
s_waitcnt lgkmcnt(0)""")
    A.label(Lw)
    A(f"""s_barrier
v_mov_b32 v21, {k_chain.L_MISC}
ds_read_b32 v22, v21
s_waitcnt lgkmcnt(0)
v_readfirstlane_b32 s90, v22
s_barrier
s_cmp_ge_u32 s90, 224
s_cbranch_scc1 {Lend}""")
    mark(A, 1)
    Lssm0 = A.newlabel('mg_ssm0'); Lssm = A.newlabel('mg_ssm'); Ltail = A.newlabel('mg_tail')
    A(f"""s_cmp_ge_u32 s90, 192
s_cbranch_scc1 {Lssm0}
s_mov_b32 s15, s90""")
    k_qkv2.emit_qkv_body(A)
    mark(A, 2)
    A(f"""s_cmp_ge_u32 s90, 64
s_cbranch_scc1 {Ltail}
s_add_u32 s91, s90, 64
s_mov_b32 s92, 1
s_branch {Lssm}""")
    A.label(Lssm0)
    A(f"""s_sub_u32 s91, s90, 192
s_lshl_b32 s91, s91, 1
s_mov_b32 s92, 2""")
    A.label(Lssm)
    A('s_mov_b32 s15, s91')
    k_ssm.emit_ssm_body(A, st=' sc1')
    Ls = A.newlabel('mg_sd')
    A(f"""s_cmp_lg_u32 s14, 0
s_cbranch_scc1 {Ls}
s_mov_b64 exec, 1
v_mov_b32 v20, 1
v_mov_b32 v21, 44
global_atomic_add v21, v20, s[12:13]
s_mov_b64 exec, -1""")
    A.label(Ls)
    A(f"""s_add_u32 s91, s91, 1
s_sub_u32 s92, s92, 1
s_cmp_lg_u32 s92, 0
s_cbranch_scc1 {Lssm}""")
    A.label(Ltail)
    mark(A, 3)
    A('s_mov_b32 s15, s90')
    k_tail2.emit_tail_body(A)
    mark(A, 4)
    A.label(Lend)
    A('s_endpgm')
```

```python
from asmlib import *
VW = 128
VACC = 64
VX = 80
VDMA = 8
VRD = 16
VST = 32
VPK = 24
def emit_qkv_body(A, publish=True):
    A(f'''s_lshr_b32 s68, s15, 1          ; ct
s_and_b32 s69, s15, 1           ; par
s_lshr_b32 s70, s68, 5          ; mat
s_and_b32 s71, s68, 31          ; h
s_lshl_b32 s72, s70, 3
s_add_u32 s72, s72, {KA_WQ}
s_load_dwordx2 s[8:9], s[0:1], {KA_X}
s_load_dwordx2 s[10:11], s[0:1], s72
v_and_b32 v1, 63, v0
v_and_b32 v3, 15, v1
v_lshrrev_b32 v4, 4, v1
s_waitcnt lgkmcnt(0)''')
    srd(A, 16, 8, 2048*1024)
    srd(A, 20, 10, 4*1024*1024)
    A(f'''v_lshlrev_b32 v5, 16, v4
s_lshl_b32 s28, s71, 8
s_lshl_b32 s29, s14, 6
s_add_u32 s28, s28, s29
v_lshl_add_u32 v5, v3, 2, v5
v_add_u32 v5, s28, v5
s_mov_b32 s30, 0x05040100
s_mov_b32 s31, 0x07060302
s_lshl_b32 s32, s14, 3''')
    for rr in range(8):
        A(f'''s_add_u32 s33, s32, {rr}
s_and_b32 s33, s33, 15
v_xor_b32 v{VDMA+rr}, s33, v1
v_lshlrev_b32 v{VDMA+rr}, 4, v{VDMA+rr}''')
    for q in range(4):
        A(f'''v_add_u32 v6, {4*q}, v4
v_xor_b32 v6, v6, v3
v_lshlrev_b32 v6, 4, v6
v_lshl_add_u32 v{VRD+q}, v3, 10, v6
v_add_u32 v{VRD+4+q}, 0x10000, v{VRD+q}''')
    A(f'''s_mov_b32 s34, s69
s_lshl_b32 s36, s32, 10''')
    def dma(buf, segreg):
        A(f'''s_lshl_b32 s35, {segreg}, 15
s_add_u32 s35, s35, s36''')
        for rr in range(8):
            A(f'''s_add_u32 m0, s36, {buf*32768 + rr*1024}
s_add_u32 s37, s35, {rr*1024}
buffer_load_dwordx4 v{VDMA+rr}, s[16:19], s37 offen lds''')
    dma(0, 's34')
    A('s_add_u32 s42, s34, 2')
    dma(1, 's42')
    A('s_add_u32 s42, s34, 4')
    dma(2, 's42')
    A('s_mov_b32 s38, 0')
    def wl(i):
        for j in range(8):
            A(f'''buffer_load_dword a{i*8+j}, v5, s[20:23], s38 offen
s_add_u32 s38, s38, {8192 if j<7 else 8192*25}''')
    for i in range(4): wl(i)
    for i in range(16):
        if i+4 < 16:
            wl(i+4)
            A('s_waitcnt vmcnt(32)')
        else:
            A(f's_waitcnt vmcnt({(15-i)*8})')
        for j in range(8):
            A(f'v_accvgpr_read_b32 v{VX+j}, a{i*8+j}')
        for p in range(4):
            A(f'''v_perm_b32 v{VW+(i*2+0)*4+p}, v{VX+2*p+1}, v{VX+2*p}, s30
v_perm_b32 v{VW+(i*2+1)*4+p}, v{VX+2*p+1}, v{VX+2*p}, s31''')
    A(f'''s_lshl_b32 s73, s71, 7
s_lshl_b32 s75, s70, 1
s_add_u32 s73, s73, s75
s_add_u32 s73, s73, s69
s_add_u32 s73, s73, {hex(WS_QF)}
v_mov_b32 v7, s73''')
    if publish:
        Lzi = A.newlabel('qkv_zi'); Lzo = A.newlabel('qkv_zo')
        A(f'''s_cmp_lg_u32 s14, 0
s_cbranch_scc1 {Lzo}
v_mov_b32 v6, 56''')
        A.label(Lzi)
        A(f'''global_load_dword v33, v6, s[12:13] sc1
s_waitcnt vmcnt(0)
v_readfirstlane_b32 s75, v33
s_cmp_ge_u32 s75, 32
s_cbranch_scc1 {Lzo}
s_sleep 8
s_branch {Lzi}''')
        A.label(Lzo)
    Lv = A.newlabel('qkv_v'); Ldone = A.newlabel('qkv_done')
    A(f'''s_cmp_eq_u32 s70, 2
s_cbranch_scc1 {Lv}''')
    ST = ' sc1' if publish else ''
    nseg = 32
    for isv in (0, 1):
        if isv == 0:
            A(f'''s_lshl_b32 s39, s70, 24
s_lshl_b32 s40, s71, 19
s_add_u32 s39, s39, s40
s_add_u32 s39, s39, s29
v_lshlrev_b32 v{VST}, 8, v3
v_lshl_add_u32 v{VST}, v4, 4, v{VST}
v_add_u32 v{VST}, s39, v{VST}''')
        else:
            A.label(Lv)
            A(f'''s_lshl_b32 s39, s71, 13
s_lshl_b32 s40, s14, 11
s_add_u32 s39, s39, s40
s_add_u32 s39, s39, {hex(WS_VT)}
v_lshlrev_b32 v{VST}, 7, v3
v_lshl_add_u32 v{VST}, v4, 4, v{VST}
v_add_u32 v{VST}, s39, v{VST}''')
        Lloop = A.newlabel('qkv_loop')
        A('s_mov_b32 s41, 0\ns_mov_b32 s74, -3')
        A.label(Lloop)
        for buf in range(4):
            A('''s_waitcnt vmcnt(22)
s_barrier''')
            if publish:
                Lnp = A.newlabel('qkv_np')
                A(f'''s_cmp_lg_u32 s14, 0
s_cbranch_scc1 {Lnp}
s_cmp_lt_i32 s74, 1
s_cbranch_scc1 {Lnp}
v_mov_b32 v6, s74
s_mov_b64 exec, 1
buffer_store_byte v6, v7, s[4:7], 0 offen sc1
s_mov_b64 exec, -1''')
                A.label(Lnp)
                A('s_add_u32 s74, s74, 1')
            A(f'''s_add_u32 s42, s34, 6
s_min_u32 s42, s42, 63''')
            dma((buf+3)%4, 's42')
            def rd(i, st):
                for mt in range(2):
                    A(f'ds_read_b128 {vr(VX+st*8+mt*4,4)}, v{VRD+(buf//2)*4+i%4} offset:{(i//4)*256+mt*16384+(buf%2)*32768}')
            rd(0, 0)
            for i in range(16):
                st = i % 2
                if i < 15:
                    rd(i+1, 1-st)
                    A('s_waitcnt lgkmcnt(2)')
                else:
                    A('s_waitcnt lgkmcnt(0)')
                for mt in range(2):
                    for T in range(2):
                        acc = vr(VACC+(mt*2+T)*4, 4)
                        c = '0' if i == 0 else acc
                        wf = vr(VW+(i*2+T)*4, 4); xf = vr(VX+st*8+mt*4, 4)
                        if isv: A(f'v_mfma_f32_16x16x32_bf16 {acc}, {xf}, {wf}, {c}')
                        else:   A(f'v_mfma_f32_16x16x32_bf16 {acc}, {wf}, {xf}, {c}')
            A('s_nop 7')
            if isv == 0:
                A('s_lshl_b32 s43, s34, 13')
                for mt in range(2):
                    for r in range(4):
                        A(f'v_cvt_pk_bf16_f32 v{VPK+mt*4+r}, v{VACC+(mt*2+0)*4+r}, v{VACC+(mt*2+1)*4+r}')
                    if mt: A('s_add_u32 s43, s43, 4096')
                    A(f'buffer_store_dwordx4 {vr(VPK+mt*4,4)}, v{VST}, s[4:7], s43 offen{ST}')
            else:
                A('s_lshl_b32 s43, s34, 18')
                for T in range(2):
                    for mt in range(2):
                        for rp in range(2):
                            A(f'v_cvt_pk_bf16_f32 v{VPK+T*4+mt*2+rp}, v{VACC+(mt*2+T)*4+2*rp}, v{VACC+(mt*2+T)*4+2*rp+1}')
                    A(f'buffer_store_dwordx4 {vr(VPK+T*4,4)}, v{VST}, s[4:7], s43 offen offset:{T*64}{ST}')
            A('s_add_u32 s34, s34, 2')
        A(f'''s_add_u32 s41, s41, 1
s_cmp_lt_u32 s41, {nseg//4}
s_cbranch_scc1 {Lloop}''')
        if isv == 0:
            A(f's_branch {Ldone}')
    A.label(Ldone)
    A('''s_waitcnt vmcnt(0)
s_barrier''')
    if publish:
        Lnp = A.newlabel('qkv_np')
        A(f'''s_cmp_lg_u32 s14, 0
s_cbranch_scc1 {Lnp}
v_mov_b32 v6, 32
s_mov_b64 exec, 1
buffer_store_byte v6, v7, s[4:7], 0 offen sc1
s_mov_b64 exec, -1''')
        A.label(Lnp)
```

```python
from asmlib import *
WS_P2 = 0x6000000
WS_FLAG = 0x5800000
NSET = 7
TSLEEP = 6
T_K = 0
T_Q = 8192
T_O = 32768
OS = 272
T_G = T_O + 32*OS
W0 = 128
ACC = 64
KF = 16

def emit_tail_body(A):
    A(f'''s_lshr_b32 s16, s15, 5           ; set
s_and_b32 s17, s15, 31           ; h
s_load_dwordx2 s[24:25], s[0:1], {KA_WO}
s_load_dwordx2 s[26:27], s[0:1], {KA_X}
s_load_dwordx2 s[28:29], s[0:1], {KA_GW}
s_load_dwordx2 s[32:33], s[0:1], {KA_DSKIP}
s_load_dwordx2 s[34:35], s[0:1], {KA_OUT}
v_and_b32 v1, 63, v0             ; lane
v_and_b32 v2, 15, v1             ; c
v_lshrrev_b32 v3, 4, v1          ; g
s_mov_b32 s30, 0x05040100
s_mov_b32 s31, 0x07060302
s_waitcnt lgkmcnt(0)''')
    srd(A, 8, 24, 4*1024*1024)
    srd(A, 36, 26, 2048*1024)
    srd(A, 40, 34, 2048*1024)
    srd(A, 44, 28, 1024)
    srd(A, 48, 32, 1024)
    A(f'''v_lshlrev_b32 v4, 13, v3
v_lshl_add_u32 v4, v2, 4, v4
s_lshl_b32 s18, s17, 17
s_lshl_b32 s19, s14, 8
s_add_u32 s18, s18, s19
v_add_u32 v4, s18, v4''')
    for ks in range(4):
        for j in range(8):
            A(f'''s_mov_b32 s18, {(32*ks+j)*1024}
buffer_load_dwordx4 {vr(KF+j*4,4)}, v4, s[8:11], s18 offen''')
        A('s_waitcnt vmcnt(0)')
        for t in range(8):
            for p in range(4):
                A(f'v_perm_b32 v{W0+(t*4+ks)*4+p}, v{KF+(2*p+1)*4+t//2}, v{KF+(2*p)*4+t//2}, {"s31" if t%2 else "s30"}')
    A(f'''s_and_b32 s18, s14, 1
s_lshl_b32 s18, s18, 2
v_add_u32 v4, s18, v3
v_lshlrev_b32 v4, 1, v4
v_xor_b32 v4, v4, v2
v_lshlrev_b32 v4, 4, v4
v_lshl_add_u32 v4, v3, 8, v4
s_lshl_b32 s18, s17, 19
s_lshl_b32 s19, s14, 11
s_add_u32 s18, s18, s19
v_add_u32 v4, s18, v4''')
    A(f'''v_and_b32 v5, 3, v2
v_lshrrev_b32 v6, 3, v2
v_lshl_add_u32 v5, v6, 2, v5
v_lshlrev_b32 v5, 1, v5
v_xor_b32 v5, v5, v3
v_lshlrev_b32 v5, 4, v5
v_lshl_add_u32 v5, v2, 8, v5''')
    A(f'''v_lshlrev_b32 v6, 7, v2
v_lshl_add_u32 v6, v3, 4, v6
s_lshl_b32 s18, s17, 13
s_lshr_b32 s19, s14, 1
s_lshl_b32 s20, s19, 12
s_add_u32 s18, s18, s20
s_add_u32 s18, s18, {hex(WS_VT)}
v_add_u32 v6, s18, v6''')
    A(f'''v_and_b32 v7, 7, v2
v_lshlrev_b32 v7, 8, v7
v_lshl_add_u32 v7, v3, 4, v7
s_lshl_b32 s18, s17, 11
s_add_u32 s18, s18, {hex(WS_KM)}
v_add_u32 v7, s18, v7''')
    A(f'''v_and_b32 v8, 1, v3
v_lshlrev_b32 v8, 3, v8
v_lshl_add_u32 v8, v2, 5, v8
s_lshl_b32 s18, s17, 11
s_lshl_b32 s20, s19, 10
s_add_u32 s18, s18, s20
s_add_u32 s18, s18, {hex(WS_VMT)}
v_add_u32 v8, s18, v8''')
    A(f'''s_and_b32 s20, s14, 1
s_lshl_b32 s20, s20, 4
v_add_u32 v9, s20, v2
v_mul_u32_u24 v9, {OS}, v9
v_lshl_add_u32 v9, v3, 4, v9
s_lshl_b32 s18, s19, 7
s_add_u32 s18, s18, {T_O}
v_add_u32 v9, s18, v9''')
    A(f'''v_mul_u32_u24 v10, {OS}, v2
v_lshl_add_u32 v10, v3, 4, v10
v_add_u32 v10, {T_O}, v10''')
    A(f'''v_lshlrev_b32 v11, 17, v3
v_lshl_add_u32 v11, v2, 4, v11
s_lshl_b32 s18, s14, 13
s_lshl_b32 s20, s17, 8
s_add_u32 s18, s18, s20
s_add_u32 s18, s18, {hex(WS_P2)}
v_add_u32 v11, s18, v11''')
    A(f'''s_and_b32 s20, s14, 1
s_lshl_b32 s20, s20, 4
v_add_u32 v12, s20, v2
v_lshlrev_b32 v13, 2, v3
v_sub_u32 v12, v12, v13
v_lshlrev_b32 v13, 4, v1         ; v13 = lane*16
v_and_b32 v14, 1, v2
v_lshlrev_b32 v14, 4, v14
v_mov_b32 v15, 0x3f80
v_lshlrev_b32 v14, v14, v15
s_mov_b32 s52, 0x3e02939f        ; SC
s_mov_b32 s53, 0xff800000        ; -inf
s_lshl_b32 s54, s14, 11
s_and_b32 s55, s14, 1
s_lshl_b32 s55, s55, 12          ; qt*4096
s_mov_b32 s56, s16               ; segment
s_mov_b32 s57, 0''')
    A('s_mov_b32 s93, 0')
    def wait0(addr_setup, load, cmp):
        Lw = A.newlabel('tl_w'); Lo = A.newlabel('tl_wo')
        A(f"""s_cmp_lg_u32 s14, 0
s_cbranch_scc1 {Lo}""")
        A(addr_setup)
        A.label(Lw)
        A(f"""{load}
s_waitcnt vmcnt(0)
{cmp}
s_add_u32 s93, s93, 1
s_cmp_lt_u32 s93, 0x80000
s_cselect_b64 vcc, vcc, 0
s_cbranch_vccz {Lo}
s_sleep {TSLEEP}
s_branch {Lw}""")
        A.label(Lo)
        A('s_waitcnt vmcnt(0)\ns_barrier')
    wait0('v_mov_b32 v56, 56', 'global_load_dword v57, v56, s[12:13] sc1', 'v_cmp_gt_u32 vcc, 32, v57')
    wait0(f"""v_min_u32 v56, 5, v1
s_lshl_b32 s63, s17, 7
s_add_u32 s63, s63, {hex(WS_QF)}""", 'buffer_load_ubyte v57, v56, s[4:7], s63 offen sc1', 'v_cmp_ne_u32 vcc, 32, v57')
    KM = 16; VMf = 32; XR = 40; GW = 44; XC = 48; YC = 50; DS = 52
    AVX = 0; APP = 32; AOF = 64
    def xloads(segreg, buf):
        A(f"""s_lshl_b32 s58, {segreg}, 13
s_add_u32 s59, s58, {hex(WS_K)}
s_add_u32 m0, s54, {buf*16384}
s_lshl_b32 s60, {segreg}, 18
buffer_load_dwordx4 v4, s[4:7], s59 offen lds
buffer_load_dwordx4 v4, s[4:7], s59 offen offset:1024 lds
s_add_u32 m0, s54, {buf*16384+T_Q}
s_nop 0
buffer_load_dwordx4 v4, s[4:7], s58 offen lds
buffer_load_dwordx4 v4, s[4:7], s58 offen offset:1024 lds""")
        for et in range(2):
            for T in range(2):
                A(f'buffer_load_dwordx4 {ar(AVX+buf*16+(et*2+T)*4,4)}, v6, s[4:7], s60 offen offset:{et*2048+T*64}')
    def red_issue(segreg, cntreg):
        wait0(f"""s_lshl_b32 s63, s16, 5
v_and_b32 v56, 31, v1
v_add_u32 v56, s63, v56
s_mov_b32 s63, {hex(WS_FLAG)}""", 'buffer_load_ubyte v57, v56, s[4:7], s63 offen sc1', f'v_cmp_gt_u32 vcc, {cntreg}, v57')
        A(f"""s_lshl_b32 s63, s17, 15
s_lshl_b32 s64, {segreg}, 20
s_add_u32 s63, s63, s64
s_lshl_b32 s64, s14, 13
s_add_u32 s63, s63, s64
s_add_u32 s63, s63, {hex(WS_P2)}
s_add_u32 s64, s63, 4096""")
        for i in range(4):
            A(f'buffer_load_dwordx4 {ar(APP+i*4,4)}, v13, s[4:7], s63 offen offset:{i*1024} sc1')
        for i in range(4):
            A(f'buffer_load_dwordx4 {ar(APP+16+i*4,4)}, v13, s[4:7], s64 offen offset:{i*1024} sc1')
        A(f"""s_lshl_b32 s65, {segreg}, 5
s_add_u32 s65, s65, s17
s_lshl_b32 s65, s65, 10
buffer_load_dwordx4 {vr(XR,4)}, v13, s[36:39], s65 offen
buffer_load_dwordx4 {vr(GW,4)}, v13, s[44:47], 0 offen
buffer_load_dwordx2 {vr(XC,2)}, v15, s[36:39], s65 offen
s_add_u32 s66, s65, {hex(WS_Y)}
buffer_load_dwordx2 {vr(YC,2)}, v15, s[4:7], s66 offen sc1
buffer_load_dwordx2 {vr(DS,2)}, v15, s[48:51], 0 offen""")
    def red_compute():
        SEL = 16; DD = 20; TT = 24
        A('v_lshrrev_b32 v57, 1, v2')
        for p in range(4):
            A(f"""v_cmp_eq_u32 vcc, {p}, v57
s_nop 1
v_cndmask_b32 v{SEL+p}, 0, v14, vcc""")
        A('s_nop 1')
        for i in range(8):
            A(f'v_mfma_f32_16x16x32_bf16 {vr(DD,4)}, {vr(SEL,4)}, {ar(APP+4*i,4)}, {"0" if i==0 else vr(DD,4)}')
        for i in range(4):
            A(f"""v_lshlrev_b32 v{TT}, 16, v{XR+i}
v_and_b32 v{TT+1}, 0xffff0000, v{XR+i}
v_lshlrev_b32 v{TT+2}, 16, v{GW+i}
v_and_b32 v{TT+3}, 0xffff0000, v{GW+i}
v_mul_f32 v{TT}, v{TT}, v{TT+2}
v_mul_f32 v{TT+1}, v{TT+1}, v{TT+3}
v_cvt_pk_bf16_f32 v{TT}, v{TT}, v{TT+1}
v_lshlrev_b32 v{TT+1}, 16, v{TT}
v_and_b32 v{TT}, 0xffff0000, v{TT}
v_add_f32 v{TT}, v{TT}, v{TT+1}""")
            A(f'v_mov_b32 v{TT+4}, v{TT}' if i == 0 else f'v_add_f32 v{TT+4}, v{TT+4}, v{TT}')
        G = TT+4
        A(f"""s_nop 1
v_add_f32_dpp v{G}, v{G}, v{G} quad_perm:[1,0,3,2] row_mask:0xf bank_mask:0xf
s_nop 1
v_add_f32_dpp v{G}, v{G}, v{G} quad_perm:[2,3,0,1] row_mask:0xf bank_mask:0xf
s_nop 1
v_add_f32_dpp v{G}, v{G}, v{G} row_ror:4 row_mask:0xf bank_mask:0xf
s_nop 1
v_add_f32_dpp v{G}, v{G}, v{G} row_ror:8 row_mask:0xf bank_mask:0xf
v_mov_b32 v{TT}, v{G}
s_nop 1
v_permlane32_swap_b32 v{TT}, v{G}
v_add_f32 v{G}, v{G}, v{TT}
v_mov_b32 v{TT}, v{G}
s_nop 1
v_permlane16_swap_b32 v{TT}, v{G}
v_add_f32 v{G}, v{G}, v{TT}
v_cvt_pk_bf16_f32 v{G}, v{G}, v{G}
v_lshlrev_b32 v{G}, 16, v{G}
v_mul_f32 v{G}, 0xbfb8aa3b, v{G}
v_exp_f32 v{G}, v{G}
s_nop 0
v_add_f32 v{G}, 1.0, v{G}
v_rcp_f32 v{G}, v{G}
s_nop 0
v_cvt_pk_bf16_f32 v{G}, v{G}, v{G}
v_lshlrev_b32 v{G}, 16, v{G}
v_sub_f32 v{G+1}, 1.0, v{G}
v_cvt_pk_bf16_f32 v{G+1}, v{G+1}, v{G+1}
v_lshlrev_b32 v{G+1}, 16, v{G+1}""")
        for i in range(2):
            A(f"""v_cvt_pk_bf16_f32 v{TT}, v{DD+2*i}, v{DD+2*i+1}
v_lshlrev_b32 v{TT+1}, 16, v{TT}
v_and_b32 v{TT}, 0xffff0000, v{TT}
v_mul_f32 v{TT+1}, v{G}, v{TT+1}
v_mul_f32 v{TT}, v{G}, v{TT}
v_cvt_pk_bf16_f32 v{DD+2*i}, v{TT+1}, v{TT}
v_lshlrev_b32 v{TT}, 16, v{XC+i}
v_and_b32 v{TT+1}, 0xffff0000, v{XC+i}
v_lshlrev_b32 v{TT+2}, 16, v{DS+i}
v_and_b32 v{TT+3}, 0xffff0000, v{DS+i}
v_mul_f32 v{TT}, v{TT}, v{TT+2}
v_mul_f32 v{TT+1}, v{TT+1}, v{TT+3}
v_cvt_pk_bf16_f32 v{TT}, v{TT}, v{TT+1}
v_lshlrev_b32 v{TT+1}, 16, v{TT}
v_and_b32 v{TT}, 0xffff0000, v{TT}
v_lshlrev_b32 v{TT+2}, 16, v{YC+i}
v_and_b32 v{TT+3}, 0xffff0000, v{YC+i}
v_add_f32 v{TT+1}, v{TT+1}, v{TT+2}
v_add_f32 v{TT}, v{TT}, v{TT+3}
v_cvt_pk_bf16_f32 v{TT}, v{TT+1}, v{TT}
v_lshlrev_b32 v{TT+1}, 16, v{TT}
v_and_b32 v{TT}, 0xffff0000, v{TT}
v_mul_f32 v{TT+1}, v{G+1}, v{TT+1}
v_mul_f32 v{TT}, v{G+1}, v{TT}
v_cvt_pk_bf16_f32 v{TT}, v{TT+1}, v{TT}
v_lshlrev_b32 v{TT+1}, 16, v{TT}
v_and_b32 v{TT}, 0xffff0000, v{TT}
v_lshlrev_b32 v{TT+2}, 16, v{DD+2*i}
v_and_b32 v{TT+3}, 0xffff0000, v{DD+2*i}
v_add_f32 v{TT+1}, v{TT+1}, v{TT+2}
v_add_f32 v{TT}, v{TT}, v{TT+3}
v_cvt_pk_bf16_f32 v{XR+i}, v{TT+1}, v{TT}""")
        A(f"""s_mov_b32 exec_hi, 0
buffer_store_dwordx2 {vr(XR,2)}, v15, s[40:43], s65 offen
s_mov_b32 exec_hi, -1""")
    A(f"""v_and_b32 v15, 1, v3
v_lshlrev_b32 v15, 3, v15
v_lshl_add_u32 v15, v2, 4, v15
s_lshl_b32 s66, s14, 8
v_add_u32 v15, s66, v15""")
    xloads('s56', 0)
    wait0('v_mov_b32 v56, 44', 'global_load_dword v57, v56, s[12:13] sc1', 'v_cmp_gt_u32 vcc, 128, v57')
    Lloop = A.newlabel('tl_loop'); Lfin = A.newlabel('tl_fin')
    A.label(Lloop)
    for buf in range(2):
        wait0(f"""s_add_u32 s63, s56, 1
s_lshl_b32 s63, s63, 5
s_cmp_lt_u32 s56, 62
s_cselect_b32 s63, s63, 32
s_cselect_b32 s64, 48, 52
v_mov_b32 v56, s64""", 'global_load_dword v57, v56, s[12:13] sc1', 'v_cmp_gt_u32 vcc, s63, v57')
        A('s_lshl_b32 s61, s56, 16')
        Lnr = A.newlabel('tl_nr')
        A(f"""s_cmp_eq_u32 s57, 0
s_cbranch_scc1 {Lnr}
s_sub_u32 s67, s56, {NSET}""")
        red_issue('s67', 's57')
        A.label(Lnr)
        for ks in range(4):
            A(f'buffer_load_dwordx4 {vr(KM+ks*4,4)}, v7, s[4:7], s61 offen offset:{ks*64} sc1')
        for et in range(2):
            for T in range(2):
                A(f'buffer_load_dwordx2 {vr(VMf+(et*2+T)*2,2)}, v8, s[4:7], s61 offen offset:{et*512+T*16} sc1')
        A('s_barrier')
        S = ACC; QF = ACC+16; KX = ACC+32
        A(f'v_add_u32 v56, s55, v5')
        for ks in range(4):
            if ks:
                A(f'v_xor_b32 v57, {ks*64}, v5\nv_xor_b32 v58, {ks*64}, v56')
            ak = 'v57' if ks else 'v5'; aq = 'v58' if ks else 'v56'
            A(f"""ds_read_b128 {vr(QF+ks*4,4)}, {aq} offset:{buf*16384+T_Q}
ds_read_b128 {vr(KX+ks*4,4)}, {ak} offset:{buf*16384+T_K}
ds_read_b128 {vr(KX+16+ks*4,4)}, {ak} offset:{buf*16384+T_K+4096}""")
        for ks in range(4):
            A(f's_waitcnt lgkmcnt({9-3*ks})')
            for t in (1,2):
                A(f'v_mfma_f32_16x16x32_bf16 {vr(S+t*4,4)}, {vr(KX+(t-1)*16+ks*4,4)}, {vr(QF+ks*4,4)}, {"0" if ks==0 else vr(S+t*4,4)}')
        A('s_waitcnt vmcnt(4)')
        for ks in range(4):
            A(f'v_mfma_f32_16x16x32_bf16 {vr(S,4)}, {vr(KM+ks*4,4)}, {vr(QF+ks*4,4)}, {"0" if ks==0 else vr(S,4)}')
        A(f'v_mov_b32 v57, s53')
        for kt in range(2):
            for r in range(4):
                A(f"""v_cmp_le_i32 vcc, {16*kt+r}, v12
s_nop 1
v_cndmask_b32 v{S+4+4*kt+r}, v57, v{S+4+4*kt+r}, vcc""")
        A(f"""v_cmp_gt_u32 vcc, 2, v3
s_nop 1""")
        for r in range(4):
            A(f'v_cndmask_b32 v{S+r}, v57, v{S+r}, vcc')
        M = S+12; T1 = S+13; L = S+14; T2 = S+15
        A(f"""v_max3_f32 v{M}, v{S}, v{S+1}, v{S+2}
v_max3_f32 v{T1}, v{S+3}, v{S+4}, v{S+5}
v_max3_f32 v{M}, v{M}, v{S+6}, v{S+7}
v_max3_f32 v{T1}, v{T1}, v{S+8}, v{S+9}
v_max3_f32 v{M}, v{M}, v{S+10}, v{S+11}
v_max_f32 v{M}, v{M}, v{T1}
v_mov_b32 v{T1}, v{M}
s_nop 1
v_permlane32_swap_b32 v{T1}, v{M}
v_max_f32 v{M}, v{M}, v{T1}
v_mov_b32 v{T1}, v{M}
s_nop 1
v_permlane16_swap_b32 v{T1}, v{M}
v_max_f32 v{M}, v{M}, v{T1}
v_mul_f32 v{M}, s52, v{M}""")
        for i in range(12):
            A(f'v_fma_f32 v{S+i}, v{S+i}, s52, -v{M}')
        for i in range(12):
            A(f'v_exp_f32 v{S+i}, v{S+i}')
        A(f"""s_nop 0
v_add_f32 v{L}, v{S}, v{S+1}
v_add_f32 v{T1}, v{S+2}, v{S+3}
v_add_f32 v{T2}, v{S+4}, v{S+5}
v_add_f32 v{M}, v{S+6}, v{S+7}
v_add_f32 v{L}, v{L}, v{T1}
v_add_f32 v{T1}, v{S+8}, v{S+9}
v_add_f32 v{T2}, v{T2}, v{M}
v_add_f32 v{M}, v{S+10}, v{S+11}
v_add_f32 v{L}, v{L}, v{T1}
v_add_f32 v{T2}, v{T2}, v{M}
v_add_f32 v{L}, v{L}, v{T2}
v_mov_b32 v{T1}, v{L}
s_nop 1
v_permlane32_swap_b32 v{T1}, v{L}
v_add_f32 v{L}, v{L}, v{T1}
v_mov_b32 v{T1}, v{L}
s_nop 1
v_permlane16_swap_b32 v{T1}, v{L}
v_add_f32 v{L}, v{L}, v{T1}
v_rcp_f32 v{L}, v{L}
s_nop 0""")
        for i in range(12):
            A(f'v_mul_f32 v{S+i}, v{S+i}, v{L}')
        PX = QF; PM = QF+4; O = KX
        A(f"""v_cvt_pk_bf16_f32 v{PX}, v{S+4}, v{S+5}
v_cvt_pk_bf16_f32 v{PX+1}, v{S+6}, v{S+7}
v_cvt_pk_bf16_f32 v{PX+2}, v{S+8}, v{S+9}
v_cvt_pk_bf16_f32 v{PX+3}, v{S+10}, v{S+11}
v_cvt_pk_bf16_f32 v{PM}, v{S}, v{S+1}
v_cvt_pk_bf16_f32 v{PM+1}, v{S+2}, v{S+3}
s_waitcnt vmcnt(0)""")
        for i in range(4):
            A(f'v_mfma_f32_16x16x32_bf16 {vr(O+i*4,4)}, {ar(AVX+buf*16+i*4,4)}, {vr(PX,4)}, 0')
        for i in range(4):
            A(f'v_mfma_f32_16x16x16_bf16 {vr(O+i*4,4)}, {vr(VMf+i*2,2)}, {vr(PM,2)}, {vr(O+i*4,4)}')
        Lnx = A.newlabel('tl_nx')
        A(f"""s_add_u32 s67, s56, {NSET}
s_cmp_ge_u32 s67, 64
s_cbranch_scc1 {Lnx}""")
        xloads('s67', 1-buf)
        A.label(Lnx)
        A('s_nop 4')
        for et in range(2):
            for r in range(4):
                A(f'v_cvt_pk_bf16_f32 v{S+et*4+r}, v{O+et*8+r}, v{O+et*8+4+r}')
            A(f'ds_write_b128 v9, {vr(S+et*4,4)} offset:{et*64}')
        A("""s_waitcnt lgkmcnt(0)
s_barrier""")
        for mt in range(2):
            for ks in range(4):
                A(f'ds_read_b128 {ar(AOF+(mt*4+ks)*4,4)}, v10 offset:{mt*16*OS+ks*64}')
        A(f's_lshl_b32 s62, s56, 20')
        for mt in range(2):
            for ks in range(4):
                A(f's_waitcnt lgkmcnt({7-(mt*4+ks)})')
                for t in range(8):
                    acc = vr(ACC+(mt*8+t)*4,4)
                    A(f'v_mfma_f32_16x16x32_bf16 {acc}, {ar(AOF+(mt*4+ks)*4,4)}, {vr(W0+(t*4+ks)*4,4)}, {"0" if ks==0 else acc}')
        A('s_nop 7')
        for mt in range(2):
            for r in range(4):
                b = 16 + ((mt*4+r)%4)*4
                for p in range(4):
                    A(f'v_cvt_pk_bf16_f32 v{b+p}, v{ACC+(mt*8+2*p)*4+r}, v{ACC+(mt*8+2*p+1)*4+r}')
                A(f"""s_add_u32 s63, s62, {(16*mt+r)*32768}
buffer_store_dwordx4 {vr(b,4)}, v11, s[4:7], s63 offen sc1""")
        Lnc = A.newlabel('tl_nc')
        A(f"""s_cmp_eq_u32 s57, 0
s_cbranch_scc1 {Lnc}
s_nop 1""")
        red_compute()
        A.label(Lnc)
        A(f"""s_add_u32 s57, s57, 1
s_waitcnt vmcnt(0)
s_barrier""")
        Lnp = A.newlabel('tl_np')
        A(f"""s_cmp_lg_u32 s14, 0
s_cbranch_scc1 {Lnp}
s_mov_b64 exec, 1
v_mov_b32 v56, s57
v_mov_b32 v57, s15
s_mov_b32 s63, {hex(WS_FLAG)}
buffer_store_byte v56, v57, s[4:7], s63 offen sc1
s_mov_b64 exec, -1""")
        A.label(Lnp)
        A(f"""s_add_u32 s56, s56, {NSET}
s_cmp_ge_u32 s56, 64
s_cbranch_scc1 {Lfin}""")
    A(f's_branch {Lloop}')
    A.label(Lfin)
    A(f's_sub_u32 s67, s56, {NSET}')
    red_issue('s67', 's57')
    A('s_waitcnt vmcnt(0)')
    red_compute()
    A('s_waitcnt vmcnt(0)')
```

```python
import sys
sys.path.insert(0, 'gen')
from asmlib import *
import k_qkv
HDR = open('gated_mix__memory_aug_recurrent_mem_tr__ssm_conv_s4__prompt.s.ref').read().split('; Override launch')[0]
def build(kernels, out):
    A = Asm()
    s = HDR
    for k in kernels:
        s += f'; @launch kernel={k[0]} grid=({k[2]},1,1) block=({k[3]},1,1) lds={k[4]}\n'
    s += '.amdgcn_target "amdgcn-amd-amdhsa--gfx950"\n.text\n'
    seen = set()
    for k in kernels:
        if k[0] in seen: continue
        seen.add(k[0]); k[1](A)
    s += A.text()
    s += '.section .rodata,"a"\n'
    seen = set()
    for k in kernels:
        if k[0] in seen: continue
        seen.add(k[0])
        s += '.p2align 6\n' + kernel_desc(k[0], k[5], k[6], k[7])
    open(out, 'w').write(s)
if __name__ == '__main__':
    build([('qkv_kernel', k_qkv.emit_qkv, 192, 256, 65536, 256, 64, 256)], 'k1.s')
    import k_chain
    build([('qkv_kernel', k_qkv.emit_qkv, 192, 256, 65536, 256, 64, 256),
           ('chain_kernel', lambda A: k_chain.emit_chain_kernel(A, timing=True), 256, 256, 163840, 512, 96, 256)], 'k2.s')
    k_chain.STAMPS = False
    build([('qkv_kernel', k_qkv.emit_qkv, 192, 256, 65536, 256, 64, 256),
           ('chain_kernel', lambda A: k_chain.emit_chain_kernel(A, timing=True), 256, 256, 163840, 512, 96, 256)], 'k2n.s')
    k_chain.STAMPS = True; k_chain.DRY = True
    build([('chain_kernel', lambda A: k_chain.emit_chain_kernel(A, timing=True), 256, 256, 163840, 512, 96, 256)], 'k2d.s')
    k_chain.NOKV = True
    build([('chain_kernel', lambda A: k_chain.emit_chain_kernel(A, timing=True), 256, 256, 163840, 512, 96, 256)], 'k2d1.s')
    k_chain.NOPST = True
    build([('chain_kernel', lambda A: k_chain.emit_chain_kernel(A, timing=True), 256, 256, 163840, 512, 96, 256)], 'k2d2.s')
    k_chain.NOWARM = True
    build([('chain_kernel', lambda A: k_chain.emit_chain_kernel(A, timing=True), 256, 256, 163840, 512, 96, 256)], 'k2d3.s')
    k_chain.NOKV = False; k_chain.NOPST = False; k_chain.NOWARM = False; k_chain.DRY = False; k_chain.TRACE = True
    build([('qkv_kernel', k_qkv.emit_qkv, 192, 256, 65536, 256, 64, 256),
           ('chain_kernel', lambda A: k_chain.emit_chain_kernel(A, timing=True), 256, 256, 163840, 512, 96, 256)], 'k2t.s')
    import k_tail
    k_chain.TRACE = False; k_chain.STAMPS = False
    build([('qkv_kernel', k_qkv.emit_qkv, 192, 256, 65536, 256, 64, 256),
           ('chain_kernel', lambda A: k_chain.emit_chain_kernel(A, timing=False), 256, 256, 163840, 512, 96, 256),
           ('tail_kernel', k_tail.emit_tail_kernel, 224, 256, 163840, 256, 96, 256)], 'k3.s')
    import k_ssm
    build([('ssm_kernel', k_ssm.emit_ssm_kernel, 128, 256, 163840, 128, 96, 128)], 'k4.s')
    build([('qkv_kernel', k_qkv.emit_qkv, 192, 256, 65536, 256, 64, 256),
           ('ssm_kernel', k_ssm.emit_ssm_kernel, 128, 256, 163840, 128, 96, 128),
           ('chain_kernel', lambda A: k_chain.emit_chain_kernel(A, timing=False), 256, 256, 163840, 512, 96, 256),
           ('tail_kernel', k_tail.emit_tail_kernel, 224, 256, 163840, 256, 96, 256)], 'k5.s')
    import k_mega
    build([('mega_kernel', k_mega.emit_mega, 256, 256, 163840, 512, 100, 256)], 'k6.s')
    k_mega.PROF = True
    build([('mega_kernel', k_mega.emit_mega, 256, 256, 163840, 512, 100, 256)], 'k6p.s')
    k_mega.PROF = False; k_chain.MARK = None
    for pad in (1,2,3):
        k_chain.ALIGNPAD = pad
        build([('mega_kernel', k_mega.emit_mega, 256, 256, 163840, 512, 100, 256)], f'k6a{pad}.s')
    k_chain.ALIGNPAD = 0
```

```python
import sys
sys.path.insert(0, 'gen')
from asmlib import *
import k_qkv
HDR = open('gated_mix__memory_aug_recurrent_mem_tr__ssm_conv_s4__prompt.s.ref').read().split('; Override launch')[0]
def build(kernels, out):
    A = Asm()
    s = HDR
    for k in kernels:
        s += f'; @launch kernel={k[0]} grid=({k[2]},1,1) block=({k[3]},1,1) lds={k[4]}\n'
    s += '.amdgcn_target "amdgcn-amd-amdhsa--gfx950"\n.text\n'
    seen = set()
    for k in kernels:
        if k[0] in seen: continue
        seen.add(k[0]); k[1](A)
    s += A.text()
    s += '.section .rodata,"a"\n'
    seen = set()
    for k in kernels:
        if k[0] in seen: continue
        seen.add(k[0])
        s += '.p2align 6\n' + kernel_desc(k[0], k[5], k[6], k[7])
    open(out, 'w').write(s)
if __name__ == '__main__':
    build([('qkv_kernel', k_qkv.emit_qkv, 192, 256, 65536, 256, 64, 256)], 'k1.s')
    import k_chain
    build([('qkv_kernel', k_qkv.emit_qkv, 192, 256, 65536, 256, 64, 256),
           ('chain_kernel', lambda A: k_chain.emit_chain_kernel(A, timing=True), 256, 256, 163840, 512, 100, 256)], 'k2.s')
    k_chain.STAMPS = False
    build([('qkv_kernel', k_qkv.emit_qkv, 192, 256, 65536, 256, 64, 256),
           ('chain_kernel', lambda A: k_chain.emit_chain_kernel(A, timing=True), 256, 256, 163840, 512, 100, 256)], 'k2n.s')
    k_chain.STAMPS = True; k_chain.DRY = True
    build([('chain_kernel', lambda A: k_chain.emit_chain_kernel(A, timing=True), 256, 256, 163840, 512, 100, 256)], 'k2d.s')
    k_chain.NOKV = True
    build([('chain_kernel', lambda A: k_chain.emit_chain_kernel(A, timing=True), 256, 256, 163840, 512, 100, 256)], 'k2d1.s')
    k_chain.NOPST = True
    build([('chain_kernel', lambda A: k_chain.emit_chain_kernel(A, timing=True), 256, 256, 163840, 512, 100, 256)], 'k2d2.s')
    k_chain.NOWARM = True
    build([('chain_kernel', lambda A: k_chain.emit_chain_kernel(A, timing=True), 256, 256, 163840, 512, 100, 256)], 'k2d3.s')
    k_chain.NOKV = False; k_chain.NOPST = False; k_chain.NOWARM = False; k_chain.DRY = False; k_chain.TRACE = True
    build([('qkv_kernel', k_qkv.emit_qkv, 192, 256, 65536, 256, 64, 256),
           ('chain_kernel', lambda A: k_chain.emit_chain_kernel(A, timing=True), 256, 256, 163840, 512, 100, 256)], 'k2t.s')
    import k_tail
    k_chain.TRACE = False; k_chain.STAMPS = False
    build([('qkv_kernel', k_qkv.emit_qkv, 192, 256, 65536, 256, 64, 256),
           ('chain_kernel', lambda A: k_chain.emit_chain_kernel(A, timing=False), 256, 256, 163840, 512, 100, 256),
           ('tail_kernel', k_tail.emit_tail_kernel, 224, 256, 163840, 256, 96, 256)], 'k3.s')
    import k_ssm
    build([('ssm_kernel', k_ssm.emit_ssm_kernel, 128, 256, 163840, 128, 96, 128)], 'k4.s')
    build([('qkv_kernel', k_qkv.emit_qkv, 192, 256, 65536, 256, 64, 256),
           ('ssm_kernel', k_ssm.emit_ssm_kernel, 128, 256, 163840, 128, 96, 128),
           ('chain_kernel', lambda A: k_chain.emit_chain_kernel(A, timing=False), 256, 256, 163840, 512, 100, 256),
           ('tail_kernel', k_tail.emit_tail_kernel, 224, 256, 163840, 256, 96, 256)], 'k5.s')
    import k_mega
    build([('mega_kernel', k_mega.emit_mega, 256, 256, 163840, 512, 100, 256)], 'k6.s')
    k_mega.PROF = True
    build([('mega_kernel', k_mega.emit_mega, 256, 256, 163840, 512, 100, 256)], 'k6p.s')
    k_mega.PROF = False; k_chain.MARK = None
    for pad in (1,2,3):
        k_chain.ALIGNPAD = pad
        build([('mega_kernel', k_mega.emit_mega, 256, 256, 163840, 512, 100, 256)], f'k6a{pad}.s')
    k_chain.ALIGNPAD = 0
    k_mega.CTIMING = True; k_chain.STAMPS = True
    build([('mega_kernel', k_mega.emit_mega, 256, 256, 163840, 512, 100, 256)], 'k6t.s')
    k_mega.CTIMING = False; k_chain.STAMPS = False
    k_mega.CTIMING = True; k_chain.TRACE = True
    build([('mega_kernel', k_mega.emit_mega, 256, 256, 163840, 512, 100, 256)], 'k6r.s')
    k_mega.CTIMING = False; k_chain.TRACE = False
    for pd, md in [(2,0),(4,0),(0,3),(3,3),(5,5)]:
        k_chain.PDELAY = pd; k_chain.MDELAY = md
        build([('mega_kernel', k_mega.emit_mega, 256, 256, 163840, 512, 100, 256)], f'k6d{pd}{md}.s')
    k_chain.PDELAY = 0; k_chain.MDELAY = 0
```

```python
from asmlib import *

L_W  = 0
L_MA = 131072
L_QK = 139264
L_O  = 139264 + 16*288
L_MISC = L_O + 16*288
L_KX = L_MISC + 1024
L_VM = L_KX + 8192
QS = 288
V_LANE16 = 1
V_IDX = 2
V_PST = 3
V_PLD = 4
V_MST = 5
V_T16 = 6
V_QKW = 7
V_QKR = 8
V_OW = 9
V_OR = 10
V_KXA = 11
V_VXA = 12
V_PUBK = 13
V_PUBV = 14
V_KXR = 15
V_MA = 16
V_KX = 48
V_VX = 80
V_STG = 88
V_ACC = 104
V_MB = 0
V_WO = 128
V_MBR = 124

SC = 0.08838834764831845*1.4426950408889634

SPINBOUND = True
DRY = False
MERGED = False
ALIGNPAD = 0
MARK = None
WS_FLAG = 0x5800000
PDELAY = 0
MDELAY = 0
NOKV = False
NOPST = False
NOWARM = False
def spin(A, Lexit):
    if SPINBOUND:
        A(f'''s_add_u32 s48, s48, 1
s_cmp_gt_u32 s48, 0x100000
s_cbranch_scc1 {Lexit}''')

STAMPS = True
TRACE = False
def stamp(A, i, timing):
    if timing and TRACE:
        L = A.newlabel('tr')
        A(f'''s_cmp_lg_u32 s34, {41 if i >= 6 else 40}
s_cbranch_scc1 {L}
s_memrealtime s[64:65]
s_waitcnt lgkmcnt(0)
s_mov_b32 s{70+i}, s64''')
        A.label(L)
    elif timing and STAMPS:
        A(f'''s_memtime s[{64}:{65}]
s_waitcnt lgkmcnt(0)
s_sub_u32 s66, s64, s67
s_add_u32 s{70+i}, s{70+i}, s66
s_mov_b32 s67, s64''')

def kv_ready(A, target, t0, Lexit):
    Lc = A.newlabel('kv_chk'); Lo = A.newlabel('kv_ok')
    A.label(Lc)
    A(f"""s_cmp_gt_u32 s80, {target}
s_cbranch_scc1 {Lo}
v_mov_b32 v{t0}, s81
buffer_load_ushort v{t0+1}, v{t0}, s[4:7], 0 offen offset:2 sc1
buffer_load_ushort v{t0+2}, v{t0}, s[4:7], 0 offen offset:4 sc1
s_waitcnt vmcnt(0)
v_readfirstlane_b32 s82, v{t0+1}
v_readfirstlane_b32 s83, v{t0+2}
s_and_b32 s84, s82, 0xff
s_and_b32 s85, s83, 0xff
s_min_u32 s84, s84, s85
s_lshl_b32 s84, s84, 1
s_lshr_b32 s82, s82, 8
s_lshr_b32 s83, s83, 8
s_min_u32 s82, s82, s83
s_lshl_b32 s82, s82, 1
s_add_u32 s82, s82, 1
s_min_u32 s80, s84, s82
s_cmp_gt_u32 s80, {target}
s_cbranch_scc1 {Lo}
s_sleep 4
s_add_u32 s88, s88, 1
s_cmp_lt_u32 s88, 0x80000
s_cbranch_scc1 {Lc}""")
    A.label(Lo)

def emit_elect(A, Lexit, role_sreg=15):
    Lw = A.newlabel('el_wait'); Lnc = A.newlabel('el_nocas'); Lrd = A.newlabel('el_rdone'); Lsp = A.newlabel('el_spin')
    A(f'''s_getreg_b32 s16, hwreg(HW_REG_XCC_ID)
s_and_b32 s16, s16, 7
s_cmp_lg_u32 s14, 0
s_cbranch_scc1 {Lw}
v_mov_b32 v20, 1
s_lshl_b32 s17, s16, 2
v_mov_b32 v21, s17
s_mov_b64 s[20:21], exec
s_mov_b64 exec, 1
global_atomic_add v22, v21, v20, s[12:13] sc0
s_waitcnt vmcnt(0)
v_readfirstlane_b32 s18, v22
s_cmp_lg_u32 s18, 31
s_cbranch_scc1 {Lnc}
s_add_u32 s19, s16, 1
v_mov_b32 v24, s19
v_mov_b32 v25, 0
v_mov_b32 v21, 32
global_atomic_cmpswap v21, v[24:25], s[12:13]
s_waitcnt vmcnt(0)''')
    A.label(Lnc)
    A(f'''s_mov_b32 s15, 0xffff
s_cmp_ge_u32 s18, 32
s_cbranch_scc1 {Lrd}
v_mov_b32 v21, 32''')
    A.label(Lsp)
    A(f'''global_load_dword v22, v21, s[12:13] sc1
s_waitcnt vmcnt(0)
v_readfirstlane_b32 s19, v22
s_cmp_eq_u32 s19, 0
s_cbranch_scc1 {Lsp}
s_sub_u32 s19, s19, 1
s_cmp_lg_u32 s19, s16
s_cbranch_scc1 {Lrd}
s_mov_b32 s15, s18''')
    A.label(Lrd)
    A(f'''v_mov_b32 v22, s15
v_mov_b32 v21, {L_MISC}
ds_write_b32 v21, v22
s_mov_b64 exec, s[20:21]
s_waitcnt lgkmcnt(0)''')
    A.label(Lw)
    A(f'''s_barrier
v_mov_b32 v21, {L_MISC}
ds_read_b32 v22, v21
s_waitcnt lgkmcnt(0)
v_readfirstlane_b32 s15, v22
s_barrier''')

def emit_elect2(A):
    Lw = A.newlabel('e2_wait'); Lnc = A.newlabel('e2_nocas'); Lsp = A.newlabel('e2_spin'); Lgot = A.newlabel('e2_got')
    A(f"""s_getreg_b32 s16, hwreg(HW_REG_XCC_ID)
s_and_b32 s16, s16, 7
s_cmp_lg_u32 s14, 0
s_cbranch_scc1 {Lw}
s_lshl_b32 s17, s16, 3
s_lshl_b64 s[18:19], 1, s17
v_mov_b32 v20, s18
v_mov_b32 v21, s19
v_mov_b32 v22, 0
s_mov_b64 exec, 1
global_atomic_add_x2 v[24:25], v22, v[20:21], s[12:13] sc0
s_waitcnt vmcnt(0)
v_readfirstlane_b32 s18, v24
v_readfirstlane_b32 s19, v25
s_lshr_b64 s[20:21], s[18:19], s17
s_and_b32 s20, s20, 0xff
s_cmp_lg_u32 s20, 31
s_cbranch_scc1 {Lnc}
s_add_u32 s21, s16, 1
v_mov_b32 v24, s21
v_mov_b32 v25, 0
v_mov_b32 v22, 32
global_atomic_cmpswap v22, v[24:25], s[12:13]""")
    A.label(Lnc)
    A('v_mov_b32 v22, 32')
    A.label(Lsp)
    A(f"""global_load_dword v24, v22, s[12:13] sc1
s_waitcnt vmcnt(0)
v_readfirstlane_b32 s21, v24
s_cmp_lg_u32 s21, 0
s_cbranch_scc1 {Lgot}
s_sleep 2
s_branch {Lsp}""")
    A.label(Lgot)
    A(f"""s_sub_u32 s21, s21, 1
s_and_b32 s24, s18, 0x00ff00ff
s_lshr_b32 s25, s18, 8
s_and_b32 s25, s25, 0x00ff00ff
s_add_u32 s24, s24, s25
s_and_b32 s25, s19, 0x00ff00ff
s_add_u32 s24, s24, s25
s_lshr_b32 s25, s19, 8
s_and_b32 s25, s25, 0x00ff00ff
s_add_u32 s24, s24, s25
s_lshr_b32 s25, s24, 16
s_and_b32 s24, s24, 0xffff
s_add_u32 s24, s24, s25             ; n
s_lshl_b32 s25, s21, 3
s_lshr_b64 s[26:27], s[18:19], s25
s_and_b32 s26, s26, 0xff
s_min_u32 s26, s26, 32
s_sub_u32 s24, s24, s26
s_cmp_eq_u32 s21, s16
s_cselect_b32 s25, s20, 0xffff
s_cmp_lt_u32 s25, 32
s_cselect_b32 s25, s25, 0xffff
v_mov_b32 v24, s25
v_mov_b32 v25, s24
v_mov_b32 v22, {L_MISC}
ds_write_b64 v22, v[24:25]
s_mov_b64 exec, -1
s_waitcnt lgkmcnt(0)""")
    A.label(Lw)
    A(f"""s_barrier
v_mov_b32 v22, {L_MISC}
ds_read_b64 v[24:25], v22
s_waitcnt lgkmcnt(0)
v_readfirstlane_b32 s15, v24
v_readfirstlane_b32 s90, v25
s_barrier""")

def emit_chain_kernel(A, name='chain_kernel', timing=False):
    kernel_header(A, name)
    Lend = A.newlabel('ch_end')
    A(f'''s_cmp_ge_u32 s2, 256
s_cbranch_scc1 {Lend}
s_load_dwordx2 s[22:23], s[0:1], {KA_WS}
s_load_dwordx2 s[12:13], s[0:1], {KA_DBG}
v_lshrrev_b32 v16, 6, v0
s_nop 0
v_readfirstlane_b32 s14, v16
s_waitcnt lgkmcnt(0)''')
    srd(A, 4, 22, WS_SIZE)
    if DRY:
        A(f'''s_mov_b32 s15, s2
s_cmp_ge_u32 s15, 1
s_cbranch_scc1 {Lend}''')
    else:
        emit_elect(A, Lend)
        A(f'''s_cmp_ge_u32 s15, 32
s_cbranch_scc1 {Lend}''')
    emit_chain_body(A, timing)
    A.label(Lend)
    A('s_endpgm')

def emit_chain_body(A, timing=False):
    A(f'''v_and_b32 v16, 63, v0
v_and_b32 v17, 15, v16
v_lshrrev_b32 v18, 4, v16
v_and_b32 v19, 1, v18
v_lshrrev_b32 v20, 1, v18
v_lshlrev_b32 v{V_LANE16}, 4, v16
v_lshlrev_b32 v{V_T16}, 4, v0
s_mov_b32 s30, 0x05040100
s_mov_b32 s31, 0x07060302''')
    if MERGED:
        Lq0 = A.newlabel('ch_q0')
        A(f'''s_cmp_lg_u32 s14, 0
s_cbranch_scc1 {Lq0}
s_lshl_b32 s18, s15, 7
s_add_u32 s18, s18, {hex(WS_QF)}
s_mov_b64 exec, 1
v_mov_b32 v24, 0
v_mov_b32 v25, 0
buffer_store_dwordx2 v[24:25], v24, s[4:7], s18 offen sc1
s_waitcnt vmcnt(0)
v_mov_b32 v25, 1
v_mov_b32 v24, 56
global_atomic_add v24, v25, s[12:13]
s_mov_b64 exec, -1''')
        A.label(Lq0)
    A(f'''s_lshl_b32 s16, s15, 13
s_add_u32 s16, s16, {hex(WS_P)}
v_mov_b32 v24, 1
v_mov_b32 v25, 1
v_mov_b32 v26, 1
v_mov_b32 v27, 1''')
    for ring in range(2):
        for i in range(2):
            A(f'''s_add_u32 s17, s16, {ring*0x40000+i*4096}
buffer_store_dwordx4 v[24:27], v{V_T16}, s[4:7], s17 offen''')
    A(f'''s_and_b32 s17, s15, 7
s_lshl_b32 s17, s17, 10
s_lshr_b32 s18, s15, 3
s_lshl_b32 s18, s18, 8
s_add_u32 s17, s17, s18
s_add_u32 s17, s17, {hex(WS_M)}
v_mov_b32 v24, -1
v_lshlrev_b32 v25, 2, v16''')
    for sl in range(3):
        A(f'''s_add_u32 s18, s17, {sl*8192}
buffer_store_dword v24, v25, s[4:7], s18 offen''')
    if MERGED:
        Lz = A.newlabel('ch_z')
        A(f'''s_mov_b32 s80, 0
s_mov_b32 s88, 0
s_lshl_b32 s81, s15, 7
s_add_u32 s81, s81, {hex(WS_QF)}
s_cmp_lg_u32 s15, 0
s_cbranch_scc1 {Lz}
v_mov_b32 v24, 0
s_mov_b32 s18, {hex(WS_FLAG)}
buffer_store_dword v24, v25, s[4:7], s18 offen sc1''')
        A.label(Lz)
    A(f'''v_mov_b32 v24, 0x4444
v_mov_b32 v25, 0xeeee
v_and_b32 v26, 1, v17
v_cmp_eq_u32 vcc, 0, v26
s_nop 1
v_cndmask_b32 v{V_IDX}, v25, v24, vcc''')
    A(f'''s_lshl_b32 s18, s14, 16
s_lshl_b32 s19, s15, 8
s_add_u32 s18, s18, s19
s_add_u32 s18, s18, {hex(WS_P)}
v_and_b32 v24, 3, v17
v_lshl_add_u32 v24, v18, 2, v24
v_lshlrev_b32 v24, 4, v24
v_lshrrev_b32 v25, 2, v17
v_lshl_add_u32 v24, v25, 13, v24
v_add_u32 v{V_PST}, s18, v24''')
    A(f's_sub_u32 s59, s16, {L_MA}')
    A(f'''v_lshrrev_b32 v24, 2, v16
v_lshlrev_b32 v24, 8, v24
v_and_b32 v25, 3, v16
v_lshl_add_u32 v24, v25, 4, v24
s_lshl_b32 s18, s14, 6
v_add_u32 v{V_PLD}, s18, v24
s_mov_b32 s59, s16''')
    A(f'''s_lshl_b32 s18, s14, 1
v_add_u32 v24, s18, v18
v_bfe_u32 v25, v17, 1, 1
v_lshl_add_u32 v24, v24, 1, v25
v_lshlrev_b32 v24, 4, v24
v_and_b32 v25, 1, v17
v_lshl_add_u32 v24, v25, 3, v24
v_add_u32 v{V_MST}, s17, v24''')
    A(f'''s_lshr_b32 s18, s14, 1
s_lshl_b32 s18, s18, 3
v_lshlrev_b32 v24, 1, v18
v_add_u32 v24, s18, v24            ; row
v_mul_u32_u24 v25, {QS}, v24
s_and_b32 s18, s14, 1
s_lshl_b32 s18, s18, 7
s_add_u32 s18, s18, {L_QK}
v_lshl_add_u32 v25, v17, 3, v25
v_add_u32 v{V_QKW}, s18, v25''')
    A(f'''s_lshl_b32 s18, s14, 2
s_add_u32 s18, s18, 8
v_add_u32 v24, s18, v18
v_mul_u32_u24 v24, {QS}, v24
v_lshl_add_u32 v24, v17, 4, v24
v_add_u32 v24, {L_QK}, v24
s_lshl_b32 s18, s14, 10
s_add_u32 s18, s18, {L_VM-2048}
v_add_u32 v25, s18, v{V_LANE16}
s_cmp_lt_u32 s14, 2
s_cselect_b64 vcc, -1, 0
v_cndmask_b32 v{V_PUBK}, v25, v24, vcc''')
    A(f'''s_lshl_b32 s19, s15, 11
s_and_b32 s18, s14, 1
s_lshl_b32 s18, s18, 10
s_add_u32 s18, s18, s19
s_cmp_lt_u32 s14, 2
s_mov_b32 s57, {hex(WS_VMT-L_MA)}
s_cselect_b32 s57, {hex(WS_KM-L_MA)}, s57
s_add_u32 s57, s57, s18''')
    A(f'''v_lshlrev_b32 v24, 2, v18
v_lshl_add_u32 v24, v17, 5, v24
s_lshl_b32 s18, s14, 9
s_add_u32 s18, s18, {L_VM}
v_add_u32 v{V_PUBV}, s18, v24''')
    A(f'''v_lshrrev_b32 v24, 1, v17
v_mul_u32_u24 v24, {QS}, v24
v_lshl_add_u32 v24, v18, 4, v24
v_add_u32 v{V_QKR}, {L_QK}, v24''')
    A(f'''v_lshrrev_b32 v24, 1, v17
v_and_b32 v25, 1, v17
v_lshl_add_u32 v24, v25, 3, v24
v_mul_u32_u24 v24, {QS}, v24
v_lshl_add_u32 v24, v18, 4, v24
s_lshl_b32 s18, s14, 6
s_add_u32 s18, s18, {L_O}
v_add_u32 v{V_OW}, s18, v24''')
    A(f'''v_lshrrev_b32 v24, 1, v17
v_mul_u32_u24 v24, {QS}, v24
v_lshl_add_u32 v24, v18, 5, v24
v_and_b32 v25, 1, v17
v_lshl_add_u32 v24, v25, 4, v24
v_add_u32 v{V_OR}, {L_O}, v24''')
    A(f'''v_lshlrev_b32 v24, 1, v18
v_xor_b32 v24, v24, v17
v_lshlrev_b32 v24, 4, v24
v_lshl_add_u32 v24, v18, 8, v24
s_lshl_b32 s18, s15, 19
s_and_b32 s19, s14, 1
s_lshl_b32 s19, s19, 12
s_add_u32 s18, s18, s19
s_add_u32 s18, s18, {hex(WS_K)}
v_add_u32 v{V_KXA}, s18, v24''')
    A(f'''v_and_b32 v24, 3, v17
v_lshrrev_b32 v25, 3, v17
v_lshl_add_u32 v24, v25, 2, v24
v_lshlrev_b32 v24, 1, v24
v_xor_b32 v24, v24, v18
v_lshlrev_b32 v24, 4, v24
v_lshl_add_u32 v24, v17, 8, v24
v_add_u32 v{V_KXR}, {L_KX}, v24''')
    A(f'''v_lshlrev_b32 v24, 7, v17
v_lshl_add_u32 v24, v18, 4, v24
s_lshl_b32 s18, s15, 13
s_lshl_b32 s19, s14, 11
s_add_u32 s18, s18, s19
s_add_u32 s18, s18, {hex(WS_VT)}
v_add_u32 v{V_VXA}, s18, v24''')
    CP = [0,1,8,9,2,3,10,11]
    def drow(kap, eta, j):
        return 256*eta + 32*(kap%4) + 4*(kap//4) + 8*(CP[j]>>2) + (CP[j]&3)
    T0 = V_MA
    TL = 48
    A(f'''s_lshr_b32 s18, s14, 1
s_lshl_b32 s18, s18, 3
s_add_u32 s18, s18, {KA_WQ}
s_load_dwordx2 s[24:25], s[0:1], s18
s_load_dwordx2 s[26:27], s[0:1], {KA_WV}
s_load_dwordx2 s[28:29], s[0:1], {KA_WO}
s_load_dwordx2 s[32:33], s[0:1], {KA_MEM0}
v_lshlrev_b32 v24, 20, v20         ; 128*(g/2)*8192
v_lshl_add_u32 v24, v19, 16, v24   ; + 8b*8192
s_lshl_b32 s19, s15, 8
v_add_u32 v24, s19, v24            ; + h*256
s_and_b32 s18, s14, 1
s_lshl_b32 s18, s18, 7
v_lshl_add_u32 v21, v17, 3, v24
v_add_u32 v21, s18, v21
s_lshl_b32 s18, s14, 6
v_lshl_add_u32 v22, v17, 2, v24
v_add_u32 v22, s18, v22            ; v22: v voffset
s_lshl_b32 s18, s14, 15
v_add_u32 v23, s18, v{V_LANE16}
s_waitcnt lgkmcnt(0)''')
    srd(A, 8, 24, 4*1024*1024)
    srd(A, 60, 26, 4*1024*1024)
    srd(A, 64, 28, 4*1024*1024)
    A(f"""v_lshlrev_b32 v24, 14, v20
v_lshl_add_u32 v24, v19, 12, v24
v_lshl_add_u32 v24, v17, 4, v24
s_lshl_b32 s18, s15, 17
s_lshl_b32 s19, s14, 8
s_add_u32 s18, s18, s19
v_add_u32 v25, s18, v24""")
    TP = 112
    batches = []
    for kap in range(8):
        buf = V_WO + (kap%3)*32
        def iss(kap=kap, buf=buf):
            for eta in range(2):
                for j in range(8):
                    A(f"""s_mov_b32 s18, {drow(kap,eta,j)*8192}
buffer_load_dwordx2 {vr(buf+(eta*8+j)*2,2)}, v21, s[8:11], s18 offen""")
        def proc(kap=kap, buf=buf):
            for eta in range(2):
                for T in range(4):
                    for p in range(4):
                        hi = buf+(eta*8+2*p+1)*2+T//2; lo = buf+(eta*8+2*p)*2+T//2
                        A(f'v_perm_b32 v{TP+p}, v{hi}, v{lo}, {"s31" if T%2 else "s30"}')
                        if T < 3: A(f'v_accvgpr_write_b32 a{(T*8+kap)*8+eta*4+p}, v{TP+p}')
                    if T == 3:
                        A(f'ds_write_b128 v23, {vr(TP,4)} offset:{kap*2048+eta*1024}\ns_nop 1')
        batches.append((iss, 16, proc))
    for kap in range(8):
        buf = V_WO + 96 + (kap%2)*16 if False else None
    for kap in range(8):
        buf = V_WO + ((kap+8)%3)*32
        def iss(kap=kap, buf=buf):
            for eta in range(2):
                for j in range(8):
                    A(f"""s_mov_b32 s18, {drow(kap,eta,j)*8192}
buffer_load_dword v{buf+eta*8+j}, v22, s[60:63], s18 offen""")
        def proc(kap=kap, buf=buf):
            for eta in range(2):
                for T in range(2):
                    for p in range(4):
                        A(f'v_perm_b32 v{TP+p}, v{buf+eta*8+2*p+1}, v{buf+eta*8+2*p}, {"s31" if T else "s30"}')
                        if T == 0: A(f'v_accvgpr_write_b32 a{192+kap*8+eta*4+p}, v{TP+p}')
                    if T == 1:
                        A(f'ds_write_b128 v23, {vr(TP,4)} offset:{16384+kap*2048+eta*1024}\ns_nop 1')
        batches.append((iss, 16, proc))
    for q in range(4):
        kp, eta = q//2, q%2
        buf = 48 + (q%2)*32
        def iss(kp=kp, eta=eta, buf=buf):
            for j in range(8):
                A(f"""s_mov_b32 s18, {(64*kp+32*eta+CP[j])*1024}
buffer_load_dwordx4 {vr(buf+j*4,4)}, v25, s[64:67], s18 offen""")
        def proc(kp=kp, eta=eta, buf=buf):
            for t in range(8):
                for p in range(4):
                    A(f'v_perm_b32 v{V_WO+(t*2+kp)*8+eta*4+p}, v{buf+(2*p+1)*4+t//2}, v{buf+(2*p)*4+t//2}, {"s31" if t%2 else "s30"}')
        batches.append((iss, 8, proc))
    n = len(batches)
    issued = 0
    order_issue = []
    def issue_upto(k):
        nonlocal issued
        while issued <= k and issued < n:
            batches[issued][0](); issued += 1
    issue_upto(2)
    for i in range(n):
        out_after = sum(batches[j][1] for j in range(i+1, issued))
        A(f's_waitcnt vmcnt({out_after})')
        batches[i][2]()
        nxt = i+3
        if nxt >= 18: nxt = i+2
        issue_upto(min(nxt, n-1))
    A('s_waitcnt lgkmcnt(0)')
    srd(A, 8, 32, 8192)
    A(f'''v_lshrrev_b32 v24, 1, v17
v_lshlrev_b32 v24, 10, v24
v_lshl_add_u32 v24, v18, 8, v24
v_and_b32 v25, 1, v17
v_lshl_add_u32 v24, v25, 5, v24
s_and_b32 s18, s14, 1
s_lshl_b32 s18, s18, 7             ; 32*2(w%2)*2 bytes
s_lshr_b32 s19, s14, 1
s_lshl_b32 s19, s19, 3             ; 4*(w/2)*2 bytes
s_add_u32 s18, s18, s19
v_add_u32 v24, s18, v24''')
    for kk in range(2):
        for pos in range(8):
            A(f'buffer_load_ushort v{TL+kk*8+pos}, v24, s[8:11], 0 offen offset:{(32*kk+8*(pos>>2)+(pos&3))*2}')
    A(f'''s_waitcnt vmcnt(0)
s_lshl_b32 s18, s14, 11
v_add_u32 v25, s18, v{V_LANE16}''')
    for kk in range(2):
        for p in range(4):
            A(f'v_lshl_or_b32 v{TL+32+p}, v{TL+kk*8+2*p+1}, 16, v{TL+kk*8+2*p}')
        A(f'ds_write_b128 v25, {vr(TL+32,4)} offset:{L_MA-65536*2 if False else 0}' if False else f'v_add_u32 v26, {L_MA+kk*1024}, v25\nds_write_b128 v26, {vr(TL+32,4)}')
        A('s_waitcnt lgkmcnt(0)')
    A(f"""s_and_b32 s53, s14, 1
s_lshl_b32 s53, s53, 12
s_add_u32 s53, s53, {L_KX}""")
    def dma_k(sreg, tmp):
        if NOKV and sreg != 's18': return
        A(f"""s_mov_b32 m0, s53
v_xor_b32 v{tmp}, 128, v{V_KXA}
buffer_load_dwordx4 v{V_KXA}, s[4:7], {sreg} offen lds
buffer_load_dwordx4 v{V_KXA}, s[4:7], {sreg} offen offset:1024 lds
buffer_load_dwordx4 v{tmp}, s[4:7], {sreg} offen offset:2048 lds
buffer_load_dwordx4 v{tmp}, s[4:7], {sreg} offen offset:3072 lds""")
    def load_v(sreg_v):
        if NOKV and sreg_v != 's18': return
        for T in range(2):
            A(f'buffer_load_dwordx4 {vr(V_VX+T*4,4)}, v{V_VXA}, s[4:7], {sreg_v} offen offset:{T*64}')
    if MARK: MARK(A, 5, 30)
    if MERGED: kv_ready(A, 0, 24, None)
    A("s_mov_b32 s18, 0")
    Ld0 = A.newlabel('ch_d0')
    A(f's_cmp_lt_u32 s14, 2\ns_cbranch_scc1 {Ld0}')
    dma_k('s18', 24)
    A.label(Ld0)
    load_v('s18')
    for i in range(12):
        A(f'v_mov_b64 {vr(V_ACC+2*i,2)}, 0')
    A(f"""v_mov_b32 v0, v23
v_add_u32 v{V_LANE16}, {L_MA}, v{V_LANE16}
v_add_u32 v{V_T16}, {L_MA}, v{V_T16}
s_waitcnt vmcnt(0)
s_barrier""")
    Lcw = A.newlabel('cb_wait'); Lcs = A.newlabel('cb_spin')
    A(f"""s_cmp_lg_u32 s14, 0
s_cbranch_scc1 {Lcw}
s_mov_b64 s[20:21], exec
s_mov_b64 exec, 1
v_mov_b32 v16, 1
v_mov_b32 v17, 36
global_atomic_add v17, v16, s[12:13]""")
    A.label(Lcs)
    A(f"""global_load_dword v16, v17, s[12:13] sc1
s_waitcnt vmcnt(0)
v_readfirstlane_b32 s18, v16
s_cmp_lt_u32 s18, {0 if DRY else 32}
s_cbranch_scc1 {Lcs}
s_mov_b64 exec, s[20:21]""")
    A.label(Lcw)
    A('s_barrier')
    A(f"""s_mov_b32 s34, 0
s_mov_b32 s35, 8192
s_mov_b32 s36, 0
s_mov_b32 s44, 0x3e02939f
s_mov_b32 s45, 0x3e02939f
s_mov_b32 s48, 0
s_lshl_b32 s50, s15, 19
s_add_u32 s50, s50, {hex(WS_K - L_MA*4)}
s_lshl_b32 s51, s15, 13
s_add_u32 s51, s51, {hex(WS_VT - L_MA*4)}
s_cmp_lt_u32 s14, 2
s_cselect_b32 s49, 13, 18
s_cselect_b32 s50, s50, s51
s_and_b32 s51, s14, 1
s_lshl_b32 s51, s51, 12
s_add_u32 s50, s50, s51
s_mov_b32 s55, 63
s_cmp_eq_u32 s14, 1
s_cselect_b32 s87, 2, 0x7fff
s_mov_b32 s46, 0x000f000f
s_mov_b32 s47, 0
s_mov_b32 s89, 0x3f80
s_mov_b32 s68, 0x3f803f80
s_mov_b32 s69, 0x3f803f80
s_mov_b32 s98, 0x3f003f00
s_mov_b32 s99, 0x3f003f00""")
    for kap in range(6):
        for eta in range(2):
            A(f'ds_read_b128 {vr([V_STG, V_STG+8, V_KX, V_KX+8, V_KX+16, V_KX+24][kap]+eta*4,4)}, v0 offset:{kap*2048+eta*1024}')
    A('s_waitcnt lgkmcnt(0)')
    if timing:
        A('s_memtime s[60:61]\ns_waitcnt lgkmcnt(0)\ns_mov_b32 s67, s60')
        for i in range(10): A(f's_mov_b32 s{70+i}, 0')
    if MARK: MARK(A, 6, 16)
    Lloop = A.newlabel('ch_loop'); Lexit = A.newlabel('ch_exit')
    A.raw('.p2align 6')
    for _ in range(ALIGNPAD): A('s_nop 0')
    A.label(Lloop)
    def smf(acc, a, b, isagpr):
        bs = ar(b,8) if isagpr else vr(b,8)
        A(f'v_smfmac_f32_16x16x64_bf16 {vr(acc,4)}, {vr(a,4)}, {bs}, v{V_IDX}')
    def rdA(k0, k1):
        for kap in range(k0, k1):
            A(f'ds_read_b128 {vr(V_MA+kap*4,4)}, v{V_LANE16} offset:{kap*1024}')
    def rdW(which, kap, st):
        for eta in range(2):
            A(f'ds_read_b128 {vr(V_STG+st*8+eta*4,4)}, v0 offset:{which*16384+kap*2048+eta*1024}')
    SET = [V_STG, V_STG+8, V_KX, V_KX+8, V_KX+16, V_KX+24]
    def rdS_l(which, kap, st):
        return [f'ds_read_b128 {vr(SET[st]+eta*4,4)}, v0 offset:{which*16384+kap*2048+eta*1024}' for eta in range(2)]
    def smf_s(acc, a, b, isagpr):
        bs = ar(b,8) if isagpr else vr(b,8)
        return f'v_smfmac_f32_16x16x64_bf16 {vr(acc,4)}, {vr(a,4)}, {bs}, v{V_IDX}'
    def weave(mf, fill):
        fill = list(fill)
        for m in mf:
            A(m)
            if fill: A(fill.pop(0))
        for f in fill: A(f)
    def p1(kap):
        return [smf_s(V_ACC+T*4, V_MA+kap*4, (T*8+kap)*8, True) for T in range(3)] + [smf_s(V_ACC+12, V_MA+kap*4, SET[kap%6], False)]
    VSET = [2,3,4,5,0,1,0,1]
    def p2(kap):
        return [smf_s(V_ACC+16, V_MA+kap*4, 192+kap*8, True), smf_s(V_ACC+20, V_MA+kap*4, SET[VSET[kap]], False)]
    def rdK_l(t, ks):
        dst = V_KX+(t*4+ks)*4
        if ks == 0: return [f'ds_read_b128 {vr(dst,4)}, v{V_KXR} offset:{4096*t}']
        return [f'v_xor_b32 v{dst}, {ks*64}, v{V_KXR}', f'ds_read_b128 {vr(dst,4)}, v{dst} offset:{4096*t}']
    rdA(0, 4)
    A(f"""s_lshl_b32 s39, s34, 16
s_and_b32 s37, s34, 1
s_lshl_b32 s37, s37, 18
s_bfe_u32 s38, s34, 0x10001
s_add_u32 s52, s37, s59
s_lshl_b32 s42, s34, 13
s_lshl_b32 s43, s34, 18
s_add_u32 s41, s34, 1
s_lshl_b32 s41, s41, s49
s_add_u32 s54, s41, s50
s_waitcnt lgkmcnt(3)""")
    weave(p1(0), ['s_nop 0','s_nop 0','s_waitcnt lgkmcnt(2)'])
    Lpb = A.newlabel('ch_pollB'); Lok = A.newlabel('ch_okB'); Lnob = A.newlabel('ch_nob')
    weave(p1(1), rdS_l(0,6,0) + ['s_cmp_eq_u32 s34, 0', f's_cbranch_scc1 {Lnob}'])
    A.label(Lpb)
    A(f"""s_waitcnt vmcnt(0)
v_max3_u32 v{V_ACC+16}, v{V_MBR}, v{V_MBR+1}, v{V_MBR+2}
v_max_u32 v{V_ACC+16}, v{V_ACC+16}, v{V_MBR+3}
v_cmp_eq_u32 vcc, -1, v{V_ACC+16}
{'s_branch' if DRY else 's_cbranch_vccz'} {Lok}""")
    spin(A, Lexit)
    A(f"""buffer_load_dwordx4 {vr(V_MBR,4)}, v{V_T16}, s[4:7], s40 offen sc1
s_branch {Lpb}""")
    A.label(Lok)
    A(f"""ds_write_b128 v{V_T16}, {vr(V_MBR,4)} offset:4096""")
    Lnk2 = A.newlabel('ch_nok2')
    A(f"""s_cmp_lt_u32 s14, 2
s_cbranch_scc1 {Lnk2}""")
    dma_k('s42', V_ACC+16)
    A.label(Lnk2)
    load_v('s43')
    A.label(Lnob)
    A('s_waitcnt lgkmcnt(3)')
    weave(p1(2), rdS_l(0,7,1) + [f'ds_read_b128 {vr(V_ACC+16,4)}, v{V_PUBK}'])
    A("""s_waitcnt lgkmcnt(0)
s_barrier""")
    rdA(4, 8)
    weave(p1(3), rdS_l(1,0,2) + [f'v_lshlrev_b32 v{V_MBR}, 2, v{V_LANE16}', f's_mov_b32 m0, {L_MISC+256}'])
    Lnw = A.newlabel('ch_nowarm')
    A(f"""s_cmp_gt_u32 s55, s34
s_cbranch_scc0 {Lnw}""")
    if MERGED:
        A('s_add_u32 s86, s34, 1')
        kv_ready(A, 's86', V_MBR+1, Lexit)
    A(f"""{'s_nop 0' if NOWARM else f'buffer_load_dword v{V_MBR}, s[4:7], s54 offen lds'}""")
    A.label(Lnw)
    A('s_waitcnt lgkmcnt(2)')
    weave(p1(4), rdS_l(1,1,3) + ['s_add_u32 s58, s39, s57', 's_sub_u32 s58, s58, 0x10000'])
    Lnp = A.newlabel('ch_nopub')
    A(f"""s_cmp_eq_u32 s34, 0
s_cbranch_scc1 {Lnp}
buffer_store_dwordx4 {vr(V_ACC+16,4)}, v{V_LANE16}, s[4:7], s58 offen{' sc1' if MERGED else ''}""")
    A.label(Lnp)
    weave(p1(5), rdS_l(1,2,4) + [f'v_mov_b64 {vr(V_MBR,2)}, 0', f'v_mov_b64 {vr(V_MBR+2,2)}, 0'])
    weave(p1(6), rdS_l(1,3,5) + [f'v_mov_b64 {vr(V_ACC+16,2)}, 0', f'v_mov_b64 {vr(V_ACC+18,2)}, 0'])
    weave(p1(7), rdS_l(1,4,0))
    stamp(A, 0, timing)
    A('s_waitcnt lgkmcnt(6)')
    weave(p2(0), rdS_l(1,5,1))
    for T in range(4):
        a = V_ACC+T*4
        A(f'v_add_f32 v{a}, v{a}, v{a+1}\nv_add_f32 v{a+2}, v{a+2}, v{a+3}')
    A(f"""v_cvt_pk_bf16_f32 v{V_ACC+0}, v{V_ACC+0}, v{V_ACC+4}
v_cvt_pk_bf16_f32 v{V_ACC+1}, v{V_ACC+8}, v{V_ACC+12}
v_cvt_pk_bf16_f32 v{V_ACC+2}, v{V_ACC+2}, v{V_ACC+6}
v_cvt_pk_bf16_f32 v{V_ACC+3}, v{V_ACC+10}, v{V_ACC+14}
ds_write_b64 v{V_QKW}, {vr(V_ACC+0,2)}
ds_write_b64 v{V_QKW}, {vr(V_ACC+2,2)} offset:{QS}
s_waitcnt lgkmcnt(6)""")
    weave(p2(1), [])
    A(f"""s_waitcnt vmcnt(2) lgkmcnt(0)
s_barrier""")
    stamp(A, 1, timing)
    S = V_MA
    def rdQK_l(ks, b):
        return [f'ds_read_b128 {vr(b,4)}, v{V_QKR} offset:{ks*64}', f'ds_read_b128 {vr(b+4,4)}, v{V_QKR} offset:{8*QS+ks*64}']
    def smm_l(ks, b):
        r = []
        for t in range(3):
            a = vr(b+4,4) if t == 0 else vr(V_KX+((t-1)*4+ks)*4,4)
            c = '0' if ks == 0 else vr(S+t*4,4)
            r.append(f'v_mfma_f32_16x16x32_bf16 {vr(S+t*4,4)}, {a}, {vr(b,4)}, {c}')
        return r
    B0 = V_ACC+8; B1 = V_ACC+0
    if MERGED:
        Lpa = A.newlabel('ch_pa')
        A(f"""s_cmp_lt_u32 s34, s87
s_cbranch_scc1 {Lpa}
s_mov_b64 exec, 1
v_mov_b32 v{V_ACC+4}, 1
v_mov_b32 v{V_ACC+5}, 48
global_atomic_add v{V_ACC+5}, v{V_ACC+4}, s[12:13]
s_mov_b64 exec, -1""")
        A.label(Lpa)
    for x in rdQK_l(0, B0) + rdK_l(0,0) + rdK_l(0,1) + rdQK_l(1, B1): A(x)
    weave(p2(2) + p2(3), rdK_l(0,2) + ['s_nop 0'] + rdK_l(1,0))
    weave(p2(4) + p2(5), rdK_l(1,1) + rdK_l(0,3))
    for x in rdK_l(1,2) + rdK_l(1,3) + rdS_l(1,6,0) + rdS_l(1,7,1): A(x)
    A('s_waitcnt lgkmcnt(7)')
    weave(smm_l(0, B0), [])
    for x in rdQK_l(2, B0): A(x)
    weave(smm_l(1, B1), [])
    for x in rdQK_l(3, B1): A(x)
    A('s_waitcnt lgkmcnt(4)')
    weave(p2(6) + p2(7), [])
    A('s_waitcnt lgkmcnt(2)')
    weave(smm_l(2, B0), [])
    A('s_waitcnt lgkmcnt(0)')
    weave(smm_l(3, B1), [])
    VM = V_ACC+8; PX = V_ACC; PM = V_ACC+4
    for T in range(2):
        a = V_ACC+16+T*4
        A(f"""v_cvt_pk_bf16_f32 v{VM+2*T}, v{a}, v{a+1}
v_cvt_pk_bf16_f32 v{VM+2*T+1}, v{a+2}, v{a+3}""")
    def vpub():
        for T in range(2):
            a = V_ACC+16+T*4
            A(f"""v_add_f32 v{a}, v{a}, v{a+1}
v_add_f32 v{a+2}, v{a+2}, v{a+3}
v_cvt_pk_bf16_f32 v{a}, v{a}, v{a+2}
ds_write_b32 v{V_PUBV}, v{a} offset:{16*T}""")
    D = V_KX
    zi = [0]
    def z(n=1):
        A(f's_nop {n-1}')
    M = S+12; T1 = S+13; L = S+14; T2 = S+15
    Lfin = A.newlabel('ch_fin')
    A(f"""s_cmp_eq_u32 s34, 63
s_cbranch_scc1 {Lfin}
v_mov_b64 {vr(V_ACC+12,2)}, 0
v_mov_b64 {vr(V_ACC+14,2)}, 0""")
    A(f"""v_max3_f32 v{M}, v{S}, v{S+1}, v{S+2}
v_max3_f32 v{T1}, v{S+3}, v{S+4}, v{S+5}
v_max3_f32 v{M}, v{M}, v{S+6}, v{S+7}
v_max3_f32 v{T1}, v{T1}, v{S+8}, v{S+9}
v_max3_f32 v{M}, v{M}, v{S+10}, v{S+11}
v_max_f32 v{M}, v{M}, v{T1}
v_mov_b32 v{T1}, v{M}
v_mfma_f32_32x32x16_bf16 {vr(D,16)}, {vr(V_ACC+12,4)}, {vr(V_ACC+12,4)}, 0
v_mfma_f32_32x32x16_bf16 {vr(D+16,16)}, {vr(V_ACC+12,4)}, {vr(V_ACC+12,4)}, 0""")
    A(f"""v_permlane32_swap_b32 v{T1}, v{M}
v_max_f32 v{M}, v{M}, v{T1}
v_mov_b32 v{T1}, v{M}
v_mov_b64 {vr(V_STG+4,2)}, s[68:69]
v_mov_b64 {vr(V_STG+6,2)}, s[68:69]""")
    A(f"""v_permlane16_swap_b32 v{T1}, v{M}
v_mov_b64 {vr(V_ACC+6,2)}, s[98:99]
v_max_f32 v{M}, v{M}, v{T1}
v_mul_f32 v{M}, s44, v{M}""")
    for i in [2,3,4,5,0,1]:
        A(f'v_pk_fma_f32 {vr(S+2*i,2)}, {vr(S+2*i,2)}, s[44:45], {vr(M,2)} op_sel_hi:[1,1,0] neg_lo:[0,0,1] neg_hi:[0,0,1]')
    for i in [4,5,6,7,8,9,10,11,0,2]:
        A(f'v_exp_f32 v{S+i}, v{S+i}')
    A(f"""v_cvt_pk_bf16_f32 v{PX}, v{S+4}, v{S+5}
v_cvt_pk_bf16_f32 v{PX+1}, v{S+6}, v{S+7}
v_cvt_pk_bf16_f32 v{PX+2}, v{S+8}, v{S+9}
v_cvt_pk_bf16_f32 v{PX+3}, v{S+10}, v{S+11}
v_cvt_pk_bf16_f32 v{PM}, v{S}, v{S}
v_cvt_pk_bf16_f32 v{PM+1}, v{S+2}, v{S+2}""")
    O = V_STG+8
    ONE = V_STG+4
    LL = V_STG
    pv = [f'v_mfma_f32_16x16x32_bf16 {vr(LL,4)}, {vr(ONE,4)}, {vr(PX,4)}, 0'] + \
         [f'v_mfma_f32_16x16x32_bf16 {vr(O+T*4,4)}, {vr(V_VX+T*4,4)}, {vr(PX,4)}, 0' for T in range(2)] + \
         [f'v_mfma_f32_16x16x16_bf16 {vr(LL,4)}, {vr(V_ACC+6,2)}, {vr(PM,2)}, {vr(LL,4)}'] + \
         [f'v_mfma_f32_16x16x16_bf16 {vr(O+T*4,4)}, {vr(VM+T*2,2)}, {vr(PM,2)}, {vr(O+T*4,4)}' for T in range(2)]
    for x in pv: A(x)
    A(f"""s_nop 5
v_rcp_f32 v{L}, v{LL}
s_nop 0""")
    for i in range(4):
        A(f'v_pk_mul_f32 {vr(O+2*i,2)}, {vr(O+2*i,2)}, {vr(L,2)} op_sel_hi:[1,0]')
    for r in range(4):
        A(f'v_cvt_pk_bf16_f32 v{S+r}, v{O+r}, v{O+4+r}')
    A(f'ds_write_b128 v{V_OW}, {vr(S,4)}')
    stamp(A, 2, timing)
    A("""s_waitcnt lgkmcnt(0)
s_barrier""")
    stamp(A, 3, timing)
    OA = V_STG
    A(f"""ds_read_b128 {vr(OA,4)}, v{V_OR}
ds_read_b128 {vr(OA+4,4)}, v{V_OR} offset:128
s_mov_b32 s41, s37""")
    vpub()
    A('s_waitcnt lgkmcnt(2)')
    def dpost_l(tq):
        a = D+tq*16
        r = []
        for t in range(4):
            r += [f'v_add_f32 v{a+4*t}, v{a+4*t}, v{a+4*t+1}', f'v_add_f32 v{a+4*t+2}, v{a+4*t+2}, v{a+4*t+3}']
        r += [f'v_cvt_pk_bf16_f32 v{a}, v{a}, v{a+4}', f'v_cvt_pk_bf16_f32 v{a+1}, v{a+8}, v{a+12}',
              f'v_cvt_pk_bf16_f32 v{a+2}, v{a+2}, v{a+6}', f'v_cvt_pk_bf16_f32 v{a+3}, v{a+10}, v{a+14}',
              f'v_and_or_b32 v{a}, v{a}, -2, s38',
              ('s_nop 0' if NOPST else f'buffer_store_dwordx4 {vr(a,4)}, v{V_PST}, s[4:7], s41 offen')]
        return r
    def pd(t):
        return [smf_s(D+t*4, OA, V_WO+(t*2+0)*8, False), smf_s(D+t*4, OA+4, V_WO+(t*2+1)*8, False)]
    weave(pd(0)+pd(1)+pd(2)+pd(3)+pd(4), [])
    weave(pd(5)+pd(6)+pd(7), dpost_l(0) + ['s_add_u32 s41, s41, 32768'])
    for x in dpost_l(1): A(x)
    stamp(A, 4, timing)
    PP = V_MA
    X = V_ACC
    def preload():
        for kap in range(6):
            for x in rdS_l(0, kap, kap): A(x)
    A(f"""s_add_u32 s40, s35, {hex(WS_M - L_MA)}
s_add_u32 s51, s52, 4096""")
    preload()
    LpP = A.newlabel('ch_pollP'); LokP = A.newlabel('ch_okP')
    def ldP():
        A(f"""buffer_load_dwordx4 {vr(PP,4)}, v{V_PLD}, s[4:7], s52 offen sc1
buffer_load_dwordx4 {vr(PP+4,4)}, v{V_PLD}, s[4:7], s51 offen sc1""")
    A(f"""v_bfe_u32 v{X+8}, v{V_LANE16}, 5, 3
v_and_b32 v{X+9}, 16, v{V_LANE16}
v_lshlrev_b32_e64 v{X+9}, v{X+9}, s89
v_mov_b32 v{X+10}, -1
v_mov_b32 v{X+11}, -1""")
    for p in range(4):
        A(f"""v_cmp_eq_u32 vcc, {p}, v{X+8}
s_nop 1
v_cndmask_b32 v{X+p}, 0, v{X+9}, vcc""")
    for i in range(6, 12):
        A(f'v_mov_b64 {vr(V_ACC+2*i,2)}, 0')
    if PDELAY: A(f's_sleep {PDELAY}')
    ldP()
    A.label(LpP)
    A(f"""s_waitcnt vmcnt(0)
v_xor_b32 v{X+8}, s38, v{PP}
v_xor_b32 v{X+9}, s38, v{PP+4}
v_or_b32 v{X+8}, v{X+8}, v{X+9}
v_and_b32 v{X+8}, 1, v{X+8}
v_cmp_ne_u32 vcc, 0, v{X+8}
{'s_branch' if DRY else 's_cbranch_vccz'} {LokP}""")
    spin(A, Lexit)
    ldP()
    A(f's_branch {LpP}')
    A.label(LokP)
    stamp(A, 5, timing)
    A(f"""v_mfma_f32_16x16x32_bf16 {vr(X+4,4)}, {vr(X,4)}, {vr(PP,4)}, 0
v_mfma_f32_16x16x32_bf16 {vr(X+4,4)}, {vr(X,4)}, {vr(PP+4,4)}, {vr(X+4,4)}
s_mov_b32 s56, s36
s_mov_b32 s36, s35
s_add_u32 s34, s34, 1
s_nop 4""")
    for sh in (4, 8):
        for r in range(4):
            A(f'v_add_f32_dpp v{X+4+r}, v{X+4+r}, v{X+4+r} row_ror:{sh} row_mask:0xf bank_mask:0xf')
    M0 = V_MA+24; M1 = V_MA+28
    A(f"""s_mov_b64 exec, s[46:47]
v_cvt_pk_bf16_f32 v{X+8}, v{X+4}, v{X+5}
v_cvt_pk_bf16_f32 v{X+9}, v{X+6}, v{X+7}
v_min_u32 v{X+8}, -2, v{X+8}
v_min_u32 v{X+9}, -2, v{X+9}
buffer_store_dwordx2 {vr(X+8,2)}, v{V_MST}, s[4:7], s35 offen
buffer_store_dwordx2 {vr(X+10,2)}, v{V_MST}, s[4:7], s56 offen
s_mov_b64 exec, -1""")
    stamp(A, 6, timing)
    def ldM(r): A(f'buffer_load_dwordx4 {vr(r,4)}, v{V_T16}, s[4:7], s40 offen sc1')
    def chkM(r, Lok):
        A(f"""v_max3_u32 v{V_MA}, v{r}, v{r+1}, v{r+2}
v_max_u32 v{V_MA}, v{V_MA}, v{r+3}
v_cmp_eq_u32 vcc, -1, v{V_MA}
{'s_branch' if DRY else 's_cbranch_vccz'} {Lok}""")
    LpM = A.newlabel('ch_pollM'); Lok0 = A.newlabel('ch_okM0'); Lok1 = A.newlabel('ch_okM1'); LokM = A.newlabel('ch_okM')
    A(f"""s_add_u32 s35, s35, 8192
s_cmp_eq_u32 s35, 24576
s_cselect_b32 s35, 0, s35
s_add_u32 s56, s40, 4096""")
    for i in range(0, 4):
        A(f'v_mov_b64 {vr(V_ACC+2*i,2)}, 0')
    if MDELAY: A(f's_sleep {MDELAY}')
    ldM(M0)
    for i in range(4, 6):
        A(f'v_mov_b64 {vr(V_ACC+2*i,2)}, 0')
    A('s_nop 15\ns_nop 7')
    ldM(M1)
    A.label(LpM)
    A('s_waitcnt vmcnt(1)')
    chkM(M0, Lok0)
    ldM(M0)
    A('s_waitcnt vmcnt(1)')
    chkM(M1, Lok1)
    ldM(M1)
    spin(A, Lexit)
    A(f's_branch {LpM}')
    A.label(Lok1)
    A(f"""ds_write_b128 v{V_T16}, {vr(M1,4)}
s_branch {LokM}""")
    A.label(Lok0)
    A(f'ds_write_b128 v{V_T16}, {vr(M0,4)}')
    A.label(LokM)
    stamp(A, 7, timing)
    A(f"""buffer_load_dwordx4 {vr(V_MBR,4)}, v{V_T16}, s[4:7], s56 offen sc1
s_mov_b32 s40, s56
s_waitcnt lgkmcnt(0)
s_barrier""")
    stamp(A, 8, timing)
    A(f's_branch {Lloop}')
    A.label(Lfin)
    A('s_nop 4')
    vpub()
    A(f"""s_waitcnt lgkmcnt(0)
s_barrier
ds_read_b128 {vr(V_MA,4)}, v{V_PUBK}
s_add_u32 s58, s39, s57
s_waitcnt lgkmcnt(0)
buffer_store_dwordx4 {vr(V_MA,4)}, v{V_LANE16}, s[4:7], s58 offen{' sc1' if MERGED else ''}""")
    if MERGED:
        Lx = A.newlabel('ch_x')
        A(f"""s_waitcnt vmcnt(0)
s_barrier
s_cmp_lg_u32 s14, 1
s_cbranch_scc1 {Lx}
s_mov_b64 exec, 1
v_mov_b32 v16, 1
v_mov_b32 v17, 52
global_atomic_add v17, v16, s[12:13]
s_mov_b64 exec, -1""")
        A.label(Lx)
    A.label(Lexit)
    if timing:
        A(f"""s_memtime s[62:63]
s_waitcnt lgkmcnt(0)
s_sub_u32 s62, s62, s60
v_mov_b32 v16, s62
s_lshl_b32 s18, s15, 2
s_add_u32 s18, s18, 64
v_mov_b32 v17, s18
s_mov_b64 exec, 1
global_store_dword v17, v16, s[12:13]""")
        A(f"""s_lshl_b32 s18, s15, 2
s_add_u32 s18, s18, s14
s_lshl_b32 s18, s18, 6
s_add_u32 s18, s18, {hex(WS_KD)}
v_mov_b32 v17, 0""")
        for i in range(10):
            A(f"""v_mov_b32 v16, s{70+i}
buffer_store_dword v16, v17, s[4:7], s18 offen offset:{4*i}""")
    A('s_waitcnt vmcnt(0)')
```

```python
from asmlib import *
L_WA = 0
L_WB = 65536
L_MA = 131072
L_QK = 139264
QS = 288
L_O  = L_QK
L_MISC = L_QK + 16*QS
L_VM = L_MISC + 1024
L_KX = 147456
L_FL = L_MISC + 64
WS_FLAG = 0x5800000
SPINBOUND = True
PDELAY = 0
MDELAY = 0
MARK = None
TIMING = False
X_NOPUB = False
X_NOK = False
PIPE_P = False
BDELAY = False
PIPE_M = False
PGAP = 20
CP = [0,1,8,9,2,3,10,11]
def drow(kap, eta, j):
    return 256*eta + 32*(kap%4) + 4*(kap//4) + 8*(CP[j]>>2) + (CP[j]&3)

STAMPS = False
def stamp(A, i):
    if STAMPS:
        A(f"""s_memtime s[94:95]
s_waitcnt lgkmcnt(0)
s_sub_u32 s96, s94, s97
s_add_u32 s{70+i}, s{70+i}, s96
s_mov_b32 s97, s94""")
def stamp_init(A):
    if STAMPS:
        A('s_memtime s[94:95]\ns_waitcnt lgkmcnt(0)\ns_mov_b32 s97, s94')
        for i in range(10): A(f's_mov_b32 s{70+i}, 0')
def stamp_dump(A):
    if STAMPS:
        A(f"""s_lshl_b32 s18, s15, 3
s_add_u32 s18, s18, s14
s_lshl_b32 s18, s18, 6
s_add_u32 s18, s18, {hex(WS_KD)}
v_mov_b32 v17, 0
s_mov_b64 exec, 1""")
        for i in range(10):
            A(f"""v_mov_b32 v16, s{70+i}
buffer_store_dword v16, v17, s[4:7], s18 offen offset:{4*i}""")
def spin(A, Lexit):
    if SPINBOUND:
        A(f'''s_add_u32 s48, s48, 1
s_cmp_gt_u32 s48, 0x200000
s_cbranch_scc1 {Lexit}''')

def kv_ready(A, target, t0):
    Lc = A.newlabel('kv_chk'); Lo = A.newlabel('kv_ok')
    A.label(Lc)
    A(f"""s_cmp_gt_u32 s80, {target}
s_cbranch_scc1 {Lo}
v_mov_b32 v{t0}, s81
buffer_load_ushort v{t0+1}, v{t0}, s[4:7], 0 offen offset:2 sc1
buffer_load_ushort v{t0+2}, v{t0}, s[4:7], 0 offen offset:4 sc1
s_waitcnt vmcnt(0)
v_readfirstlane_b32 s82, v{t0+1}
v_readfirstlane_b32 s83, v{t0+2}
s_and_b32 s84, s82, 0xff
s_and_b32 s85, s83, 0xff
s_min_u32 s84, s84, s85
s_lshl_b32 s84, s84, 1
s_lshr_b32 s82, s82, 8
s_lshr_b32 s83, s83, 8
s_min_u32 s82, s82, s83
s_lshl_b32 s82, s82, 1
s_add_u32 s82, s82, 1
s_min_u32 s80, s84, s82
s_cmp_gt_u32 s80, {target}
s_cbranch_scc1 {Lo}
s_sleep 4
s_add_u32 s88, s88, 1
s_cmp_lt_u32 s88, 0x80000
s_cbranch_scc1 {Lc}""")
    A.label(Lo)

def smf_s(acc, a, b, isagpr, idx):
    bs = ar(b,8) if isagpr else vr(b,8)
    return f'v_smfmac_f32_16x16x64_bf16 {vr(acc,4)}, {vr(a,4)}, {bs}, v{idx}'

def run_batches(A, batches, depth_of):
    n = len(batches); issued = [0]
    def issue_upto(k):
        while issued[0] <= k and issued[0] < n:
            batches[issued[0]][0](); issued[0] += 1
    issue_upto(depth_of(0)-1)
    for i in range(n):
        out_after = sum(batches[j][1] for j in range(i+1, issued[0]))
        A(f's_waitcnt vmcnt({out_after})')
        batches[i][2]()
        issue_upto(min(i+depth_of(i+1), n-1))

def emit_chain8(A):
    LB = A.newlabel('c8_B'); Lexit = A.newlabel('c8_exit')
    A(f'''v_and_b32 v40, 63, v0
v_and_b32 v41, 15, v40            ; c
v_lshrrev_b32 v42, 4, v40         ; g
v_and_b32 v43, 1, v42             ; b
v_lshrrev_b32 v44, 1, v42         ; g/2
s_mov_b32 s30, 0x05040100
s_mov_b32 s31, 0x07060302
s_and_b32 s13+0, s13, s13'''.replace('s_and_b32 s13+0, s13, s13','s_and_b32 s20, s14, 3') + f'''
s_mov_b32 s48, 0
s_mov_b32 s80, 0
s_mov_b32 s88, 0
s_lshl_b32 s81, s15, 7
s_add_u32 s81, s81, {hex(WS_QF)}
v_mov_b32 v46, 0x4444
v_mov_b32 v47, 0xeeee
v_and_b32 v45, 1, v41
v_cmp_eq_u32 vcc, 0, v45
s_nop 1
v_cndmask_b32 v2, v47, v46, vcc   ; IDX
v_lshlrev_b32 v1, 4, v40
v_add_u32 v1, {L_MA}, v1          ; V_LA = L_MA + lane*16
v_lshlrev_b32 v45, 20, v44
v_lshl_add_u32 v45, v43, 16, v45
s_lshl_b32 s19, s15, 8
v_add_u32 v45, s19, v45           ; weight row base + h*256
s_cmp_ge_u32 s14, 4
s_cbranch_scc1 {LB}''')
    emit_A(A, Lexit)
    A.label(LB)
    emit_B(A, Lexit)
    A.label(Lexit)
    stamp_dump(A)
    A('s_waitcnt vmcnt(0)')

def emit_A(A, Lexit):
    IDX = 2; LA = 1
    WB = 0; QKW = 3; QKR = 4; OW = 5; KXR = 6; VXA = 7; VMR = 8; PUBR = 9
    VX = 10
    AF = 18
    STG = 32
    ACC = 48
    T2W = 64
    Lq0 = A.newlabel('cA_q0')
    A(f'''s_cmp_lg_u32 s20, 0
s_cbranch_scc1 {Lq0}
s_mov_b64 exec, 1
v_mov_b32 v50, 0
v_mov_b32 v51, 0
v_mov_b32 v52, 0
v_mov_b32 v53, 0
buffer_store_dwordx4 v[50:53], v50, s[4:7], s81 offen sc1
s_waitcnt vmcnt(0)
v_mov_b32 v51, 1
v_mov_b32 v50, 56
global_atomic_add v50, v51, s[12:13]
s_mov_b64 exec, -1''')
    A.label(Lq0)
    A('v_lshlrev_b32 v9, 4, v0')
    A(f'''s_lshl_b32 s18, s20, 14
v_lshlrev_b32 v{WB}, 4, v40
v_add_u32 v{WB}, s18, v{WB}
s_lshr_b32 s18, s20, 1
s_lshl_b32 s18, s18, 3
v_lshlrev_b32 v50, 1, v42
v_add_u32 v50, s18, v50
v_mul_u32_u24 v50, {QS}, v50
s_and_b32 s18, s20, 1
s_lshl_b32 s18, s18, 7
s_add_u32 s18, s18, {L_QK}
v_lshl_add_u32 v50, v41, 3, v50
v_add_u32 v{QKW}, s18, v50
v_lshrrev_b32 v50, 1, v41
v_mul_u32_u24 v50, {QS}, v50
v_lshl_add_u32 v50, v42, 4, v50
v_add_u32 v{QKR}, {L_QK}, v50
v_lshrrev_b32 v50, 1, v41
v_mul_u32_u24 v50, {QS}, v50
v_lshl_add_u32 v50, v42, 4, v50
s_lshl_b32 s18, s20, 6
s_add_u32 s18, s18, {L_O}
v_add_u32 v{OW}, s18, v50
v_and_b32 v50, 3, v41
v_lshrrev_b32 v51, 3, v41
v_lshl_add_u32 v50, v51, 2, v50
v_lshlrev_b32 v50, 1, v50
v_xor_b32 v50, v50, v42
v_lshlrev_b32 v50, 4, v50
v_lshl_add_u32 v50, v41, 8, v50
v_add_u32 v{KXR}, {L_KX}, v50
v_lshlrev_b32 v50, 7, v41
v_lshl_add_u32 v50, v42, 4, v50
s_lshl_b32 s18, s15, 13
s_lshl_b32 s19, s20, 11
s_add_u32 s18, s18, s19
s_add_u32 s18, s18, {hex(WS_VT)}
v_add_u32 v{VXA}, s18, v50''')
    A(f'''v_lshlrev_b32 v50, 2, v42
v_lshl_add_u32 v50, v41, 5, v50
s_lshl_b32 s18, s20, 9
s_add_u32 s18, s18, {L_VM}
v_add_u32 v{VMR}, s18, v50''')
    A(f'''s_lshr_b32 s18, s20, 1
s_lshl_b32 s18, s18, 3
s_add_u32 s18, s18, {KA_WQ}
s_load_dwordx2 s[24:25], s[0:1], s18
s_and_b32 s18, s20, 1
s_lshl_b32 s18, s18, 7
v_lshl_add_u32 v30, v41, 3, v45
v_add_u32 v30, s18, v30
s_waitcnt lgkmcnt(0)''')
    srd(A, 8, 24, 4*1024*1024)
    bufs = [32, 48, 12]
    batches = []
    for q in range(16):
        kap, eta = q//2, q%2
        buf = bufs[q%3]
        def iss(kap=kap, eta=eta, buf=buf):
            for j in range(8):
                A(f"""s_mov_b32 s18, {drow(kap,eta,j)*8192}
buffer_load_dwordx2 {vr(buf+j*2,2)}, v30, s[8:11], s18 offen""")
        def proc(kap=kap, eta=eta, buf=buf):
            for T in range(4):
                for p in range(4):
                    hi = buf+(2*p+1)*2+T//2; lo = buf+(2*p)*2+T//2
                    sel = "s31" if T%2 else "s30"
                    if T < 2:
                        A(f'v_perm_b32 v31, v{hi}, v{lo}, {sel}\nv_accvgpr_write_b32 a{(T*8+kap)*8+eta*4+p}, v31')
                    elif T == 2:
                        A(f'v_perm_b32 v{T2W+kap*8+eta*4+p}, v{hi}, v{lo}, {sel}')
                    else:
                        A(f'v_perm_b32 v{28+(p%2)}, v{hi}, v{lo}, {sel}')
                        if p % 2 == 1:
                            A(f'ds_write_b64 v{WB}, v[28:29] offset:{kap*2048+eta*1024+(p//2)*8}\ns_nop 0')
        batches.append((iss, 8, proc))
    run_batches(A, batches, lambda i: 3)
    if MARK: MARK(A, 5, 30)
    A(f'''v_bfe_u32 v40, v{LA}, 4, 6
v_and_b32 v41, 15, v40
v_lshrrev_b32 v42, 4, v40''')
    A(f'''s_lshl_b32 s16, s15, 13
s_add_u32 s16, s16, {hex(WS_P)}
v_mov_b32 v50, 1
v_mov_b32 v51, 1
v_mov_b32 v52, 1
v_mov_b32 v53, 1''')
    for ring in range(2):
        for i in range(2):
            A(f'''s_add_u32 s17, s16, {ring*0x40000+i*4096}
buffer_store_dwordx4 v[50:53], v9, s[4:7], s17 offen''')
    A(f'''s_and_b32 s17, s15, 7
s_lshl_b32 s17, s17, 10
s_lshr_b32 s18, s15, 3
s_lshl_b32 s18, s18, 8
s_add_u32 s17, s17, s18
s_add_u32 s17, s17, {hex(WS_M)}
v_mov_b32 v54, -1
v_lshlrev_b32 v55, 2, v40''')
    for sl in range(3):
        A(f'''s_add_u32 s18, s17, {sl*8192}
buffer_store_dword v54, v55, s[4:7], s18 offen''')
    Lz = A.newlabel('cA_z')
    A(f'''v_mov_b32 v54, 0
v_add_u32 v56, {L_FL}, v55
v_cmp_gt_u32 vcc, 8, v40
s_and_saveexec_b64 s[22:23], vcc
ds_write_b32 v56, v54
s_mov_b64 exec, s[22:23]
s_cmp_lg_u32 s15, 0
s_cbranch_scc1 {Lz}
s_mov_b32 s18, {hex(WS_FLAG)}
buffer_store_dword v54, v55, s[4:7], s18 offen sc1''')
    A.label(Lz)
    A(f'''s_waitcnt vmcnt(0)
s_mov_b64 exec, 1
v_mov_b32 v50, 1
v_mov_b32 v51, 36
global_atomic_add v51, v50, s[12:13]
s_mov_b64 exec, -1''')
    A(f'''s_load_dwordx2 s[32:33], s[0:1], {KA_MEM0}
v_lshrrev_b32 v50, 1, v41
v_lshlrev_b32 v50, 10, v50
v_lshl_add_u32 v50, v42, 8, v50
v_and_b32 v51, 1, v41
v_lshl_add_u32 v50, v51, 5, v50
s_and_b32 s18, s20, 1
s_lshl_b32 s18, s18, 7
s_lshr_b32 s19, s20, 1
s_lshl_b32 s19, s19, 3
s_add_u32 s18, s18, s19
v_add_u32 v30, s18, v50
s_waitcnt lgkmcnt(0)''')
    srd(A, 8, 32, 8192)
    for kk in range(2):
        for pos in range(8):
            A(f'buffer_load_ushort v{32+kk*8+pos}, v30, s[8:11], 0 offen offset:{(32*kk+8*(pos>>2)+(pos&3))*2}')
    A(f'''s_waitcnt vmcnt(0)
s_lshl_b32 s18, s20, 11
v_add_u32 v31, s18, v{LA}''')
    for kk in range(2):
        for p in range(4):
            A(f'v_lshl_or_b32 v{48+p}, v{32+kk*8+2*p+1}, 16, v{32+kk*8+2*p}')
        A(f'ds_write_b128 v31, v[48:51] offset:{kk*1024}\ns_waitcnt lgkmcnt(0)')
    def load_v(sreg):
        for T in range(2):
            A(f'buffer_load_dwordx4 {vr(VX+T*4,4)}, v{VXA}, s[4:7], {sreg} offen offset:{T*64}')
    A(f'''s_mov_b32 s34, 0
s_mov_b32 s44, 0x3e02939f
s_mov_b32 s45, 0x3e02939f
s_mov_b32 s68, 0x3f803f80
s_mov_b32 s69, 0x3f803f80
s_cmp_eq_u32 s20, 1
s_cselect_b32 s87, 1, 0x7fff
s_lshl_b32 s50, s20, 2
s_add_u32 s50, s50, {L_FL}
s_waitcnt vmcnt(0) lgkmcnt(0)
s_barrier
s_barrier
s_setprio 3''')
    def rdT(kap, st): return [f'ds_read_b128 {vr(STG+st*8+eta*4,4)}, v{WB} offset:{kap*2048+eta*1024}' for eta in range(2)]
    def rdA(kap): return [f'ds_read_b128 {vr(AF+(kap%3)*4,4)}, v{LA} offset:{kap*1024}']
    def p1(kap):
        a = AF+(kap%3)*4
        return [smf_s(ACC, a, kap*8, True, IDX), smf_s(ACC+4, a, 64+kap*8, True, IDX),
                smf_s(ACC+8, a, T2W+kap*8, False, IDX), smf_s(ACC+12, a, STG+(kap%2)*8, False, IDX)]
    def emit(l):
        for x in l: A(x)
    def pre():
        emit(rdT(0,0)+rdT(1,1))
        for i in range(8): A(f'v_mov_b64 {vr(ACC+2*i,2)}, 0')
    pre()
    if MARK: MARK(A, 6, 30)
    stamp_init(A)
    Lloop = A.newlabel('cA_loop'); Lfin = A.newlabel('cA_fin')
    A.raw('.p2align 6')
    A.label(Lloop)
    A('s_waitcnt lgkmcnt(0)\ns_barrier')
    stamp(A, 0)
    def rdK(ks):
        b = STG+(ks%2)*8
        if ks == 0: return [f'ds_read_b128 {vr(b,4)}, v{KXR}', f'ds_read_b128 {vr(b+4,4)}, v{KXR} offset:4096']
        return [f'v_xor_b32 v{b+4}, {ks*64}, v{KXR}', f'ds_read_b128 {vr(b,4)}, v{b+4}', f'ds_read_b128 {vr(b+4,4)}, v{b+4} offset:4096']
    q = []
    def iss(tag, l):
        for x in l:
            A(x)
            if x.startswith('ds_'): q.append(tag)
    def need(tag):
        if tag not in q: return
        last = max(i for i,t in enumerate(q) if t == tag)
        n = len(q)-1-last
        A(f's_waitcnt lgkmcnt({n})')
        del q[:last+1]
    iss('A0', rdA(0)); iss('A1', rdA(1)); iss('A2', rdA(2))
    A(f's_add_u32 s35, s34, 1\ns_lshl_b32 s43, s34, 18')
    pend = []
    def gapfill():
        if pend:
            t, x = pend.pop(0); iss(t, [x])
    for kap in range(8):
        if kap == 2:
            while pend: gapfill()
            stamp(A, 1)
            A('s_barrier')
            stamp(A, 2)
            if STAMPS: q.clear()
            iss('A4', rdA(4))
            if not X_NOK: load_v('s43')
        m = p1(kap)
        need(f'A{kap}')
        A(m[0]); gapfill(); A(m[1]); gapfill(); A(m[2]); gapfill()
        need(f'T{kap}')
        A(m[3])
        if kap+2 < 8: pend += [(f'T{kap+2}', x) for x in rdT(kap+2, kap%2)]
        if kap == 0: pend += [('A3', x) for x in rdA(3)]
        if 2 <= kap <= 4: pend += [(f'A{kap+3}', x) for x in rdA(kap+3)]
        if kap == 6: pend += [('K0', x) for x in rdK(0)]
        gapfill()
    while pend: gapfill()
    A(f'v_mov_b32 v30, s35\nv_mov_b32 v31, s50\ns_nop 1')
    for T in range(4):
        a = ACC+T*4
        A(f'v_add_f32 v{a}, v{a}, v{a+1}\nv_add_f32 v{a+2}, v{a+2}, v{a+3}')
    A(f"""v_cvt_pk_bf16_f32 v{ACC+0}, v{ACC+0}, v{ACC+4}
v_cvt_pk_bf16_f32 v{ACC+1}, v{ACC+8}, v{ACC+12}
v_cvt_pk_bf16_f32 v{ACC+2}, v{ACC+2}, v{ACC+6}
v_cvt_pk_bf16_f32 v{ACC+3}, v{ACC+10}, v{ACC+14}
ds_write_b64 v{QKW}, {vr(ACC+0,2)}
ds_write_b64 v{QKW}, {vr(ACC+2,2)} offset:{QS}
ds_write_b32 v31, v30
v_xor_b32 v{STG+12}, 64, v{KXR}
ds_read_b128 {vr(STG+8,4)}, v{STG+12}
ds_read_b128 {vr(STG+12,4)}, v{STG+12} offset:4096
v_mov_b32 v31, {L_FL}
s_cmp_eq_u32 s34, 63
s_cbranch_scc1 {Lfin}""")
    stamp(A, 3)
    Lf = A.newlabel('cA_fl')
    A.label(Lf)
    A(f"""ds_read_b128 {vr(AF,4)}, v31
s_waitcnt lgkmcnt(0)
v_min3_u32 v{AF}, v{AF}, v{AF+1}, v{AF+2}
v_min_u32 v{AF}, v{AF}, v{AF+3}
v_cmp_gt_u32 vcc, s35, v{AF}
s_cbranch_vccnz {Lf}""")
    stamp(A, 4)
    S = AF; M = 30; T1 = 31
    def rdQK(ks):
        b = ACC+(ks%2)*8
        return [f'ds_read_b128 {vr(b,4)}, v{QKR} offset:{ks*64}', f'ds_read_b128 {vr(b+4,4)}, v{QKR} offset:{8*QS+ks*64}']
    def smm(ks):
        b = ACC+(ks%2)*8; k = STG+(ks%2)*8
        r = []
        for t in range(3):
            a = vr(b+4,4) if t == 0 else vr(k+(t-1)*4,4)
            r.append(f'v_mfma_f32_16x16x32_bf16 {vr(S+t*4,4)}, {a}, {vr(b,4)}, {"0" if ks==0 else vr(S+t*4,4)}')
        return r
    emit(rdQK(0)+rdQK(1))
    A('s_waitcnt lgkmcnt(2)')
    emit(smm(0)); emit(rdQK(2)+rdK(2))
    A('s_waitcnt lgkmcnt(4)')
    emit(smm(1)); emit(rdQK(3)+rdK(3))
    A('s_waitcnt lgkmcnt(4)')
    emit(smm(2))
    A('s_waitcnt lgkmcnt(0)')
    emit(smm(3))
    PX = ACC; PM = ACC+4; VM = ACC+6; ONE = ACC+12; O = STG; LL = STG+8; LR = STG+12
    stamp(A, 5)
    A('s_barrier')
    stamp(A, 6)
    A(f"""ds_read_b32 v{VM}, v{VMR}
ds_read_b32 v{VM+2}, v{VMR} offset:16
v_mov_b32 v{VM+1}, 0
v_mov_b32 v{VM+3}, 0
v_mov_b32 v{PM+1}, 0
v_mov_b64 {vr(ONE,2)}, s[68:69]
v_mov_b64 {vr(ONE+2,2)}, s[68:69]
v_max3_f32 v{M}, v{S}, v{S+2}, v{S+4}
v_max3_f32 v{T1}, v{S+5}, v{S+6}, v{S+7}
v_max3_f32 v{M}, v{M}, v{S+8}, v{S+9}
v_max3_f32 v{T1}, v{T1}, v{S+10}, v{S+11}
v_max_f32 v{M}, v{M}, v{T1}
v_mov_b32 v{T1}, v{M}
s_nop 1
v_permlane32_swap_b32 v{T1}, v{M}
v_max_f32 v{M}, v{M}, v{T1}
v_mov_b32 v{T1}, v{M}
s_nop 1
v_permlane16_swap_b32 v{T1}, v{M}
v_max_f32 v{M}, v{M}, v{T1}
v_mul_f32 v{M}, s44, v{M}""")
    for i in [2,3,4,5]:
        A(f'v_pk_fma_f32 {vr(S+2*i,2)}, {vr(S+2*i,2)}, s[44:45], {vr(M,2)} op_sel_hi:[1,1,0] neg_lo:[0,0,1] neg_hi:[0,0,1]')
    A(f'v_fma_f32 v{S}, v{S}, s44, -v{M}\nv_fma_f32 v{S+2}, v{S+2}, s44, -v{M}')
    for i in [4,5,6,7,8,9,10,11,0,2]:
        A(f'v_exp_f32 v{S+i}, v{S+i}')
    A(f"""v_cvt_pk_bf16_f32 v{PX}, v{S+4}, v{S+5}
v_cvt_pk_bf16_f32 v{PX+1}, v{S+6}, v{S+7}
v_cvt_pk_bf16_f32 v{PX+2}, v{S+8}, v{S+9}
v_cvt_pk_bf16_f32 v{PX+3}, v{S+10}, v{S+11}
v_cvt_pk_bf16_f32 v{PM}, v{S}, v{S+2}
s_waitcnt vmcnt(0) lgkmcnt(0)
v_mfma_f32_16x16x32_bf16 {vr(LL,4)}, {vr(ONE,4)}, {vr(PX,4)}, 0
v_mfma_f32_16x16x32_bf16 {vr(O,4)}, {vr(VX,4)}, {vr(PX,4)}, 0
v_mfma_f32_16x16x32_bf16 {vr(O+4,4)}, {vr(VX+4,4)}, {vr(PX,4)}, 0
v_mfma_f32_16x16x16_bf16 {vr(LL,4)}, {vr(ONE,2)}, {vr(PM,2)}, {vr(LL,4)}
v_mfma_f32_16x16x16_bf16 {vr(O,4)}, {vr(VM,2)}, {vr(PM,2)}, {vr(O,4)}
v_mfma_f32_16x16x16_bf16 {vr(O+4,4)}, {vr(VM+2,2)}, {vr(PM,2)}, {vr(O+4,4)}
s_nop 5
v_rcp_f32 v{LR}, v{LL}
s_nop 0""")
    for i in range(4):
        A(f'v_pk_mul_f32 {vr(O+2*i,2)}, {vr(O+2*i,2)}, {vr(LR,2)} op_sel_hi:[1,0]')
    for r in range(4):
        A(f'v_cvt_pk_bf16_f32 v{S+r}, v{O+r}, v{O+4+r}')
    A(f"""ds_write_b128 v{OW}, {vr(S,4)}
s_waitcnt lgkmcnt(0)""")
    stamp(A, 7)
    A('s_barrier')
    stamp(A, 8)
    A(f's_mov_b32 s34, s35\nv_xor_b32 v{KXR}, 0x2000, v{KXR}')
    pre()
    stamp(A, 9)
    A(f's_branch {Lloop}')
    A.label(Lfin)
    A(f"""s_waitcnt lgkmcnt(0)
s_barrier
s_branch {Lexit}""")

def emit_B(A, Lexit):
    IDX = 2; LA = 1
    WB = 0; PST = 3; PLD = 4; MST = 5; T16 = 6; OR = 7; KXA = 8; VMW = 9
    MBR = 12
    VACC = 16
    OA = 24
    D = 32
    AF = 32; STG = 48
    V0W = 64
    A(f'''v_subrev_u32 v46, 256, v0
v_lshlrev_b32 v{T16}, 4, v46''')
    A(f'''s_lshl_b32 s16, s15, 13
s_add_u32 s16, s16, {hex(WS_P)}
s_and_b32 s17, s15, 7
s_lshl_b32 s17, s17, 10
s_lshr_b32 s18, s15, 3
s_lshl_b32 s18, s18, 8
s_add_u32 s17, s17, s18
s_add_u32 s17, s17, {hex(WS_M)}''')
    A(f'''s_lshl_b32 s18, s20, 14
s_add_u32 s18, s18, {L_WB}
v_lshlrev_b32 v{WB}, 4, v40
v_add_u32 v{WB}, s18, v{WB}
s_lshl_b32 s18, s20, 16
s_lshl_b32 s19, s15, 6
s_add_u32 s18, s18, s19
s_add_u32 s18, s18, {hex(WS_P)}
v_and_b32 v50, 3, v41
v_lshlrev_b32 v50, 4, v50
v_lshl_add_u32 v50, v42, 11, v50
v_lshrrev_b32 v51, 2, v41
v_lshl_add_u32 v50, v51, 13, v50
v_add_u32 v{PST}, s18, v50
s_lshl_b32 s18, s20, 11
v_lshlrev_b32 v50, 4, v40
v_add_u32 v{PLD}, s18, v50
s_mov_b32 s59, s16
s_lshl_b32 s18, s20, 1
v_add_u32 v50, s18, v42
v_bfe_u32 v51, v41, 1, 1
v_lshl_add_u32 v50, v50, 1, v51
v_lshlrev_b32 v50, 4, v50
v_and_b32 v51, 1, v41
v_lshl_add_u32 v50, v51, 3, v50
v_add_u32 v{MST}, s17, v50
v_lshrrev_b32 v50, 1, v41
v_mul_u32_u24 v50, {QS}, v50
v_lshl_add_u32 v50, v42, 5, v50
v_and_b32 v51, 1, v41
v_lshl_add_u32 v50, v51, 4, v50
v_add_u32 v{OR}, {L_O}, v50
v_lshlrev_b32 v50, 1, v42
v_xor_b32 v50, v50, v41
v_lshlrev_b32 v50, 4, v50
v_lshl_add_u32 v50, v42, 8, v50
s_lshl_b32 s18, s15, 19
s_and_b32 s19, s20, 1
s_lshl_b32 s19, s19, 12
s_add_u32 s18, s18, s19
s_add_u32 s18, s18, {hex(WS_K)}
v_add_u32 v{KXA}, s18, v50
v_lshlrev_b32 v50, 2, v42
v_lshl_add_u32 v50, v41, 5, v50
s_lshl_b32 s18, s20, 9
s_add_u32 s18, s18, {L_VM}
v_add_u32 v{VMW}, s18, v50
s_load_dwordx2 s[26:27], s[0:1], {KA_WV}
s_load_dwordx2 s[28:29], s[0:1], {KA_WO}
s_load_dwordx2 s[32:33], s[0:1], {KA_MEM0}
s_lshl_b32 s18, s20, 6
v_lshl_add_u32 v10, v41, 2, v45
v_add_u32 v10, s18, v10            ; v voffset
v_lshlrev_b32 v50, 14, v44
v_lshl_add_u32 v50, v43, 12, v50
v_lshl_add_u32 v50, v41, 4, v50
s_lshl_b32 s18, s15, 17
s_lshl_b32 s19, s20, 8
s_add_u32 s18, s18, s19
v_add_u32 v11, s18, v50
v_lshrrev_b32 v50, 1, v41
v_lshlrev_b32 v50, 10, v50
v_lshl_add_u32 v50, v42, 8, v50
v_and_b32 v51, 1, v41
v_lshl_add_u32 v50, v51, 5, v50
s_and_b32 s18, s20, 1
s_lshl_b32 s18, s18, 7
s_lshr_b32 s19, s20, 1
s_lshl_b32 s19, s19, 3
s_add_u32 s18, s18, s19
v_add_u32 v12, s18, v50
s_waitcnt lgkmcnt(0)''')
    srd(A, 60, 26, 4*1024*1024)
    srd(A, 64, 28, 4*1024*1024)
    srd(A, 8, 32, 8192)
    batches = []
    for q in range(4):
        kp, eta = q//2, q%2
        buf = V0W + (q%2)*32
        def iss(kp=kp, eta=eta, buf=buf):
            for j in range(8):
                A(f"""s_mov_b32 s18, {(64*kp+32*eta+CP[j])*1024}
buffer_load_dwordx4 {vr(buf+j*4,4)}, v11, s[64:67], s18 offen""")
        def proc(kp=kp, eta=eta, buf=buf):
            for t in range(8):
                for p in range(4):
                    A(f'v_perm_b32 v12, v{buf+(2*p+1)*4+t//2}, v{buf+(2*p)*4+t//2}, {"s31" if t%2 else "s30"}\nv_accvgpr_write_b32 a{(t*2+kp)*8+eta*4+p}, v12')
        batches.append((iss, 8, proc))
    for kap in range(8):
        buf = 16 + (kap%3)*16
        def iss(kap=kap, buf=buf):
            for eta in range(2):
                for j in range(8):
                    A(f"""s_mov_b32 s18, {drow(kap,eta,j)*8192}
buffer_load_dword v{buf+eta*8+j}, v10, s[60:63], s18 offen""")
        def proc(kap=kap, buf=buf):
            for eta in range(2):
                for p in range(4):
                    A(f'v_perm_b32 v{V0W+kap*8+eta*4+p}, v{buf+eta*8+2*p+1}, v{buf+eta*8+2*p}, s30')
                for p in range(4):
                    A(f'v_perm_b32 v{12+p}, v{buf+eta*8+2*p+1}, v{buf+eta*8+2*p}, s31')
                A(f'ds_write_b128 v{WB}, v[12:15] offset:{kap*2048+eta*1024}\ns_nop 1')
        batches.append((iss, 16, proc))
    n = len(batches)
    order = []
    issued = set()
    def issue(i):
        if i < n and i not in issued:
            batches[i][0](); issued.add(i); order.append(i)
    issue(0); issue(1); issue(4); issue(5)
    for i in range(n):
        pos = order.index(i)
        out_after = sum(batches[j][1] for j in order[pos+1:])
        A(f's_waitcnt vmcnt({out_after})')
        batches[i][2]()
        if i < 2: issue(i+2)
        elif i == 2: issue(6)
        elif i >= 4: issue(i+3)
    if MARK: MARK(A, 2, 20, 4)
    kv_ready(A, 0, 16)
    if MARK: MARK(A, 3, 20, 4)
    A(f"""s_and_b32 s53, s20, 1
s_lshl_b32 s53, s53, 12
s_add_u32 s53, s53, {L_KX}""")
    def dma_k(sreg, tmp):
        A(f"""s_mov_b32 m0, s53
v_xor_b32 v{tmp}, 128, v{KXA}
buffer_load_dwordx4 v{KXA}, s[4:7], {sreg} offen lds
buffer_load_dwordx4 v{KXA}, s[4:7], {sreg} offen offset:1024 lds
buffer_load_dwordx4 v{tmp}, s[4:7], {sreg} offen offset:2048 lds
buffer_load_dwordx4 v{tmp}, s[4:7], {sreg} offen offset:3072 lds""")
    Ld0 = A.newlabel('cB_d0')
    A(f"""s_mov_b32 s18, 0
s_cmp_lt_u32 s20, 2
s_cbranch_scc1 {Ld0}""")
    dma_k('s18', 16)
    A.label(Ld0)
    A(f"""v_add_u32 v{T16}, {L_MA}, v{T16}
v_bfe_u32 v16, v{LA}, 4, 4
v_bfe_u32 v17, v{LA}, 8, 2
s_lshl_b32 s18, s20, 2
s_add_u32 s18, s18, 8
v_add_u32 v18, s18, v17
v_mul_u32_u24 v18, {QS}, v18
v_lshl_add_u32 v18, v16, 4, v18
v_add_u32 v18, {L_QK}, v18
s_lshl_b32 s18, s20, 10
s_add_u32 s18, s18, {L_VM-2048-L_MA}
v_add_u32 v19, s18, v{LA}
s_cmp_lt_u32 s20, 2
s_cselect_b64 vcc, -1, 0
v_cndmask_b32 v11, v19, v18, vcc
s_lshl_b32 s19, s15, 11
s_and_b32 s18, s20, 1
s_lshl_b32 s18, s18, 10
s_add_u32 s18, s18, s19
s_cmp_lt_u32 s20, 2
s_mov_b32 s57, {hex(WS_VMT-L_MA)}
s_cselect_b32 s57, {hex(WS_KM-L_MA)}, s57
s_add_u32 s57, s57, s18
s_cmp_eq_u32 s20, 1
s_cselect_b32 s87, 2, 0x7fff
s_waitcnt vmcnt(0) lgkmcnt(0)
s_barrier""")
    Lcw = A.newlabel('cb_wait'); Lcs = A.newlabel('cb_spin')
    A(f"""s_cmp_lg_u32 s20, 0
s_cbranch_scc1 {Lcw}
s_mov_b64 exec, 1
v_mov_b32 v17, 36""")
    A.label(Lcs)
    A(f"""global_load_dword v16, v17, s[12:13] sc1
s_waitcnt vmcnt(0)
v_readfirstlane_b32 s18, v16
s_cmp_lt_u32 s18, 128
s_cbranch_scc1 {Lcs}
s_mov_b64 exec, -1""")
    A.label(Lcw)
    A(f"""s_barrier
s_mov_b32 s34, 0
s_mov_b32 s35, 8192
s_mov_b32 s36, 0
s_lshl_b32 s50, s15, 13
s_add_u32 s50, s50, {hex(WS_VT - L_MA*4)}
s_and_b32 s51, s20, 1
s_lshl_b32 s51, s51, 12
s_add_u32 s50, s50, s51
s_mov_b32 s46, 0x000f000f
s_mov_b32 s47, 0
s_mov_b32 s89, 0x3f80
s_lshl_b32 s60, s20, 2
s_add_u32 s60, s60, {L_FL}""")
    if TIMING: A('s_memtime s[62:63]\ns_waitcnt lgkmcnt(0)')
    def emit(l):
        for x in l: A(x)
    TS = [STG, STG+8, OA]
    def rdT(kap): return [f'ds_read_b128 {vr(TS[kap%3]+eta*4,4)}, v{WB} offset:{kap*2048+eta*1024}' for eta in range(2)]
    def rdA(kap): return [f'ds_read_b128 {vr(AF+(kap%4)*4,4)}, v{LA} offset:{kap*1024}']
    def p2(kap):
        a = AF+(kap%4)*4
        return [smf_s(VACC, a, V0W+kap*8, False, IDX), smf_s(VACC+4, a, TS[kap%3], False, IDX)]
    stamp_init(A)
    Lloop = A.newlabel('cB_loop'); Lfin = A.newlabel('cB_fin')
    A('s_waitcnt lgkmcnt(0)')
    A.raw('.p2align 6')
    A.label(Lloop)
    A('s_barrier')
    stamp(A, 0)
    Lnob = A.newlabel('cB_nob'); Lpb = A.newlabel('cB_pb'); Lok = A.newlabel('cB_okb')
    A(f"""s_cmp_eq_u32 s34, 0
s_cbranch_scc1 {Lnob}
ds_read_b128 {vr(OA,4)}, v11""")
    A.label(Lpb)
    A(f"""s_waitcnt vmcnt(0)
v_max3_u32 v{VACC}, v{MBR}, v{MBR+1}, v{MBR+2}
v_max_u32 v{VACC}, v{VACC}, v{MBR+3}
v_cmp_eq_u32 vcc, -1, v{VACC}
s_cbranch_vccz {Lok}""")
    spin(A, Lexit)
    A(f"""buffer_load_dwordx4 {vr(MBR,4)}, v{T16}, s[4:7], s40 offen sc1
s_branch {Lpb}""")
    A.label(Lok)
    A(f"""ds_write_b128 v{T16}, {vr(MBR,4)} offset:4096
s_waitcnt lgkmcnt(0)""")
    A.label(Lnob)
    stamp(A, 1)
    A('s_barrier')
    stamp(A, 2)
    Lnk = A.newlabel('cB_nk'); Lnw = A.newlabel('cB_nw')
    A('s_add_u32 s41, s34, 1')
    emit(rdA(0)+rdA(1)+rdA(2)+rdA(3)+rdT(0)+rdT(1))
    A(f"""s_and_b32 s37, s34, 1
s_lshl_b32 s37, s37, 18
s_bfe_u32 s38, s34, 0x10001
s_add_u32 s52, s37, s59
s_add_u32 s51, s52, 1024
s_xor_b32 s53, s53, 0x2000""")
    Lnp = A.newlabel('cB_np'); Lpa = A.newlabel('cB_pa')
    A(f"""s_cmp_eq_u32 s34, 0
s_cbranch_scc1 {Lnp}
s_lshl_b32 s58, s34, 16
s_add_u32 s58, s58, s57
s_sub_u32 s58, s58, 0x10000
{'s_nop 0' if X_NOPUB else f'buffer_store_dwordx4 {vr(OA,4)}, v{LA}, s[4:7], s58 offen sc1'}""")
    A.label(Lnp)
    A(f"""s_cmp_lt_u32 s34, s87
s_cbranch_scc1 {Lpa}
s_mov_b64 exec, 1
s_sub_u32 s58, s34, 1
v_mov_b32 v{MBR+2}, s58
v_mov_b32 v{MBR+3}, 8
buffer_store_byte v{MBR+2}, v{MBR+3}, s[4:7], s81 offen sc1
s_mov_b64 exec, -1""")
    A.label(Lpa)
    Lnw2 = A.newlabel('cB_nw2')
    A(f"""s_cmp_ge_u32 s34, {0 if X_NOK else 63}
s_cbranch_scc1 {Lnw2}""")
    kv_ready(A, 's41', MBR+1)
    Lk2 = A.newlabel('cB_k2')
    A(f"""s_cmp_lt_u32 s20, 2
s_cbranch_scc0 {Lk2}
v_lshlrev_b32 v{MBR}, 2, v{LA}
s_lshl_b32 s54, s41, 18
s_add_u32 s54, s54, s50
s_mov_b32 m0, {L_MISC+256}
s_nop 0
buffer_load_dword v{MBR}, s[4:7], s54 offen lds
s_branch {Lnw2}""")
    A.label(Lk2)
    A('s_lshl_b32 s42, s41, 13')
    dma_k('s42', MBR)
    A.label(Lnw2)
    for i in range(4): A(f'v_mov_b64 {vr(VACC+2*i,2)}, 0')
    emit(rdT(2))
    if BDELAY:
        Lvf = A.newlabel('cB_vf')
        A(f'v_mov_b32 v{MBR}, s60')
        A.label(Lvf)
        A(f"""ds_read_b32 v{MBR+1}, v{MBR}
s_waitcnt lgkmcnt(0)
v_cmp_gt_u32 vcc, s41, v{MBR+1}
s_cbranch_vccnz {Lvf}""")
    else:
        A('s_waitcnt lgkmcnt(0)')
    stamp(A, 3)
    q = []
    def iss(tag, l):
        for x in l:
            A(x); q.append(tag)
    def need(tag):
        if tag not in q: return
        last = max(i for i,t in enumerate(q) if t == tag)
        A(f's_waitcnt lgkmcnt({len(q)-1-last})')
        del q[:last+1]
    for kap in range(8):
        m = p2(kap)
        need(f'A{kap}'); A(m[0])
        need(f'T{kap}'); A(m[1])
        if kap+3 < 8: iss(f'T{kap+3}', rdT(kap+3))
        if kap+4 < 8: iss(f'A{kap+4}', rdA(kap+4))
    A('s_nop 7')
    for T in range(2):
        a = VACC+T*4
        A(f"""v_add_f32 v{a}, v{a}, v{a+1}
v_add_f32 v{a+2}, v{a+2}, v{a+3}
v_cvt_pk_bf16_f32 v{a}, v{a}, v{a+2}
ds_write_b32 v{VMW}, v{a} offset:{16*T}""")
    A(f"""v_mov_b64 {vr(OA,2)}, 0
v_mov_b64 {vr(OA+2,2)}, 0
s_waitcnt lgkmcnt(0)""")
    stamp(A, 4)
    A(f"""s_barrier
s_cmp_eq_u32 s34, 63
s_cbranch_scc1 {Lfin}
v_mfma_f32_32x32x16_bf16 {vr(D,16)}, {vr(OA,4)}, {vr(OA,4)}, 0
v_mfma_f32_32x32x16_bf16 {vr(D+16,16)}, {vr(OA,4)}, {vr(OA,4)}, 0""")
    X = VACC
    A(f"""v_bfe_u32 v{MBR}, v{LA}, 5, 3
v_and_b32 v{MBR+1}, 16, v{LA}
v_lshlrev_b32_e64 v{MBR+1}, v{MBR+1}, s89""")
    for p in range(4):
        A(f"""v_cmp_eq_u32 vcc, {p}, v{MBR}
s_nop 1
v_cndmask_b32 v{X+p}, 0, v{MBR+1}, vcc""")
    A(f"""v_mov_b32 v{MBR+2}, -1
v_mov_b32 v{MBR+3}, -1
s_mov_b32 s41, s37
s_add_u32 s40, s35, {hex(WS_M - L_MA)}
s_setprio 3
s_barrier""")
    stamp(A, 5)
    A(f"""ds_read_b128 {vr(OA,4)}, v{OR}
ds_read_b128 {vr(OA+4,4)}, v{OR} offset:128
s_waitcnt lgkmcnt(0)""")
    def dpost_l(tq):
        a = D+tq*16
        r = []
        for t in range(4):
            r += [f'v_add_f32 v{a+4*t}, v{a+4*t}, v{a+4*t+1}', f'v_add_f32 v{a+4*t+2}, v{a+4*t+2}, v{a+4*t+3}']
        r += [f'v_cvt_pk_bf16_f32 v{a}, v{a}, v{a+4}', f'v_cvt_pk_bf16_f32 v{a+1}, v{a+8}, v{a+12}',
              f'v_cvt_pk_bf16_f32 v{a+2}, v{a+2}, v{a+6}', f'v_cvt_pk_bf16_f32 v{a+3}, v{a+10}, v{a+14}',
              f'v_and_or_b32 v{a}, v{a}, -2, s38',
              f'buffer_store_dwordx4 {vr(a,4)}, v{PST}, s[4:7], s41 offen']
        return r
    def pd(t):
        return [smf_s(D+t*4, OA, (t*2+0)*8, True, IDX), smf_s(D+t*4, OA+4, (t*2+1)*8, True, IDX)]
    def weave(mf, fill):
        fill = list(fill)
        for m in mf:
            A(m)
            if fill: A(fill.pop(0))
        for f in fill: A(f)
    weave(pd(0)+pd(1)+pd(2)+pd(3)+pd(4), [])
    weave(pd(5)+pd(6)+pd(7), dpost_l(0) + ['s_add_u32 s41, s41, 32768'])
    emit(dpost_l(1))
    stamp(A, 6)
    PP = OA
    LpP = A.newlabel('cB_pollP'); LokP = A.newlabel('cB_okP')
    def ldP():
        A(f"""buffer_load_dwordx4 {vr(PP,4)}, v{PLD}, s[4:7], s52 offen sc1
buffer_load_dwordx4 {vr(PP+4,4)}, v{PLD}, s[4:7], s51 offen sc1""")
    if PDELAY: A(f's_sleep {PDELAY}')
    def gap(n):
        while n > 0:
            k = min(n, 16); A(f's_nop {k-1}'); n -= k
    if not PIPE_P:
        ldP()
        A.label(LpP)
        A(f"""s_waitcnt vmcnt(0)
v_xor_b32 v{MBR}, s38, v{PP}
v_xor_b32 v{MBR+1}, s38, v{PP+4}
v_or_b32 v{MBR}, v{MBR}, v{MBR+1}
v_and_b32 v{MBR}, 1, v{MBR}
v_cmp_ne_u32 vcc, 0, v{MBR}
s_cbranch_vccz {LokP}""")
        spin(A, Lexit)
        ldP()
        A(f's_branch {LpP}')
        A.label(LokP)
        stamp(A, 7)
        A(f"""v_mfma_f32_16x16x32_bf16 {vr(X+4,4)}, {vr(X,4)}, {vr(PP,4)}, 0
v_mfma_f32_16x16x32_bf16 {vr(X+4,4)}, {vr(X,4)}, {vr(PP+4,4)}, {vr(X+4,4)}""")
    else:
        PQ = D+24
        def ldP2(r):
            A(f"""buffer_load_dwordx4 {vr(r,4)}, v{PLD}, s[4:7], s52 offen sc1
buffer_load_dwordx4 {vr(r+4,4)}, v{PLD}, s[4:7], s51 offen sc1""")
        def chkP(r, Lok):
            A(f"""v_xor_b32 v{MBR}, s38, v{r}
v_xor_b32 v{MBR+1}, s38, v{r+4}
v_or_b32 v{MBR}, v{MBR}, v{MBR+1}
v_and_b32 v{MBR}, 1, v{MBR}
v_cmp_ne_u32 vcc, 0, v{MBR}
s_cbranch_vccz {Lok}""")
        LokP1 = A.newlabel('cB_okP1'); LokP2 = A.newlabel('cB_okP2')
        ldP2(PP); gap(PGAP); ldP2(PQ)
        A.label(LpP)
        A('s_waitcnt vmcnt(2)')
        chkP(PP, LokP)
        ldP2(PP)
        A('s_waitcnt vmcnt(2)')
        chkP(PQ, LokP1)
        ldP2(PQ)
        spin(A, Lexit)
        A(f's_branch {LpP}')
        A.label(LokP1)
        A(f"""v_mfma_f32_16x16x32_bf16 {vr(X+4,4)}, {vr(X,4)}, {vr(PQ,4)}, 0
v_mfma_f32_16x16x32_bf16 {vr(X+4,4)}, {vr(X,4)}, {vr(PQ+4,4)}, {vr(X+4,4)}
s_branch {LokP2}""")
        A.label(LokP)
        A(f"""v_mfma_f32_16x16x32_bf16 {vr(X+4,4)}, {vr(X,4)}, {vr(PP,4)}, 0
v_mfma_f32_16x16x32_bf16 {vr(X+4,4)}, {vr(X,4)}, {vr(PP+4,4)}, {vr(X+4,4)}""")
        A.label(LokP2)
    A(f"""s_mov_b32 s56, s36
s_mov_b32 s36, s35
s_add_u32 s34, s34, 1
s_nop 4""")
    for sh in (4, 8):
        for r in range(4):
            A(f'v_add_f32_dpp v{X+4+r}, v{X+4+r}, v{X+4+r} row_ror:{sh} row_mask:0xf bank_mask:0xf')
    M0 = D
    A(f"""s_mov_b64 exec, s[46:47]
v_cvt_pk_bf16_f32 v{MBR}, v{X+4}, v{X+5}
v_cvt_pk_bf16_f32 v{MBR+1}, v{X+6}, v{X+7}
v_min_u32 v{MBR}, -2, v{MBR}
v_min_u32 v{MBR+1}, -2, v{MBR+1}
buffer_store_dwordx2 {vr(MBR,2)}, v{MST}, s[4:7], s35 offen
buffer_store_dwordx2 {vr(MBR+2,2)}, v{MST}, s[4:7], s56 offen
s_mov_b64 exec, -1
s_add_u32 s35, s35, 8192
s_cmp_eq_u32 s35, 24576
s_cselect_b32 s35, 0, s35
s_add_u32 s56, s40, 4096""")
    stamp(A, 8)
    if MDELAY: A(f's_sleep {MDELAY}')
    LpM = A.newlabel('cB_pollM'); LokM = A.newlabel('cB_okM')
    def ldM(r): A(f'buffer_load_dwordx4 {vr(r,4)}, v{T16}, s[4:7], s40 offen sc1')
    def chkM(r, Lok):
        A(f"""v_max3_u32 v{M0+8}, v{r}, v{r+1}, v{r+2}
v_max_u32 v{M0+8}, v{M0+8}, v{r+3}
v_cmp_eq_u32 vcc, -1, v{M0+8}
s_cbranch_vccz {Lok}""")
    if not PIPE_M:
        ldM(M0)
        A.label(LpM)
        A('s_waitcnt vmcnt(0)')
        chkM(M0, LokM)
        spin(A, Lexit)
        ldM(M0)
        A(f's_branch {LpM}')
        A.label(LokM)
        stamp(A, 9)
        A(f'ds_write_b128 v{T16}, {vr(M0,4)}')
    else:
        M1 = M0+4
        Lok1 = A.newlabel('cB_okM1'); Lok2 = A.newlabel('cB_okM2')
        ldM(M0); gap(PGAP); ldM(M1)
        A.label(LpM)
        A('s_waitcnt vmcnt(1)')
        chkM(M0, LokM)
        ldM(M0)
        A('s_waitcnt vmcnt(1)')
        chkM(M1, Lok1)
        ldM(M1)
        spin(A, Lexit)
        A(f's_branch {LpM}')
        A.label(Lok1)
        A(f'ds_write_b128 v{T16}, {vr(M1,4)}\ns_branch {Lok2}')
        A.label(LokM)
        A(f'ds_write_b128 v{T16}, {vr(M0,4)}')
        A.label(Lok2)
    A(f"""buffer_load_dwordx4 {vr(MBR,4)}, v{T16}, s[4:7], s56 offen sc1
s_mov_b32 s40, s56
s_setprio 0
s_waitcnt lgkmcnt(0)
s_branch {Lloop}""")
    A.label(Lfin)
    if TIMING:
        A(f"""s_memtime s[64:65]
s_waitcnt lgkmcnt(0)
s_sub_u32 s64, s64, s62
v_mov_b32 v16, s64
s_lshl_b32 s18, s15, 2
s_add_u32 s18, s18, 64
v_mov_b32 v17, s18
s_mov_b64 exec, 1
global_store_dword v17, v16, s[12:13]
s_mov_b64 exec, -1""")
    A(f"""ds_read_b128 {vr(OA,4)}, v11
s_lshl_b32 s58, s34, 16
s_add_u32 s58, s58, s57
s_waitcnt lgkmcnt(0)
buffer_store_dwordx4 {vr(OA,4)}, v{LA}, s[4:7], s58 offen sc1
s_waitcnt vmcnt(0)
s_barrier
s_cmp_lg_u32 s20, 1
s_cbranch_scc1 {Lexit}
s_mov_b64 exec, 1
v_mov_b32 v16, 64
v_mov_b32 v17, 8
buffer_store_byte v16, v17, s[4:7], s81 offen sc1
s_mov_b64 exec, -1""")
```

```python
from asmlib import *
import k_chain, k_qkv2, k_ssm, k_tail2
PROF = False
CTIMING = False
def mark(A, i, t=250):
    if not PROF: return
    L = A.newlabel('mk')
    A(f"""s_cmp_lg_u32 s14, 0
s_cbranch_scc1 {L}
s_memrealtime s[94:95]
s_lshl_b32 s96, s2, 6
s_add_u32 s96, s96, {hex(WS_KD)}
s_waitcnt lgkmcnt(0)
s_mov_b64 exec, 1
v_mov_b32 v{t}, s94
v_mov_b32 v{t+1}, 0
buffer_store_dword v{t}, v{t+1}, s[4:7], s96 offen offset:{4*i}
s_waitcnt vmcnt(0)
s_mov_b64 exec, -1""")
    A.label(L)
def emit_mega(A, name='mega_kernel'):
    kernel_header(A, name)
    Lend = A.newlabel('mg_end'); Lworker = A.newlabel('mg_worker')
    A(f"""s_cmp_ge_u32 s2, 256
s_cbranch_scc1 {Lend}
s_load_dwordx2 s[22:23], s[0:1], {KA_WS}
s_load_dwordx2 s[12:13], s[0:1], {KA_DBG}
v_lshrrev_b32 v16, 6, v0
s_nop 0
v_readfirstlane_b32 s14, v16
s_waitcnt lgkmcnt(0)""")
    srd(A, 4, 22, WS_SIZE)
    k_chain.MERGED = True
    mark(A, 0)
    k_chain.MARK = mark
    k_chain.emit_elect2(A)
    A(f"""s_cmp_ge_u32 s15, 32
s_cbranch_scc1 {Lworker}""")
    mark(A, 1)
    k_chain.emit_chain_body(A, CTIMING)
    mark(A, 7)
    A('s_endpgm')
    A.label(Lworker)
    A(f"""s_cmp_ge_u32 s90, 224
s_cbranch_scc1 {Lend}""")
    mark(A, 1)
    Lssm0 = A.newlabel('mg_ssm0'); Lssm = A.newlabel('mg_ssm'); Ltail = A.newlabel('mg_tail')
    A(f"""s_cmp_ge_u32 s90, 192
s_cbranch_scc1 {Lssm0}
s_mov_b32 s15, s90""")
    k_qkv2.emit_qkv_body(A)
    mark(A, 2)
    A(f"""s_cmp_ge_u32 s90, 64
s_cbranch_scc1 {Ltail}
s_add_u32 s91, s90, 64
s_mov_b32 s92, 1
s_branch {Lssm}""")
    A.label(Lssm0)
    A(f"""s_sub_u32 s91, s90, 192
s_lshl_b32 s91, s91, 1
s_mov_b32 s92, 2""")
    A.label(Lssm)
    A('s_mov_b32 s15, s91')
    k_ssm.emit_ssm_body(A, st=' sc1')
    Ls = A.newlabel('mg_sd')
    A(f"""s_cmp_lg_u32 s14, 0
s_cbranch_scc1 {Ls}
s_mov_b64 exec, 1
v_mov_b32 v20, 1
v_mov_b32 v21, 44
global_atomic_add v21, v20, s[12:13]
s_mov_b64 exec, -1""")
    A.label(Ls)
    A(f"""s_add_u32 s91, s91, 1
s_sub_u32 s92, s92, 1
s_cmp_lg_u32 s92, 0
s_cbranch_scc1 {Lssm}""")
    A.label(Ltail)
    mark(A, 3)
    A('s_mov_b32 s15, s90')
    k_tail2.emit_tail_body(A)
    mark(A, 4)
    A.label(Lend)
    A('s_endpgm')
```

```python
from asmlib import *
import k_chain, k_chain8, k_qkv3, k_ssm, k_tail3
PROF = False
NOTAIL = False
CTIMING = False
def mark(A, i, t=120, wv=0):
    if not PROF: return
    L = A.newlabel('mk')
    A(f"""s_cmp_lg_u32 s14, {wv}
s_cbranch_scc1 {L}
s_memrealtime s[94:95]
s_lshl_b32 s96, s2, 6
s_add_u32 s96, s96, {hex(WS_KD)}
s_waitcnt lgkmcnt(0)
s_mov_b64 exec, 1
v_mov_b32 v{t}, s94
v_mov_b32 v{t+1}, 0
buffer_store_dword v{t}, v{t+1}, s[4:7], s96 offen offset:{4*i}
s_waitcnt vmcnt(0)
s_mov_b64 exec, -1""")
    A.label(L)
def emit_mega(A, name='mega_kernel'):
    kernel_header(A, name)
    Lend = A.newlabel('mg_end'); Lworker = A.newlabel('mg_worker')
    A(f"""s_cmp_ge_u32 s2, 256
s_cbranch_scc1 {Lend}
s_load_dwordx2 s[22:23], s[0:1], {KA_WS}
s_load_dwordx2 s[12:13], s[0:1], {KA_DBG}
v_lshrrev_b32 v16, 6, v0
s_nop 0
v_readfirstlane_b32 s14, v16
s_waitcnt lgkmcnt(0)""")
    srd(A, 4, 22, WS_SIZE)
    k_chain.MERGED = True
    mark(A, 0)
    k_chain8.MARK = mark if PROF else None
    k_chain8.TIMING = CTIMING
    k_chain.emit_elect2(A)
    A(f"""s_cmp_ge_u32 s15, 32
s_cbranch_scc1 {Lworker}""")
    mark(A, 1)
    k_chain8.emit_chain8(A)
    mark(A, 7, 30)
    A('s_endpgm')
    A.label(Lworker)
    A(f"""s_cmp_ge_u32 s90, 224
s_cbranch_scc1 {Lend}
s_cmp_ge_u32 s14, 4
s_cbranch_scc1 {Lend}""")
    mark(A, 1)
    Lssm0 = A.newlabel('mg_ssm0'); Lssm = A.newlabel('mg_ssm'); Ltail = A.newlabel('mg_tail')
    A(f"""s_cmp_ge_u32 s90, 192
s_cbranch_scc1 {Lssm0}
s_mov_b32 s15, s90""")
    k_qkv3.emit_qkv_body(A)
    mark(A, 2)
    A(f"""s_cmp_ge_u32 s90, 64
s_cbranch_scc1 {Ltail}
s_add_u32 s91, s90, 64
s_mov_b32 s92, 1
s_branch {Lssm}""")
    A.label(Lssm0)
    A(f"""s_sub_u32 s91, s90, 192
s_lshl_b32 s91, s91, 1
s_mov_b32 s92, 2""")
    A.label(Lssm)
    A('s_mov_b32 s15, s91')
    k_ssm.emit_ssm_body(A, st=' sc1')
    Ls = A.newlabel('mg_sd')
    A(f"""s_cmp_lg_u32 s14, 0
s_cbranch_scc1 {Ls}
s_mov_b64 exec, 1
v_mov_b32 v20, 1
v_mov_b32 v21, 44
global_atomic_add v21, v20, s[12:13]
s_mov_b64 exec, -1""")
    A.label(Ls)
    A(f"""s_add_u32 s91, s91, 1
s_sub_u32 s92, s92, 1
s_cmp_lg_u32 s92, 0
s_cbranch_scc1 {Lssm}""")
    A.label(Ltail)
    mark(A, 3)
    A('s_mov_b32 s15, s90')
    if not NOTAIL: k_tail3.emit_tail_body(A)
    mark(A, 4)
    A.label(Lend)
    A('s_endpgm')
```

```python
from asmlib import *
VW = 128
VACC = 64
VX = 80
VDMA = 8
VRD = 16
VST = 32
VPK = 24
def emit_qkv_body(A, publish=True):
    A(f'''s_lshr_b32 s68, s15, 1          ; ct
s_and_b32 s69, s15, 1           ; par
s_lshr_b32 s70, s68, 5          ; mat
s_and_b32 s71, s68, 31          ; h
s_lshl_b32 s72, s70, 3
s_add_u32 s72, s72, {KA_WQ}
s_load_dwordx2 s[8:9], s[0:1], {KA_X}
s_load_dwordx2 s[10:11], s[0:1], s72
v_and_b32 v1, 63, v0
v_and_b32 v3, 15, v1
v_lshrrev_b32 v4, 4, v1
s_waitcnt lgkmcnt(0)''')
    srd(A, 16, 8, 2048*1024)
    srd(A, 20, 10, 4*1024*1024)
    A(f'''v_lshlrev_b32 v5, 16, v4
s_lshl_b32 s28, s71, 8
s_lshl_b32 s29, s14, 6
s_add_u32 s28, s28, s29
v_lshl_add_u32 v5, v3, 2, v5
v_add_u32 v5, s28, v5
s_mov_b32 s30, 0x05040100
s_mov_b32 s31, 0x07060302
s_lshl_b32 s32, s14, 3''')
    for rr in range(8):
        A(f'''s_add_u32 s33, s32, {rr}
s_and_b32 s33, s33, 15
v_xor_b32 v{VDMA+rr}, s33, v1
v_lshlrev_b32 v{VDMA+rr}, 4, v{VDMA+rr}''')
    for q in range(4):
        A(f'''v_add_u32 v6, {4*q}, v4
v_xor_b32 v6, v6, v3
v_lshlrev_b32 v6, 4, v6
v_lshl_add_u32 v{VRD+q}, v3, 10, v6
v_add_u32 v{VRD+4+q}, 0x10000, v{VRD+q}''')
    A(f'''s_mov_b32 s34, s69
s_lshl_b32 s36, s32, 10''')
    def dma(buf, segreg):
        A(f'''s_lshl_b32 s35, {segreg}, 15
s_add_u32 s35, s35, s36''')
        for rr in range(8):
            A(f'''s_add_u32 m0, s36, {buf*32768 + rr*1024}
s_add_u32 s37, s35, {rr*1024}
buffer_load_dwordx4 v{VDMA+rr}, s[16:19], s37 offen lds''')
    dma(0, 's34')
    A('s_add_u32 s42, s34, 2')
    dma(1, 's42')
    A('s_add_u32 s42, s34, 4')
    dma(2, 's42')
    A('s_mov_b32 s38, 0')
    def wl(i):
        for j in range(8):
            A(f'''buffer_load_dword a{i*8+j}, v5, s[20:23], s38 offen
s_add_u32 s38, s38, {8192 if j<7 else 8192*25}''')
    for i in range(4): wl(i)
    for i in range(16):
        if i+4 < 16:
            wl(i+4)
            A('s_waitcnt vmcnt(32)')
        else:
            A(f's_waitcnt vmcnt({(15-i)*8})')
        for j in range(8):
            A(f'v_accvgpr_read_b32 v{VX+j}, a{i*8+j}')
        for p in range(4):
            A(f'''v_perm_b32 v{VW+(i*2+0)*4+p}, v{VX+2*p+1}, v{VX+2*p}, s30
v_perm_b32 v{VW+(i*2+1)*4+p}, v{VX+2*p+1}, v{VX+2*p}, s31''')
    A(f'''s_lshl_b32 s73, s71, 7
s_lshl_b32 s75, s70, 1
s_add_u32 s73, s73, s75
s_add_u32 s73, s73, s69
s_add_u32 s73, s73, {hex(WS_QF)}
v_mov_b32 v7, s73''')
    if publish:
        Lzi = A.newlabel('qkv_zi'); Lzo = A.newlabel('qkv_zo')
        A(f'''s_cmp_lg_u32 s14, 0
s_cbranch_scc1 {Lzo}
v_mov_b32 v6, 56''')
        A.label(Lzi)
        A(f'''global_load_dword v33, v6, s[12:13] sc1
s_waitcnt vmcnt(0)
v_readfirstlane_b32 s75, v33
s_cmp_ge_u32 s75, 32
s_cbranch_scc1 {Lzo}
s_sleep 8
s_branch {Lzi}''')
        A.label(Lzo)
    Lv = A.newlabel('qkv_v'); Ldone = A.newlabel('qkv_done')
    A(f'''s_cmp_eq_u32 s70, 2
s_cbranch_scc1 {Lv}''')
    ST = ' sc1' if publish else ''
    nseg = 32
    for isv in (0, 1):
        if isv == 0:
            A(f'''s_lshl_b32 s39, s70, 24
s_lshl_b32 s40, s71, 19
s_add_u32 s39, s39, s40
s_add_u32 s39, s39, s29
v_lshlrev_b32 v{VST}, 8, v3
v_lshl_add_u32 v{VST}, v4, 4, v{VST}
v_add_u32 v{VST}, s39, v{VST}''')
        else:
            A.label(Lv)
            A(f'''s_lshl_b32 s39, s71, 13
s_lshl_b32 s40, s14, 11
s_add_u32 s39, s39, s40
s_add_u32 s39, s39, {hex(WS_VT)}
v_lshlrev_b32 v{VST}, 7, v3
v_lshl_add_u32 v{VST}, v4, 4, v{VST}
v_add_u32 v{VST}, s39, v{VST}''')
        Lloop = A.newlabel('qkv_loop')
        A('s_mov_b32 s41, 0\ns_mov_b32 s74, -3')
        A.label(Lloop)
        for buf in range(4):
            A('''s_waitcnt vmcnt(22)
s_barrier''')
            if publish:
                Lnp = A.newlabel('qkv_np')
                A(f'''s_cmp_lg_u32 s14, 0
s_cbranch_scc1 {Lnp}
s_cmp_lt_i32 s74, 3
s_cbranch_scc1 {Lnp}
v_mov_b32 v6, s74
s_mov_b64 exec, 1
buffer_store_byte v6, v7, s[4:7], 0 offen sc1
s_mov_b64 exec, -1''')
                A.label(Lnp)
                A('s_add_u32 s74, s74, 1')
            A(f'''s_add_u32 s42, s34, 6
s_min_u32 s42, s42, 63''')
            dma((buf+3)%4, 's42')
            def rd(i, st):
                for mt in range(2):
                    A(f'ds_read_b128 {vr(VX+st*8+mt*4,4)}, v{VRD+(buf//2)*4+i%4} offset:{(i//4)*256+mt*16384+(buf%2)*32768}')
            rd(0, 0)
            for i in range(16):
                st = i % 2
                if i < 15:
                    rd(i+1, 1-st)
                    A('s_waitcnt lgkmcnt(2)')
                else:
                    A('s_waitcnt lgkmcnt(0)')
                for mt in range(2):
                    for T in range(2):
                        acc = vr(VACC+(mt*2+T)*4, 4)
                        c = '0' if i == 0 else acc
                        wf = vr(VW+(i*2+T)*4, 4); xf = vr(VX+st*8+mt*4, 4)
                        if isv: A(f'v_mfma_f32_16x16x32_bf16 {acc}, {xf}, {wf}, {c}')
                        else:   A(f'v_mfma_f32_16x16x32_bf16 {acc}, {wf}, {xf}, {c}')
            A('s_nop 7')
            if isv == 0:
                A('s_lshl_b32 s43, s34, 13')
                for mt in range(2):
                    for r in range(4):
                        A(f'v_cvt_pk_bf16_f32 v{VPK+mt*4+r}, v{VACC+(mt*2+0)*4+r}, v{VACC+(mt*2+1)*4+r}')
                    if mt: A('s_add_u32 s43, s43, 4096')
                    A(f'buffer_store_dwordx4 {vr(VPK+mt*4,4)}, v{VST}, s[4:7], s43 offen{ST}')
            else:
                A('s_lshl_b32 s43, s34, 18')
                for T in range(2):
                    for mt in range(2):
                        for rp in range(2):
                            A(f'v_cvt_pk_bf16_f32 v{VPK+T*4+mt*2+rp}, v{VACC+(mt*2+T)*4+2*rp}, v{VACC+(mt*2+T)*4+2*rp+1}')
                    A(f'buffer_store_dwordx4 {vr(VPK+T*4,4)}, v{VST}, s[4:7], s43 offen offset:{T*64}{ST}')
            A('s_add_u32 s34, s34, 2')
            if publish and buf < 2:
                Le = A.newlabel('qkv_eg')
                A(f'''s_cmp_lg_u32 s41, 0
s_cbranch_scc1 {Le}
s_waitcnt vmcnt(0)
s_barrier
s_cmp_lg_u32 s14, 0
s_cbranch_scc1 {Le}
v_mov_b32 v6, {buf+1}
s_mov_b64 exec, 1
buffer_store_byte v6, v7, s[4:7], 0 offen sc1
s_mov_b64 exec, -1''')
                A.label(Le)
        A(f'''s_add_u32 s41, s41, 1
s_cmp_lt_u32 s41, {nseg//4}
s_cbranch_scc1 {Lloop}''')
        if isv == 0:
            A(f's_branch {Ldone}')
    A.label(Ldone)
    A('''s_waitcnt vmcnt(0)
s_barrier''')
    if publish:
        Lnp = A.newlabel('qkv_np')
        A(f'''s_cmp_lg_u32 s14, 0
s_cbranch_scc1 {Lnp}
v_mov_b32 v6, 32
s_mov_b64 exec, 1
buffer_store_byte v6, v7, s[4:7], 0 offen sc1
s_mov_b64 exec, -1''')
        A.label(Lnp)
```

```python
from asmlib import *
VW = 128
VACC = 64
VX = 80
VDMA = 8
VRD = 16
VST = 32
VPK = 24
def emit_qkv_body(A, publish=True):
    A(f'''s_lshr_b32 s68, s15, 1          ; ct
s_and_b32 s69, s15, 1           ; par
s_lshr_b32 s70, s68, 5          ; mat
s_and_b32 s71, s68, 31          ; h
s_lshl_b32 s72, s70, 3
s_add_u32 s72, s72, {KA_WQ}
s_load_dwordx2 s[8:9], s[0:1], {KA_X}
s_load_dwordx2 s[10:11], s[0:1], s72
v_and_b32 v1, 63, v0
v_and_b32 v3, 15, v1
v_lshrrev_b32 v4, 4, v1
s_waitcnt lgkmcnt(0)''')
    srd(A, 16, 8, 2048*1024)
    srd(A, 20, 10, 4*1024*1024)
    A(f'''v_lshlrev_b32 v5, 16, v4
s_lshl_b32 s28, s71, 8
s_lshl_b32 s29, s14, 6
s_add_u32 s28, s28, s29
v_lshl_add_u32 v5, v3, 2, v5
v_add_u32 v5, s28, v5
s_mov_b32 s30, 0x05040100
s_mov_b32 s31, 0x07060302
s_lshl_b32 s32, s14, 3''')
    for rr in range(8):
        A(f'''s_add_u32 s33, s32, {rr}
s_and_b32 s33, s33, 15
v_xor_b32 v{VDMA+rr}, s33, v1
v_lshlrev_b32 v{VDMA+rr}, 4, v{VDMA+rr}''')
    for q in range(4):
        A(f'''v_add_u32 v6, {4*q}, v4
v_xor_b32 v6, v6, v3
v_lshlrev_b32 v6, 4, v6
v_lshl_add_u32 v{VRD+q}, v3, 10, v6
v_add_u32 v{VRD+4+q}, 0x10000, v{VRD+q}''')
    A(f'''s_mov_b32 s34, s69
s_lshl_b32 s36, s32, 10''')
    def dma(buf, segreg):
        A(f'''s_lshl_b32 s35, {segreg}, 15
s_add_u32 s35, s35, s36''')
        for rr in range(8):
            A(f'''s_add_u32 m0, s36, {buf*32768 + rr*1024}
s_add_u32 s37, s35, {rr*1024}
buffer_load_dwordx4 v{VDMA+rr}, s[16:19], s37 offen lds''')
    dma(0, 's34')
    A('s_add_u32 s42, s34, 2')
    dma(1, 's42')
    A('s_add_u32 s42, s34, 4')
    dma(2, 's42')
    A('s_mov_b32 s38, 0')
    def wl(i):
        for j in range(8):
            A(f'''buffer_load_dword v{64+(i%8)*8+j}, v5, s[20:23], s38 offen
s_add_u32 s38, s38, {8192 if j<7 else 8192*25}''')
    for i in range(4): wl(i)
    for i in range(16):
        if i+4 < 16:
            wl(i+4)
            A('s_waitcnt vmcnt(32)')
        else:
            A(f's_waitcnt vmcnt({(15-i)*8})')
        b = 64+(i%8)*8
        for p in range(4):
            A(f'''v_perm_b32 v34, v{b+2*p+1}, v{b+2*p}, s30
v_perm_b32 v35, v{b+2*p+1}, v{b+2*p}, s31
v_accvgpr_write_b32 a{(i*2+0)*4+p}, v34
v_accvgpr_write_b32 a{(i*2+1)*4+p}, v35''')
    A(f'''s_lshl_b32 s73, s71, 7
s_lshl_b32 s75, s70, 1
s_add_u32 s73, s73, s75
s_add_u32 s73, s73, s69
s_add_u32 s73, s73, {hex(WS_QF)}
v_mov_b32 v7, s73''')
    if publish:
        Lzi = A.newlabel('qkv_zi'); Lzo = A.newlabel('qkv_zo')
        A(f'''s_cmp_lg_u32 s14, 0
s_cbranch_scc1 {Lzo}
v_mov_b32 v6, 56''')
        A.label(Lzi)
        A(f'''global_load_dword v33, v6, s[12:13] sc1
s_waitcnt vmcnt(0)
v_readfirstlane_b32 s75, v33
s_cmp_ge_u32 s75, 32
s_cbranch_scc1 {Lzo}
s_sleep 8
s_branch {Lzi}''')
        A.label(Lzo)
    Lv = A.newlabel('qkv_v'); Ldone = A.newlabel('qkv_done')
    A(f'''s_cmp_eq_u32 s70, 2
s_cbranch_scc1 {Lv}''')
    ST = ' sc1' if publish else ''
    nseg = 32
    for isv in (0, 1):
        if isv == 0:
            A(f'''s_lshl_b32 s39, s70, 24
s_lshl_b32 s40, s71, 19
s_add_u32 s39, s39, s40
s_add_u32 s39, s39, s29
v_lshlrev_b32 v{VST}, 8, v3
v_lshl_add_u32 v{VST}, v4, 4, v{VST}
v_add_u32 v{VST}, s39, v{VST}''')
        else:
            A.label(Lv)
            A(f'''s_lshl_b32 s39, s71, 13
s_lshl_b32 s40, s14, 11
s_add_u32 s39, s39, s40
s_add_u32 s39, s39, {hex(WS_VT)}
v_lshlrev_b32 v{VST}, 7, v3
v_lshl_add_u32 v{VST}, v4, 4, v{VST}
v_add_u32 v{VST}, s39, v{VST}''')
        Lloop = A.newlabel('qkv_loop')
        A('s_mov_b32 s41, 0\ns_mov_b32 s74, -3')
        A.label(Lloop)
        for buf in range(4):
            A('''s_waitcnt vmcnt(22)
s_barrier''')
            if publish:
                Lnp = A.newlabel('qkv_np')
                A(f'''s_cmp_lg_u32 s14, 0
s_cbranch_scc1 {Lnp}
s_cmp_lt_i32 s74, 3
s_cbranch_scc1 {Lnp}
v_mov_b32 v6, s74
s_mov_b64 exec, 1
buffer_store_byte v6, v7, s[4:7], 0 offen sc1
s_mov_b64 exec, -1''')
                A.label(Lnp)
                A('s_add_u32 s74, s74, 1')
            A(f'''s_add_u32 s42, s34, 6
s_min_u32 s42, s42, 63''')
            dma((buf+3)%4, 's42')
            def rd(i, st):
                for mt in range(2):
                    A(f'ds_read_b128 {vr(VX+st*8+mt*4,4)}, v{VRD+(buf//2)*4+i%4} offset:{(i//4)*256+mt*16384+(buf%2)*32768}')
            rd(0, 0)
            for i in range(16):
                st = i % 2
                if i < 15:
                    rd(i+1, 1-st)
                    A('s_waitcnt lgkmcnt(2)')
                else:
                    A('s_waitcnt lgkmcnt(0)')
                for mt in range(2):
                    for T in range(2):
                        acc = vr(VACC+(mt*2+T)*4, 4)
                        c = '0' if i == 0 else acc
                        wf = ar((i*2+T)*4, 4); xf = vr(VX+st*8+mt*4, 4)
                        if isv: A(f'v_mfma_f32_16x16x32_bf16 {acc}, {xf}, {wf}, {c}')
                        else:   A(f'v_mfma_f32_16x16x32_bf16 {acc}, {wf}, {xf}, {c}')
            A('s_nop 7')
            if isv == 0:
                A('s_lshl_b32 s43, s34, 13')
                for mt in range(2):
                    for r in range(4):
                        A(f'v_cvt_pk_bf16_f32 v{VPK+mt*4+r}, v{VACC+(mt*2+0)*4+r}, v{VACC+(mt*2+1)*4+r}')
                    if mt: A('s_add_u32 s43, s43, 4096')
                    A(f'buffer_store_dwordx4 {vr(VPK+mt*4,4)}, v{VST}, s[4:7], s43 offen{ST}')
            else:
                A('s_lshl_b32 s43, s34, 18')
                for T in range(2):
                    for mt in range(2):
                        for rp in range(2):
                            A(f'v_cvt_pk_bf16_f32 v{VPK+T*4+mt*2+rp}, v{VACC+(mt*2+T)*4+2*rp}, v{VACC+(mt*2+T)*4+2*rp+1}')
                    A(f'buffer_store_dwordx4 {vr(VPK+T*4,4)}, v{VST}, s[4:7], s43 offen offset:{T*64}{ST}')
            A('s_add_u32 s34, s34, 2')
            if publish and buf < 2:
                Le = A.newlabel('qkv_eg')
                A(f'''s_cmp_lg_u32 s41, 0
s_cbranch_scc1 {Le}
s_waitcnt vmcnt(0)
s_barrier
s_cmp_lg_u32 s14, 0
s_cbranch_scc1 {Le}
v_mov_b32 v6, {buf+1}
s_mov_b64 exec, 1
buffer_store_byte v6, v7, s[4:7], 0 offen sc1
s_mov_b64 exec, -1''')
                A.label(Le)
        A(f'''s_add_u32 s41, s41, 1
s_cmp_lt_u32 s41, {nseg//4}
s_cbranch_scc1 {Lloop}''')
        if isv == 0:
            A(f's_branch {Ldone}')
    A.label(Ldone)
    A('''s_waitcnt vmcnt(0)
s_barrier''')
    if publish:
        Lnp = A.newlabel('qkv_np')
        A(f'''s_cmp_lg_u32 s14, 0
s_cbranch_scc1 {Lnp}
v_mov_b32 v6, 32
s_mov_b64 exec, 1
buffer_store_byte v6, v7, s[4:7], 0 offen sc1
s_mov_b64 exec, -1''')
        A.label(Lnp)
```

```python
from asmlib import *
WS_P2 = 0x6000000
WS_FLAG = 0x5800000
NSET = 7
TSLEEP = 6
T_K = 0
T_Q = 8192
T_O = 32768
OS = 272
T_G = T_O + 32*OS
W0 = 128
ACC = 64
KF = 16

def emit_tail_body(A):
    A(f'''s_lshr_b32 s16, s15, 5           ; set
s_and_b32 s17, s15, 31           ; h
s_load_dwordx2 s[24:25], s[0:1], {KA_WO}
s_load_dwordx2 s[26:27], s[0:1], {KA_X}
s_load_dwordx2 s[28:29], s[0:1], {KA_GW}
s_load_dwordx2 s[32:33], s[0:1], {KA_DSKIP}
s_load_dwordx2 s[34:35], s[0:1], {KA_OUT}
v_and_b32 v1, 63, v0             ; lane
v_and_b32 v2, 15, v1             ; c
v_lshrrev_b32 v3, 4, v1          ; g
s_mov_b32 s30, 0x05040100
s_mov_b32 s31, 0x07060302
s_waitcnt lgkmcnt(0)''')
    srd(A, 8, 24, 4*1024*1024)
    srd(A, 36, 26, 2048*1024)
    srd(A, 40, 34, 2048*1024)
    srd(A, 44, 28, 1024)
    srd(A, 48, 32, 1024)
    A(f'''v_lshlrev_b32 v4, 13, v3
v_lshl_add_u32 v4, v2, 4, v4
s_lshl_b32 s18, s17, 17
s_lshl_b32 s19, s14, 8
s_add_u32 s18, s18, s19
v_add_u32 v4, s18, v4''')
    for ks in range(4):
        for j in range(8):
            A(f'''s_mov_b32 s18, {(32*ks+j)*1024}
buffer_load_dwordx4 {vr(KF+j*4,4)}, v4, s[8:11], s18 offen''')
        A('s_waitcnt vmcnt(0)')
        for t in range(8):
            for p in range(4):
                A(f'v_perm_b32 v60, v{KF+(2*p+1)*4+t//2}, v{KF+(2*p)*4+t//2}, {"s31" if t%2 else "s30"}\nv_accvgpr_write_b32 a{(t*4+ks)*4+p}, v60')
    A(f'''s_and_b32 s18, s14, 1
s_lshl_b32 s18, s18, 2
v_add_u32 v4, s18, v3
v_lshlrev_b32 v4, 1, v4
v_xor_b32 v4, v4, v2
v_lshlrev_b32 v4, 4, v4
v_lshl_add_u32 v4, v3, 8, v4
s_lshl_b32 s18, s17, 19
s_lshl_b32 s19, s14, 11
s_add_u32 s18, s18, s19
v_add_u32 v4, s18, v4''')
    A(f'''v_and_b32 v5, 3, v2
v_lshrrev_b32 v6, 3, v2
v_lshl_add_u32 v5, v6, 2, v5
v_lshlrev_b32 v5, 1, v5
v_xor_b32 v5, v5, v3
v_lshlrev_b32 v5, 4, v5
v_lshl_add_u32 v5, v2, 8, v5''')
    A(f'''v_lshlrev_b32 v6, 7, v2
v_lshl_add_u32 v6, v3, 4, v6
s_lshl_b32 s18, s17, 13
s_lshr_b32 s19, s14, 1
s_lshl_b32 s20, s19, 12
s_add_u32 s18, s18, s20
s_add_u32 s18, s18, {hex(WS_VT)}
v_add_u32 v6, s18, v6''')
    A(f'''v_and_b32 v7, 7, v2
v_lshlrev_b32 v7, 8, v7
v_lshl_add_u32 v7, v3, 4, v7
s_lshl_b32 s18, s17, 11
s_add_u32 s18, s18, {hex(WS_KM)}
v_add_u32 v7, s18, v7''')
    A(f'''v_and_b32 v8, 1, v3
v_lshlrev_b32 v8, 3, v8
v_lshl_add_u32 v8, v2, 5, v8
s_lshl_b32 s18, s17, 11
s_lshl_b32 s20, s19, 10
s_add_u32 s18, s18, s20
s_add_u32 s18, s18, {hex(WS_VMT)}
v_add_u32 v8, s18, v8''')
    A(f'''s_and_b32 s20, s14, 1
s_lshl_b32 s20, s20, 4
v_add_u32 v9, s20, v2
v_mul_u32_u24 v9, {OS}, v9
v_lshl_add_u32 v9, v3, 4, v9
s_lshl_b32 s18, s19, 7
s_add_u32 s18, s18, {T_O}
v_add_u32 v9, s18, v9''')
    A(f'''v_mul_u32_u24 v10, {OS}, v2
v_lshl_add_u32 v10, v3, 4, v10
v_add_u32 v10, {T_O}, v10''')
    A(f'''v_lshlrev_b32 v11, 17, v3
v_lshl_add_u32 v11, v2, 4, v11
s_lshl_b32 s18, s14, 13
s_lshl_b32 s20, s17, 8
s_add_u32 s18, s18, s20
s_add_u32 s18, s18, {hex(WS_P2)}
v_add_u32 v11, s18, v11''')
    A(f'''s_and_b32 s20, s14, 1
s_lshl_b32 s20, s20, 4
v_add_u32 v12, s20, v2
v_lshlrev_b32 v13, 2, v3
v_sub_u32 v12, v12, v13
v_lshlrev_b32 v13, 4, v1         ; v13 = lane*16
v_and_b32 v14, 1, v2
v_lshlrev_b32 v14, 4, v14
v_mov_b32 v15, 0x3f80
v_lshlrev_b32 v14, v14, v15
s_mov_b32 s52, 0x3e02939f        ; SC
s_mov_b32 s53, 0xff800000        ; -inf
s_lshl_b32 s54, s14, 11
s_and_b32 s55, s14, 1
s_lshl_b32 s55, s55, 12          ; qt*4096
s_mov_b32 s56, s16               ; segment
s_mov_b32 s57, 0''')
    A('s_mov_b32 s93, 0')
    def wait0(addr_setup, load, cmp):
        Lw = A.newlabel('tl_w'); Lo = A.newlabel('tl_wo')
        A(f"""s_cmp_lg_u32 s14, 0
s_cbranch_scc1 {Lo}""")
        A(addr_setup)
        A.label(Lw)
        A(f"""{load}
s_waitcnt vmcnt(0)
{cmp}
s_add_u32 s93, s93, 1
s_cmp_lt_u32 s93, 0x80000
s_cselect_b64 vcc, vcc, 0
s_cbranch_vccz {Lo}
s_sleep {TSLEEP}
s_branch {Lw}""")
        A.label(Lo)
        A('s_waitcnt vmcnt(0)\ns_barrier')
    wait0('v_mov_b32 v56, 56', 'global_load_dword v57, v56, s[12:13] sc1', 'v_cmp_gt_u32 vcc, 32, v57')
    wait0(f"""v_min_u32 v56, 5, v1
s_lshl_b32 s63, s17, 7
s_add_u32 s63, s63, {hex(WS_QF)}""", 'buffer_load_ubyte v57, v56, s[4:7], s63 offen sc1', 'v_cmp_ne_u32 vcc, 32, v57')
    KM = 16; VMf = 32; XR = 40; GW = 44; XC = 48; YC = 50; DS = 52
    AVX = 0; APP = 32; AOF = 64
    def xloads(segreg, buf):
        A(f"""s_lshl_b32 s58, {segreg}, 13
s_add_u32 s59, s58, {hex(WS_K)}
s_add_u32 m0, s54, {buf*16384}
s_lshl_b32 s60, {segreg}, 18
buffer_load_dwordx4 v4, s[4:7], s59 offen lds
buffer_load_dwordx4 v4, s[4:7], s59 offen offset:1024 lds
s_add_u32 m0, s54, {buf*16384+T_Q}
s_nop 0
buffer_load_dwordx4 v4, s[4:7], s58 offen lds
buffer_load_dwordx4 v4, s[4:7], s58 offen offset:1024 lds""")
    def red_issue(segreg, cntreg):
        wait0(f"""s_lshl_b32 s63, s16, 5
v_and_b32 v56, 31, v1
v_add_u32 v56, s63, v56
s_mov_b32 s63, {hex(WS_FLAG)}""", 'buffer_load_ubyte v57, v56, s[4:7], s63 offen sc1', f'v_cmp_gt_u32 vcc, {cntreg}, v57')
        A(f"""s_lshl_b32 s63, s17, 15
s_lshl_b32 s64, {segreg}, 20
s_add_u32 s63, s63, s64
s_lshl_b32 s64, s14, 13
s_add_u32 s63, s63, s64
s_add_u32 s63, s63, {hex(WS_P2)}
s_add_u32 s64, s63, 4096""")
        for i in range(4):
            A(f'buffer_load_dwordx4 {vr(ACC+i*4,4)}, v13, s[4:7], s63 offen offset:{i*1024} sc1')
        for i in range(4):
            A(f'buffer_load_dwordx4 {vr(ACC+16+i*4,4)}, v13, s[4:7], s64 offen offset:{i*1024} sc1')
        A(f"""s_lshl_b32 s65, {segreg}, 5
s_add_u32 s65, s65, s17
s_lshl_b32 s65, s65, 10
buffer_load_dwordx4 {vr(XR,4)}, v13, s[36:39], s65 offen
buffer_load_dwordx4 {vr(GW,4)}, v13, s[44:47], 0 offen
buffer_load_dwordx2 {vr(XC,2)}, v15, s[36:39], s65 offen
s_add_u32 s66, s65, {hex(WS_Y)}
buffer_load_dwordx2 {vr(YC,2)}, v15, s[4:7], s66 offen sc1
buffer_load_dwordx2 {vr(DS,2)}, v15, s[48:51], 0 offen""")
    def red_compute():
        SEL = 16; DD = 20; TT = 24
        A('v_lshrrev_b32 v57, 1, v2')
        for p in range(4):
            A(f"""v_cmp_eq_u32 vcc, {p}, v57
s_nop 1
v_cndmask_b32 v{SEL+p}, 0, v14, vcc""")
        A('s_nop 1')
        for i in range(8):
            A(f'v_mfma_f32_16x16x32_bf16 {vr(DD,4)}, {vr(SEL,4)}, {vr(ACC+4*i,4)}, {"0" if i==0 else vr(DD,4)}')
        for i in range(4):
            A(f"""v_lshlrev_b32 v{TT}, 16, v{XR+i}
v_and_b32 v{TT+1}, 0xffff0000, v{XR+i}
v_lshlrev_b32 v{TT+2}, 16, v{GW+i}
v_and_b32 v{TT+3}, 0xffff0000, v{GW+i}
v_mul_f32 v{TT}, v{TT}, v{TT+2}
v_mul_f32 v{TT+1}, v{TT+1}, v{TT+3}
v_cvt_pk_bf16_f32 v{TT}, v{TT}, v{TT+1}
v_lshlrev_b32 v{TT+1}, 16, v{TT}
v_and_b32 v{TT}, 0xffff0000, v{TT}
v_add_f32 v{TT}, v{TT}, v{TT+1}""")
            A(f'v_mov_b32 v{TT+4}, v{TT}' if i == 0 else f'v_add_f32 v{TT+4}, v{TT+4}, v{TT}')
        G = TT+4
        A(f"""s_nop 1
v_add_f32_dpp v{G}, v{G}, v{G} quad_perm:[1,0,3,2] row_mask:0xf bank_mask:0xf
s_nop 1
v_add_f32_dpp v{G}, v{G}, v{G} quad_perm:[2,3,0,1] row_mask:0xf bank_mask:0xf
s_nop 1
v_add_f32_dpp v{G}, v{G}, v{G} row_ror:4 row_mask:0xf bank_mask:0xf
s_nop 1
v_add_f32_dpp v{G}, v{G}, v{G} row_ror:8 row_mask:0xf bank_mask:0xf
v_mov_b32 v{TT}, v{G}
s_nop 1
v_permlane32_swap_b32 v{TT}, v{G}
v_add_f32 v{G}, v{G}, v{TT}
v_mov_b32 v{TT}, v{G}
s_nop 1
v_permlane16_swap_b32 v{TT}, v{G}
v_add_f32 v{G}, v{G}, v{TT}
v_cvt_pk_bf16_f32 v{G}, v{G}, v{G}
v_lshlrev_b32 v{G}, 16, v{G}
v_mul_f32 v{G}, 0xbfb8aa3b, v{G}
v_exp_f32 v{G}, v{G}
s_nop 0
v_add_f32 v{G}, 1.0, v{G}
v_rcp_f32 v{G}, v{G}
s_nop 0
v_cvt_pk_bf16_f32 v{G}, v{G}, v{G}
v_lshlrev_b32 v{G}, 16, v{G}
v_sub_f32 v{G+1}, 1.0, v{G}
v_cvt_pk_bf16_f32 v{G+1}, v{G+1}, v{G+1}
v_lshlrev_b32 v{G+1}, 16, v{G+1}""")
        for i in range(2):
            A(f"""v_cvt_pk_bf16_f32 v{TT}, v{DD+2*i}, v{DD+2*i+1}
v_lshlrev_b32 v{TT+1}, 16, v{TT}
v_and_b32 v{TT}, 0xffff0000, v{TT}
v_mul_f32 v{TT+1}, v{G}, v{TT+1}
v_mul_f32 v{TT}, v{G}, v{TT}
v_cvt_pk_bf16_f32 v{DD+2*i}, v{TT+1}, v{TT}
v_lshlrev_b32 v{TT}, 16, v{XC+i}
v_and_b32 v{TT+1}, 0xffff0000, v{XC+i}
v_lshlrev_b32 v{TT+2}, 16, v{DS+i}
v_and_b32 v{TT+3}, 0xffff0000, v{DS+i}
v_mul_f32 v{TT}, v{TT}, v{TT+2}
v_mul_f32 v{TT+1}, v{TT+1}, v{TT+3}
v_cvt_pk_bf16_f32 v{TT}, v{TT}, v{TT+1}
v_lshlrev_b32 v{TT+1}, 16, v{TT}
v_and_b32 v{TT}, 0xffff0000, v{TT}
v_lshlrev_b32 v{TT+2}, 16, v{YC+i}
v_and_b32 v{TT+3}, 0xffff0000, v{YC+i}
v_add_f32 v{TT+1}, v{TT+1}, v{TT+2}
v_add_f32 v{TT}, v{TT}, v{TT+3}
v_cvt_pk_bf16_f32 v{TT}, v{TT+1}, v{TT}
v_lshlrev_b32 v{TT+1}, 16, v{TT}
v_and_b32 v{TT}, 0xffff0000, v{TT}
v_mul_f32 v{TT+1}, v{G+1}, v{TT+1}
v_mul_f32 v{TT}, v{G+1}, v{TT}
v_cvt_pk_bf16_f32 v{TT}, v{TT+1}, v{TT}
v_lshlrev_b32 v{TT+1}, 16, v{TT}
v_and_b32 v{TT}, 0xffff0000, v{TT}
v_lshlrev_b32 v{TT+2}, 16, v{DD+2*i}
v_and_b32 v{TT+3}, 0xffff0000, v{DD+2*i}
v_add_f32 v{TT+1}, v{TT+1}, v{TT+2}
v_add_f32 v{TT}, v{TT}, v{TT+3}
v_cvt_pk_bf16_f32 v{XR+i}, v{TT+1}, v{TT}""")
        A(f"""s_mov_b32 exec_hi, 0
buffer_store_dwordx2 {vr(XR,2)}, v15, s[40:43], s65 offen
s_mov_b32 exec_hi, -1""")
    A(f"""v_and_b32 v15, 1, v3
v_lshlrev_b32 v15, 3, v15
v_lshl_add_u32 v15, v2, 4, v15
s_lshl_b32 s66, s14, 8
v_add_u32 v15, s66, v15""")
    xloads('s56', 0)
    wait0('v_mov_b32 v56, 44', 'global_load_dword v57, v56, s[12:13] sc1', 'v_cmp_gt_u32 vcc, 128, v57')
    Lloop = A.newlabel('tl_loop'); Lfin = A.newlabel('tl_fin')
    A.label(Lloop)
    for buf in range(2):
        Lnc = A.newlabel('tl_nc')
        A(f"""s_cmp_eq_u32 s57, 0
s_cbranch_scc1 {Lnc}
s_sub_u32 s67, s56, {NSET}""")
        red_issue('s67', 's57')
        A('s_waitcnt vmcnt(0)')
        red_compute()
        A.label(Lnc)
        wait0(f"""s_add_u32 s64, s56, 1
s_lshl_b32 s63, s17, 7
s_add_u32 s63, s63, {hex(WS_QF)}
v_mov_b32 v56, 8""", 'buffer_load_ubyte v57, v56, s[4:7], s63 offen sc1', 'v_cmp_gt_u32 vcc, s64, v57')
        A('s_lshl_b32 s61, s56, 16')
        A('s_lshl_b32 s60, s56, 18')
        for ks in range(4):
            A(f'buffer_load_dwordx4 {vr(KM+ks*4,4)}, v7, s[4:7], s61 offen offset:{ks*64} sc1')
        for et in range(2):
            for T in range(2):
                A(f'buffer_load_dwordx4 {vr(40+(et*2+T)*4,4)}, v6, s[4:7], s60 offen offset:{et*2048+T*64}')
        for et in range(2):
            for T in range(2):
                A(f'buffer_load_dwordx2 {vr(VMf+(et*2+T)*2,2)}, v8, s[4:7], s61 offen offset:{et*512+T*16} sc1')
        A('s_barrier')
        S = ACC; QF = ACC+16; KX = ACC+32
        A(f'v_add_u32 v56, s55, v5')
        for ks in range(4):
            if ks:
                A(f'v_xor_b32 v57, {ks*64}, v5\nv_xor_b32 v58, {ks*64}, v56')
            ak = 'v57' if ks else 'v5'; aq = 'v58' if ks else 'v56'
            A(f"""ds_read_b128 {vr(QF+ks*4,4)}, {aq} offset:{buf*16384+T_Q}
ds_read_b128 {vr(KX+ks*4,4)}, {ak} offset:{buf*16384+T_K}
ds_read_b128 {vr(KX+16+ks*4,4)}, {ak} offset:{buf*16384+T_K+4096}""")
        for ks in range(4):
            A(f's_waitcnt lgkmcnt({9-3*ks})')
            for t in (1,2):
                A(f'v_mfma_f32_16x16x32_bf16 {vr(S+t*4,4)}, {vr(KX+(t-1)*16+ks*4,4)}, {vr(QF+ks*4,4)}, {"0" if ks==0 else vr(S+t*4,4)}')
        A('s_waitcnt vmcnt(8)')
        for ks in range(4):
            A(f'v_mfma_f32_16x16x32_bf16 {vr(S,4)}, {vr(KM+ks*4,4)}, {vr(QF+ks*4,4)}, {"0" if ks==0 else vr(S,4)}')
        A(f'v_mov_b32 v57, s53')
        for kt in range(2):
            for r in range(4):
                A(f"""v_cmp_le_i32 vcc, {16*kt+r}, v12
s_nop 1
v_cndmask_b32 v{S+4+4*kt+r}, v57, v{S+4+4*kt+r}, vcc""")
        A(f"""v_cmp_gt_u32 vcc, 2, v3
s_nop 1""")
        for r in range(4):
            A(f'v_cndmask_b32 v{S+r}, v57, v{S+r}, vcc')
        M = S+12; T1 = S+13; L = S+14; T2 = S+15
        A(f"""v_max3_f32 v{M}, v{S}, v{S+1}, v{S+2}
v_max3_f32 v{T1}, v{S+3}, v{S+4}, v{S+5}
v_max3_f32 v{M}, v{M}, v{S+6}, v{S+7}
v_max3_f32 v{T1}, v{T1}, v{S+8}, v{S+9}
v_max3_f32 v{M}, v{M}, v{S+10}, v{S+11}
v_max_f32 v{M}, v{M}, v{T1}
v_mov_b32 v{T1}, v{M}
s_nop 1
v_permlane32_swap_b32 v{T1}, v{M}
v_max_f32 v{M}, v{M}, v{T1}
v_mov_b32 v{T1}, v{M}
s_nop 1
v_permlane16_swap_b32 v{T1}, v{M}
v_max_f32 v{M}, v{M}, v{T1}
v_mul_f32 v{M}, s52, v{M}""")
        for i in range(12):
            A(f'v_fma_f32 v{S+i}, v{S+i}, s52, -v{M}')
        for i in range(12):
            A(f'v_exp_f32 v{S+i}, v{S+i}')
        A(f"""s_nop 0
v_add_f32 v{L}, v{S}, v{S+1}
v_add_f32 v{T1}, v{S+2}, v{S+3}
v_add_f32 v{T2}, v{S+4}, v{S+5}
v_add_f32 v{M}, v{S+6}, v{S+7}
v_add_f32 v{L}, v{L}, v{T1}
v_add_f32 v{T1}, v{S+8}, v{S+9}
v_add_f32 v{T2}, v{T2}, v{M}
v_add_f32 v{M}, v{S+10}, v{S+11}
v_add_f32 v{L}, v{L}, v{T1}
v_add_f32 v{T2}, v{T2}, v{M}
v_add_f32 v{L}, v{L}, v{T2}
v_mov_b32 v{T1}, v{L}
s_nop 1
v_permlane32_swap_b32 v{T1}, v{L}
v_add_f32 v{L}, v{L}, v{T1}
v_mov_b32 v{T1}, v{L}
s_nop 1
v_permlane16_swap_b32 v{T1}, v{L}
v_add_f32 v{L}, v{L}, v{T1}
v_rcp_f32 v{L}, v{L}
s_nop 0""")
        for i in range(12):
            A(f'v_mul_f32 v{S+i}, v{S+i}, v{L}')
        PX = QF; PM = QF+4; O = KX
        A(f"""v_cvt_pk_bf16_f32 v{PX}, v{S+4}, v{S+5}
v_cvt_pk_bf16_f32 v{PX+1}, v{S+6}, v{S+7}
v_cvt_pk_bf16_f32 v{PX+2}, v{S+8}, v{S+9}
v_cvt_pk_bf16_f32 v{PX+3}, v{S+10}, v{S+11}
v_cvt_pk_bf16_f32 v{PM}, v{S}, v{S+1}
v_cvt_pk_bf16_f32 v{PM+1}, v{S+2}, v{S+3}
s_waitcnt vmcnt(0)""")
        for i in range(4):
            A(f'v_mfma_f32_16x16x32_bf16 {vr(O+i*4,4)}, {vr(40+i*4,4)}, {vr(PX,4)}, 0')
        for i in range(4):
            A(f'v_mfma_f32_16x16x16_bf16 {vr(O+i*4,4)}, {vr(VMf+i*2,2)}, {vr(PM,2)}, {vr(O+i*4,4)}')
        Lnx = A.newlabel('tl_nx')
        A(f"""s_add_u32 s67, s56, {NSET}
s_cmp_ge_u32 s67, 64
s_cbranch_scc1 {Lnx}""")
        xloads('s67', 1-buf)
        A.label(Lnx)
        A('s_nop 4')
        for et in range(2):
            for r in range(4):
                A(f'v_cvt_pk_bf16_f32 v{S+et*4+r}, v{O+et*8+r}, v{O+et*8+4+r}')
            A(f'ds_write_b128 v9, {vr(S+et*4,4)} offset:{et*64}')
        A("""s_waitcnt lgkmcnt(0)
s_barrier""")
        for mt in range(2):
            for ks in range(4):
                A(f'ds_read_b128 {vr(16+(mt*4+ks)*4,4)}, v10 offset:{mt*16*OS+ks*64}')
        A(f's_lshl_b32 s62, s56, 20')
        for mt in range(2):
            for ks in range(4):
                A(f's_waitcnt lgkmcnt({7-(mt*4+ks)})')
                for t in range(8):
                    acc = vr(ACC+(mt*8+t)*4,4)
                    A(f'v_mfma_f32_16x16x32_bf16 {acc}, {vr(16+(mt*4+ks)*4,4)}, {ar((t*4+ks)*4,4)}, {"0" if ks==0 else acc}')
        A('s_nop 7')
        for mt in range(2):
            for r in range(4):
                b = 16 + ((mt*4+r)%4)*4
                for p in range(4):
                    A(f'v_cvt_pk_bf16_f32 v{b+p}, v{ACC+(mt*8+2*p)*4+r}, v{ACC+(mt*8+2*p+1)*4+r}')
                A(f"""s_add_u32 s63, s62, {(16*mt+r)*32768}
buffer_store_dwordx4 {vr(b,4)}, v11, s[4:7], s63 offen sc1""")
        A(f"""s_add_u32 s57, s57, 1
s_waitcnt vmcnt(0)
s_barrier""")
        Lnp = A.newlabel('tl_np')
        A(f"""s_cmp_lg_u32 s14, 0
s_cbranch_scc1 {Lnp}
s_mov_b64 exec, 1
v_mov_b32 v56, s57
v_mov_b32 v57, s15
s_mov_b32 s63, {hex(WS_FLAG)}
buffer_store_byte v56, v57, s[4:7], s63 offen sc1
s_mov_b64 exec, -1""")
        A.label(Lnp)
        A(f"""s_add_u32 s56, s56, {NSET}
s_cmp_ge_u32 s56, 64
s_cbranch_scc1 {Lfin}""")
    A(f's_branch {Lloop}')
    A.label(Lfin)
    A(f's_sub_u32 s67, s56, {NSET}')
    red_issue('s67', 's57')
    A('s_waitcnt vmcnt(0)')
    red_compute()
    A('s_waitcnt vmcnt(0)')
```

```python
import sys
sys.path.insert(0, 'gen')
from gen import build
import k_mega8, k_chain8
def mk(out):
    build([('mega_kernel', k_mega8.emit_mega, 256, 512, 163840, 256, 100, 128)], out)
if __name__ == '__main__':
    mk('k8.s')
    k_mega8.PROF = True; mk('k8p.s'); k_mega8.PROF = False
    k_chain8.STAMPS = True; mk('k8s.s'); k_chain8.STAMPS = False
    k_mega8.CTIMING = True
    mk('k8t.s')
    import k_tail3
    for ts in (3, 12, 20):
        k_tail3.TSLEEP = ts; mk(f'k8ts{ts}.s')
    k_tail3.TSLEEP = 6
    for pd, md in [(4,3),(6,4),(7,5),(5,0)]:
        k_chain8.PDELAY = pd; k_chain8.MDELAY = md
        mk(f'k8d{pd}{md}.s')
    k_chain8.PDELAY = 0; k_chain8.MDELAY = 0
    k_mega8.NOTAIL = True
    mk('k8x0.s')
    k_chain8.PIPE_P = True; mk('k8x1.s')
    k_chain8.PIPE_M = True; mk('k8x2.s')
    k_chain8.PIPE_P = False; mk('k8x3.s')
    k_chain8.PIPE_P = True; k_chain8.PDELAY = 4; k_chain8.MDELAY = 3; mk('k8x4.s')
```

```python
from asmlib import *
L_WA = 0
L_WB = 65536
L_MA = 131072
L_QK = 139264
QS = 288
L_O  = L_QK
L_MISC = L_QK + 16*QS
L_VM = L_MISC + 1024
L_KX = 147456
L_FL = L_MISC + 64
WS_FLAG = 0x5800000
SPINBOUND = True
PDELAY = 4
PDELAY2 = 0
MDELAY = 3
MARK = None
TIMING = False
X_NOPUB = False
X_NOK = False
PIPE_P = False
VMAP = 0
VOFF1 = """s_lshr_b32 s18, s20, 1
s_lshl_b32 s18, s18, 7
s_and_b32 s19, s20, 1
s_lshl_b32 s19, s19, 2
s_add_u32 s18, s18, s19
v_lshl_add_u32 v10, v41, 3, v45"""
VOFF0 = """s_lshl_b32 s18, s20, 6
v_lshl_add_u32 v10, v41, 2, v45"""
VMW1 = """v_lshl_add_u32 v50, v41, 6, v50
s_lshr_b32 s18, s20, 1
s_lshl_b32 s18, s18, 10
s_and_b32 s19, s20, 1
s_lshl_b32 s19, s19, 5
s_add_u32 s18, s18, s19"""
VMW0 = """v_lshl_add_u32 v50, v41, 5, v50
s_lshl_b32 s18, s20, 9"""
BDELAY = False
PIPE_M = False
PGAP = 20
CP = [0,1,8,9,2,3,10,11]
def drow(kap, eta, j):
    return 256*eta + 32*(kap%4) + 4*(kap//4) + 8*(CP[j]>>2) + (CP[j]&3)

STAMPS = False
def stamp(A, i):
    if STAMPS:
        A(f"""s_memtime s[94:95]
s_waitcnt lgkmcnt(0)
s_sub_u32 s96, s94, s97
s_add_u32 s{70+i}, s{70+i}, s96
s_mov_b32 s97, s94""")
def stamp_init(A):
    if STAMPS:
        A('s_memtime s[94:95]\ns_waitcnt lgkmcnt(0)\ns_mov_b32 s97, s94')
        for i in range(10): A(f's_mov_b32 s{70+i}, 0')
def stamp_dump(A):
    if STAMPS:
        A(f"""s_lshl_b32 s18, s15, 3
s_add_u32 s18, s18, s14
s_lshl_b32 s18, s18, 6
s_add_u32 s18, s18, {hex(WS_KD)}
v_mov_b32 v17, 0
s_mov_b64 exec, 1""")
        for i in range(10):
            A(f"""v_mov_b32 v16, s{70+i}
buffer_store_dword v16, v17, s[4:7], s18 offen offset:{4*i}""")
def spin(A, Lexit):
    if SPINBOUND:
        A(f'''s_add_u32 s48, s48, 1
s_cmp_gt_u32 s48, 0x200000
s_cbranch_scc1 {Lexit}''')

def kv_ready(A, target, t0):
    Lc = A.newlabel('kv_chk'); Lo = A.newlabel('kv_ok')
    A.label(Lc)
    A(f"""s_cmp_gt_u32 s80, {target}
s_cbranch_scc1 {Lo}
v_mov_b32 v{t0}, s81
buffer_load_ushort v{t0+1}, v{t0}, s[4:7], 0 offen offset:2 sc1
buffer_load_ushort v{t0+2}, v{t0}, s[4:7], 0 offen offset:4 sc1
s_waitcnt vmcnt(0)
v_readfirstlane_b32 s82, v{t0+1}
v_readfirstlane_b32 s83, v{t0+2}
s_and_b32 s84, s82, 0xff
s_and_b32 s85, s83, 0xff
s_min_u32 s84, s84, s85
s_lshl_b32 s84, s84, 1
s_lshr_b32 s82, s82, 8
s_lshr_b32 s83, s83, 8
s_min_u32 s82, s82, s83
s_lshl_b32 s82, s82, 1
s_add_u32 s82, s82, 1
s_min_u32 s80, s84, s82
s_cmp_gt_u32 s80, {target}
s_cbranch_scc1 {Lo}
s_sleep 4
s_add_u32 s88, s88, 1
s_cmp_lt_u32 s88, 0x80000
s_cbranch_scc1 {Lc}""")
    A.label(Lo)

def smf_s(acc, a, b, isagpr, idx):
    bs = ar(b,8) if isagpr else vr(b,8)
    return f'v_smfmac_f32_16x16x64_bf16 {vr(acc,4)}, {vr(a,4)}, {bs}, v{idx}'

def run_batches(A, batches, depth_of):
    n = len(batches); issued = [0]
    def issue_upto(k):
        while issued[0] <= k and issued[0] < n:
            batches[issued[0]][0](); issued[0] += 1
    issue_upto(depth_of(0)-1)
    for i in range(n):
        out_after = sum(batches[j][1] for j in range(i+1, issued[0]))
        A(f's_waitcnt vmcnt({out_after})')
        batches[i][2]()
        issue_upto(min(i+depth_of(i+1), n-1))

def emit_chain8(A):
    LB = A.newlabel('c8_B'); Lexit = A.newlabel('c8_exit')
    A(f'''v_and_b32 v40, 63, v0
v_and_b32 v41, 15, v40            ; c
v_lshrrev_b32 v42, 4, v40         ; g
v_and_b32 v43, 1, v42             ; b
v_lshrrev_b32 v44, 1, v42         ; g/2
s_mov_b32 s30, 0x05040100
s_mov_b32 s31, 0x07060302
s_and_b32 s13+0, s13, s13'''.replace('s_and_b32 s13+0, s13, s13','s_and_b32 s20, s14, 3') + f'''
s_mov_b32 s48, 0
s_mov_b32 s80, 0
s_mov_b32 s88, 0
s_lshl_b32 s81, s15, 7
s_add_u32 s81, s81, {hex(WS_QF)}
v_mov_b32 v46, 0x4444
v_mov_b32 v47, 0xeeee
v_and_b32 v45, 1, v41
v_cmp_eq_u32 vcc, 0, v45
s_nop 1
v_cndmask_b32 v2, v47, v46, vcc   ; IDX
v_lshlrev_b32 v1, 4, v40
v_add_u32 v1, {L_MA}, v1          ; V_LA = L_MA + lane*16
v_lshlrev_b32 v45, 20, v44
v_lshl_add_u32 v45, v43, 16, v45
s_lshl_b32 s19, s15, 8
v_add_u32 v45, s19, v45           ; weight row base + h*256
s_cmp_ge_u32 s14, 4
s_cbranch_scc1 {LB}''')
    emit_A(A, Lexit)
    A.label(LB)
    emit_B(A, Lexit)
    A.label(Lexit)
    stamp_dump(A)
    A('s_waitcnt vmcnt(0)')

def emit_A(A, Lexit):
    IDX = 2; LA = 1
    WB = 0; QKW = 3; QKR = 4; OW = 5; KXR = 6; VXA = 7; VMR = 8; PUBR = 9
    VX = 10
    AF = 18
    STG = 32
    ACC = 48
    T2W = 64
    Lq0 = A.newlabel('cA_q0')
    A(f'''s_cmp_lg_u32 s20, 0
s_cbranch_scc1 {Lq0}
s_mov_b64 exec, 1
v_mov_b32 v50, 0
v_mov_b32 v51, 0
v_mov_b32 v52, 0
v_mov_b32 v53, 0
buffer_store_dwordx4 v[50:53], v50, s[4:7], s81 offen sc1
s_waitcnt vmcnt(0)
v_mov_b32 v51, 1
v_mov_b32 v50, 56
global_atomic_add v50, v51, s[12:13]
s_mov_b64 exec, -1''')
    A.label(Lq0)
    A('v_lshlrev_b32 v9, 4, v0')
    A(f'''s_lshl_b32 s18, s20, 14
v_lshlrev_b32 v{WB}, 4, v40
v_add_u32 v{WB}, s18, v{WB}
s_lshr_b32 s18, s20, 1
s_lshl_b32 s18, s18, 3
v_lshlrev_b32 v50, 1, v42
v_add_u32 v50, s18, v50
v_mul_u32_u24 v50, {QS}, v50
s_and_b32 s18, s20, 1
s_lshl_b32 s18, s18, 7
s_add_u32 s18, s18, {L_QK}
v_lshl_add_u32 v50, v41, 3, v50
v_add_u32 v{QKW}, s18, v50
v_lshrrev_b32 v50, 1, v41
v_mul_u32_u24 v50, {QS}, v50
v_lshl_add_u32 v50, v42, 4, v50
v_add_u32 v{QKR}, {L_QK}, v50
v_lshrrev_b32 v50, 1, v41
v_mul_u32_u24 v50, {QS}, v50
v_lshl_add_u32 v50, v42, 4, v50
s_lshl_b32 s18, s20, 6
s_add_u32 s18, s18, {L_O}
v_add_u32 v{OW}, s18, v50
v_and_b32 v50, 3, v41
v_lshrrev_b32 v51, 3, v41
v_lshl_add_u32 v50, v51, 2, v50
v_lshlrev_b32 v50, 1, v50
v_xor_b32 v50, v50, v42
v_lshlrev_b32 v50, 4, v50
v_lshl_add_u32 v50, v41, 8, v50
v_add_u32 v{KXR}, {L_KX}, v50
v_lshlrev_b32 v50, 7, v41
v_lshl_add_u32 v50, v42, 4, v50
s_lshl_b32 s18, s15, 13
s_lshl_b32 s19, s20, 11
s_add_u32 s18, s18, s19
s_add_u32 s18, s18, {hex(WS_VT)}
v_add_u32 v{VXA}, s18, v50''')
    A(f'''v_lshlrev_b32 v50, 2, v42
v_lshl_add_u32 v50, v41, 5, v50
s_lshl_b32 s18, s20, 9
s_add_u32 s18, s18, {L_VM}
v_add_u32 v{VMR}, s18, v50''')
    A(f'''s_lshr_b32 s18, s20, 1
s_lshl_b32 s18, s18, 3
s_add_u32 s18, s18, {KA_WQ}
s_load_dwordx2 s[24:25], s[0:1], s18
s_and_b32 s18, s20, 1
s_lshl_b32 s18, s18, 7
v_lshl_add_u32 v30, v41, 3, v45
v_add_u32 v30, s18, v30
s_waitcnt lgkmcnt(0)''')
    srd(A, 8, 24, 4*1024*1024)
    bufs = [32, 48, 12]
    batches = []
    for q in range(16):
        kap, eta = q//2, q%2
        buf = bufs[q%3]
        def iss(kap=kap, eta=eta, buf=buf):
            for j in range(8):
                A(f"""s_mov_b32 s18, {drow(kap,eta,j)*8192}
buffer_load_dwordx2 {vr(buf+j*2,2)}, v30, s[8:11], s18 offen""")
        def proc(kap=kap, eta=eta, buf=buf):
            for T in range(4):
                for p in range(4):
                    hi = buf+(2*p+1)*2+T//2; lo = buf+(2*p)*2+T//2
                    sel = "s31" if T%2 else "s30"
                    if T < 2:
                        A(f'v_perm_b32 v31, v{hi}, v{lo}, {sel}\nv_accvgpr_write_b32 a{(T*8+kap)*8+eta*4+p}, v31')
                    elif T == 2:
                        A(f'v_perm_b32 v{T2W+kap*8+eta*4+p}, v{hi}, v{lo}, {sel}')
                    else:
                        A(f'v_perm_b32 v{28+(p%2)}, v{hi}, v{lo}, {sel}')
                        if p % 2 == 1:
                            A(f'ds_write_b64 v{WB}, v[28:29] offset:{kap*2048+eta*1024+(p//2)*8}\ns_nop 0')
        batches.append((iss, 8, proc))
    run_batches(A, batches, lambda i: 3)
    if MARK: MARK(A, 5, 30)
    A(f'''v_bfe_u32 v40, v{LA}, 4, 6
v_and_b32 v41, 15, v40
v_lshrrev_b32 v42, 4, v40''')
    A(f'''s_lshl_b32 s16, s15, 13
s_add_u32 s16, s16, {hex(WS_P)}
v_mov_b32 v50, 1
v_mov_b32 v51, 1
v_mov_b32 v52, 1
v_mov_b32 v53, 1''')
    for ring in range(2):
        for i in range(2):
            A(f'''s_add_u32 s17, s16, {ring*0x40000+i*4096}
buffer_store_dwordx4 v[50:53], v9, s[4:7], s17 offen''')
    A(f'''s_and_b32 s17, s15, 7
s_lshl_b32 s17, s17, 10
s_lshr_b32 s18, s15, 3
s_lshl_b32 s18, s18, 8
s_add_u32 s17, s17, s18
s_add_u32 s17, s17, {hex(WS_M)}
v_mov_b32 v54, -1
v_lshlrev_b32 v55, 2, v40''')
    for sl in range(3):
        A(f'''s_add_u32 s18, s17, {sl*8192}
buffer_store_dword v54, v55, s[4:7], s18 offen''')
    Lz = A.newlabel('cA_z')
    A(f'''v_mov_b32 v54, 0
v_add_u32 v56, {L_FL}, v55
v_cmp_gt_u32 vcc, 8, v40
s_and_saveexec_b64 s[22:23], vcc
ds_write_b32 v56, v54
s_mov_b64 exec, s[22:23]
s_cmp_lg_u32 s15, 0
s_cbranch_scc1 {Lz}
s_mov_b32 s18, {hex(WS_FLAG)}
buffer_store_dword v54, v55, s[4:7], s18 offen sc1''')
    A.label(Lz)
    A(f'''s_waitcnt vmcnt(0)
s_mov_b64 exec, 1
v_mov_b32 v50, 1
v_mov_b32 v51, 36
global_atomic_add v51, v50, s[12:13]
s_mov_b64 exec, -1''')
    A(f'''s_load_dwordx2 s[32:33], s[0:1], {KA_MEM0}
v_lshrrev_b32 v50, 1, v41
v_lshlrev_b32 v50, 10, v50
v_lshl_add_u32 v50, v42, 8, v50
v_and_b32 v51, 1, v41
v_lshl_add_u32 v50, v51, 5, v50
s_and_b32 s18, s20, 1
s_lshl_b32 s18, s18, 7
s_lshr_b32 s19, s20, 1
s_lshl_b32 s19, s19, 3
s_add_u32 s18, s18, s19
v_add_u32 v30, s18, v50
s_waitcnt lgkmcnt(0)''')
    srd(A, 8, 32, 8192)
    for kk in range(2):
        for pos in range(8):
            A(f'buffer_load_ushort v{32+kk*8+pos}, v30, s[8:11], 0 offen offset:{(32*kk+8*(pos>>2)+(pos&3))*2}')
    A(f'''s_waitcnt vmcnt(0)
s_lshl_b32 s18, s20, 11
v_add_u32 v31, s18, v{LA}''')
    for kk in range(2):
        for p in range(4):
            A(f'v_lshl_or_b32 v{48+p}, v{32+kk*8+2*p+1}, 16, v{32+kk*8+2*p}')
        A(f'ds_write_b128 v31, v[48:51] offset:{kk*1024}\ns_waitcnt lgkmcnt(0)')
    def load_v(sreg):
        for T in range(2):
            A(f'buffer_load_dwordx4 {vr(VX+T*4,4)}, v{VXA}, s[4:7], {sreg} offen offset:{T*64}')
    A(f'''s_mov_b32 s34, 0
s_mov_b32 s44, 0x3e02939f
s_mov_b32 s45, 0x3e02939f
s_mov_b32 s68, 0x3f803f80
s_mov_b32 s69, 0x3f803f80
s_cmp_eq_u32 s20, 1
s_cselect_b32 s87, 1, 0x7fff
s_lshl_b32 s50, s20, 2
s_add_u32 s50, s50, {L_FL}
s_waitcnt vmcnt(0) lgkmcnt(0)
s_barrier
s_barrier
s_setprio 3''')
    def rdT(kap, st): return [f'ds_read_b128 {vr(STG+st*8+eta*4,4)}, v{WB} offset:{kap*2048+eta*1024}' for eta in range(2)]
    def rdA(kap): return [f'ds_read_b128 {vr(AF+(kap%3)*4,4)}, v{LA} offset:{kap*1024}']
    def p1(kap):
        a = AF+(kap%3)*4
        return [smf_s(ACC, a, kap*8, True, IDX), smf_s(ACC+4, a, 64+kap*8, True, IDX),
                smf_s(ACC+8, a, T2W+kap*8, False, IDX), smf_s(ACC+12, a, STG+(kap%2)*8, False, IDX)]
    def emit(l):
        for x in l: A(x)
    def pre():
        emit(rdT(0,0)+rdT(1,1))
        for i in range(8): A(f'v_mov_b64 {vr(ACC+2*i,2)}, 0')
    pre()
    if MARK: MARK(A, 6, 30)
    stamp_init(A)
    Lloop = A.newlabel('cA_loop'); Lfin = A.newlabel('cA_fin')
    A.raw('.p2align 6')
    A.label(Lloop)
    A('s_waitcnt lgkmcnt(0)\ns_barrier')
    stamp(A, 0)
    def rdK(ks):
        b = STG+(ks%2)*8
        if ks == 0: return [f'ds_read_b128 {vr(b,4)}, v{KXR}', f'ds_read_b128 {vr(b+4,4)}, v{KXR} offset:4096']
        return [f'v_xor_b32 v{b+4}, {ks*64}, v{KXR}', f'ds_read_b128 {vr(b,4)}, v{b+4}', f'ds_read_b128 {vr(b+4,4)}, v{b+4} offset:4096']
    q = []
    def iss(tag, l):
        for x in l:
            A(x)
            if x.startswith('ds_'): q.append(tag)
    def need(tag):
        if tag not in q: return
        last = max(i for i,t in enumerate(q) if t == tag)
        n = len(q)-1-last
        A(f's_waitcnt lgkmcnt({n})')
        del q[:last+1]
    iss('A0', rdA(0)); iss('A1', rdA(1)); iss('A2', rdA(2))
    A(f's_add_u32 s35, s34, 1\ns_lshl_b32 s43, s34, 18')
    pend = []
    def gapfill():
        if pend:
            t, x = pend.pop(0); iss(t, [x])
    for kap in range(8):
        if kap == 2:
            while pend: gapfill()
            stamp(A, 1)
            A('s_barrier')
            stamp(A, 2)
            if STAMPS: q.clear()
            iss('A4', rdA(4))
            if not X_NOK: load_v('s43')
        m = p1(kap)
        need(f'A{kap}')
        A(m[0]); gapfill(); A(m[1]); gapfill(); A(m[2]); gapfill()
        need(f'T{kap}')
        A(m[3])
        if kap+2 < 8: pend += [(f'T{kap+2}', x) for x in rdT(kap+2, kap%2)]
        if kap == 0: pend += [('A3', x) for x in rdA(3)]
        if 2 <= kap <= 4: pend += [(f'A{kap+3}', x) for x in rdA(kap+3)]
        if kap == 6: pend += [('K0', x) for x in rdK(0)]
        gapfill()
    while pend: gapfill()
    A(f'v_mov_b32 v30, s35\nv_mov_b32 v31, s50\ns_nop 1')
    for T in range(4):
        a = ACC+T*4
        A(f'v_add_f32 v{a}, v{a}, v{a+1}\nv_add_f32 v{a+2}, v{a+2}, v{a+3}')
    A(f"""v_cvt_pk_bf16_f32 v{ACC+0}, v{ACC+0}, v{ACC+4}
v_cvt_pk_bf16_f32 v{ACC+1}, v{ACC+8}, v{ACC+12}
v_cvt_pk_bf16_f32 v{ACC+2}, v{ACC+2}, v{ACC+6}
v_cvt_pk_bf16_f32 v{ACC+3}, v{ACC+10}, v{ACC+14}
ds_write_b64 v{QKW}, {vr(ACC+0,2)}
ds_write_b64 v{QKW}, {vr(ACC+2,2)} offset:{QS}
ds_write_b32 v31, v30
v_xor_b32 v{STG+12}, 64, v{KXR}
ds_read_b128 {vr(STG+8,4)}, v{STG+12}
ds_read_b128 {vr(STG+12,4)}, v{STG+12} offset:4096
v_mov_b32 v31, {L_FL}
s_cmp_eq_u32 s34, 63
s_cbranch_scc1 {Lfin}""")
    stamp(A, 3)
    Lf = A.newlabel('cA_fl')
    A.label(Lf)
    A(f"""ds_read_b128 {vr(AF,4)}, v31
ds_read_b128 {vr(ACC,4)}, v{QKR}
ds_read_b128 {vr(ACC+4,4)}, v{QKR} offset:{8*QS}
ds_read_b128 {vr(ACC+8,4)}, v{QKR} offset:64
ds_read_b128 {vr(ACC+12,4)}, v{QKR} offset:{8*QS+64}
s_waitcnt lgkmcnt(4)
v_min3_u32 v{AF}, v{AF}, v{AF+1}, v{AF+2}
v_min_u32 v{AF}, v{AF}, v{AF+3}
v_cmp_gt_u32 vcc, s35, v{AF}
s_cbranch_vccnz {Lf}""")
    stamp(A, 4)
    S = AF; M = 30; T1 = 31
    def rdQK(ks):
        b = ACC+(ks%2)*8
        return [f'ds_read_b128 {vr(b,4)}, v{QKR} offset:{ks*64}', f'ds_read_b128 {vr(b+4,4)}, v{QKR} offset:{8*QS+ks*64}']
    def smm(ks):
        b = ACC+(ks%2)*8; k = STG+(ks%2)*8
        r = []
        for t in range(3):
            a = vr(b+4,4) if t == 0 else vr(k+(t-1)*4,4)
            r.append(f'v_mfma_f32_16x16x32_bf16 {vr(S+t*4,4)}, {a}, {vr(b,4)}, {"0" if ks==0 else vr(S+t*4,4)}')
        return r
    A('s_waitcnt lgkmcnt(2)')
    emit(smm(0)); emit(rdQK(2)+rdK(2))
    A('s_waitcnt lgkmcnt(4)')
    emit(smm(1)); emit(rdQK(3)+rdK(3))
    A('s_waitcnt lgkmcnt(4)')
    emit(smm(2))
    A('s_waitcnt lgkmcnt(0)')
    emit(smm(3))
    PX = ACC; PM = ACC+4; VM = ACC+6; ONE = ACC+12; O = STG; LL = STG+8; LR = STG+12
    A(f"""s_nop 2
v_mov_b32 v{VM+1}, 0
v_mov_b32 v{VM+3}, 0
v_mov_b32 v{PM+1}, 0
v_mov_b64 {vr(ONE,2)}, s[68:69]
v_mov_b64 {vr(ONE+2,2)}, s[68:69]
v_max3_f32 v{M}, v{S}, v{S+2}, v{S+4}
v_max3_f32 v{T1}, v{S+5}, v{S+6}, v{S+7}
v_max3_f32 v{M}, v{M}, v{S+8}, v{S+9}
v_max3_f32 v{T1}, v{T1}, v{S+10}, v{S+11}
v_max_f32 v{M}, v{M}, v{T1}
v_mov_b32 v{T1}, v{M}
s_nop 1
v_permlane32_swap_b32 v{T1}, v{M}
v_max_f32 v{M}, v{M}, v{T1}
v_mov_b32 v{T1}, v{M}
s_nop 1
v_permlane16_swap_b32 v{T1}, v{M}
v_max_f32 v{M}, v{M}, v{T1}
v_mul_f32 v{M}, s44, v{M}""")
    for i in [2,3,4,5]:
        A(f'v_pk_fma_f32 {vr(S+2*i,2)}, {vr(S+2*i,2)}, s[44:45], {vr(M,2)} op_sel_hi:[1,1,0] neg_lo:[0,0,1] neg_hi:[0,0,1]')
    A(f'v_fma_f32 v{S}, v{S}, s44, -v{M}\nv_fma_f32 v{S+2}, v{S+2}, s44, -v{M}')
    for i in [4,5,6,7,8,9,10,11,0,2]:
        A(f'v_exp_f32 v{S+i}, v{S+i}')
    stamp(A, 5)
    A('s_barrier')
    stamp(A, 6)
    A(f"""ds_read_b32 v{VM}, v{VMR}
ds_read_b32 v{VM+2}, v{VMR} offset:16
v_cvt_pk_bf16_f32 v{PX}, v{S+4}, v{S+5}
v_cvt_pk_bf16_f32 v{PX+1}, v{S+6}, v{S+7}
v_cvt_pk_bf16_f32 v{PX+2}, v{S+8}, v{S+9}
v_cvt_pk_bf16_f32 v{PX+3}, v{S+10}, v{S+11}
v_cvt_pk_bf16_f32 v{PM}, v{S}, v{S+2}
s_waitcnt vmcnt(0)
v_mfma_f32_16x16x32_bf16 {vr(LL,4)}, {vr(ONE,4)}, {vr(PX,4)}, 0
v_mfma_f32_16x16x32_bf16 {vr(O,4)}, {vr(VX,4)}, {vr(PX,4)}, 0
v_mfma_f32_16x16x32_bf16 {vr(O+4,4)}, {vr(VX+4,4)}, {vr(PX,4)}, 0
v_mfma_f32_16x16x16_bf16 {vr(LL,4)}, {vr(ONE,2)}, {vr(PM,2)}, {vr(LL,4)}
s_waitcnt lgkmcnt(0)
v_mfma_f32_16x16x16_bf16 {vr(O,4)}, {vr(VM,2)}, {vr(PM,2)}, {vr(O,4)}
v_mfma_f32_16x16x16_bf16 {vr(O+4,4)}, {vr(VM+2,2)}, {vr(PM,2)}, {vr(O+4,4)}
s_nop 5
v_rcp_f32 v{LR}, v{LL}
s_nop 0""")
    for i in range(4):
        A(f'v_pk_mul_f32 {vr(O+2*i,2)}, {vr(O+2*i,2)}, {vr(LR,2)} op_sel_hi:[1,0]')
    for r in range(4):
        A(f'v_cvt_pk_bf16_f32 v{S+r}, v{O+r}, v{O+4+r}')
    A(f"""ds_write_b128 v{OW}, {vr(S,4)}
s_waitcnt lgkmcnt(0)""")
    stamp(A, 7)
    A('s_barrier')
    stamp(A, 8)
    A(f's_mov_b32 s34, s35\nv_xor_b32 v{KXR}, 0x2000, v{KXR}')
    pre()
    stamp(A, 9)
    A(f's_branch {Lloop}')
    A.label(Lfin)
    A(f"""s_waitcnt lgkmcnt(0)
s_barrier
s_branch {Lexit}""")

def emit_B(A, Lexit):
    IDX = 2; LA = 1
    WB = 0; PST = 3; PLD = 4; MST = 5; T16 = 6; OR = 7; KXA = 8; VMW = 9
    MBR = 12
    VACC = 16
    OA = 24
    D = 32
    AF = 32; STG = 48
    V0W = 64
    A(f'''v_subrev_u32 v46, 256, v0
v_lshlrev_b32 v{T16}, 4, v46''')
    A(f'''s_lshl_b32 s16, s15, 13
s_add_u32 s16, s16, {hex(WS_P)}
s_and_b32 s17, s15, 7
s_lshl_b32 s17, s17, 10
s_lshr_b32 s18, s15, 3
s_lshl_b32 s18, s18, 8
s_add_u32 s17, s17, s18
s_add_u32 s17, s17, {hex(WS_M)}''')
    A(f'''s_lshl_b32 s18, s20, 14
s_add_u32 s18, s18, {L_WB}
v_lshlrev_b32 v{WB}, 4, v40
v_add_u32 v{WB}, s18, v{WB}
s_lshl_b32 s18, s20, 16
s_lshl_b32 s19, s15, 6
s_add_u32 s18, s18, s19
s_add_u32 s18, s18, {hex(WS_P)}
v_and_b32 v50, 3, v41
v_lshlrev_b32 v50, 4, v50
v_lshl_add_u32 v50, v42, 11, v50
v_lshrrev_b32 v51, 2, v41
v_lshl_add_u32 v50, v51, 13, v50
v_add_u32 v{PST}, s18, v50
s_lshl_b32 s18, s20, 11
v_lshlrev_b32 v50, 4, v40
v_add_u32 v{PLD}, s18, v50
s_mov_b32 s59, s16
s_lshl_b32 s18, s20, 1
v_add_u32 v50, s18, v42
v_bfe_u32 v51, v41, 1, 1
v_lshl_add_u32 v50, v50, 1, v51
v_lshlrev_b32 v50, 4, v50
v_and_b32 v51, 1, v41
v_lshl_add_u32 v50, v51, 3, v50
v_add_u32 v{MST}, s17, v50
v_lshrrev_b32 v50, 1, v41
v_mul_u32_u24 v50, {QS}, v50
v_lshl_add_u32 v50, v42, 5, v50
v_and_b32 v51, 1, v41
v_lshl_add_u32 v50, v51, 4, v50
v_add_u32 v{OR}, {L_O}, v50
v_lshlrev_b32 v50, 1, v42
v_xor_b32 v50, v50, v41
v_lshlrev_b32 v50, 4, v50
v_lshl_add_u32 v50, v42, 8, v50
s_lshl_b32 s18, s15, 19
s_and_b32 s19, s20, 1
s_lshl_b32 s19, s19, 12
s_add_u32 s18, s18, s19
s_add_u32 s18, s18, {hex(WS_K)}
v_add_u32 v{KXA}, s18, v50
v_lshlrev_b32 v50, 2, v42
{VMW1 if VMAP else VMW0}
s_add_u32 s18, s18, {L_VM}
v_add_u32 v{VMW}, s18, v50
s_load_dwordx2 s[26:27], s[0:1], {KA_WV}
s_load_dwordx2 s[28:29], s[0:1], {KA_WO}
s_load_dwordx2 s[32:33], s[0:1], {KA_MEM0}
{VOFF1 if VMAP else VOFF0}
v_add_u32 v10, s18, v10            ; v voffset
v_lshlrev_b32 v50, 14, v44
v_lshl_add_u32 v50, v43, 12, v50
v_lshl_add_u32 v50, v41, 4, v50
s_lshl_b32 s18, s15, 17
s_lshl_b32 s19, s20, 8
s_add_u32 s18, s18, s19
v_add_u32 v11, s18, v50
v_lshrrev_b32 v50, 1, v41
v_lshlrev_b32 v50, 10, v50
v_lshl_add_u32 v50, v42, 8, v50
v_and_b32 v51, 1, v41
v_lshl_add_u32 v50, v51, 5, v50
s_and_b32 s18, s20, 1
s_lshl_b32 s18, s18, 7
s_lshr_b32 s19, s20, 1
s_lshl_b32 s19, s19, 3
s_add_u32 s18, s18, s19
v_add_u32 v12, s18, v50
s_waitcnt lgkmcnt(0)''')
    srd(A, 60, 26, 4*1024*1024)
    srd(A, 64, 28, 4*1024*1024)
    srd(A, 8, 32, 8192)
    batches = []
    for q in range(4):
        kp, eta = q//2, q%2
        buf = V0W + (q%2)*32
        def iss(kp=kp, eta=eta, buf=buf):
            for j in range(8):
                A(f"""s_mov_b32 s18, {(64*kp+32*eta+CP[j])*1024}
buffer_load_dwordx4 {vr(buf+j*4,4)}, v11, s[64:67], s18 offen""")
        def proc(kp=kp, eta=eta, buf=buf):
            for t in range(8):
                for p in range(4):
                    A(f'v_perm_b32 v12, v{buf+(2*p+1)*4+t//2}, v{buf+(2*p)*4+t//2}, {"s31" if t%2 else "s30"}\nv_accvgpr_write_b32 a{(t*2+kp)*8+eta*4+p}, v12')
        batches.append((iss, 8, proc))
    for kap in range(8):
        buf = 16 + (kap%3)*16
        def iss(kap=kap, buf=buf):
            for eta in range(2):
                for j in range(8):
                    A(f"""s_mov_b32 s18, {drow(kap,eta,j)*8192}
buffer_load_dword v{buf+eta*8+j}, v10, s[60:63], s18 offen""")
        def proc(kap=kap, buf=buf):
            for eta in range(2):
                for p in range(4):
                    A(f'v_perm_b32 v{V0W+kap*8+eta*4+p}, v{buf+eta*8+2*p+1}, v{buf+eta*8+2*p}, s30')
                for p in range(4):
                    A(f'v_perm_b32 v{12+p}, v{buf+eta*8+2*p+1}, v{buf+eta*8+2*p}, s31')
                A(f'ds_write_b128 v{WB}, v[12:15] offset:{kap*2048+eta*1024}\ns_nop 1')
        batches.append((iss, 16, proc))
    n = len(batches)
    order = []
    issued = set()
    def issue(i):
        if i < n and i not in issued:
            batches[i][0](); issued.add(i); order.append(i)
    issue(0); issue(1); issue(4); issue(5)
    for i in range(n):
        pos = order.index(i)
        out_after = sum(batches[j][1] for j in order[pos+1:])
        A(f's_waitcnt vmcnt({out_after})')
        batches[i][2]()
        if i < 2: issue(i+2)
        elif i == 2: issue(6)
        elif i >= 4: issue(i+3)
    if MARK: MARK(A, 2, 20, 4)
    kv_ready(A, 0, 16)
    if MARK: MARK(A, 3, 20, 4)
    A(f"""s_and_b32 s53, s20, 1
s_lshl_b32 s53, s53, 12
s_add_u32 s53, s53, {L_KX}""")
    def dma_k(sreg, tmp):
        A(f"""s_mov_b32 m0, s53
v_xor_b32 v{tmp}, 128, v{KXA}
buffer_load_dwordx4 v{KXA}, s[4:7], {sreg} offen lds
buffer_load_dwordx4 v{KXA}, s[4:7], {sreg} offen offset:1024 lds
buffer_load_dwordx4 v{tmp}, s[4:7], {sreg} offen offset:2048 lds
buffer_load_dwordx4 v{tmp}, s[4:7], {sreg} offen offset:3072 lds""")
    Ld0 = A.newlabel('cB_d0')
    A(f"""s_mov_b32 s18, 0
s_cmp_lt_u32 s20, 2
s_cbranch_scc1 {Ld0}""")
    dma_k('s18', 16)
    A.label(Ld0)
    A(f"""v_add_u32 v{T16}, {L_MA}, v{T16}
v_bfe_u32 v16, v{LA}, 4, 4
v_bfe_u32 v17, v{LA}, 8, 2
s_lshl_b32 s18, s20, 2
s_add_u32 s18, s18, 8
v_add_u32 v18, s18, v17
v_mul_u32_u24 v18, {QS}, v18
v_lshl_add_u32 v18, v16, 4, v18
v_add_u32 v18, {L_QK}, v18
s_lshl_b32 s18, s20, 10
s_add_u32 s18, s18, {L_VM-2048-L_MA}
v_add_u32 v19, s18, v{LA}
s_cmp_lt_u32 s20, 2
s_cselect_b64 vcc, -1, 0
v_cndmask_b32 v11, v19, v18, vcc
s_lshl_b32 s19, s15, 11
s_and_b32 s18, s20, 1
s_lshl_b32 s18, s18, 10
s_add_u32 s18, s18, s19
s_cmp_lt_u32 s20, 2
s_mov_b32 s57, {hex(WS_VMT-L_MA)}
s_cselect_b32 s57, {hex(WS_KM-L_MA)}, s57
s_add_u32 s57, s57, s18
s_cmp_eq_u32 s20, 1
s_cselect_b32 s87, 2, 0x7fff
s_waitcnt vmcnt(0) lgkmcnt(0)
s_barrier""")
    Lcw = A.newlabel('cb_wait'); Lcs = A.newlabel('cb_spin')
    A(f"""s_cmp_lg_u32 s20, 0
s_cbranch_scc1 {Lcw}
s_mov_b64 exec, 1
v_mov_b32 v17, 36""")
    A.label(Lcs)
    A(f"""global_load_dword v16, v17, s[12:13] sc1
s_waitcnt vmcnt(0)
v_readfirstlane_b32 s18, v16
s_cmp_lt_u32 s18, 128
s_cbranch_scc1 {Lcs}
s_mov_b64 exec, -1""")
    A.label(Lcw)
    A(f"""s_barrier
s_mov_b32 s34, 0
s_mov_b32 s35, 8192
s_mov_b32 s36, 0
s_lshl_b32 s50, s15, 13
s_add_u32 s50, s50, {hex(WS_VT - L_MA*4)}
s_and_b32 s51, s20, 1
s_lshl_b32 s51, s51, 12
s_add_u32 s50, s50, s51
s_mov_b32 s46, 0x000f000f
s_mov_b32 s47, 0
s_mov_b32 s89, 0x3f80
s_lshl_b32 s60, s20, 2
s_add_u32 s60, s60, {L_FL}""")
    if TIMING: A('s_memtime s[62:63]\ns_waitcnt lgkmcnt(0)')
    def emit(l):
        for x in l: A(x)
    TS = [STG, STG+8, OA]
    def rdT(kap): return [f'ds_read_b128 {vr(TS[kap%3]+eta*4,4)}, v{WB} offset:{kap*2048+eta*1024}' for eta in range(2)]
    def rdA(kap): return [f'ds_read_b128 {vr(AF+(kap%4)*4,4)}, v{LA} offset:{kap*1024}']
    def p2(kap):
        a = AF+(kap%4)*4
        return [smf_s(VACC, a, V0W+kap*8, False, IDX), smf_s(VACC+4, a, TS[kap%3], False, IDX)]
    stamp_init(A)
    Lloop = A.newlabel('cB_loop'); Lfin = A.newlabel('cB_fin')
    A('s_waitcnt lgkmcnt(0)')
    A.raw('.p2align 6')
    A.label(Lloop)
    A('s_barrier')
    stamp(A, 0)
    Lnob = A.newlabel('cB_nob'); Lpb = A.newlabel('cB_pb'); Lok = A.newlabel('cB_okb')
    A(f"""s_cmp_eq_u32 s34, 0
s_cbranch_scc1 {Lnob}
ds_read_b128 {vr(OA,4)}, v11""")
    A.label(Lpb)
    A(f"""s_waitcnt vmcnt(0)
v_max3_u32 v{VACC}, v{MBR}, v{MBR+1}, v{MBR+2}
v_max_u32 v{VACC}, v{VACC}, v{MBR+3}
v_cmp_eq_u32 vcc, -1, v{VACC}
s_cbranch_vccz {Lok}""")
    spin(A, Lexit)
    A(f"""buffer_load_dwordx4 {vr(MBR,4)}, v{T16}, s[4:7], s40 offen sc1
s_branch {Lpb}""")
    A.label(Lok)
    A(f"""ds_write_b128 v{T16}, {vr(MBR,4)} offset:4096
s_waitcnt lgkmcnt(0)""")
    A.label(Lnob)
    stamp(A, 1)
    A('s_barrier')
    stamp(A, 2)
    Lnk = A.newlabel('cB_nk'); Lnw = A.newlabel('cB_nw')
    A('s_add_u32 s41, s34, 1')
    emit(rdA(0)+rdA(1)+rdA(2)+rdA(3)+rdT(0)+rdT(1))
    A(f"""s_and_b32 s37, s34, 1
s_lshl_b32 s37, s37, 18
s_bfe_u32 s38, s34, 0x10001
s_add_u32 s52, s37, s59
s_add_u32 s51, s52, 1024
s_xor_b32 s53, s53, 0x2000""")
    Lnp = A.newlabel('cB_np'); Lpa = A.newlabel('cB_pa')
    A(f"""s_cmp_eq_u32 s34, 0
s_cbranch_scc1 {Lnp}
s_lshl_b32 s58, s34, 16
s_add_u32 s58, s58, s57
s_sub_u32 s58, s58, 0x10000
{'s_nop 0' if X_NOPUB else f'buffer_store_dwordx4 {vr(OA,4)}, v{LA}, s[4:7], s58 offen sc1'}""")
    A.label(Lnp)
    A(f"""s_cmp_lt_u32 s34, s87
s_cbranch_scc1 {Lpa}
s_mov_b64 exec, 1
s_sub_u32 s58, s34, 1
v_mov_b32 v{MBR+2}, s58
v_mov_b32 v{MBR+3}, 8
buffer_store_byte v{MBR+2}, v{MBR+3}, s[4:7], s81 offen sc1
s_mov_b64 exec, -1""")
    A.label(Lpa)
    Lnw2 = A.newlabel('cB_nw2')
    A(f"""s_cmp_ge_u32 s34, {0 if X_NOK else 63}
s_cbranch_scc1 {Lnw2}""")
    kv_ready(A, 's41', MBR+1)
    Lk2 = A.newlabel('cB_k2')
    A(f"""s_cmp_lt_u32 s20, 2
s_cbranch_scc0 {Lk2}
v_lshlrev_b32 v{MBR}, 2, v{LA}
s_lshl_b32 s54, s41, 18
s_add_u32 s54, s54, s50
s_mov_b32 m0, {L_MISC+256}
s_nop 0
buffer_load_dword v{MBR}, s[4:7], s54 offen lds
s_branch {Lnw2}""")
    A.label(Lk2)
    A('s_lshl_b32 s42, s41, 13')
    dma_k('s42', MBR)
    A.label(Lnw2)
    for i in range(4): A(f'v_mov_b64 {vr(VACC+2*i,2)}, 0')
    emit(rdT(2))
    if BDELAY:
        Lvf = A.newlabel('cB_vf')
        A(f'v_mov_b32 v{MBR}, s60')
        A.label(Lvf)
        A(f"""ds_read_b32 v{MBR+1}, v{MBR}
s_waitcnt lgkmcnt(0)
v_cmp_gt_u32 vcc, s41, v{MBR+1}
s_cbranch_vccnz {Lvf}""")
    else:
        A('s_waitcnt lgkmcnt(0)')
    stamp(A, 3)
    q = []
    def iss(tag, l):
        for x in l:
            A(x); q.append(tag)
    def need(tag):
        if tag not in q: return
        last = max(i for i,t in enumerate(q) if t == tag)
        A(f's_waitcnt lgkmcnt({len(q)-1-last})')
        del q[:last+1]
    for kap in range(8):
        m = p2(kap)
        need(f'A{kap}'); A(m[0])
        need(f'T{kap}'); A(m[1])
        if kap+3 < 8: iss(f'T{kap+3}', rdT(kap+3))
        if kap+4 < 8: iss(f'A{kap+4}', rdA(kap+4))
    A('s_nop 7')
    for T in range(2):
        a = VACC+T*4
        A(f"""v_add_f32 v{a}, v{a}, v{a+1}
v_add_f32 v{a+2}, v{a+2}, v{a+3}
v_cvt_pk_bf16_f32 v{a}, v{a}, v{a+2}
ds_write_b32 v{VMW}, v{a} offset:{16*T}""")
    A(f"""v_mov_b64 {vr(OA,2)}, 0
v_mov_b64 {vr(OA+2,2)}, 0
s_waitcnt lgkmcnt(0)""")
    stamp(A, 4)
    A(f"""s_barrier
s_cmp_eq_u32 s34, 63
s_cbranch_scc1 {Lfin}
v_mfma_f32_32x32x16_bf16 {vr(D,16)}, {vr(OA,4)}, {vr(OA,4)}, 0
v_mfma_f32_32x32x16_bf16 {vr(D+16,16)}, {vr(OA,4)}, {vr(OA,4)}, 0""")
    X = VACC
    A(f"""v_bfe_u32 v{MBR}, v{LA}, 5, 3
v_and_b32 v{MBR+1}, 16, v{LA}
v_lshlrev_b32_e64 v{MBR+1}, v{MBR+1}, s89""")
    for p in range(4):
        A(f"""v_cmp_eq_u32 vcc, {p}, v{MBR}
s_nop 1
v_cndmask_b32 v{X+p}, 0, v{MBR+1}, vcc""")
    A(f"""v_mov_b32 v{MBR+2}, -1
v_mov_b32 v{MBR+3}, -1
s_mov_b32 s41, s37
s_add_u32 s40, s35, {hex(WS_M - L_MA)}
s_setprio 3
s_barrier""")
    stamp(A, 5)
    A(f"""ds_read_b128 {vr(OA,4)}, v{OR}
ds_read_b128 {vr(OA+4,4)}, v{OR} offset:128
s_waitcnt lgkmcnt(0)""")
    def dpost_l(tq):
        a = D+tq*16
        r = []
        for t in range(4):
            r += [f'v_add_f32 v{a+4*t}, v{a+4*t}, v{a+4*t+1}', f'v_add_f32 v{a+4*t+2}, v{a+4*t+2}, v{a+4*t+3}']
        r += [f'v_cvt_pk_bf16_f32 v{a}, v{a}, v{a+4}', f'v_cvt_pk_bf16_f32 v{a+1}, v{a+8}, v{a+12}',
              f'v_cvt_pk_bf16_f32 v{a+2}, v{a+2}, v{a+6}', f'v_cvt_pk_bf16_f32 v{a+3}, v{a+10}, v{a+14}',
              f'v_and_or_b32 v{a}, v{a}, -2, s38',
              f'buffer_store_dwordx4 {vr(a,4)}, v{PST}, s[4:7], s41 offen']
        return r
    def pd(t):
        return [smf_s(D+t*4, OA, (t*2+0)*8, True, IDX), smf_s(D+t*4, OA+4, (t*2+1)*8, True, IDX)]
    def weave(mf, fill):
        fill = list(fill)
        for m in mf:
            A(m)
            if fill: A(fill.pop(0))
        for f in fill: A(f)
    weave(pd(0)+pd(1)+pd(2)+pd(3), [])
    p0 = dpost_l(0)
    weave(pd(4), p0[:2])
    emit(p0[2:])
    weave(pd(5)+pd(6)+pd(7), ['s_add_u32 s41, s41, 32768'])
    A('s_nop 1')
    emit(dpost_l(1))
    stamp(A, 6)
    PP = OA
    LpP = A.newlabel('cB_pollP'); LokP = A.newlabel('cB_okP')
    def ldP():
        A(f"""buffer_load_dwordx4 {vr(PP,4)}, v{PLD}, s[4:7], s52 offen sc1
buffer_load_dwordx4 {vr(PP+4,4)}, v{PLD}, s[4:7], s51 offen sc1""")
    if PDELAY: A(f's_sleep {PDELAY}')
    if PDELAY2:
        Lp2 = A.newlabel('cB_pd2')
        A(f's_bitcmp0_b32 s15, 2\ns_cbranch_scc1 {Lp2}\ns_sleep {PDELAY2}')
        A.label(Lp2)
    def gap(n):
        while n > 0:
            k = min(n, 16); A(f's_nop {k-1}'); n -= k
    if not PIPE_P:
        ldP()
        A.label(LpP)
        A(f"""s_waitcnt vmcnt(0)
v_xor_b32 v{MBR}, s38, v{PP}
v_xor_b32 v{MBR+1}, s38, v{PP+4}
v_or_b32 v{MBR}, v{MBR}, v{MBR+1}
v_and_b32 v{MBR}, 1, v{MBR}
v_cmp_ne_u32 vcc, 0, v{MBR}
s_cbranch_vccz {LokP}""")
        spin(A, Lexit)
        ldP()
        A(f's_branch {LpP}')
        A.label(LokP)
        stamp(A, 7)
        A(f"""v_mfma_f32_16x16x32_bf16 {vr(X+4,4)}, {vr(X,4)}, {vr(PP,4)}, 0
v_mfma_f32_16x16x32_bf16 {vr(X+4,4)}, {vr(X,4)}, {vr(PP+4,4)}, {vr(X+4,4)}""")
    else:
        PQ = D+24
        def ldP2(r):
            A(f"""buffer_load_dwordx4 {vr(r,4)}, v{PLD}, s[4:7], s52 offen sc1
buffer_load_dwordx4 {vr(r+4,4)}, v{PLD}, s[4:7], s51 offen sc1""")
        def chkP(r, Lok):
            A(f"""v_xor_b32 v{MBR}, s38, v{r}
v_xor_b32 v{MBR+1}, s38, v{r+4}
v_or_b32 v{MBR}, v{MBR}, v{MBR+1}
v_and_b32 v{MBR}, 1, v{MBR}
v_cmp_ne_u32 vcc, 0, v{MBR}
s_cbranch_vccz {Lok}""")
        LokP1 = A.newlabel('cB_okP1'); LokP2 = A.newlabel('cB_okP2')
        ldP2(PP); gap(PGAP); ldP2(PQ)
        A.label(LpP)
        A('s_waitcnt vmcnt(2)')
        chkP(PP, LokP)
        ldP2(PP)
        A('s_waitcnt vmcnt(2)')
        chkP(PQ, LokP1)
        ldP2(PQ)
        spin(A, Lexit)
        A(f's_branch {LpP}')
        A.label(LokP1)
        A(f"""v_mfma_f32_16x16x32_bf16 {vr(X+4,4)}, {vr(X,4)}, {vr(PQ,4)}, 0
v_mfma_f32_16x16x32_bf16 {vr(X+4,4)}, {vr(X,4)}, {vr(PQ+4,4)}, {vr(X+4,4)}
s_branch {LokP2}""")
        A.label(LokP)
        A(f"""v_mfma_f32_16x16x32_bf16 {vr(X+4,4)}, {vr(X,4)}, {vr(PP,4)}, 0
v_mfma_f32_16x16x32_bf16 {vr(X+4,4)}, {vr(X,4)}, {vr(PP+4,4)}, {vr(X+4,4)}""")
        A.label(LokP2)
    A(f"""s_mov_b32 s56, s36
s_mov_b32 s36, s35
s_add_u32 s34, s34, 1
s_nop 4""")
    for sh in (4, 8):
        for r in range(4):
            A(f'v_add_f32_dpp v{X+4+r}, v{X+4+r}, v{X+4+r} row_ror:{sh} row_mask:0xf bank_mask:0xf')
    M0 = D
    A(f"""s_mov_b64 exec, s[46:47]
v_cvt_pk_bf16_f32 v{MBR}, v{X+4}, v{X+5}
v_cvt_pk_bf16_f32 v{MBR+1}, v{X+6}, v{X+7}
v_min_u32 v{MBR}, -2, v{MBR}
v_min_u32 v{MBR+1}, -2, v{MBR+1}
buffer_store_dwordx2 {vr(MBR,2)}, v{MST}, s[4:7], s35 offen
buffer_store_dwordx2 {vr(MBR+2,2)}, v{MST}, s[4:7], s56 offen
s_mov_b64 exec, -1
s_add_u32 s35, s35, 8192
s_cmp_eq_u32 s35, 24576
s_cselect_b32 s35, 0, s35
s_add_u32 s56, s40, 4096""")
    stamp(A, 8)
    if MDELAY: A(f's_sleep {MDELAY}')
    LpM = A.newlabel('cB_pollM'); LokM = A.newlabel('cB_okM')
    def ldM(r): A(f'buffer_load_dwordx4 {vr(r,4)}, v{T16}, s[4:7], s40 offen sc1')
    def chkM(r, Lok):
        A(f"""v_max3_u32 v{M0+8}, v{r}, v{r+1}, v{r+2}
v_max_u32 v{M0+8}, v{M0+8}, v{r+3}
v_cmp_eq_u32 vcc, -1, v{M0+8}
s_cbranch_vccz {Lok}""")
    if not PIPE_M:
        ldM(M0)
        A.label(LpM)
        A('s_waitcnt vmcnt(0)')
        chkM(M0, LokM)
        spin(A, Lexit)
        ldM(M0)
        A(f's_branch {LpM}')
        A.label(LokM)
        stamp(A, 9)
        A(f'ds_write_b128 v{T16}, {vr(M0,4)}')
    else:
        M1 = M0+4
        Lok1 = A.newlabel('cB_okM1'); Lok2 = A.newlabel('cB_okM2')
        ldM(M0); gap(PGAP); ldM(M1)
        A.label(LpM)
        A('s_waitcnt vmcnt(1)')
        chkM(M0, LokM)
        ldM(M0)
        A('s_waitcnt vmcnt(1)')
        chkM(M1, Lok1)
        ldM(M1)
        spin(A, Lexit)
        A(f's_branch {LpM}')
        A.label(Lok1)
        A(f'ds_write_b128 v{T16}, {vr(M1,4)}\ns_branch {Lok2}')
        A.label(LokM)
        A(f'ds_write_b128 v{T16}, {vr(M0,4)}')
        A.label(Lok2)
    A(f"""buffer_load_dwordx4 {vr(MBR,4)}, v{T16}, s[4:7], s56 offen sc1
s_mov_b32 s40, s56
s_setprio 0
s_waitcnt lgkmcnt(0)
s_branch {Lloop}""")
    A.label(Lfin)
    if TIMING:
        A(f"""s_memtime s[64:65]
s_waitcnt lgkmcnt(0)
s_sub_u32 s64, s64, s62
v_mov_b32 v16, s64
s_lshl_b32 s18, s15, 2
s_add_u32 s18, s18, 64
v_mov_b32 v17, s18
s_mov_b64 exec, 1
global_store_dword v17, v16, s[12:13]
s_mov_b64 exec, -1""")
    A(f"""ds_read_b128 {vr(OA,4)}, v11
s_lshl_b32 s58, s34, 16
s_add_u32 s58, s58, s57
s_waitcnt lgkmcnt(0)
buffer_store_dwordx4 {vr(OA,4)}, v{LA}, s[4:7], s58 offen sc1
s_waitcnt vmcnt(0)
s_barrier
s_cmp_lg_u32 s20, 1
s_cbranch_scc1 {Lexit}
s_mov_b64 exec, 1
v_mov_b32 v16, 64
v_mov_b32 v17, 8
buffer_store_byte v16, v17, s[4:7], s81 offen sc1
s_mov_b64 exec, -1""")
```

```python
from asmlib import *
UB = 80
S_U = 0
S_T = 7680
S_R = 7680+8448
RQ = 1040
WR = S_R + 4*RQ*4
S_Y = 4*WR
assert WR == 32768

def emit_ssm_kernel(A, name='ssm_kernel'):
    kernel_header(A, name)
    Lend = A.newlabel('ss_end')
    A(f'''s_cmp_ge_u32 s2, 128
s_cbranch_scc1 {Lend}
s_load_dwordx2 s[22:23], s[0:1], {KA_WS}
v_lshrrev_b32 v16, 6, v0
s_nop 0
v_readfirstlane_b32 s14, v16
s_mov_b32 s15, s2
s_waitcnt lgkmcnt(0)''')
    srd(A, 4, 22, WS_SIZE)
    emit_ssm_body(A)
    A.label(Lend)
    A('s_endpgm')

def emit_ssm_body(A, st=''):
    A(f'''s_load_dwordx2 s[24:25], s[0:1], {KA_X}
s_load_dwordx4 s[28:31], s[0:1], {KA_ARE}
s_load_dwordx4 s[32:35], s[0:1], {KA_BRE}
s_load_dwordx4 s[36:39], s[0:1], {KA_CRE}
s_load_dwordx2 s[40:41], s[0:1], {KA_LOGDT}
v_and_b32 v1, 63, v0
v_and_b32 v2, 15, v1          ; c
v_lshrrev_b32 v3, 4, v1       ; g
s_lshl_b32 s16, s14, 15
s_lshl_b32 s17, s15, 2
s_add_u32 s17, s17, s14       ; channel d
s_waitcnt lgkmcnt(0)''')
    srd(A, 8, 24, 2048*1024)
    A(f'''v_lshlrev_b32 v4, 10, v0
s_lshl_b32 s18, s15, 3''')
    for i in range(8):
        A(f'''s_add_u32 s19, s18, {i*256*1024}
buffer_load_dwordx2 {vr(16+2*i,2)}, v4, s[8:11], s19 offen''')
    A(f'''s_lshl_b32 s19, s17, 8
v_lshlrev_b32 v5, 2, v1
v_add_u32 v5, s19, v5
global_load_dword v32, v5, s[28:29]
global_load_dword v33, v5, s[30:31]
global_load_dword v34, v5, s[32:33]
global_load_dword v35, v5, s[34:35]
global_load_dword v36, v5, s[36:37]
global_load_dword v37, v5, s[38:39]
s_lshl_b32 s19, s17, 1
v_mov_b32 v6, s19
global_load_ushort v38, v6, s[40:41]''')
    A(f'''v_mov_b32 v7, 0
v_lshlrev_b32 v8, 2, v1
v_add_u32 v8, s16, v8''')
    for i in range(10):
        A(f'ds_write_b32 v8, v7 offset:{i*256}')
    A(f'''v_lshrrev_b32 v8, 5, v0
v_mul_u32_u24 v8, {UB}, v8
v_and_b32 v9, 31, v0
v_lshl_add_u32 v8, v9, 1, v8
v_add_u32 v8, {32*UB}, v8
v_add_u32 v9, {2*WR}, v8
s_waitcnt vmcnt(7)''')
    for i in range(8):
        o = i*8*UB
        A(f'''ds_write_b16 v8, v{16+2*i} offset:{o}
ds_write_b16_d16_hi v8, v{16+2*i} offset:{o+WR}
ds_write_b16 v9, v{17+2*i} offset:{o}
ds_write_b16_d16_hi v9, v{17+2*i} offset:{o+WR}''')
    A(f'''s_waitcnt vmcnt(0)
v_lshlrev_b32 v38, 16, v38
v_mul_f32 v38, 0x3fb8aa3b, v38
v_exp_f32 v38, v38
s_nop 0
v_cvt_pk_bf16_f32 v38, v38, v38
v_lshlrev_b32 v38, 16, v38        ; dt
v_lshlrev_b32 v8, 6, v1           ; lane*64 (2 n x 32B)
v_add_u32 v8, s16, v8''')
    for hh in range(2):
        ex = (lambda r: f'v_lshlrev_b32 v{40+r-32}, 16, v{r}') if hh == 0 else (lambda r: f'v_and_b32 v{40+r-32}, 0xffff0000, v{r}')
        for r in range(32, 38): A(ex(r))
        A(f'''v_mul_f32 v40, v38, v40
v_mul_f32 v41, v38, v41
v_mul_f32 v42, v38, v42
v_mul_f32 v43, v38, v43
v_mul_f32 v48, 0x3fb8aa3b, v40        ; a'
v_mul_f32 v49, 0.15915494, v41        ; b'
v_mul_f32 v46, v44, v42
v_fma_f32 v46, -v45, v43, v46         ; Wr
v_mul_f32 v47, v44, v43
v_fma_f32 v47, v45, v42, v47          ; Wi
v_mov_b32 v50, v46
v_sub_f32 v51, 0, v47
v_mov_b32 v52, v48
v_mov_b32 v53, v49
v_sub_f32 v54, 0, v47
v_sub_f32 v55, 0, v46
ds_write_b128 v8, v[48:51] offset:{S_T+hh*32}
ds_write_b128 v8, v[52:55] offset:{S_T+hh*32+16}
s_waitcnt lgkmcnt(0)''')
    A(f'''v_lshlrev_b32 v10, 3, v2
v_cvt_f32_u32 v10, v10                ; lo
v_and_b32 v11, 1, v3
v_cvt_f32_u32 v11, v11
v_mul_f32 v11, -0.25, v11             ; hmm literal''' .replace('v_mul_f32 v11, -0.25, v11             ; hmm literal','v_mul_f32 v11, 0xbe800000, v11'))
    A(f'''v_lshrrev_b32 v12, 3, v2
v_lshlrev_b32 v12, 7, v12
v_and_b32 v13, 7, v2
v_add_u32 v12, v12, v13               ; H0 int
v_bfe_u32 v13, v2, 2, 1
v_lshlrev_b32 v13, 7, v13
v_and_b32 v14, 3, v2
v_lshl_add_u32 v13, v14, 1, v13
v_add_u32 v13, 256, v13               ; c<8 variant
v_bfe_u32 v14, v2, 1, 2
v_lshlrev_b32 v14, 7, v14
v_and_b32 v15, 1, v2
v_lshl_add_u32 v14, v15, 2, v14
v_add_u32 v14, 0x200, v14             ; c>=8 variant
v_cmp_gt_u32 vcc, 8, v2
s_nop 1
v_cndmask_b32 v13, v14, v13, vcc      ; H1 int
v_lshlrev_b32 v14, 7, v2
v_add_u32 v14, 0x400, v14
v_cmp_gt_u32 vcc, 9, v2
s_nop 1
v_cndmask_b32 v14, 0, v14, vcc        ; H2 int
v_cvt_f32_u32 v16, v12
v_cvt_f32_u32 v17, v13
v_cvt_f32_u32 v18, v14
v_lshlrev_b32 v8, 4, v3               ; g*16 : entry (n=2i+g/2, part=g%2) -> (2i)*32 + g*16
v_add_u32 v8, s16, v8
s_mov_b32 s20, 0''')
    for i in range(12): A(f'v_mov_b32 v{64+i}, 0')
    Lk = A.newlabel('ss_kgen')
    A(f'ds_read_b128 v[40:43], v8 offset:{S_T}')
    A.label(Lk)
    A(f'''s_waitcnt lgkmcnt(0)
v_mov_b64 v[20:21], v[40:41]
v_mov_b64 v[22:23], v[42:43]
v_add_u32 v8, 64, v8
ds_read_b128 v[40:43], v8 offset:{S_T}
v_mul_f32 v24, v20, v10
v_fma_f32 v25, v21, v10, v11
v_exp_f32 v24, v24
v_fract_f32 v25, v25
v_cos_f32 v25, v25''')
    for t in range(3):
        A(f'''v_mul_f32 v{26+4*t}, v20, v{16+t}
v_mul_f32 v{27+4*t}, v21, v{16+t}
v_exp_f32 v{26+4*t}, v{26+4*t}
v_fract_f32 v{27+4*t}, v{27+4*t}
v_cos_f32 v{28+4*t}, v{27+4*t}
v_sin_f32 v{27+4*t}, v{27+4*t}''')
    A('v_mul_f32 v24, v24, v25')
    for t in range(3):
        A(f'''v_mul_f32 v{28+4*t}, v22, v{28+4*t}
v_fma_f32 v{28+4*t}, v23, v{27+4*t}, v{28+4*t}
v_mul_f32 v{28+4*t}, v{26+4*t}, v{28+4*t}''')
    A('s_add_u32 s20, s20, 1\ns_cmp_lt_u32 s20, 64')
    for t in range(3):
        A(f'v_mfma_f32_16x16x4_f32 {vr(64+4*t,4)}, v{28+4*t}, v24, {vr(64+4*t,4)}')
    A(f's_cbranch_scc1 {Lk}')
    A(f'''s_nop 7
s_nop 7
s_waitcnt lgkmcnt(0)
v_lshlrev_b32 v20, 4, v3
v_lshlrev_b32 v21, 5, v2              ; 8c*4
v_add_u32 v21, s16, v21''')
    for t in range(3):
        for r in range(4):
            A(f'''v_add_u32 v22, {4*r}, v20
ds_bpermute_b32 v23, v22, v{12+t}
s_waitcnt lgkmcnt(0)
v_lshl_add_u32 v23, v23, 2, v21''')
            if t == 2:
                A(f'''v_lshlrev_b32 v24, 2, v3
v_add_u32 v24, {r}, v24               ; m
v_lshl_add_u32 v25, v24, 4, v2        ; m*16 + c
v_cmp_gt_u32 vcc, 129, v25
s_and_saveexec_b64 s[44:45], vcc
ds_write_b32 v23, v{64+4*t+r} offset:{S_T}
s_mov_b64 exec, s[44:45]''')
            else:
                A(f'ds_write_b32 v23, v{64+4*t+r} offset:{S_T}')
    A('s_waitcnt lgkmcnt(0)')
    Le = A.newlabel('ss_exp')
    A(f'''v_mov_b32 v20, v1               ; q
s_mov_b32 s20, 0''')
    A.label(Le)
    A(f'''v_lshlrev_b32 v21, 1, v20
v_sub_u32 v21, 0x7ff, v21             ; k0 = 2047-2q''')
    for j in range(3):
        A(f'''v_subrev_u32 v22, {j}, v21
v_max_i32 v23, 0, v22
v_cvt_f32_u32 v23, v23
v_cvt_pk_bf16_f32 v23, v23, v23
v_lshlrev_b32 v23, 16, v23
v_cvt_u32_f32 v23, v23
v_lshlrev_b32 v23, 2, v23
v_add_u32 v23, s16, v23
ds_read_b32 v{24+j}, v23 offset:{S_T}
v_cmp_le_i32 s[{46+2*j}:{47+2*j}], 0, v22''')
    A('s_waitcnt lgkmcnt(0)')
    for j in range(3):
        A(f'v_cndmask_b32 v{24+j}, 0, v{24+j}, s[{46+2*j}:{47+2*j}]')
    A(f'''v_cvt_pk_bf16_f32 v28, v24, v25       ; hi c0
v_cvt_pk_bf16_f32 v29, v25, v26       ; hi c1
v_lshlrev_b32 v30, 16, v28
v_and_b32 v31, 0xffff0000, v28
v_and_b32 v32, 0xffff0000, v29
v_sub_f32 v24, v24, v30
v_sub_f32 v25, v25, v31
v_sub_f32 v26, v26, v32
v_cvt_pk_bf16_f32 v30, v24, v25       ; lo c0
v_cvt_pk_bf16_f32 v31, v25, v26       ; lo c1
v_lshlrev_b32 v23, 2, v20
v_add_u32 v23, s16, v23
v_cmp_gt_u32 vcc, {RQ}, v20
s_and_saveexec_b64 s[44:45], vcc
ds_write_b32 v23, v28 offset:{S_R}
ds_write_b32 v23, v29 offset:{S_R+RQ*4}
ds_write_b32 v23, v30 offset:{S_R+2*RQ*4}
ds_write_b32 v23, v31 offset:{S_R+3*RQ*4}
s_mov_b64 exec, s[44:45]
v_add_u32 v20, 64, v20
s_add_u32 s20, s20, 1
s_cmp_lt_u32 s20, 17
s_cbranch_scc1 {Le}
s_waitcnt lgkmcnt(0)
s_barrier''')
    A(f'''v_and_b32 v20, 31, v1
v_lshrrev_b32 v21, 5, v1
v_lshlrev_b32 v22, 3, v21
v_sub_u32 v22, v22, v20
v_add_u32 v22, 0x7ff, v22             ; i0(c=0,ks=0)
v_and_b32 v23, 1, v22
v_mul_u32_u24 v23, {RQ*4}, v23
v_lshrrev_b32 v22, 1, v22
v_lshl_add_u32 v22, v22, 2, v23
v_add_u32 v22, s16, v22
v_add_u32 v22, {S_R}, v22
v_add_u32 v23, {2*RQ*4}, v22
v_mul_u32_u24 v24, {UB}, v20
v_lshl_add_u32 v24, v21, 4, v24
v_add_u32 v24, s16, v24
v_add_u32 v24, {32*UB}, v24
v_add_u32 v25, {32*UB}, v24           ; nu=1
s_mov_b32 s20, 0''')
    for i in range(32): A(f'v_mov_b32 v{64+i}, 0')
    def loads(base, both):
        for ks in range(2):
            A(f"""ds_read2_b32 {vr(base+ks*8,2)}, v22 offset0:{8*ks} offset1:{8*ks+1}
ds_read2_b32 {vr(base+2+ks*8,2)}, v22 offset0:{8*ks+2} offset1:{8*ks+3}
ds_read2_b32 {vr(base+4+ks*8,2)}, v23 offset0:{8*ks} offset1:{8*ks+1}
ds_read2_b32 {vr(base+6+ks*8,2)}, v23 offset0:{8*ks+2} offset1:{8*ks+3}
ds_read_b128 {vr(base+16+ks*4,4)}, v25 offset:{32*ks}""")
            if both: A(f'ds_read_b128 {vr(base+24+ks*4,4)}, v24 offset:{32*ks}')
        A(f"""v_subrev_u32 v22, 64, v22
v_subrev_u32 v23, 64, v23
v_subrev_u32 v25, {UB}, v25""")
        if both: A(f'v_subrev_u32 v24, {UB}, v24')
    def mm(base, both):
        for ks in range(2):
            for hl in range(2):
                A(f'v_mfma_f32_32x32x16_bf16 v[80:95], {vr(base+ks*8+hl*4,4)}, {vr(base+16+ks*4,4)}, v[80:95]')
                if both: A(f'v_mfma_f32_32x32x16_bf16 v[64:79], {vr(base+ks*8+hl*4,4)}, {vr(base+24+ks*4,4)}, v[64:79]')
    B0, B1 = 28, 96
    Lc1 = A.newlabel('ss_c1'); Lc2 = A.newlabel('ss_c2')
    loads(B0, True)
    A.label(Lc1)
    loads(B1, True)
    A('s_waitcnt lgkmcnt(12)')
    mm(B0, True)
    A('s_add_u32 s20, s20, 2\ns_cmp_lt_u32 s20, 32')
    Lx = A.newlabel('ss_x')
    A(f's_cbranch_scc0 {Lx}')
    loads(B0, True)
    A('s_waitcnt lgkmcnt(12)')
    mm(B1, True)
    A(f's_branch {Lc1}')
    A.label(Lx)
    loads(B0, False)
    A('s_waitcnt lgkmcnt(10)')
    mm(B1, True)
    A.label(Lc2)
    loads(B1, False)
    A('s_waitcnt lgkmcnt(10)')
    mm(B0, False)
    A('s_add_u32 s20, s20, 2\ns_cmp_lt_u32 s20, 64')
    Ly = A.newlabel('ss_y')
    A(f's_cbranch_scc0 {Ly}')
    loads(B0, False)
    A('s_waitcnt lgkmcnt(10)')
    mm(B1, False)
    A(f's_branch {Lc2}')
    A.label(Ly)
    A('s_waitcnt lgkmcnt(0)')
    mm(B1, False)
    A(f'''s_nop 15
v_lshlrev_b32 v22, 8, v20             ; n*32*8
v_lshl_add_u32 v22, v21, 5, v22       ; + 4gg*8
s_lshl_b32 s20, s14, 1
s_add_u32 s20, s20, {S_Y}
v_add_u32 v22, s20, v22''')
    for nu in range(2):
        for i in range(0, 16, 2):
            o = nu*8192 + (8*(i//4) + i%4)*8
            A(f'''v_cvt_pk_bf16_f32 v24, v{64+16*nu+i}, v{64+16*nu+i+1}
ds_write_b16 v22, v24 offset:{o}
ds_write_b16_d16_hi v22, v24 offset:{o+8}''')
    A(f'''s_waitcnt lgkmcnt(0)
s_barrier
v_lshlrev_b32 v23, 4, v0
v_add_u32 v22, {S_Y}, v23
s_lshl_b32 s18, s15, 14
s_add_u32 s18, s18, {hex(WS_Y)}''')
    for i in range(4):
        A(f'ds_read_b128 {vr(24+4*i,4)}, v22 offset:{i*4096}')
    for i in range(4):
        A(f'''s_waitcnt lgkmcnt({3-i})
s_add_u32 s19, s18, {i*4096}
buffer_store_dwordx4 {vr(24+4*i,4)}, v23, s[4:7], s19 offen{st}''')
    A('s_waitcnt vmcnt(0)\ns_barrier')
```

```python
from asmlib import *
WS_P2 = 0x6000000
WS_FLAG = 0x5800000
NSET = 7
TSLEEP = 12
T_K = 0
T_Q = 8192
T_O = 32768
OS = 272
T_G = T_O + 32*OS
W0 = 128
ACC = 64
KF = 16

def emit_tail_body(A):
    A(f'''s_lshr_b32 s16, s15, 5           ; set
s_and_b32 s17, s15, 31           ; h
s_load_dwordx2 s[24:25], s[0:1], {KA_WO}
s_load_dwordx2 s[26:27], s[0:1], {KA_X}
s_load_dwordx2 s[28:29], s[0:1], {KA_GW}
s_load_dwordx2 s[32:33], s[0:1], {KA_DSKIP}
s_load_dwordx2 s[34:35], s[0:1], {KA_OUT}
v_and_b32 v1, 63, v0             ; lane
v_and_b32 v2, 15, v1             ; c
v_lshrrev_b32 v3, 4, v1          ; g
s_mov_b32 s30, 0x05040100
s_mov_b32 s31, 0x07060302
s_waitcnt lgkmcnt(0)''')
    srd(A, 8, 24, 4*1024*1024)
    srd(A, 36, 26, 2048*1024)
    srd(A, 40, 34, 2048*1024)
    srd(A, 44, 28, 1024)
    srd(A, 48, 32, 1024)
    A(f'''v_lshlrev_b32 v4, 13, v3
v_lshl_add_u32 v4, v2, 4, v4
s_lshl_b32 s18, s17, 17
s_lshl_b32 s19, s14, 8
s_add_u32 s18, s18, s19
v_add_u32 v4, s18, v4''')
    for ks in range(4):
        for j in range(8):
            A(f'''s_mov_b32 s18, {(32*ks+j)*1024}
buffer_load_dwordx4 {vr(KF+j*4,4)}, v4, s[8:11], s18 offen''')
        A('s_waitcnt vmcnt(0)')
        for t in range(8):
            for p in range(4):
                A(f'v_perm_b32 v60, v{KF+(2*p+1)*4+t//2}, v{KF+(2*p)*4+t//2}, {"s31" if t%2 else "s30"}\nv_accvgpr_write_b32 a{(t*4+ks)*4+p}, v60')
    A(f'''s_and_b32 s18, s14, 1
s_lshl_b32 s18, s18, 2
v_add_u32 v4, s18, v3
v_lshlrev_b32 v4, 1, v4
v_xor_b32 v4, v4, v2
v_lshlrev_b32 v4, 4, v4
v_lshl_add_u32 v4, v3, 8, v4
s_lshl_b32 s18, s17, 19
s_lshl_b32 s19, s14, 11
s_add_u32 s18, s18, s19
v_add_u32 v4, s18, v4''')
    A(f'''v_and_b32 v5, 3, v2
v_lshrrev_b32 v6, 3, v2
v_lshl_add_u32 v5, v6, 2, v5
v_lshlrev_b32 v5, 1, v5
v_xor_b32 v5, v5, v3
v_lshlrev_b32 v5, 4, v5
v_lshl_add_u32 v5, v2, 8, v5''')
    A(f'''v_lshlrev_b32 v6, 7, v2
v_lshl_add_u32 v6, v3, 4, v6
s_lshl_b32 s18, s17, 13
s_lshr_b32 s19, s14, 1
s_lshl_b32 s20, s19, 12
s_add_u32 s18, s18, s20
s_add_u32 s18, s18, {hex(WS_VT)}
v_add_u32 v6, s18, v6''')
    A(f'''v_and_b32 v7, 7, v2
v_lshlrev_b32 v7, 8, v7
v_lshl_add_u32 v7, v3, 4, v7
s_lshl_b32 s18, s17, 11
s_add_u32 s18, s18, {hex(WS_KM)}
v_add_u32 v7, s18, v7''')
    A(f'''v_and_b32 v8, 1, v3
v_lshlrev_b32 v8, 3, v8
v_lshl_add_u32 v8, v2, 5, v8
s_lshl_b32 s18, s17, 11
s_lshl_b32 s20, s19, 10
s_add_u32 s18, s18, s20
s_add_u32 s18, s18, {hex(WS_VMT)}
v_add_u32 v8, s18, v8''')
    A(f'''s_and_b32 s20, s14, 1
s_lshl_b32 s20, s20, 4
v_add_u32 v9, s20, v2
v_mul_u32_u24 v9, {OS}, v9
v_lshl_add_u32 v9, v3, 4, v9
s_lshl_b32 s18, s19, 7
s_add_u32 s18, s18, {T_O}
v_add_u32 v9, s18, v9''')
    A(f'''v_mul_u32_u24 v10, {OS}, v2
v_lshl_add_u32 v10, v3, 4, v10
v_add_u32 v10, {T_O}, v10''')
    A(f'''v_lshlrev_b32 v11, 17, v3
v_lshl_add_u32 v11, v2, 4, v11
s_lshl_b32 s18, s14, 13
s_lshl_b32 s20, s17, 8
s_add_u32 s18, s18, s20
s_add_u32 s18, s18, {hex(WS_P2)}
v_add_u32 v11, s18, v11''')
    A(f'''s_and_b32 s20, s14, 1
s_lshl_b32 s20, s20, 4
v_add_u32 v12, s20, v2
v_lshlrev_b32 v13, 2, v3
v_sub_u32 v12, v12, v13
v_lshlrev_b32 v13, 4, v1         ; v13 = lane*16
v_and_b32 v14, 1, v2
v_lshlrev_b32 v14, 4, v14
v_mov_b32 v15, 0x3f80
v_lshlrev_b32 v14, v14, v15
s_mov_b32 s52, 0x3e02939f        ; SC
s_mov_b32 s53, 0xff800000        ; -inf
s_lshl_b32 s54, s14, 11
s_and_b32 s55, s14, 1
s_lshl_b32 s55, s55, 12          ; qt*4096
s_mov_b32 s56, s16               ; segment
s_mov_b32 s57, 0''')
    A('s_mov_b32 s93, 0\ns_mov_b32 s68, 0')
    def wait0(addr_setup, load, cmp):
        Lw = A.newlabel('tl_w'); Lo = A.newlabel('tl_wo')
        A(f"""s_cmp_lg_u32 s14, 0
s_cbranch_scc1 {Lo}""")
        A(addr_setup)
        A.label(Lw)
        A(f"""{load}
s_waitcnt vmcnt(0)
{cmp}
s_add_u32 s93, s93, 1
s_cmp_lt_u32 s93, 0x80000
s_cselect_b64 vcc, vcc, 0
s_cbranch_vccz {Lo}
s_sleep {TSLEEP}
s_branch {Lw}""")
        A.label(Lo)
        A('s_waitcnt vmcnt(0)\ns_barrier')
    wait0('v_mov_b32 v56, 56', 'global_load_dword v57, v56, s[12:13] sc1', 'v_cmp_gt_u32 vcc, 32, v57')
    wait0(f"""v_min_u32 v56, 5, v1
s_lshl_b32 s63, s17, 7
s_add_u32 s63, s63, {hex(WS_QF)}""", 'buffer_load_ubyte v57, v56, s[4:7], s63 offen sc1', 'v_cmp_ne_u32 vcc, 32, v57')
    KM = 16; VMf = 32; XR = 40; GW = 44; XC = 48; YC = 50; DS = 52
    AVX = 0; APP = 32; AOF = 64
    def xloads(segreg, buf):
        A(f"""s_lshl_b32 s58, {segreg}, 13
s_add_u32 s59, s58, {hex(WS_K)}
s_add_u32 m0, s54, {buf*16384}
s_lshl_b32 s60, {segreg}, 18
buffer_load_dwordx4 v4, s[4:7], s59 offen lds
buffer_load_dwordx4 v4, s[4:7], s59 offen offset:1024 lds
s_add_u32 m0, s54, {buf*16384+T_Q}
s_nop 0
buffer_load_dwordx4 v4, s[4:7], s58 offen lds
buffer_load_dwordx4 v4, s[4:7], s58 offen offset:1024 lds""")
    def red_issue(segreg, cntreg):
        wait0(f"""s_lshl_b32 s63, s16, 5
v_and_b32 v56, 31, v1
v_add_u32 v56, s63, v56
s_mov_b32 s63, {hex(WS_FLAG)}""", 'buffer_load_ubyte v57, v56, s[4:7], s63 offen sc1', f'v_cmp_gt_u32 vcc, {cntreg}, v57')
        A(f"""s_lshl_b32 s63, s17, 15
s_lshl_b32 s64, {segreg}, 20
s_add_u32 s63, s63, s64
s_lshl_b32 s64, s14, 13
s_add_u32 s63, s63, s64
s_add_u32 s63, s63, {hex(WS_P2)}
s_add_u32 s64, s63, 4096""")
        for i in range(4):
            A(f'buffer_load_dwordx4 {vr(ACC+i*4,4)}, v13, s[4:7], s63 offen offset:{i*1024} sc1')
        for i in range(4):
            A(f'buffer_load_dwordx4 {vr(ACC+16+i*4,4)}, v13, s[4:7], s64 offen offset:{i*1024} sc1')
        A(f"""s_lshl_b32 s65, {segreg}, 5
s_add_u32 s65, s65, s17
s_lshl_b32 s65, s65, 10
buffer_load_dwordx4 {vr(XR,4)}, v13, s[36:39], s65 offen
buffer_load_dwordx4 {vr(GW,4)}, v13, s[44:47], 0 offen
buffer_load_dwordx2 {vr(XC,2)}, v15, s[36:39], s65 offen
s_lshr_b32 s66, s65, 7
s_add_u32 s66, s66, {hex(WS_Y)}
v_lshlrev_b32 v56, 11, v15
buffer_load_dwordx2 {vr(YC,2)}, v56, s[4:7], s66 offen sc1
buffer_load_dwordx2 {vr(DS,2)}, v15, s[48:51], 0 offen""")
    def red_compute():
        SEL = 16; DD = 20; TT = 24
        A('v_lshrrev_b32 v57, 1, v2')
        for p in range(4):
            A(f"""v_cmp_eq_u32 vcc, {p}, v57
s_nop 1
v_cndmask_b32 v{SEL+p}, 0, v14, vcc""")
        A('s_nop 1')
        for i in range(8):
            A(f'v_mfma_f32_16x16x32_bf16 {vr(DD,4)}, {vr(SEL,4)}, {vr(ACC+4*i,4)}, {"0" if i==0 else vr(DD,4)}')
        for i in range(4):
            A(f"""v_lshlrev_b32 v{TT}, 16, v{XR+i}
v_and_b32 v{TT+1}, 0xffff0000, v{XR+i}
v_lshlrev_b32 v{TT+2}, 16, v{GW+i}
v_and_b32 v{TT+3}, 0xffff0000, v{GW+i}
v_mul_f32 v{TT}, v{TT}, v{TT+2}
v_mul_f32 v{TT+1}, v{TT+1}, v{TT+3}
v_cvt_pk_bf16_f32 v{TT}, v{TT}, v{TT+1}
v_lshlrev_b32 v{TT+1}, 16, v{TT}
v_and_b32 v{TT}, 0xffff0000, v{TT}
v_add_f32 v{TT}, v{TT}, v{TT+1}""")
            A(f'v_mov_b32 v{TT+4}, v{TT}' if i == 0 else f'v_add_f32 v{TT+4}, v{TT+4}, v{TT}')
        G = TT+4
        A(f"""s_nop 1
v_add_f32_dpp v{G}, v{G}, v{G} quad_perm:[1,0,3,2] row_mask:0xf bank_mask:0xf
s_nop 1
v_add_f32_dpp v{G}, v{G}, v{G} quad_perm:[2,3,0,1] row_mask:0xf bank_mask:0xf
s_nop 1
v_add_f32_dpp v{G}, v{G}, v{G} row_ror:4 row_mask:0xf bank_mask:0xf
s_nop 1
v_add_f32_dpp v{G}, v{G}, v{G} row_ror:8 row_mask:0xf bank_mask:0xf
v_mov_b32 v{TT}, v{G}
s_nop 1
v_permlane32_swap_b32 v{TT}, v{G}
v_add_f32 v{G}, v{G}, v{TT}
v_mov_b32 v{TT}, v{G}
s_nop 1
v_permlane16_swap_b32 v{TT}, v{G}
v_add_f32 v{G}, v{G}, v{TT}
v_cvt_pk_bf16_f32 v{G}, v{G}, v{G}
v_lshlrev_b32 v{G}, 16, v{G}
v_mul_f32 v{G}, 0xbfb8aa3b, v{G}
v_exp_f32 v{G}, v{G}
s_nop 0
v_add_f32 v{G}, 1.0, v{G}
v_rcp_f32 v{G}, v{G}
s_nop 0
v_cvt_pk_bf16_f32 v{G}, v{G}, v{G}
v_lshlrev_b32 v{G}, 16, v{G}
v_sub_f32 v{G+1}, 1.0, v{G}
v_cvt_pk_bf16_f32 v{G+1}, v{G+1}, v{G+1}
v_lshlrev_b32 v{G+1}, 16, v{G+1}""")
        for i in range(2):
            A(f"""v_cvt_pk_bf16_f32 v{TT}, v{DD+2*i}, v{DD+2*i+1}
v_lshlrev_b32 v{TT+1}, 16, v{TT}
v_and_b32 v{TT}, 0xffff0000, v{TT}
v_mul_f32 v{TT+1}, v{G}, v{TT+1}
v_mul_f32 v{TT}, v{G}, v{TT}
v_cvt_pk_bf16_f32 v{DD+2*i}, v{TT+1}, v{TT}
v_lshlrev_b32 v{TT}, 16, v{XC+i}
v_and_b32 v{TT+1}, 0xffff0000, v{XC+i}
v_lshlrev_b32 v{TT+2}, 16, v{DS+i}
v_and_b32 v{TT+3}, 0xffff0000, v{DS+i}
v_mul_f32 v{TT}, v{TT}, v{TT+2}
v_mul_f32 v{TT+1}, v{TT+1}, v{TT+3}
v_cvt_pk_bf16_f32 v{TT}, v{TT}, v{TT+1}
v_lshlrev_b32 v{TT+1}, 16, v{TT}
v_and_b32 v{TT}, 0xffff0000, v{TT}
v_lshlrev_b32 v{TT+2}, 16, v{YC+i}
v_and_b32 v{TT+3}, 0xffff0000, v{YC+i}
v_add_f32 v{TT+1}, v{TT+1}, v{TT+2}
v_add_f32 v{TT}, v{TT}, v{TT+3}
v_cvt_pk_bf16_f32 v{TT}, v{TT+1}, v{TT}
v_lshlrev_b32 v{TT+1}, 16, v{TT}
v_and_b32 v{TT}, 0xffff0000, v{TT}
v_mul_f32 v{TT+1}, v{G+1}, v{TT+1}
v_mul_f32 v{TT}, v{G+1}, v{TT}
v_cvt_pk_bf16_f32 v{TT}, v{TT+1}, v{TT}
v_lshlrev_b32 v{TT+1}, 16, v{TT}
v_and_b32 v{TT}, 0xffff0000, v{TT}
v_lshlrev_b32 v{TT+2}, 16, v{DD+2*i}
v_and_b32 v{TT+3}, 0xffff0000, v{DD+2*i}
v_add_f32 v{TT+1}, v{TT+1}, v{TT+2}
v_add_f32 v{TT}, v{TT}, v{TT+3}
v_cvt_pk_bf16_f32 v{XR+i}, v{TT+1}, v{TT}""")
        A(f"""s_mov_b32 exec_hi, 0
buffer_store_dwordx2 {vr(XR,2)}, v15, s[40:43], s65 offen
s_mov_b32 exec_hi, -1""")
    A(f"""v_and_b32 v15, 1, v3
v_lshlrev_b32 v15, 3, v15
v_lshl_add_u32 v15, v2, 4, v15
s_lshl_b32 s66, s14, 8
v_add_u32 v15, s66, v15""")
    xloads('s56', 0)
    wait0('v_mov_b32 v56, 44', 'global_load_dword v57, v56, s[12:13] sc1', 'v_cmp_gt_u32 vcc, 128, v57')
    Lloop = A.newlabel('tl_loop'); Lfin = A.newlabel('tl_fin')
    A.label(Lloop)
    for buf in range(2):
        Lnc = A.newlabel('tl_nc'); Lq1 = A.newlabel('tl_q1')
        A(f"""s_cmp_eq_u32 s68, 0
s_cbranch_scc1 {Lnc}
s_cmp_lg_u32 s14, 0
s_cbranch_scc1 {Lq1}
s_lshl_b32 s63, s17, 7
s_add_u32 s63, s63, {hex(WS_QF)}
v_mov_b32 v56, 8
buffer_load_ubyte v57, v56, s[4:7], s63 offen sc1
v_mov_b32 v56, {T_G}
s_waitcnt vmcnt(0)
ds_write_b32 v56, v57
s_waitcnt lgkmcnt(0)""")
        A.label(Lq1)
        A(f"""s_barrier
v_mov_b32 v56, {T_G}
ds_read_b32 v57, v56
s_waitcnt lgkmcnt(0)
v_readfirstlane_b32 s63, v57
s_cmp_gt_u32 s63, s56
s_cbranch_scc1 {Lnc}
s_sub_u32 s67, s56, {NSET}""")
        red_issue('s67', 's57')
        A('s_waitcnt vmcnt(0)')
        red_compute()
        A('s_mov_b32 s68, 0')
        A.label(Lnc)
        wait0(f"""s_add_u32 s64, s56, 1
s_lshl_b32 s63, s17, 7
s_add_u32 s63, s63, {hex(WS_QF)}
v_mov_b32 v56, 8""", 'buffer_load_ubyte v57, v56, s[4:7], s63 offen sc1', 'v_cmp_gt_u32 vcc, s64, v57')
        A('s_lshl_b32 s61, s56, 16')
        A('s_lshl_b32 s60, s56, 18')
        for ks in range(4):
            A(f'buffer_load_dwordx4 {vr(KM+ks*4,4)}, v7, s[4:7], s61 offen offset:{ks*64} sc1')
        for et in range(2):
            for T in range(2):
                A(f'buffer_load_dwordx4 {vr(40+(et*2+T)*4,4)}, v6, s[4:7], s60 offen offset:{et*2048+T*64}')
        for et in range(2):
            for T in range(2):
                A(f'buffer_load_dwordx2 {vr(VMf+(et*2+T)*2,2)}, v8, s[4:7], s61 offen offset:{et*512+T*16} sc1')
        A('s_barrier')
        S = ACC; QF = ACC+16; KX = ACC+32
        A(f'v_add_u32 v56, s55, v5')
        for ks in range(4):
            if ks:
                A(f'v_xor_b32 v57, {ks*64}, v5\nv_xor_b32 v58, {ks*64}, v56')
            ak = 'v57' if ks else 'v5'; aq = 'v58' if ks else 'v56'
            A(f"""ds_read_b128 {vr(QF+ks*4,4)}, {aq} offset:{buf*16384+T_Q}
ds_read_b128 {vr(KX+ks*4,4)}, {ak} offset:{buf*16384+T_K}
ds_read_b128 {vr(KX+16+ks*4,4)}, {ak} offset:{buf*16384+T_K+4096}""")
        for ks in range(4):
            A(f's_waitcnt lgkmcnt({9-3*ks})')
            for t in (1,2):
                A(f'v_mfma_f32_16x16x32_bf16 {vr(S+t*4,4)}, {vr(KX+(t-1)*16+ks*4,4)}, {vr(QF+ks*4,4)}, {"0" if ks==0 else vr(S+t*4,4)}')
        A('s_waitcnt vmcnt(8)')
        for ks in range(4):
            A(f'v_mfma_f32_16x16x32_bf16 {vr(S,4)}, {vr(KM+ks*4,4)}, {vr(QF+ks*4,4)}, {"0" if ks==0 else vr(S,4)}')
        A(f'v_mov_b32 v57, s53')
        for kt in range(2):
            for r in range(4):
                A(f"""v_cmp_le_i32 vcc, {16*kt+r}, v12
s_nop 1
v_cndmask_b32 v{S+4+4*kt+r}, v57, v{S+4+4*kt+r}, vcc""")
        A(f"""v_cmp_gt_u32 vcc, 2, v3
s_nop 1""")
        for r in range(4):
            A(f'v_cndmask_b32 v{S+r}, v57, v{S+r}, vcc')
        M = S+12; T1 = S+13; L = S+14; T2 = S+15
        A(f"""v_max3_f32 v{M}, v{S}, v{S+1}, v{S+2}
v_max3_f32 v{T1}, v{S+3}, v{S+4}, v{S+5}
v_max3_f32 v{M}, v{M}, v{S+6}, v{S+7}
v_max3_f32 v{T1}, v{T1}, v{S+8}, v{S+9}
v_max3_f32 v{M}, v{M}, v{S+10}, v{S+11}
v_max_f32 v{M}, v{M}, v{T1}
v_mov_b32 v{T1}, v{M}
s_nop 1
v_permlane32_swap_b32 v{T1}, v{M}
v_max_f32 v{M}, v{M}, v{T1}
v_mov_b32 v{T1}, v{M}
s_nop 1
v_permlane16_swap_b32 v{T1}, v{M}
v_max_f32 v{M}, v{M}, v{T1}
v_mul_f32 v{M}, s52, v{M}""")
        for i in range(12):
            A(f'v_fma_f32 v{S+i}, v{S+i}, s52, -v{M}')
        for i in range(12):
            A(f'v_exp_f32 v{S+i}, v{S+i}')
        A(f"""s_nop 0
v_add_f32 v{L}, v{S}, v{S+1}
v_add_f32 v{T1}, v{S+2}, v{S+3}
v_add_f32 v{T2}, v{S+4}, v{S+5}
v_add_f32 v{M}, v{S+6}, v{S+7}
v_add_f32 v{L}, v{L}, v{T1}
v_add_f32 v{T1}, v{S+8}, v{S+9}
v_add_f32 v{T2}, v{T2}, v{M}
v_add_f32 v{M}, v{S+10}, v{S+11}
v_add_f32 v{L}, v{L}, v{T1}
v_add_f32 v{T2}, v{T2}, v{M}
v_add_f32 v{L}, v{L}, v{T2}
v_mov_b32 v{T1}, v{L}
s_nop 1
v_permlane32_swap_b32 v{T1}, v{L}
v_add_f32 v{L}, v{L}, v{T1}
v_mov_b32 v{T1}, v{L}
s_nop 1
v_permlane16_swap_b32 v{T1}, v{L}
v_add_f32 v{L}, v{L}, v{T1}
v_rcp_f32 v{L}, v{L}
s_nop 0""")
        for i in range(12):
            A(f'v_mul_f32 v{S+i}, v{S+i}, v{L}')
        PX = QF; PM = QF+4; O = KX
        A(f"""v_cvt_pk_bf16_f32 v{PX}, v{S+4}, v{S+5}
v_cvt_pk_bf16_f32 v{PX+1}, v{S+6}, v{S+7}
v_cvt_pk_bf16_f32 v{PX+2}, v{S+8}, v{S+9}
v_cvt_pk_bf16_f32 v{PX+3}, v{S+10}, v{S+11}
v_cvt_pk_bf16_f32 v{PM}, v{S}, v{S+1}
v_cvt_pk_bf16_f32 v{PM+1}, v{S+2}, v{S+3}
s_waitcnt vmcnt(0)""")
        for i in range(4):
            A(f'v_mfma_f32_16x16x32_bf16 {vr(O+i*4,4)}, {vr(40+i*4,4)}, {vr(PX,4)}, 0')
        for i in range(4):
            A(f'v_mfma_f32_16x16x16_bf16 {vr(O+i*4,4)}, {vr(VMf+i*2,2)}, {vr(PM,2)}, {vr(O+i*4,4)}')
        Lnx = A.newlabel('tl_nx')
        A(f"""s_add_u32 s67, s56, {NSET}
s_cmp_ge_u32 s67, 64
s_cbranch_scc1 {Lnx}""")
        xloads('s67', 1-buf)
        A.label(Lnx)
        A('s_nop 4')
        for et in range(2):
            for r in range(4):
                A(f'v_cvt_pk_bf16_f32 v{S+et*4+r}, v{O+et*8+r}, v{O+et*8+4+r}')
            A(f'ds_write_b128 v9, {vr(S+et*4,4)} offset:{et*64}')
        A("""s_waitcnt lgkmcnt(0)
s_barrier""")
        for mt in range(2):
            for ks in range(4):
                A(f'ds_read_b128 {vr(16+(mt*4+ks)*4,4)}, v10 offset:{mt*16*OS+ks*64}')
        A(f's_lshl_b32 s62, s56, 20')
        for mt in range(2):
            for ks in range(4):
                A(f's_waitcnt lgkmcnt({7-(mt*4+ks)})')
                for t in range(8):
                    acc = vr(ACC+(mt*8+t)*4,4)
                    A(f'v_mfma_f32_16x16x32_bf16 {acc}, {vr(16+(mt*4+ks)*4,4)}, {ar((t*4+ks)*4,4)}, {"0" if ks==0 else acc}')
        A('s_nop 7')
        for mt in range(2):
            for r in range(4):
                b = 16 + ((mt*4+r)%4)*4
                for p in range(4):
                    A(f'v_cvt_pk_bf16_f32 v{b+p}, v{ACC+(mt*8+2*p)*4+r}, v{ACC+(mt*8+2*p+1)*4+r}')
                A(f"""s_add_u32 s63, s62, {(16*mt+r)*32768}
buffer_store_dwordx4 {vr(b,4)}, v11, s[4:7], s63 offen sc1""")
        A(f"""s_add_u32 s57, s57, 1
s_waitcnt vmcnt(0)
s_barrier""")
        Lnp = A.newlabel('tl_np')
        A(f"""s_cmp_lg_u32 s14, 0
s_cbranch_scc1 {Lnp}
s_mov_b64 exec, 1
v_mov_b32 v56, s57
v_mov_b32 v57, s15
s_mov_b32 s63, {hex(WS_FLAG)}
buffer_store_byte v56, v57, s[4:7], s63 offen sc1
s_mov_b64 exec, -1""")
        A.label(Lnp)
        Lnd = A.newlabel('tl_nd')
        A(f"""s_cmp_eq_u32 s68, 0
s_cbranch_scc1 {Lnd}
s_sub_u32 s67, s56, {NSET}
s_sub_u32 s69, s57, 1""")
        red_issue('s67', 's69')
        A('s_waitcnt vmcnt(0)')
        red_compute()
        A.label(Lnd)
        A('s_mov_b32 s68, 1')
        A(f"""s_add_u32 s56, s56, {NSET}
s_cmp_ge_u32 s56, 64
s_cbranch_scc1 {Lfin}""")
    A(f's_branch {Lloop}')
    A.label(Lfin)
    A(f's_sub_u32 s67, s56, {NSET}')
    red_issue('s67', 's57')
    A('s_waitcnt vmcnt(0)')
    red_compute()
    A('s_waitcnt vmcnt(0)')
```

```python
import sys
sys.path.insert(0, 'gen')
from gen import build
import k_mega8, k_chain8, k_tail3
def mk(out):
    build([('mega_kernel', k_mega8.emit_mega, 256, 512, 163840, 256, 100, 128)], out)
if __name__ == '__main__':
    mk('k8.s')
    k_mega8.PROF = True; mk('k8p.s')
    k_chain8.VMAP = 1; mk('k8p1.s'); k_chain8.VMAP = 0
    k_mega8.PROF = False
    k_chain8.STAMPS = True; mk('k8s.s'); k_chain8.STAMPS = False
    k_mega8.CTIMING = True
    mk('k8t.s')
```

```python
from asmlib import *
import k_elect
L_WA = 0
L_WB = 65536
L_MA = 131072
L_QK = 139264
QS = 288
L_O  = L_QK
L_MISC = L_QK + 16*QS
L_VM = L_MISC + 1024
L_KX = 147456
L_FL = L_MISC + 64
WS_FLAG = 0x5800000
SPINBOUND = True
PDELAY = 4
PDELAY2 = 0
MDELAY = 3
MARK = None
TIMING = False
DIVERT = None
X_NOPUB = False
X_NOK = False
PIPE_P = False
VMAP = 0
VOFF1 = """s_lshr_b32 s18, s20, 1
s_lshl_b32 s18, s18, 7
s_and_b32 s19, s20, 1
s_lshl_b32 s19, s19, 2
s_add_u32 s18, s18, s19
v_lshl_add_u32 v10, v41, 3, v45"""
VOFF0 = """s_lshl_b32 s18, s20, 6
v_lshl_add_u32 v10, v41, 2, v45"""
VMW1 = """v_lshl_add_u32 v50, v41, 6, v50
s_lshr_b32 s18, s20, 1
s_lshl_b32 s18, s18, 10
s_and_b32 s19, s20, 1
s_lshl_b32 s19, s19, 5
s_add_u32 s18, s18, s19"""
VMW0 = """v_lshl_add_u32 v50, v41, 5, v50
s_lshl_b32 s18, s20, 9"""
BDELAY = False
B2POS = 2
PIPE_M = False
PGAP = 20
CP = [0,1,8,9,2,3,10,11]
def drow(kap, eta, j):
    return 256*eta + 32*(kap%4) + 4*(kap//4) + 8*(CP[j]>>2) + (CP[j]&3)

STAMPS = False
def stamp(A, i):
    if STAMPS:
        A(f"""s_memtime s[94:95]
s_waitcnt lgkmcnt(0)
s_sub_u32 s96, s94, s97
s_add_u32 s{70+i}, s{70+i}, s96
s_mov_b32 s97, s94""")
def stamp_init(A):
    if STAMPS:
        A('s_memtime s[94:95]\ns_waitcnt lgkmcnt(0)\ns_mov_b32 s97, s94')
        for i in range(10): A(f's_mov_b32 s{70+i}, 0')
def stamp_dump(A):
    if STAMPS:
        A(f"""s_lshl_b32 s18, s15, 3
s_add_u32 s18, s18, s14
s_lshl_b32 s18, s18, 6
s_add_u32 s18, s18, {hex(WS_KD)}
v_mov_b32 v17, 0
s_mov_b64 exec, 1""")
        for i in range(10):
            A(f"""v_mov_b32 v16, s{70+i}
buffer_store_dword v16, v17, s[4:7], s18 offen offset:{4*i}""")
def spin(A, Lexit):
    if SPINBOUND:
        A(f'''s_add_u32 s48, s48, 1
s_cmp_gt_u32 s48, 0x200000
s_cbranch_scc1 {Lexit}''')

def kv_ready(A, target, t0):
    Lc = A.newlabel('kv_chk'); Lo = A.newlabel('kv_ok')
    A.label(Lc)
    A(f"""s_cmp_gt_u32 s80, {target}
s_cbranch_scc1 {Lo}
v_mov_b32 v{t0}, s81
buffer_load_ushort v{t0+1}, v{t0}, s[4:7], 0 offen offset:2 sc1
buffer_load_ushort v{t0+2}, v{t0}, s[4:7], 0 offen offset:4 sc1
s_waitcnt vmcnt(0)
v_readfirstlane_b32 s82, v{t0+1}
v_readfirstlane_b32 s83, v{t0+2}
s_and_b32 s84, s82, 0xff
s_and_b32 s85, s83, 0xff
s_min_u32 s84, s84, s85
s_lshl_b32 s84, s84, 1
s_lshr_b32 s82, s82, 8
s_lshr_b32 s83, s83, 8
s_min_u32 s82, s82, s83
s_lshl_b32 s82, s82, 1
s_add_u32 s82, s82, 1
s_min_u32 s80, s84, s82
s_cmp_gt_u32 s80, {target}
s_cbranch_scc1 {Lo}
s_sleep 4
s_add_u32 s88, s88, 1
s_cmp_lt_u32 s88, 0x80000
s_cbranch_scc1 {Lc}""")
    A.label(Lo)

def confirm(A, t):
    Lok = A.newlabel('cf_ok')
    A(f"""s_cmp_eq_u32 s75, 0
s_cbranch_scc1 {Lok}""")
    k_elect.emit_resolve(A, t)
    A(f"""s_mov_b32 s75, 0
s_cmp_lt_u32 s15, 32
s_cbranch_scc1 {Lok}
s_waitcnt vmcnt(0) lgkmcnt(0)
v_mbcnt_lo_u32_b32 v0, -1, 0
v_mbcnt_hi_u32_b32 v0, -1, v0
s_lshl_b32 s24, s14, 6
v_add_u32 v0, s24, v0
s_branch {DIVERT}""")
    A.label(Lok)

def smf_s(acc, a, b, isagpr, idx):
    bs = ar(b,8) if isagpr else vr(b,8)
    return f'v_smfmac_f32_16x16x64_bf16 {vr(acc,4)}, {vr(a,4)}, {bs}, v{idx}'

def run_batches(A, batches, depth_of):
    n = len(batches); issued = [0]
    def issue_upto(k):
        while issued[0] <= k and issued[0] < n:
            batches[issued[0]][0](); issued[0] += 1
    issue_upto(depth_of(0)-1)
    for i in range(n):
        out_after = sum(batches[j][1] for j in range(i+1, issued[0]))
        A(f's_waitcnt vmcnt({out_after})')
        batches[i][2]()
        issue_upto(min(i+depth_of(i+1), n-1))

def emit_chain8(A):
    LB = A.newlabel('c8_B'); Lexit = A.newlabel('c8_exit')
    A(f'''v_and_b32 v40, 63, v0
v_and_b32 v41, 15, v40            ; c
v_lshrrev_b32 v42, 4, v40         ; g
v_and_b32 v43, 1, v42             ; b
v_lshrrev_b32 v44, 1, v42         ; g/2
s_mov_b32 s30, 0x05040100
s_mov_b32 s31, 0x07060302
s_and_b32 s13+0, s13, s13'''.replace('s_and_b32 s13+0, s13, s13','s_and_b32 s20, s14, 3') + f'''
s_mov_b32 s48, 0
s_mov_b32 s80, 0
s_mov_b32 s88, 0
s_lshl_b32 s81, s15, 7
s_add_u32 s81, s81, {hex(WS_QF)}
v_mov_b32 v46, 0x4444
v_mov_b32 v47, 0xeeee
v_and_b32 v45, 1, v41
v_cmp_eq_u32 vcc, 0, v45
s_nop 1
v_cndmask_b32 v2, v47, v46, vcc   ; IDX
v_lshlrev_b32 v1, 4, v40
v_add_u32 v1, {L_MA}, v1          ; V_LA = L_MA + lane*16
v_lshlrev_b32 v45, 20, v44
v_lshl_add_u32 v45, v43, 16, v45
s_lshl_b32 s19, s15, 8
v_add_u32 v45, s19, v45           ; weight row base + h*256
s_cmp_ge_u32 s14, 4
s_cbranch_scc1 {LB}''')
    emit_A(A, Lexit)
    A.label(LB)
    emit_B(A, Lexit)
    A.label(Lexit)
    stamp_dump(A)
    A('s_waitcnt vmcnt(0)')

def emit_A(A, Lexit):
    IDX = 2; LA = 1
    WB = 0; QKW = 3; QKR = 4; OW = 5; KXR = 6; VXA = 7; VMR = 8; PUBR = 9
    VX = 10
    AF = 18
    STG = 32
    ACC = 48
    T2W = 64
    Lq0 = A.newlabel('cA_q0')
    A(f'''s_cmp_lg_u32 s20, 0
s_cbranch_scc1 {Lq0}''')
    confirm(A, 50)
    A(f'''s_mov_b64 exec, 1
v_mov_b32 v50, 0
v_mov_b32 v51, 0
v_mov_b32 v52, 0
v_mov_b32 v53, 0
buffer_store_dwordx4 v[50:53], v50, s[4:7], s81 offen sc1
s_waitcnt vmcnt(0)
v_mov_b32 v51, 1
v_mov_b32 v50, 56
global_atomic_add v50, v51, s[12:13]
s_mov_b64 exec, -1''')
    A.label(Lq0)
    A('v_lshlrev_b32 v9, 4, v0')
    A(f'''s_lshl_b32 s18, s20, 14
v_lshlrev_b32 v{WB}, 4, v40
v_add_u32 v{WB}, s18, v{WB}
s_lshr_b32 s18, s20, 1
s_lshl_b32 s18, s18, 3
v_lshlrev_b32 v50, 1, v42
v_add_u32 v50, s18, v50
v_mul_u32_u24 v50, {QS}, v50
s_and_b32 s18, s20, 1
s_lshl_b32 s18, s18, 7
s_add_u32 s18, s18, {L_QK}
v_lshl_add_u32 v50, v41, 3, v50
v_add_u32 v{QKW}, s18, v50
v_lshrrev_b32 v50, 1, v41
v_mul_u32_u24 v50, {QS}, v50
v_lshl_add_u32 v50, v42, 4, v50
v_add_u32 v{QKR}, {L_QK}, v50
v_lshrrev_b32 v50, 1, v41
v_mul_u32_u24 v50, {QS}, v50
v_lshl_add_u32 v50, v42, 4, v50
s_lshl_b32 s18, s20, 6
s_add_u32 s18, s18, {L_O}
v_add_u32 v{OW}, s18, v50
v_and_b32 v50, 3, v41
v_lshrrev_b32 v51, 3, v41
v_lshl_add_u32 v50, v51, 2, v50
v_lshlrev_b32 v50, 1, v50
v_xor_b32 v50, v50, v42
v_lshlrev_b32 v50, 4, v50
v_lshl_add_u32 v50, v41, 8, v50
v_add_u32 v{KXR}, {L_KX}, v50
v_lshlrev_b32 v50, 7, v41
v_lshl_add_u32 v50, v42, 4, v50
s_lshl_b32 s18, s15, 13
s_lshl_b32 s19, s20, 11
s_add_u32 s18, s18, s19
s_add_u32 s18, s18, {hex(WS_VT)}
v_add_u32 v{VXA}, s18, v50''')
    A(f'''v_lshlrev_b32 v50, 2, v42
v_lshl_add_u32 v50, v41, 5, v50
s_lshl_b32 s18, s20, 9
s_add_u32 s18, s18, {L_VM}
v_add_u32 v{VMR}, s18, v50''')
    A(f'''s_lshr_b32 s18, s20, 1
s_lshl_b32 s18, s18, 3
s_add_u32 s18, s18, {KA_WQ}
s_load_dwordx2 s[24:25], s[0:1], s18
s_and_b32 s18, s20, 1
s_lshl_b32 s18, s18, 7
v_lshl_add_u32 v30, v41, 3, v45
v_add_u32 v30, s18, v30
s_waitcnt lgkmcnt(0)''')
    srd(A, 8, 24, 4*1024*1024)
    bufs = [32, 48, 12]
    batches = []
    for q in range(16):
        kap, eta = q//2, q%2
        buf = bufs[q%3]
        def iss(kap=kap, eta=eta, buf=buf):
            for j in range(8):
                A(f"""s_mov_b32 s18, {drow(kap,eta,j)*8192}
buffer_load_dwordx2 {vr(buf+j*2,2)}, v30, s[8:11], s18 offen""")
        def proc(kap=kap, eta=eta, buf=buf):
            for T in range(4):
                for p in range(4):
                    hi = buf+(2*p+1)*2+T//2; lo = buf+(2*p)*2+T//2
                    sel = "s31" if T%2 else "s30"
                    if T < 2:
                        A(f'v_perm_b32 v31, v{hi}, v{lo}, {sel}\nv_accvgpr_write_b32 a{(T*8+kap)*8+eta*4+p}, v31')
                    elif T == 2:
                        A(f'v_perm_b32 v{T2W+kap*8+eta*4+p}, v{hi}, v{lo}, {sel}')
                    else:
                        A(f'v_perm_b32 v{28+(p%2)}, v{hi}, v{lo}, {sel}')
                        if p % 2 == 1:
                            A(f'ds_write_b64 v{WB}, v[28:29] offset:{kap*2048+eta*1024+(p//2)*8}\ns_nop 0')
        batches.append((iss, 8, proc))
    run_batches(A, batches, lambda i: 3)
    if MARK: MARK(A, 5, 30)
    confirm(A, 32)
    A(f'''v_bfe_u32 v40, v{LA}, 4, 6
v_and_b32 v41, 15, v40
v_lshrrev_b32 v42, 4, v40''')
    A(f'''s_lshl_b32 s16, s15, 13
s_add_u32 s16, s16, {hex(WS_P)}
v_mov_b32 v50, 1
v_mov_b32 v51, 1
v_mov_b32 v52, 1
v_mov_b32 v53, 1''')
    for ring in range(2):
        for i in range(2):
            A(f'''s_add_u32 s17, s16, {ring*0x40000+i*4096}
buffer_store_dwordx4 v[50:53], v9, s[4:7], s17 offen''')
    A(f'''s_and_b32 s17, s15, 7
s_lshl_b32 s17, s17, 10
s_lshr_b32 s18, s15, 3
s_lshl_b32 s18, s18, 8
s_add_u32 s17, s17, s18
s_add_u32 s17, s17, {hex(WS_M)}
v_mov_b32 v54, -1
v_lshlrev_b32 v55, 2, v40''')
    for sl in range(3):
        A(f'''s_add_u32 s18, s17, {sl*8192}
buffer_store_dword v54, v55, s[4:7], s18 offen''')
    Lz = A.newlabel('cA_z')
    A(f'''v_mov_b32 v54, 0
v_add_u32 v56, {L_FL}, v55
v_cmp_gt_u32 vcc, 8, v40
s_and_saveexec_b64 s[22:23], vcc
ds_write_b32 v56, v54
s_mov_b64 exec, s[22:23]
s_cmp_lg_u32 s15, 0
s_cbranch_scc1 {Lz}
s_mov_b32 s18, {hex(WS_FLAG)}
buffer_store_dword v54, v55, s[4:7], s18 offen sc1''')
    A.label(Lz)
    A(f'''s_waitcnt vmcnt(0)
s_mov_b64 exec, 1
v_mov_b32 v50, 1
v_mov_b32 v51, 36
global_atomic_add v51, v50, s[12:13]
s_mov_b64 exec, -1''')
    A(f'''s_load_dwordx2 s[32:33], s[0:1], {KA_MEM0}
v_lshrrev_b32 v50, 1, v41
v_lshlrev_b32 v50, 10, v50
v_lshl_add_u32 v50, v42, 8, v50
v_and_b32 v51, 1, v41
v_lshl_add_u32 v50, v51, 5, v50
s_and_b32 s18, s20, 1
s_lshl_b32 s18, s18, 7
s_lshr_b32 s19, s20, 1
s_lshl_b32 s19, s19, 3
s_add_u32 s18, s18, s19
v_add_u32 v30, s18, v50
s_waitcnt lgkmcnt(0)''')
    srd(A, 8, 32, 8192)
    for kk in range(2):
        for pos in range(8):
            A(f'buffer_load_ushort v{32+kk*8+pos}, v30, s[8:11], 0 offen offset:{(32*kk+8*(pos>>2)+(pos&3))*2}')
    A(f'''s_waitcnt vmcnt(0)
s_lshl_b32 s18, s20, 11
v_add_u32 v31, s18, v{LA}''')
    for kk in range(2):
        for p in range(4):
            A(f'v_lshl_or_b32 v{48+p}, v{32+kk*8+2*p+1}, 16, v{32+kk*8+2*p}')
        A(f'ds_write_b128 v31, v[48:51] offset:{kk*1024}\ns_waitcnt lgkmcnt(0)')
    def load_v(sreg):
        for T in range(2):
            A(f'buffer_load_dwordx4 {vr(VX+T*4,4)}, v{VXA}, s[4:7], {sreg} offen offset:{T*64}')
    A(f'''s_mov_b32 s34, 0
s_mov_b32 s44, 0x3e02939f
s_mov_b32 s45, 0x3e02939f
s_mov_b32 s68, 0x3f803f80
s_mov_b32 s69, 0x3f803f80
s_cmp_eq_u32 s20, 1
s_cselect_b32 s87, 1, 0x7fff
s_lshl_b32 s50, s20, 2
s_add_u32 s50, s50, {L_FL}
s_waitcnt vmcnt(0) lgkmcnt(0)
s_barrier
s_barrier
s_setprio 3''')
    def rdT(kap, st): return [f'ds_read_b128 {vr(STG+st*8+eta*4,4)}, v{WB} offset:{kap*2048+eta*1024}' for eta in range(2)]
    def rdA(kap): return [f'ds_read_b128 {vr(AF+(kap%3)*4,4)}, v{LA} offset:{kap*1024}']
    def p1(kap):
        a = AF+(kap%3)*4
        return [smf_s(ACC, a, kap*8, True, IDX), smf_s(ACC+4, a, 64+kap*8, True, IDX),
                smf_s(ACC+8, a, T2W+kap*8, False, IDX), smf_s(ACC+12, a, STG+(kap%2)*8, False, IDX)]
    def emit(l):
        for x in l: A(x)
    def pre():
        emit(rdT(0,0)+rdT(1,1))
        for i in range(8): A(f'v_mov_b64 {vr(ACC+2*i,2)}, 0')
    pre()
    if MARK: MARK(A, 6, 30)
    stamp_init(A)
    Lloop = A.newlabel('cA_loop'); Lfin = A.newlabel('cA_fin')
    A.raw('.p2align 6')
    A.label(Lloop)
    A('s_waitcnt lgkmcnt(0)\ns_barrier')
    stamp(A, 0)
    def rdK(ks):
        b = STG+(ks%2)*8
        if ks == 0: return [f'ds_read_b128 {vr(b,4)}, v{KXR}', f'ds_read_b128 {vr(b+4,4)}, v{KXR} offset:4096']
        return [f'v_xor_b32 v{b+4}, {ks*64}, v{KXR}', f'ds_read_b128 {vr(b,4)}, v{b+4}', f'ds_read_b128 {vr(b+4,4)}, v{b+4} offset:4096']
    q = []
    def iss(tag, l):
        for x in l:
            A(x)
            if x.startswith('ds_'): q.append(tag)
    def need(tag):
        if tag not in q: return
        last = max(i for i,t in enumerate(q) if t == tag)
        n = len(q)-1-last
        A(f's_waitcnt lgkmcnt({n})')
        del q[:last+1]
    iss('A0', rdA(0)); iss('A1', rdA(1)); iss('A2', rdA(2))
    A(f's_add_u32 s35, s34, 1\ns_lshl_b32 s43, s34, 18')
    pend = []
    def gapfill():
        if pend:
            t, x = pend.pop(0); iss(t, [x])
    for kap in range(8):
        if kap == B2POS:
            while pend: gapfill()
            stamp(A, 1)
            A('s_barrier')
            stamp(A, 2)
            if STAMPS: q.clear()
            iss('A4', rdA(4))
            if B2POS == 3: iss('A5', rdA(5))
            if not X_NOK: load_v('s43')
        m = p1(kap)
        need(f'A{kap}')
        A(m[0]); gapfill(); A(m[1]); gapfill(); A(m[2]); gapfill()
        need(f'T{kap}')
        A(m[3])
        if kap+2 < 8: pend += [(f'T{kap+2}', x) for x in rdT(kap+2, kap%2)]
        if kap == 0: pend += [('A3', x) for x in rdA(3)]
        if B2POS <= kap <= 4: pend += [(f'A{kap+3}', x) for x in rdA(kap+3)]
        if kap == 6: pend += [('K0', x) for x in rdK(0)]
        gapfill()
    while pend: gapfill()
    A(f'v_mov_b32 v30, s35\nv_mov_b32 v31, s50\ns_nop 1')
    for T in range(4):
        a = ACC+T*4
        A(f'v_add_f32 v{a}, v{a}, v{a+1}\nv_add_f32 v{a+2}, v{a+2}, v{a+3}')
    A(f"""v_cvt_pk_bf16_f32 v{ACC+0}, v{ACC+0}, v{ACC+4}
v_cvt_pk_bf16_f32 v{ACC+1}, v{ACC+8}, v{ACC+12}
v_cvt_pk_bf16_f32 v{ACC+2}, v{ACC+2}, v{ACC+6}
v_cvt_pk_bf16_f32 v{ACC+3}, v{ACC+10}, v{ACC+14}
ds_write_b64 v{QKW}, {vr(ACC+0,2)}
ds_write_b64 v{QKW}, {vr(ACC+2,2)} offset:{QS}
ds_write_b32 v31, v30
v_xor_b32 v{STG+12}, 64, v{KXR}
ds_read_b128 {vr(STG+8,4)}, v{STG+12}
ds_read_b128 {vr(STG+12,4)}, v{STG+12} offset:4096
v_mov_b32 v31, {L_FL}
s_cmp_eq_u32 s34, 63
s_cbranch_scc1 {Lfin}""")
    stamp(A, 3)
    Lf = A.newlabel('cA_fl')
    A.label(Lf)
    A(f"""ds_read_b128 {vr(AF,4)}, v31
ds_read_b128 {vr(ACC,4)}, v{QKR}
ds_read_b128 {vr(ACC+4,4)}, v{QKR} offset:{8*QS}
ds_read_b128 {vr(ACC+8,4)}, v{QKR} offset:64
ds_read_b128 {vr(ACC+12,4)}, v{QKR} offset:{8*QS+64}
s_waitcnt lgkmcnt(4)
v_min3_u32 v{AF}, v{AF}, v{AF+1}, v{AF+2}
v_min_u32 v{AF}, v{AF}, v{AF+3}
v_cmp_gt_u32 vcc, s35, v{AF}
s_cbranch_vccnz {Lf}""")
    stamp(A, 4)
    S = AF; M = 30; T1 = 31
    def rdQK(ks):
        b = ACC+(ks%2)*8
        return [f'ds_read_b128 {vr(b,4)}, v{QKR} offset:{ks*64}', f'ds_read_b128 {vr(b+4,4)}, v{QKR} offset:{8*QS+ks*64}']
    def smm(ks):
        b = ACC+(ks%2)*8; k = STG+(ks%2)*8
        r = []
        for t in range(3):
            a = vr(b+4,4) if t == 0 else vr(k+(t-1)*4,4)
            r.append(f'v_mfma_f32_16x16x32_bf16 {vr(S+t*4,4)}, {a}, {vr(b,4)}, {"0" if ks==0 else vr(S+t*4,4)}')
        return r
    A('s_waitcnt lgkmcnt(2)')
    emit(smm(0)); emit(rdQK(2)+rdK(2))
    A('s_waitcnt lgkmcnt(4)')
    emit(smm(1)); emit(rdQK(3)+rdK(3))
    A('s_waitcnt lgkmcnt(4)')
    emit(smm(2))
    A('s_waitcnt lgkmcnt(0)')
    emit(smm(3))
    PX = ACC; PM = ACC+4; VM = ACC+6; ONE = ACC+12; O = STG; LL = STG+8; LR = STG+12
    A(f"""s_nop 2
v_mov_b32 v{VM+1}, 0
v_mov_b32 v{VM+3}, 0
v_mov_b32 v{PM+1}, 0
v_mov_b64 {vr(ONE,2)}, s[68:69]
v_mov_b64 {vr(ONE+2,2)}, s[68:69]
v_max3_f32 v{M}, v{S}, v{S+2}, v{S+4}
v_max3_f32 v{T1}, v{S+5}, v{S+6}, v{S+7}
v_max3_f32 v{M}, v{M}, v{S+8}, v{S+9}
v_max3_f32 v{T1}, v{T1}, v{S+10}, v{S+11}
v_max_f32 v{M}, v{M}, v{T1}
v_mov_b32 v{T1}, v{M}
s_nop 1
v_permlane32_swap_b32 v{T1}, v{M}
v_max_f32 v{M}, v{M}, v{T1}
v_mov_b32 v{T1}, v{M}
s_nop 1
v_permlane16_swap_b32 v{T1}, v{M}
v_max_f32 v{M}, v{M}, v{T1}
v_mul_f32 v{M}, s44, v{M}""")
    for i in [2,3,4,5]:
        A(f'v_pk_fma_f32 {vr(S+2*i,2)}, {vr(S+2*i,2)}, s[44:45], {vr(M,2)} op_sel_hi:[1,1,0] neg_lo:[0,0,1] neg_hi:[0,0,1]')
    A(f'v_fma_f32 v{S}, v{S}, s44, -v{M}\nv_fma_f32 v{S+2}, v{S+2}, s44, -v{M}')
    for i in [4,5,6,7,8,9,10,11,0,2]:
        A(f'v_exp_f32 v{S+i}, v{S+i}')
    stamp(A, 5)
    A('s_barrier')
    stamp(A, 6)
    A(f"""ds_read_b32 v{VM}, v{VMR}
ds_read_b32 v{VM+2}, v{VMR} offset:16
v_cvt_pk_bf16_f32 v{PX}, v{S+4}, v{S+5}
v_cvt_pk_bf16_f32 v{PX+1}, v{S+6}, v{S+7}
v_cvt_pk_bf16_f32 v{PX+2}, v{S+8}, v{S+9}
v_cvt_pk_bf16_f32 v{PX+3}, v{S+10}, v{S+11}
v_cvt_pk_bf16_f32 v{PM}, v{S}, v{S+2}
s_waitcnt vmcnt(0)
v_mfma_f32_16x16x32_bf16 {vr(LL,4)}, {vr(ONE,4)}, {vr(PX,4)}, 0
v_mfma_f32_16x16x32_bf16 {vr(O,4)}, {vr(VX,4)}, {vr(PX,4)}, 0
v_mfma_f32_16x16x32_bf16 {vr(O+4,4)}, {vr(VX+4,4)}, {vr(PX,4)}, 0
v_mfma_f32_16x16x16_bf16 {vr(LL,4)}, {vr(ONE,2)}, {vr(PM,2)}, {vr(LL,4)}
s_waitcnt lgkmcnt(0)
v_mfma_f32_16x16x16_bf16 {vr(O,4)}, {vr(VM,2)}, {vr(PM,2)}, {vr(O,4)}
v_mfma_f32_16x16x16_bf16 {vr(O+4,4)}, {vr(VM+2,2)}, {vr(PM,2)}, {vr(O+4,4)}
s_nop 5
v_rcp_f32 v{LR}, v{LL}
s_nop 0""")
    for i in range(4):
        A(f'v_pk_mul_f32 {vr(O+2*i,2)}, {vr(O+2*i,2)}, {vr(LR,2)} op_sel_hi:[1,0]')
    for r in range(4):
        A(f'v_cvt_pk_bf16_f32 v{S+r}, v{O+r}, v{O+4+r}')
    A(f"""ds_write_b128 v{OW}, {vr(S,4)}
s_waitcnt lgkmcnt(0)""")
    stamp(A, 7)
    A('s_barrier')
    stamp(A, 8)
    A(f's_mov_b32 s34, s35\nv_xor_b32 v{KXR}, 0x2000, v{KXR}')
    pre()
    stamp(A, 9)
    A(f's_branch {Lloop}')
    A.label(Lfin)
    A(f"""s_waitcnt lgkmcnt(0)
s_barrier
s_branch {Lexit}""")

def emit_B(A, Lexit):
    IDX = 2; LA = 1
    WB = 0; PST = 3; PLD = 4; MST = 5; T16 = 6; OR = 7; KXA = 8; VMW = 9
    MBR = 12
    VACC = 16
    OA = 24
    D = 32
    AF = 32; STG = 48
    V0W = 64
    A(f'''v_subrev_u32 v46, 256, v0
v_lshlrev_b32 v{T16}, 4, v46''')
    A(f'''s_lshl_b32 s16, s15, 13
s_add_u32 s16, s16, {hex(WS_P)}
s_and_b32 s17, s15, 7
s_lshl_b32 s17, s17, 10
s_lshr_b32 s18, s15, 3
s_lshl_b32 s18, s18, 8
s_add_u32 s17, s17, s18
s_add_u32 s17, s17, {hex(WS_M)}''')
    A(f'''s_lshl_b32 s18, s20, 14
s_add_u32 s18, s18, {L_WB}
v_lshlrev_b32 v{WB}, 4, v40
v_add_u32 v{WB}, s18, v{WB}
s_lshl_b32 s18, s20, 16
s_lshl_b32 s19, s15, 6
s_add_u32 s18, s18, s19
s_add_u32 s18, s18, {hex(WS_P)}
v_and_b32 v50, 3, v41
v_lshlrev_b32 v50, 4, v50
v_lshl_add_u32 v50, v42, 11, v50
v_lshrrev_b32 v51, 2, v41
v_lshl_add_u32 v50, v51, 13, v50
v_add_u32 v{PST}, s18, v50
s_lshl_b32 s18, s20, 11
v_lshlrev_b32 v50, 4, v40
v_add_u32 v{PLD}, s18, v50
s_mov_b32 s59, s16
s_lshl_b32 s18, s20, 1
v_add_u32 v50, s18, v42
v_bfe_u32 v51, v41, 1, 1
v_lshl_add_u32 v50, v50, 1, v51
v_lshlrev_b32 v50, 4, v50
v_and_b32 v51, 1, v41
v_lshl_add_u32 v50, v51, 3, v50
v_add_u32 v{MST}, s17, v50
v_lshrrev_b32 v50, 1, v41
v_mul_u32_u24 v50, {QS}, v50
v_lshl_add_u32 v50, v42, 5, v50
v_and_b32 v51, 1, v41
v_lshl_add_u32 v50, v51, 4, v50
v_add_u32 v{OR}, {L_O}, v50
v_lshlrev_b32 v50, 1, v42
v_xor_b32 v50, v50, v41
v_lshlrev_b32 v50, 4, v50
v_lshl_add_u32 v50, v42, 8, v50
s_lshl_b32 s18, s15, 19
s_and_b32 s19, s20, 1
s_lshl_b32 s19, s19, 12
s_add_u32 s18, s18, s19
s_add_u32 s18, s18, {hex(WS_K)}
v_add_u32 v{KXA}, s18, v50
v_lshlrev_b32 v50, 2, v42
{VMW1 if VMAP else VMW0}
s_add_u32 s18, s18, {L_VM}
v_add_u32 v{VMW}, s18, v50
s_load_dwordx2 s[26:27], s[0:1], {KA_WV}
s_load_dwordx2 s[28:29], s[0:1], {KA_WO}
s_load_dwordx2 s[32:33], s[0:1], {KA_MEM0}
{VOFF1 if VMAP else VOFF0}
v_add_u32 v10, s18, v10            ; v voffset
v_lshlrev_b32 v50, 14, v44
v_lshl_add_u32 v50, v43, 12, v50
v_lshl_add_u32 v50, v41, 4, v50
s_lshl_b32 s18, s15, 17
s_lshl_b32 s19, s20, 8
s_add_u32 s18, s18, s19
v_add_u32 v11, s18, v50
v_lshrrev_b32 v50, 1, v41
v_lshlrev_b32 v50, 10, v50
v_lshl_add_u32 v50, v42, 8, v50
v_and_b32 v51, 1, v41
v_lshl_add_u32 v50, v51, 5, v50
s_and_b32 s18, s20, 1
s_lshl_b32 s18, s18, 7
s_lshr_b32 s19, s20, 1
s_lshl_b32 s19, s19, 3
s_add_u32 s18, s18, s19
v_add_u32 v12, s18, v50
s_waitcnt lgkmcnt(0)''')
    srd(A, 60, 26, 4*1024*1024)
    srd(A, 64, 28, 4*1024*1024)
    srd(A, 8, 32, 8192)
    batches = []
    for q in range(4):
        kp, eta = q//2, q%2
        buf = V0W + (q%2)*32
        def iss(kp=kp, eta=eta, buf=buf):
            for j in range(8):
                A(f"""s_mov_b32 s18, {(64*kp+32*eta+CP[j])*1024}
buffer_load_dwordx4 {vr(buf+j*4,4)}, v11, s[64:67], s18 offen""")
        def proc(kp=kp, eta=eta, buf=buf):
            for t in range(8):
                for p in range(4):
                    A(f'v_perm_b32 v12, v{buf+(2*p+1)*4+t//2}, v{buf+(2*p)*4+t//2}, {"s31" if t%2 else "s30"}\nv_accvgpr_write_b32 a{(t*2+kp)*8+eta*4+p}, v12')
        batches.append((iss, 8, proc))
    for kap in range(8):
        buf = 16 + (kap%3)*16
        def iss(kap=kap, buf=buf):
            for eta in range(2):
                for j in range(8):
                    A(f"""s_mov_b32 s18, {drow(kap,eta,j)*8192}
buffer_load_dword v{buf+eta*8+j}, v10, s[60:63], s18 offen""")
        def proc(kap=kap, buf=buf):
            for eta in range(2):
                for p in range(4):
                    A(f'v_perm_b32 v{V0W+kap*8+eta*4+p}, v{buf+eta*8+2*p+1}, v{buf+eta*8+2*p}, s30')
                for p in range(4):
                    A(f'v_perm_b32 v{12+p}, v{buf+eta*8+2*p+1}, v{buf+eta*8+2*p}, s31')
                A(f'ds_write_b128 v{WB}, v[12:15] offset:{kap*2048+eta*1024}\ns_nop 1')
        batches.append((iss, 16, proc))
    n = len(batches)
    order = []
    issued = set()
    def issue(i):
        if i < n and i not in issued:
            batches[i][0](); issued.add(i); order.append(i)
    issue(0); issue(1); issue(4); issue(5)
    for i in range(n):
        pos = order.index(i)
        out_after = sum(batches[j][1] for j in order[pos+1:])
        A(f's_waitcnt vmcnt({out_after})')
        batches[i][2]()
        if i < 2: issue(i+2)
        elif i == 2: issue(6)
        elif i >= 4: issue(i+3)
    if MARK: MARK(A, 2, 20, 4)
    confirm(A, 16)
    A(f"""s_and_b32 s53, s20, 1
s_lshl_b32 s53, s53, 12
s_add_u32 s53, s53, {L_KX}""")
    def dma_k(sreg, tmp):
        A(f"""s_mov_b32 m0, s53
v_xor_b32 v{tmp}, 128, v{KXA}
buffer_load_dwordx4 v{KXA}, s[4:7], {sreg} offen lds
buffer_load_dwordx4 v{KXA}, s[4:7], {sreg} offen offset:1024 lds
buffer_load_dwordx4 v{tmp}, s[4:7], {sreg} offen offset:2048 lds
buffer_load_dwordx4 v{tmp}, s[4:7], {sreg} offen offset:3072 lds""")
    A(f"""v_add_u32 v{T16}, {L_MA}, v{T16}
v_bfe_u32 v16, v{LA}, 4, 4
v_bfe_u32 v17, v{LA}, 8, 2
s_lshl_b32 s18, s20, 2
s_add_u32 s18, s18, 8
v_add_u32 v18, s18, v17
v_mul_u32_u24 v18, {QS}, v18
v_lshl_add_u32 v18, v16, 4, v18
v_add_u32 v18, {L_QK}, v18
s_lshl_b32 s18, s20, 10
s_add_u32 s18, s18, {L_VM-2048-L_MA}
v_add_u32 v19, s18, v{LA}
s_cmp_lt_u32 s20, 2
s_cselect_b64 vcc, -1, 0
v_cndmask_b32 v11, v19, v18, vcc
s_lshl_b32 s19, s15, 11
s_and_b32 s18, s20, 1
s_lshl_b32 s18, s18, 10
s_add_u32 s18, s18, s19
s_cmp_lt_u32 s20, 2
s_mov_b32 s57, {hex(WS_VMT-L_MA)}
s_cselect_b32 s57, {hex(WS_KM-L_MA)}, s57
s_add_u32 s57, s57, s18
s_cmp_eq_u32 s20, 1
s_cselect_b32 s87, 2, 0x7fff
s_waitcnt vmcnt(0) lgkmcnt(0)
s_barrier""")
    kv_ready(A, 0, 16)
    if MARK: MARK(A, 3, 20, 4)
    Ld0 = A.newlabel('cB_d0')
    A(f"""s_mov_b32 s18, 0
s_cmp_lt_u32 s20, 2
s_cbranch_scc1 {Ld0}""")
    dma_k('s18', 16)
    A.label(Ld0)
    A('s_waitcnt vmcnt(0)')
    Lcw = A.newlabel('cb_wait'); Lcs = A.newlabel('cb_spin')
    A(f"""s_cmp_lg_u32 s20, 0
s_cbranch_scc1 {Lcw}
s_mov_b64 exec, 1
v_mov_b32 v17, 36""")
    A.label(Lcs)
    A(f"""global_load_dword v16, v17, s[12:13] sc1
s_waitcnt vmcnt(0)
v_readfirstlane_b32 s18, v16
s_cmp_lt_u32 s18, 128
s_cbranch_scc1 {Lcs}
s_mov_b64 exec, -1""")
    A.label(Lcw)
    A(f"""s_barrier
s_mov_b32 s34, 0
s_mov_b32 s35, 8192
s_mov_b32 s36, 0
s_lshl_b32 s50, s15, 13
s_add_u32 s50, s50, {hex(WS_VT - L_MA*4)}
s_and_b32 s51, s20, 1
s_lshl_b32 s51, s51, 12
s_add_u32 s50, s50, s51
s_mov_b32 s46, 0x000f000f
s_mov_b32 s47, 0
s_mov_b32 s89, 0x3f80
s_lshl_b32 s60, s20, 2
s_add_u32 s60, s60, {L_FL}""")
    if TIMING: A('s_memtime s[62:63]\ns_waitcnt lgkmcnt(0)')
    def emit(l):
        for x in l: A(x)
    TS = [STG, STG+8, OA]
    def rdT(kap): return [f'ds_read_b128 {vr(TS[kap%3]+eta*4,4)}, v{WB} offset:{kap*2048+eta*1024}' for eta in range(2)]
    def rdA(kap): return [f'ds_read_b128 {vr(AF+(kap%4)*4,4)}, v{LA} offset:{kap*1024}']
    def p2(kap):
        a = AF+(kap%4)*4
        return [smf_s(VACC, a, V0W+kap*8, False, IDX), smf_s(VACC+4, a, TS[kap%3], False, IDX)]
    stamp_init(A)
    Lloop = A.newlabel('cB_loop'); Lfin = A.newlabel('cB_fin')
    A('s_waitcnt lgkmcnt(0)')
    A.raw('.p2align 6')
    A.label(Lloop)
    A('s_barrier')
    stamp(A, 0)
    Lnob = A.newlabel('cB_nob'); Lpb = A.newlabel('cB_pb'); Lok = A.newlabel('cB_okb')
    A(f"""s_cmp_eq_u32 s34, 0
s_cbranch_scc1 {Lnob}
ds_read_b128 {vr(OA,4)}, v11""")
    A.label(Lpb)
    A(f"""s_waitcnt vmcnt(0)
v_max3_u32 v{VACC}, v{MBR}, v{MBR+1}, v{MBR+2}
v_max_u32 v{VACC}, v{VACC}, v{MBR+3}
v_cmp_eq_u32 vcc, -1, v{VACC}
s_cbranch_vccz {Lok}""")
    spin(A, Lexit)
    A(f"""buffer_load_dwordx4 {vr(MBR,4)}, v{T16}, s[4:7], s40 offen sc1
s_branch {Lpb}""")
    A.label(Lok)
    A(f"""ds_write_b128 v{T16}, {vr(MBR,4)} offset:4096
s_waitcnt lgkmcnt(0)""")
    A.label(Lnob)
    stamp(A, 1)
    A('s_barrier')
    stamp(A, 2)
    Lnk = A.newlabel('cB_nk'); Lnw = A.newlabel('cB_nw')
    A('s_add_u32 s41, s34, 1')
    emit(rdA(0)+rdA(1)+rdA(2)+rdA(3)+rdT(0)+rdT(1))
    A(f"""s_and_b32 s37, s34, 1
s_lshl_b32 s37, s37, 18
s_bfe_u32 s38, s34, 0x10001
s_add_u32 s52, s37, s59
s_add_u32 s51, s52, 1024
s_xor_b32 s53, s53, 0x2000""")
    Lnp = A.newlabel('cB_np'); Lpa = A.newlabel('cB_pa')
    A(f"""s_cmp_eq_u32 s34, 0
s_cbranch_scc1 {Lnp}
s_lshl_b32 s58, s34, 16
s_add_u32 s58, s58, s57
s_sub_u32 s58, s58, 0x10000
{'s_nop 0' if X_NOPUB else f'buffer_store_dwordx4 {vr(OA,4)}, v{LA}, s[4:7], s58 offen sc1'}""")
    A.label(Lnp)
    A(f"""s_cmp_lt_u32 s34, s87
s_cbranch_scc1 {Lpa}
s_mov_b64 exec, 1
s_sub_u32 s58, s34, 1
v_mov_b32 v{MBR+2}, s58
v_mov_b32 v{MBR+3}, 8
buffer_store_byte v{MBR+2}, v{MBR+3}, s[4:7], s81 offen sc1
s_mov_b64 exec, -1""")
    A.label(Lpa)
    Lnw2 = A.newlabel('cB_nw2')
    A(f"""s_cmp_ge_u32 s34, {0 if X_NOK else 63}
s_cbranch_scc1 {Lnw2}""")
    kv_ready(A, 's41', MBR+1)
    Lk2 = A.newlabel('cB_k2')
    A(f"""s_cmp_lt_u32 s20, 2
s_cbranch_scc0 {Lk2}
v_lshlrev_b32 v{MBR}, 2, v{LA}
s_lshl_b32 s54, s41, 18
s_add_u32 s54, s54, s50
s_mov_b32 m0, {L_MISC+256}
s_nop 0
buffer_load_dword v{MBR}, s[4:7], s54 offen lds
s_branch {Lnw2}""")
    A.label(Lk2)
    A('s_lshl_b32 s42, s41, 13')
    dma_k('s42', MBR)
    A.label(Lnw2)
    for i in range(4): A(f'v_mov_b64 {vr(VACC+2*i,2)}, 0')
    emit(rdT(2))
    if BDELAY:
        Lvf = A.newlabel('cB_vf')
        A(f'v_mov_b32 v{MBR}, s60')
        A.label(Lvf)
        A(f"""ds_read_b32 v{MBR+1}, v{MBR}
s_waitcnt lgkmcnt(0)
v_cmp_gt_u32 vcc, s41, v{MBR+1}
s_cbranch_vccnz {Lvf}""")
    else:
        A('s_waitcnt lgkmcnt(0)')
    stamp(A, 3)
    q = []
    def iss(tag, l):
        for x in l:
            A(x); q.append(tag)
    def need(tag):
        if tag not in q: return
        last = max(i for i,t in enumerate(q) if t == tag)
        A(f's_waitcnt lgkmcnt({len(q)-1-last})')
        del q[:last+1]
    for kap in range(8):
        m = p2(kap)
        need(f'A{kap}'); A(m[0])
        need(f'T{kap}'); A(m[1])
        if kap+3 < 8: iss(f'T{kap+3}', rdT(kap+3))
        if kap+4 < 8: iss(f'A{kap+4}', rdA(kap+4))
    A('s_nop 7')
    for T in range(2):
        a = VACC+T*4
        A(f"""v_add_f32 v{a}, v{a}, v{a+1}
v_add_f32 v{a+2}, v{a+2}, v{a+3}
v_cvt_pk_bf16_f32 v{a}, v{a}, v{a+2}
ds_write_b32 v{VMW}, v{a} offset:{16*T}""")
    A(f"""v_mov_b64 {vr(OA,2)}, 0
v_mov_b64 {vr(OA+2,2)}, 0
s_waitcnt lgkmcnt(0)""")
    stamp(A, 4)
    A(f"""s_barrier
s_cmp_eq_u32 s34, 63
s_cbranch_scc1 {Lfin}
v_mfma_f32_32x32x16_bf16 {vr(D,16)}, {vr(OA,4)}, {vr(OA,4)}, 0
v_mfma_f32_32x32x16_bf16 {vr(D+16,16)}, {vr(OA,4)}, {vr(OA,4)}, 0""")
    X = VACC
    A(f"""v_bfe_u32 v{MBR}, v{LA}, 5, 3
v_and_b32 v{MBR+1}, 16, v{LA}
v_lshlrev_b32_e64 v{MBR+1}, v{MBR+1}, s89""")
    for p in range(4):
        A(f"""v_cmp_eq_u32 vcc, {p}, v{MBR}
s_nop 1
v_cndmask_b32 v{X+p}, 0, v{MBR+1}, vcc""")
    A(f"""v_mov_b32 v{MBR+2}, -1
v_mov_b32 v{MBR+3}, -1
s_mov_b32 s41, s37
s_add_u32 s40, s35, {hex(WS_M - L_MA)}
s_setprio 3
s_barrier""")
    stamp(A, 5)
    A(f"""ds_read_b128 {vr(OA,4)}, v{OR}
ds_read_b128 {vr(OA+4,4)}, v{OR} offset:128
s_waitcnt lgkmcnt(0)""")
    def dpost_l(tq):
        a = D+tq*16
        r = []
        for t in range(4):
            r += [f'v_add_f32 v{a+4*t}, v{a+4*t}, v{a+4*t+1}', f'v_add_f32 v{a+4*t+2}, v{a+4*t+2}, v{a+4*t+3}']
        r += [f'v_cvt_pk_bf16_f32 v{a}, v{a}, v{a+4}', f'v_cvt_pk_bf16_f32 v{a+1}, v{a+8}, v{a+12}',
              f'v_cvt_pk_bf16_f32 v{a+2}, v{a+2}, v{a+6}', f'v_cvt_pk_bf16_f32 v{a+3}, v{a+10}, v{a+14}',
              f'v_and_or_b32 v{a}, v{a}, -2, s38',
              f'buffer_store_dwordx4 {vr(a,4)}, v{PST}, s[4:7], s41 offen']
        return r
    def pd(t):
        return [smf_s(D+t*4, OA, (t*2+0)*8, True, IDX), smf_s(D+t*4, OA+4, (t*2+1)*8, True, IDX)]
    def weave(mf, fill):
        fill = list(fill)
        for m in mf:
            A(m)
            if fill: A(fill.pop(0))
        for f in fill: A(f)
    weave(pd(0)+pd(1)+pd(2)+pd(3), [])
    p0 = dpost_l(0)
    weave(pd(4), p0[:2])
    emit(p0[2:])
    weave(pd(5)+pd(6)+pd(7), ['s_add_u32 s41, s41, 32768'])
    A('s_nop 1')
    emit(dpost_l(1))
    stamp(A, 6)
    PP = OA
    LpP = A.newlabel('cB_pollP'); LokP = A.newlabel('cB_okP')
    def ldP():
        A(f"""buffer_load_dwordx4 {vr(PP,4)}, v{PLD}, s[4:7], s52 offen sc1
buffer_load_dwordx4 {vr(PP+4,4)}, v{PLD}, s[4:7], s51 offen sc1""")
    if PDELAY: A(f's_sleep {PDELAY}')
    if PDELAY2:
        Lp2 = A.newlabel('cB_pd2')
        A(f's_bitcmp0_b32 s15, 2\ns_cbranch_scc1 {Lp2}\ns_sleep {PDELAY2}')
        A.label(Lp2)
    def gap(n):
        while n > 0:
            k = min(n, 16); A(f's_nop {k-1}'); n -= k
    if not PIPE_P:
        ldP()
        A.label(LpP)
        A(f"""s_waitcnt vmcnt(0)
v_xor_b32 v{MBR}, s38, v{PP}
v_xor_b32 v{MBR+1}, s38, v{PP+4}
v_or_b32 v{MBR}, v{MBR}, v{MBR+1}
v_and_b32 v{MBR}, 1, v{MBR}
v_cmp_ne_u32 vcc, 0, v{MBR}
s_cbranch_vccz {LokP}""")
        spin(A, Lexit)
        ldP()
        A(f's_branch {LpP}')
        A.label(LokP)
        stamp(A, 7)
        A(f"""v_mfma_f32_16x16x32_bf16 {vr(X+4,4)}, {vr(X,4)}, {vr(PP,4)}, 0
v_mfma_f32_16x16x32_bf16 {vr(X+4,4)}, {vr(X,4)}, {vr(PP+4,4)}, {vr(X+4,4)}""")
    else:
        PQ = D+24
        def ldP2(r):
            A(f"""buffer_load_dwordx4 {vr(r,4)}, v{PLD}, s[4:7], s52 offen sc1
buffer_load_dwordx4 {vr(r+4,4)}, v{PLD}, s[4:7], s51 offen sc1""")
        def chkP(r, Lok):
            A(f"""v_xor_b32 v{MBR}, s38, v{r}
v_xor_b32 v{MBR+1}, s38, v{r+4}
v_or_b32 v{MBR}, v{MBR}, v{MBR+1}
v_and_b32 v{MBR}, 1, v{MBR}
v_cmp_ne_u32 vcc, 0, v{MBR}
s_cbranch_vccz {Lok}""")
        LokP1 = A.newlabel('cB_okP1'); LokP2 = A.newlabel('cB_okP2')
        ldP2(PP); gap(PGAP); ldP2(PQ)
        A.label(LpP)
        A('s_waitcnt vmcnt(2)')
        chkP(PP, LokP)
        ldP2(PP)
        A('s_waitcnt vmcnt(2)')
        chkP(PQ, LokP1)
        ldP2(PQ)
        spin(A, Lexit)
        A(f's_branch {LpP}')
        A.label(LokP1)
        A(f"""v_mfma_f32_16x16x32_bf16 {vr(X+4,4)}, {vr(X,4)}, {vr(PQ,4)}, 0
v_mfma_f32_16x16x32_bf16 {vr(X+4,4)}, {vr(X,4)}, {vr(PQ+4,4)}, {vr(X+4,4)}
s_branch {LokP2}""")
        A.label(LokP)
        A(f"""v_mfma_f32_16x16x32_bf16 {vr(X+4,4)}, {vr(X,4)}, {vr(PP,4)}, 0
v_mfma_f32_16x16x32_bf16 {vr(X+4,4)}, {vr(X,4)}, {vr(PP+4,4)}, {vr(X+4,4)}""")
        A.label(LokP2)
    A(f"""s_mov_b32 s56, s36
s_mov_b32 s36, s35
s_add_u32 s34, s34, 1
s_nop 4""")
    for sh in (4, 8):
        for r in range(4):
            A(f'v_add_f32_dpp v{X+4+r}, v{X+4+r}, v{X+4+r} row_ror:{sh} row_mask:0xf bank_mask:0xf')
    M0 = D
    A(f"""s_mov_b64 exec, s[46:47]
v_cvt_pk_bf16_f32 v{MBR}, v{X+4}, v{X+5}
v_cvt_pk_bf16_f32 v{MBR+1}, v{X+6}, v{X+7}
v_min_u32 v{MBR}, -2, v{MBR}
v_min_u32 v{MBR+1}, -2, v{MBR+1}
buffer_store_dwordx2 {vr(MBR,2)}, v{MST}, s[4:7], s35 offen
buffer_store_dwordx2 {vr(MBR+2,2)}, v{MST}, s[4:7], s56 offen
s_mov_b64 exec, -1
s_add_u32 s35, s35, 8192
s_cmp_eq_u32 s35, 24576
s_cselect_b32 s35, 0, s35
s_add_u32 s56, s40, 4096""")
    stamp(A, 8)
    if MDELAY: A(f's_sleep {MDELAY}')
    LpM = A.newlabel('cB_pollM'); LokM = A.newlabel('cB_okM')
    def ldM(r): A(f'buffer_load_dwordx4 {vr(r,4)}, v{T16}, s[4:7], s40 offen sc1')
    def chkM(r, Lok):
        A(f"""v_max3_u32 v{M0+8}, v{r}, v{r+1}, v{r+2}
v_max_u32 v{M0+8}, v{M0+8}, v{r+3}
v_cmp_eq_u32 vcc, -1, v{M0+8}
s_cbranch_vccz {Lok}""")
    if not PIPE_M:
        ldM(M0)
        A.label(LpM)
        A('s_waitcnt vmcnt(0)')
        chkM(M0, LokM)
        spin(A, Lexit)
        ldM(M0)
        A(f's_branch {LpM}')
        A.label(LokM)
        stamp(A, 9)
        A(f'ds_write_b128 v{T16}, {vr(M0,4)}')
    else:
        M1 = M0+4
        Lok1 = A.newlabel('cB_okM1'); Lok2 = A.newlabel('cB_okM2')
        ldM(M0); gap(PGAP); ldM(M1)
        A.label(LpM)
        A('s_waitcnt vmcnt(1)')
        chkM(M0, LokM)
        ldM(M0)
        A('s_waitcnt vmcnt(1)')
        chkM(M1, Lok1)
        ldM(M1)
        spin(A, Lexit)
        A(f's_branch {LpM}')
        A.label(Lok1)
        A(f'ds_write_b128 v{T16}, {vr(M1,4)}\ns_branch {Lok2}')
        A.label(LokM)
        A(f'ds_write_b128 v{T16}, {vr(M0,4)}')
        A.label(Lok2)
    A(f"""buffer_load_dwordx4 {vr(MBR,4)}, v{T16}, s[4:7], s56 offen sc1
s_mov_b32 s40, s56
s_setprio 0
s_waitcnt lgkmcnt(0)
s_branch {Lloop}""")
    A.label(Lfin)
    if TIMING:
        A(f"""s_memtime s[64:65]
s_waitcnt lgkmcnt(0)
s_sub_u32 s64, s64, s62
v_mov_b32 v16, s64
s_lshl_b32 s18, s15, 2
s_add_u32 s18, s18, 64
v_mov_b32 v17, s18
s_mov_b64 exec, 1
global_store_dword v17, v16, s[12:13]
s_mov_b64 exec, -1""")
    A(f"""ds_read_b128 {vr(OA,4)}, v11
s_lshl_b32 s58, s34, 16
s_add_u32 s58, s58, s57
s_waitcnt lgkmcnt(0)
buffer_store_dwordx4 {vr(OA,4)}, v{LA}, s[4:7], s58 offen sc1
s_waitcnt vmcnt(0)
s_barrier
s_cmp_lg_u32 s20, 1
s_cbranch_scc1 {Lexit}
s_mov_b64 exec, 1
v_mov_b32 v16, 64
v_mov_b32 v17, 8
buffer_store_byte v16, v17, s[4:7], s81 offen sc1
s_mov_b64 exec, -1""")
```

```python
from asmlib import *
L_E = 148480
PREF = 0
NEVER = False
def emit_ticket(A):
    Lw = A.newlabel('e3_wait'); Lnd = A.newlabel('e3_nd'); Ldecl = A.newlabel('e3_decl'); Lfb = A.newlabel('e3_fb')
    A(f"""s_getreg_b32 s16, hwreg(HW_REG_XCC_ID)
s_and_b32 s16, s16, 7
s_cmp_lg_u32 s14, 0
s_cbranch_scc1 {Lw}
s_lshl_b32 s17, s16, 3
s_lshl_b64 s[24:25], 1, s17
v_mov_b32 v20, s24
v_mov_b32 v21, s25
v_mov_b32 v22, 0
s_mov_b64 exec, 1
global_atomic_add_x2 v[24:25], v22, v[20:21], s[12:13] sc0
s_waitcnt vmcnt(0)
v_mov_b32 v22, {L_E}
ds_write_b64 v22, v[24:25]
v_readfirstlane_b32 s18, v24
v_readfirstlane_b32 s19, v25
s_lshr_b64 s[20:21], s[18:19], s17
s_and_b32 s21, s20, 0xff
s_mov_b32 s26, {PREF+1}
s_cmp_eq_u32 s16, {PREF}
s_cselect_b32 s27, s21, 0
s_cmp_eq_u32 s27, {99 if NEVER else 31}
s_cbranch_scc1 {Ldecl}""")
    A(f"""s_add_u32 s24, s18, s24
s_addc_u32 s25, s19, s25
s_and_b32 s27, s24, 0x00ff00ff
s_lshr_b32 s28, s24, 8
s_and_b32 s28, s28, 0x00ff00ff
s_add_u32 s27, s27, s28
s_and_b32 s28, s25, 0x00ff00ff
s_add_u32 s27, s27, s28
s_lshr_b32 s28, s25, 8
s_and_b32 s28, s28, 0x00ff00ff
s_add_u32 s27, s27, s28
s_lshr_b32 s28, s27, 16
s_and_b32 s27, s27, 0xffff
s_add_u32 s27, s27, s28
s_cmp_lg_u32 s27, 256
s_cbranch_scc1 {Lnd}""")
    if PREF < 8 and not NEVER:
        A(f"""s_lshr_b64 s[28:29], s[24:25], {8*PREF}
s_and_b32 s28, s28, 0xff
s_cmp_ge_u32 s28, 32
s_cbranch_scc1 {Lnd}""")
    A('s_mov_b32 s26, 1')
    A.label(Lfb)
    A(f"""s_and_b32 s28, s24, 0xff
s_cmp_ge_u32 s28, 32
s_cbranch_scc1 {Ldecl}
s_lshr_b64 s[24:25], s[24:25], 8
s_add_u32 s26, s26, 1
s_cmp_le_u32 s26, 8
s_cbranch_scc1 {Lfb}""")
    A.label(Ldecl)
    A(f"""v_mov_b32 v24, s26
v_mov_b32 v22, 32
global_store_dword v22, v24, s[12:13] sc1""")
    A.label(Lnd)
    A(f"""s_mov_b64 exec, -1
s_waitcnt lgkmcnt(0)""")
    A.label(Lw)
    A(f"""s_barrier
v_mov_b32 v22, {L_E}
ds_read_b64 v[24:25], v22
s_waitcnt lgkmcnt(0)
v_readfirstlane_b32 s18, v24
v_readfirstlane_b32 s19, v25
s_lshl_b32 s17, s16, 3
s_lshr_b64 s[20:21], s[18:19], s17
s_and_b32 s21, s20, 0xff
s_mov_b32 s76, s18
s_mov_b32 s77, s19
s_mov_b32 s78, s16
s_mov_b32 s79, s21
s_barrier""")

def emit_resolve(A, t=24):
    Lsp = A.newlabel('e3_spin'); Lgot = A.newlabel('e3_got')
    A(f'v_mov_b32 v{t}, 32')
    A.label(Lsp)
    A(f"""global_load_dword v{t+1}, v{t}, s[12:13] sc1
s_waitcnt vmcnt(0)
v_readfirstlane_b32 s24, v{t+1}
s_cmp_lg_u32 s24, 0
s_cbranch_scc1 {Lgot}
s_sleep 3
s_branch {Lsp}""")
    A.label(Lgot)
    A(f"""s_sub_u32 s24, s24, 1
s_and_b32 s25, s76, 0x00ff00ff
s_lshr_b32 s26, s76, 8
s_and_b32 s26, s26, 0x00ff00ff
s_add_u32 s25, s25, s26
s_and_b32 s26, s77, 0x00ff00ff
s_add_u32 s25, s25, s26
s_lshr_b32 s26, s77, 8
s_and_b32 s26, s26, 0x00ff00ff
s_add_u32 s25, s25, s26
s_lshr_b32 s26, s25, 16
s_and_b32 s25, s25, 0xffff
s_add_u32 s25, s25, s26
s_lshl_b32 s26, s24, 3
s_lshr_b64 s[26:27], s[76:77], s26
s_and_b32 s26, s26, 0xff
s_min_u32 s26, s26, 32
s_sub_u32 s90, s25, s26
s_cmp_eq_u32 s24, s78
s_cselect_b32 s15, s79, 0xffff
s_cmp_lt_u32 s15, 32
s_cselect_b32 s15, s15, 0xffff""")
```

```python
from asmlib import *
import k_chain, k_chain8, k_qkv3, k_ssm, k_tail3, k_elect
PROF = False
NOTAIL = False
TOUCH = True
WSLEEP = 0
CTIMING = False
def mark(A, i, t=120, wv=0):
    if not PROF: return
    L = A.newlabel('mk')
    A(f"""s_cmp_lg_u32 s14, {wv}
s_cbranch_scc1 {L}
s_memrealtime s[94:95]
s_lshl_b32 s96, s2, 6
s_add_u32 s96, s96, {hex(WS_KD)}
s_waitcnt lgkmcnt(0)
s_mov_b64 exec, 1
v_mov_b32 v{t}, s94
v_mov_b32 v{t+1}, 0
buffer_store_dword v{t}, v{t+1}, s[4:7], s96 offen offset:{4*i}
s_waitcnt vmcnt(0)
s_mov_b64 exec, -1""")
    A.label(L)
def emit_mega(A, name='mega_kernel'):
    kernel_header(A, name)
    Lend = A.newlabel('mg_end'); Lworker = A.newlabel('mg_worker')
    A(f"""s_cmp_ge_u32 s2, 256
s_cbranch_scc1 {Lend}
s_load_dwordx2 s[22:23], s[0:1], {KA_WS}
s_load_dwordx2 s[12:13], s[0:1], {KA_DBG}
v_lshrrev_b32 v16, 6, v0
s_nop 0
v_readfirstlane_b32 s14, v16
s_waitcnt lgkmcnt(0)""")
    srd(A, 4, 22, WS_SIZE)
    k_chain.MERGED = True
    mark(A, 0)
    k_chain8.MARK = mark if PROF else None
    k_chain8.TIMING = CTIMING
    if TOUCH:
        A(f"""s_lshr_b32 s24, s2, 6
s_lshl_b32 s24, s24, 3
s_add_u32 s24, s24, {KA_WQ}
s_load_dwordx2 s[26:27], s[0:1], s24
s_and_b32 s25, s2, 63
s_lshl_b32 s25, s25, 16
v_lshlrev_b32 v124, 4, v0
s_waitcnt lgkmcnt(0)""")
        srd(A, 28, 26, 4*1024*1024)
        for i in range(8):
            A(f's_add_u32 s24, s25, {i*8192}\nbuffer_load_dwordx4 v[{92+4*i}:{95+4*i}], v124, s[28:31], s24 offen')
    k_elect.emit_ticket(A)
    Lchain = A.newlabel('mg_chain'); Lres = A.newlabel('mg_res')
    A(f"""s_mov_b32 s75, 1
s_mov_b32 s15, s79
s_cmp_eq_u32 s78, {k_elect.PREF}
s_cselect_b32 s24, s79, 0xffff
s_cmp_lt_u32 s24, 32
s_cbranch_scc1 {Lchain}""")
    A.label(Lres)
    Lr0 = A.newlabel('mg_r0')
    A(f's_cmp_lg_u32 s14, 0\ns_cbranch_scc1 {Lr0}')
    k_elect.emit_resolve(A)
    A(f"""v_mov_b32 v24, s15
v_mov_b32 v25, s90
v_mov_b32 v22, {k_elect.L_E+16}
ds_write_b64 v22, v[24:25]
s_waitcnt lgkmcnt(0)""")
    A.label(Lr0)
    A(f"""s_barrier
v_mov_b32 v22, {k_elect.L_E+16}
ds_read_b64 v[24:25], v22
s_waitcnt lgkmcnt(0)
v_readfirstlane_b32 s15, v24
v_readfirstlane_b32 s90, v25
s_barrier""")
    A(f"""s_mov_b32 s75, 0
s_cmp_ge_u32 s15, 32
s_cbranch_scc1 {Lworker}""")
    A.label(Lchain)
    mark(A, 1)
    Ldiv = A.newlabel('mg_div')
    k_chain8.DIVERT = Ldiv
    k_chain8.emit_chain8(A)
    mark(A, 7, 30)
    A('s_endpgm')
    A.label(Ldiv)
    A('s_barrier')
    A.label(Lworker)
    A(f"""s_cmp_ge_u32 s90, 224
s_cbranch_scc1 {Lend}
s_cmp_ge_u32 s14, 4
s_cbranch_scc1 {Lend}""")
    mark(A, 1)
    for _ in range(WSLEEP): A('s_sleep 127')
    Lssm0 = A.newlabel('mg_ssm0'); Lssm = A.newlabel('mg_ssm'); Ltail = A.newlabel('mg_tail')
    A(f"""s_cmp_ge_u32 s90, 192
s_cbranch_scc1 {Lssm0}
s_mov_b32 s15, s90""")
    k_qkv3.emit_qkv_body(A)
    mark(A, 2)
    A(f"""s_cmp_ge_u32 s90, 64
s_cbranch_scc1 {Ltail}
s_add_u32 s91, s90, 64
s_mov_b32 s92, 1
s_branch {Lssm}""")
    A.label(Lssm0)
    A(f"""s_sub_u32 s91, s90, 192
s_lshl_b32 s91, s91, 1
s_mov_b32 s92, 2""")
    A.label(Lssm)
    A('s_mov_b32 s15, s91')
    k_ssm.emit_ssm_body(A, st=' sc1')
    Ls = A.newlabel('mg_sd')
    A(f"""s_cmp_lg_u32 s14, 0
s_cbranch_scc1 {Ls}
s_mov_b64 exec, 1
v_mov_b32 v20, 1
v_mov_b32 v21, 44
global_atomic_add v21, v20, s[12:13]
s_mov_b64 exec, -1""")
    A.label(Ls)
    A(f"""s_add_u32 s91, s91, 1
s_sub_u32 s92, s92, 1
s_cmp_lg_u32 s92, 0
s_cbranch_scc1 {Lssm}""")
    A.label(Ltail)
    mark(A, 3)
    A('s_mov_b32 s15, s90')
    if not NOTAIL: k_tail3.emit_tail_body(A)
    mark(A, 4)
    A.label(Lend)
    A('s_endpgm')
```

```python
from asmlib import *
VW = 128
VACC = 64
VX = 80
VDMA = 8
VRD = 16
VST = 32
VPK = 24
def emit_qkv_body(A, publish=True):
    A(f'''s_lshr_b32 s68, s15, 1          ; ct
s_and_b32 s69, s15, 1           ; par
s_lshr_b32 s70, s68, 5          ; mat
s_and_b32 s71, s68, 31          ; h
s_lshl_b32 s72, s70, 3
s_add_u32 s72, s72, {KA_WQ}
s_load_dwordx2 s[8:9], s[0:1], {KA_X}
s_load_dwordx2 s[10:11], s[0:1], s72
v_and_b32 v1, 63, v0
v_and_b32 v3, 15, v1
v_lshrrev_b32 v4, 4, v1
s_waitcnt lgkmcnt(0)''')
    srd(A, 16, 8, 2048*1024)
    srd(A, 20, 10, 4*1024*1024)
    A(f'''v_lshlrev_b32 v5, 16, v4
s_lshl_b32 s28, s71, 8
s_lshl_b32 s29, s14, 6
s_add_u32 s28, s28, s29
v_lshl_add_u32 v5, v3, 2, v5
v_add_u32 v5, s28, v5
s_mov_b32 s30, 0x05040100
s_mov_b32 s31, 0x07060302
s_lshl_b32 s32, s14, 3''')
    for rr in range(8):
        A(f'''s_add_u32 s33, s32, {rr}
s_and_b32 s33, s33, 15
v_xor_b32 v{VDMA+rr}, s33, v1
v_lshlrev_b32 v{VDMA+rr}, 4, v{VDMA+rr}''')
    for q in range(4):
        A(f'''v_add_u32 v6, {4*q}, v4
v_xor_b32 v6, v6, v3
v_lshlrev_b32 v6, 4, v6
v_lshl_add_u32 v{VRD+q}, v3, 10, v6
v_add_u32 v{VRD+4+q}, 0x10000, v{VRD+q}''')
    A(f'''s_mov_b32 s34, s69
s_lshl_b32 s36, s32, 10''')
    def dma(buf, segreg):
        A(f'''s_lshl_b32 s35, {segreg}, 15
s_add_u32 s35, s35, s36''')
        for rr in range(8):
            A(f'''s_add_u32 m0, s36, {buf*32768 + rr*1024}
s_add_u32 s37, s35, {rr*1024}
buffer_load_dwordx4 v{VDMA+rr}, s[16:19], s37 offen lds''')
    dma(0, 's34')
    A(f"""v_lshlrev_b32 v5, 13, v4
v_lshl_add_u32 v5, v3, 4, v5
s_lshl_b32 s28, s71, 8
v_add_u32 v5, s28, v5
s_lshl_b32 s38, s14, 20          ; 128w*8192
s_lshl_b32 s39, s14, 15
s_add_u32 s39, s39, 32768""")
    for i in range(32):
        A(f"""s_add_u32 m0, s39, {i*1024}
s_add_u32 s40, s38, {i*4*8192}
buffer_load_dwordx4 v5, s[20:23], s40 offen lds""")
    A(f"""v_lshrrev_b32 v34, 2, v3
v_lshl_add_u32 v34, v4, 3, v34
v_lshlrev_b32 v34, 8, v34
v_and_b32 v35, 3, v3
v_lshl_add_u32 v34, v35, 4, v34
s_add_u32 s40, s29, 32768
v_add_u32 v34, s40, v34
v_add_u32 v35, 0x10000, v34
s_waitcnt vmcnt(0)
s_barrier""")
    for i in range(16):
        for T in range(2):
            for hh in range(2):
                A(f'ds_read_b64_tr_b16 {ar((i*2+T)*4+2*hh,2)}, v{34+i//8} offset:{(i%8)*8192+T*8+hh*1024}')
        if i % 3 == 2: A('s_waitcnt lgkmcnt(0)')
    A("""s_waitcnt lgkmcnt(0)
s_barrier""")
    A('s_add_u32 s42, s34, 2')
    dma(1, 's42')
    A('s_add_u32 s42, s34, 4')
    dma(2, 's42')
    A(f'''s_lshl_b32 s73, s71, 7
s_lshl_b32 s75, s70, 1
s_add_u32 s73, s73, s75
s_add_u32 s73, s73, s69
s_add_u32 s73, s73, {hex(WS_QF)}
v_mov_b32 v7, s73''')
    if publish:
        Lzi = A.newlabel('qkv_zi'); Lzo = A.newlabel('qkv_zo')
        A(f'''s_cmp_lg_u32 s14, 0
s_cbranch_scc1 {Lzo}
v_mov_b32 v6, 56''')
        A.label(Lzi)
        A(f'''global_load_dword v33, v6, s[12:13] sc1
s_waitcnt vmcnt(0)
v_readfirstlane_b32 s75, v33
s_cmp_ge_u32 s75, 32
s_cbranch_scc1 {Lzo}
s_sleep 8
s_branch {Lzi}''')
        A.label(Lzo)
    Lv = A.newlabel('qkv_v'); Ldone = A.newlabel('qkv_done')
    A(f'''s_cmp_eq_u32 s70, 2
s_cbranch_scc1 {Lv}''')
    ST = ' sc1' if publish else ''
    nseg = 32
    for isv in (0, 1):
        if isv == 0:
            A(f'''s_lshl_b32 s39, s70, 24
s_lshl_b32 s40, s71, 19
s_add_u32 s39, s39, s40
s_add_u32 s39, s39, s29
v_lshlrev_b32 v{VST}, 8, v3
v_lshl_add_u32 v{VST}, v4, 4, v{VST}
v_add_u32 v{VST}, s39, v{VST}''')
        else:
            A.label(Lv)
            A(f'''s_lshl_b32 s39, s71, 13
s_lshl_b32 s40, s14, 11
s_add_u32 s39, s39, s40
s_add_u32 s39, s39, {hex(WS_VT)}
v_lshrrev_b32 v{VST}, 2, v3
v_lshlrev_b32 v{VST}, 3, v{VST}
v_and_b32 v34, 3, v3
v_add_u32 v{VST}, v{VST}, v34
v_lshlrev_b32 v{VST}, 6, v{VST}
v_lshl_add_u32 v{VST}, v4, 4, v{VST}
v_add_u32 v{VST}, s39, v{VST}''')
        Lloop = A.newlabel('qkv_loop')
        A('s_mov_b32 s41, 0\ns_mov_b32 s74, -3')
        A.label(Lloop)
        for buf in range(4):
            A('''s_waitcnt vmcnt(22)
s_barrier''')
            if publish:
                Lnp = A.newlabel('qkv_np')
                A(f'''s_cmp_lg_u32 s14, 0
s_cbranch_scc1 {Lnp}
s_cmp_lt_i32 s74, 3
s_cbranch_scc1 {Lnp}
v_mov_b32 v6, s74
s_mov_b64 exec, 1
buffer_store_byte v6, v7, s[4:7], 0 offen sc1
s_mov_b64 exec, -1''')
                A.label(Lnp)
                A('s_add_u32 s74, s74, 1')
            A(f'''s_add_u32 s42, s34, 6
s_min_u32 s42, s42, 63''')
            dma((buf+3)%4, 's42')
            def rd(i, st):
                for mt in range(2):
                    A(f'ds_read_b128 {vr(VX+st*8+mt*4,4)}, v{VRD+(buf//2)*4+i%4} offset:{(i//4)*256+mt*16384+(buf%2)*32768}')
            rd(0, 0)
            for i in range(16):
                st = i % 2
                if i < 15:
                    rd(i+1, 1-st)
                    A('s_waitcnt lgkmcnt(2)')
                else:
                    A('s_waitcnt lgkmcnt(0)')
                for mt in range(2):
                    for T in range(2):
                        acc = vr(VACC+(mt*2+T)*4, 4)
                        c = '0' if i == 0 else acc
                        wf = ar((i*2+T)*4, 4); xf = vr(VX+st*8+mt*4, 4)
                        if isv: A(f'v_mfma_f32_16x16x32_bf16 {acc}, {xf}, {wf}, {c}')
                        else:   A(f'v_mfma_f32_16x16x32_bf16 {acc}, {wf}, {xf}, {c}')
            A('s_nop 7')
            if isv == 0:
                A('s_lshl_b32 s43, s34, 13')
                for mt in range(2):
                    for r in range(4):
                        A(f'v_cvt_pk_bf16_f32 v{VPK+mt*4+r}, v{VACC+(mt*2+r//2)*4+2*(r%2)}, v{VACC+(mt*2+r//2)*4+2*(r%2)+1}')
                    if mt: A('s_add_u32 s43, s43, 4096')
                    A(f'buffer_store_dwordx4 {vr(VPK+mt*4,4)}, v{VST}, s[4:7], s43 offen{ST}')
            else:
                A('s_lshl_b32 s43, s34, 18')
                for T in range(2):
                    for mt in range(2):
                        for rp in range(2):
                            A(f'v_cvt_pk_bf16_f32 v{VPK+T*4+mt*2+rp}, v{VACC+(mt*2+T)*4+2*rp}, v{VACC+(mt*2+T)*4+2*rp+1}')
                    A(f'buffer_store_dwordx4 {vr(VPK+T*4,4)}, v{VST}, s[4:7], s43 offen offset:{T*256}{ST}')
            A('s_add_u32 s34, s34, 2')
            if publish and buf < 2:
                Le = A.newlabel('qkv_eg')
                A(f'''s_cmp_lg_u32 s41, 0
s_cbranch_scc1 {Le}
s_waitcnt vmcnt(0)
s_barrier
s_cmp_lg_u32 s14, 0
s_cbranch_scc1 {Le}
v_mov_b32 v6, {buf+1}
s_mov_b64 exec, 1
buffer_store_byte v6, v7, s[4:7], 0 offen sc1
s_mov_b64 exec, -1''')
                A.label(Le)
        A(f'''s_add_u32 s41, s41, 1
s_cmp_lt_u32 s41, {nseg//4}
s_cbranch_scc1 {Lloop}''')
        if isv == 0:
            A(f's_branch {Ldone}')
    A.label(Ldone)
    A('''s_waitcnt vmcnt(0)
s_barrier''')
    if publish:
        Lnp = A.newlabel('qkv_np')
        A(f'''s_cmp_lg_u32 s14, 0
s_cbranch_scc1 {Lnp}
v_mov_b32 v6, 32
s_mov_b64 exec, 1
buffer_store_byte v6, v7, s[4:7], 0 offen sc1
s_mov_b64 exec, -1''')
        A.label(Lnp)
```

```python
import sys
sys.path.insert(0, 'gen')
from gen import build
import k_mega8, k_chain8, k_tail3
def mk(out):
    build([('mega_kernel', k_mega8.emit_mega, 256, 512, 163840, 256, 100, 128)], out)
if __name__ == '__main__':
    mk('k8.s')
    k_mega8.PROF = True; mk('k8p.s')
    k_mega8.PROF = False
    k_chain8.STAMPS = True; mk('k8s.s'); k_chain8.STAMPS = False
    k_mega8.CTIMING = True
    mk('k8t.s')
    import k_elect
    k_mega8.CTIMING = False
    k_mega8.TOUCH = False; mk('k8nt.s'); k_mega8.TOUCH = True
    k_elect.PREF = 8; mk('k8f8.s')
```

```python
from asmlib import *
import k_elect
L_WA = 0
L_WB = 65536
L_MA = 131072
L_QK = 139264
QS = 288
L_O  = L_QK
L_MISC = L_QK + 16*QS
L_VM = L_MISC + 1024
L_KX = 147456
L_FL = L_MISC + 64
WS_FLAG = 0x5800000
SPINBOUND = True
PDELAY = 4
PDELAY2 = 0
MDELAY = 3
MARK = None
TIMING = False
DIVERT = None
X_NOPUB = False
X_NOK = False
PIPE_P = False
VMAP = 0
VOFF1 = """s_lshr_b32 s18, s20, 1
s_lshl_b32 s18, s18, 7
s_and_b32 s19, s20, 1
s_lshl_b32 s19, s19, 2
s_add_u32 s18, s18, s19
v_lshl_add_u32 v10, v41, 3, v45"""
VOFF0 = """s_lshl_b32 s18, s20, 6
v_lshl_add_u32 v10, v41, 2, v45"""
VMW1 = """v_lshl_add_u32 v50, v41, 6, v50
s_lshr_b32 s18, s20, 1
s_lshl_b32 s18, s18, 10
s_and_b32 s19, s20, 1
s_lshl_b32 s19, s19, 5
s_add_u32 s18, s18, s19"""
VMW0 = """v_lshl_add_u32 v50, v41, 5, v50
s_lshl_b32 s18, s20, 9"""
BDELAY = False
B2POS = 2
PIPE_M = False
PGAP = 20
CP = [0,1,8,9,2,3,10,11]
def drow(kap, eta, j):
    return 256*eta + 32*(kap%4) + 4*(kap//4) + 8*(CP[j]>>2) + (CP[j]&3)

STAMPS = False
def stamp(A, i):
    if STAMPS:
        A(f"""s_memtime s[94:95]
s_waitcnt lgkmcnt(0)
s_sub_u32 s96, s94, s97
s_add_u32 s{70+i}, s{70+i}, s96
s_mov_b32 s97, s94""")
def stamp_init(A):
    if STAMPS:
        A('s_memtime s[94:95]\ns_waitcnt lgkmcnt(0)\ns_mov_b32 s97, s94')
        for i in range(10): A(f's_mov_b32 s{70+i}, 0')
def stamp_dump(A):
    if STAMPS:
        A(f"""s_lshl_b32 s18, s15, 3
s_add_u32 s18, s18, s14
s_lshl_b32 s18, s18, 6
s_add_u32 s18, s18, {hex(WS_KD)}
v_mov_b32 v17, 0
s_mov_b64 exec, 1""")
        for i in range(10):
            A(f"""v_mov_b32 v16, s{70+i}
buffer_store_dword v16, v17, s[4:7], s18 offen offset:{4*i}""")
def spin(A, Lexit):
    if SPINBOUND:
        A(f'''s_add_u32 s48, s48, 1
s_cmp_gt_u32 s48, 0x200000
s_cbranch_scc1 {Lexit}''')

def kv_ready(A, target, t0):
    Lc = A.newlabel('kv_chk'); Lo = A.newlabel('kv_ok')
    A.label(Lc)
    A(f"""s_cmp_gt_u32 s80, {target}
s_cbranch_scc1 {Lo}
v_mov_b32 v{t0}, s81
buffer_load_ushort v{t0+1}, v{t0}, s[4:7], 0 offen offset:2 sc1
buffer_load_ushort v{t0+2}, v{t0}, s[4:7], 0 offen offset:4 sc1
s_waitcnt vmcnt(0)
v_readfirstlane_b32 s82, v{t0+1}
v_readfirstlane_b32 s83, v{t0+2}
s_and_b32 s84, s82, 0xff
s_and_b32 s85, s83, 0xff
s_min_u32 s84, s84, s85
s_lshl_b32 s84, s84, 1
s_lshr_b32 s82, s82, 8
s_lshr_b32 s83, s83, 8
s_min_u32 s82, s82, s83
s_lshl_b32 s82, s82, 1
s_add_u32 s82, s82, 1
s_min_u32 s80, s84, s82
s_cmp_gt_u32 s80, {target}
s_cbranch_scc1 {Lo}
s_sleep 4
s_add_u32 s88, s88, 1
s_cmp_lt_u32 s88, 0x80000
s_cbranch_scc1 {Lc}""")
    A.label(Lo)

def confirm(A, t):
    Lok = A.newlabel('cf_ok')
    A(f"""s_cmp_eq_u32 s75, 0
s_cbranch_scc1 {Lok}""")
    k_elect.emit_resolve(A, t)
    A(f"""s_mov_b32 s75, 0
s_cmp_lt_u32 s15, 32
s_cbranch_scc1 {Lok}
s_waitcnt vmcnt(0) lgkmcnt(0)
v_mbcnt_lo_u32_b32 v0, -1, 0
v_mbcnt_hi_u32_b32 v0, -1, v0
s_lshl_b32 s24, s14, 6
v_add_u32 v0, s24, v0
s_branch {DIVERT}""")
    A.label(Lok)

def smf_s(acc, a, b, isagpr, idx):
    bs = ar(b,8) if isagpr else vr(b,8)
    return f'v_smfmac_f32_16x16x64_bf16 {vr(acc,4)}, {vr(a,4)}, {bs}, v{idx}'

def run_batches(A, batches, depth_of):
    n = len(batches); issued = [0]
    def issue_upto(k):
        while issued[0] <= k and issued[0] < n:
            batches[issued[0]][0](); issued[0] += 1
    issue_upto(depth_of(0)-1)
    for i in range(n):
        out_after = sum(batches[j][1] for j in range(i+1, issued[0]))
        A(f's_waitcnt vmcnt({out_after})')
        batches[i][2]()
        issue_upto(min(i+depth_of(i+1), n-1))

def emit_chain8(A):
    LB = A.newlabel('c8_B'); Lexit = A.newlabel('c8_exit')
    A(f'''v_and_b32 v40, 63, v0
v_and_b32 v41, 15, v40            ; c
v_lshrrev_b32 v42, 4, v40         ; g
v_and_b32 v43, 1, v42             ; b
v_lshrrev_b32 v44, 1, v42         ; g/2
s_mov_b32 s30, 0x05040100
s_mov_b32 s31, 0x07060302
s_and_b32 s13+0, s13, s13'''.replace('s_and_b32 s13+0, s13, s13','s_and_b32 s20, s14, 3') + f'''
s_mov_b32 s48, 0
s_mov_b32 s80, 0
s_mov_b32 s88, 0
s_lshl_b32 s81, s15, 7
s_add_u32 s81, s81, {hex(WS_QF)}
v_mov_b32 v46, 0x4444
v_mov_b32 v47, 0xeeee
v_and_b32 v45, 1, v41
v_cmp_eq_u32 vcc, 0, v45
s_nop 1
v_cndmask_b32 v2, v47, v46, vcc   ; IDX
v_lshlrev_b32 v1, 4, v40
v_add_u32 v1, {L_MA}, v1          ; V_LA = L_MA + lane*16
v_lshlrev_b32 v45, 20, v44
v_lshl_add_u32 v45, v43, 16, v45
s_lshl_b32 s19, s15, 8
v_add_u32 v45, s19, v45           ; weight row base + h*256
s_cmp_ge_u32 s14, 4
s_cbranch_scc1 {LB}''')
    emit_A(A, Lexit)
    A.label(LB)
    emit_B(A, Lexit)
    A.label(Lexit)
    stamp_dump(A)
    A('s_waitcnt vmcnt(0)')

def emit_A(A, Lexit):
    IDX = 2; LA = 1
    WB = 0; QKW = 3; QKR = 4; OW = 5; KXR = 6; VXA = 7; VMR = 8; PUBR = 9
    VX = 10
    AF = 18
    STG = 32
    ACC = 48
    T2W = 64
    Lq0 = A.newlabel('cA_q0')
    A(f'''s_cmp_lg_u32 s20, 0
s_cbranch_scc1 {Lq0}''')
    confirm(A, 50)
    A(f'''s_mov_b64 exec, 1
v_mov_b32 v50, 0
v_mov_b32 v51, 0
v_mov_b32 v52, 0
v_mov_b32 v53, 0
buffer_store_dwordx4 v[50:53], v50, s[4:7], s81 offen sc1
s_waitcnt vmcnt(0)
v_mov_b32 v51, 1
v_mov_b32 v50, 56
global_atomic_add v50, v51, s[12:13]
s_mov_b64 exec, -1''')
    A.label(Lq0)
    A('v_lshlrev_b32 v9, 4, v0')
    A(f'''s_lshl_b32 s18, s20, 14
v_lshlrev_b32 v{WB}, 4, v40
v_add_u32 v{WB}, s18, v{WB}
s_lshr_b32 s18, s20, 1
s_lshl_b32 s18, s18, 3
v_lshlrev_b32 v50, 1, v42
v_add_u32 v50, s18, v50
v_mul_u32_u24 v50, {QS}, v50
s_and_b32 s18, s20, 1
s_lshl_b32 s18, s18, 7
s_add_u32 s18, s18, {L_QK}
v_lshl_add_u32 v50, v41, 3, v50
v_add_u32 v{QKW}, s18, v50
v_lshrrev_b32 v50, 1, v41
v_mul_u32_u24 v50, {QS}, v50
v_lshl_add_u32 v50, v42, 4, v50
v_add_u32 v{QKR}, {L_QK}, v50
v_lshrrev_b32 v50, 1, v41
v_mul_u32_u24 v50, {QS}, v50
v_lshl_add_u32 v50, v42, 4, v50
s_lshl_b32 s18, s20, 6
s_add_u32 s18, s18, {L_O}
v_add_u32 v{OW}, s18, v50
v_and_b32 v50, 3, v41
v_lshrrev_b32 v51, 3, v41
v_lshl_add_u32 v50, v51, 2, v50
v_lshlrev_b32 v50, 1, v50
v_xor_b32 v50, v50, v42
v_lshlrev_b32 v50, 4, v50
v_lshl_add_u32 v50, v41, 8, v50
v_add_u32 v{KXR}, {L_KX}, v50
v_lshlrev_b32 v50, 7, v41
v_lshl_add_u32 v50, v42, 4, v50
s_lshl_b32 s18, s15, 13
s_lshl_b32 s19, s20, 11
s_add_u32 s18, s18, s19
s_add_u32 s18, s18, {hex(WS_VT)}
v_add_u32 v{VXA}, s18, v50''')
    A(f'''v_lshlrev_b32 v50, 2, v42
v_lshl_add_u32 v50, v41, 5, v50
s_lshl_b32 s18, s20, 9
s_add_u32 s18, s18, {L_VM}
v_add_u32 v{VMR}, s18, v50''')
    A(f'''s_lshr_b32 s18, s20, 1
s_lshl_b32 s18, s18, 3
s_add_u32 s18, s18, {KA_WQ}
s_load_dwordx2 s[24:25], s[0:1], s18
s_and_b32 s18, s20, 1
s_lshl_b32 s18, s18, 7
v_lshl_add_u32 v30, v41, 3, v45
v_add_u32 v30, s18, v30
s_waitcnt lgkmcnt(0)''')
    srd(A, 8, 24, 4*1024*1024)
    bufs = [32, 48, 12]
    batches = []
    for q in range(16):
        kap, eta = q//2, q%2
        buf = bufs[q%3]
        def iss(kap=kap, eta=eta, buf=buf):
            for j in range(8):
                A(f"""s_mov_b32 s18, {drow(kap,eta,j)*8192}
buffer_load_dwordx2 {vr(buf+j*2,2)}, v30, s[8:11], s18 offen""")
        def proc(kap=kap, eta=eta, buf=buf):
            for T in range(4):
                for p in range(4):
                    hi = buf+(2*p+1)*2+T//2; lo = buf+(2*p)*2+T//2
                    sel = "s31" if T%2 else "s30"
                    if T < 2:
                        A(f'v_perm_b32 v31, v{hi}, v{lo}, {sel}\nv_accvgpr_write_b32 a{(T*8+kap)*8+eta*4+p}, v31')
                    elif T == 2:
                        A(f'v_perm_b32 v{T2W+kap*8+eta*4+p}, v{hi}, v{lo}, {sel}')
                    else:
                        A(f'v_perm_b32 v{28+(p%2)}, v{hi}, v{lo}, {sel}')
                        if p % 2 == 1:
                            A(f'ds_write_b64 v{WB}, v[28:29] offset:{kap*2048+eta*1024+(p//2)*8}\ns_nop 0')
        batches.append((iss, 8, proc))
    run_batches(A, batches, lambda i: 3)
    if MARK: MARK(A, 5, 30)
    confirm(A, 32)
    A(f'''v_bfe_u32 v40, v{LA}, 4, 6
v_and_b32 v41, 15, v40
v_lshrrev_b32 v42, 4, v40''')
    A(f'''s_lshl_b32 s16, s15, 13
s_add_u32 s16, s16, {hex(WS_P)}
v_mov_b32 v50, 1
v_mov_b32 v51, 1
v_mov_b32 v52, 1
v_mov_b32 v53, 1''')
    for ring in range(2):
        for i in range(2):
            A(f'''s_add_u32 s17, s16, {ring*0x40000+i*4096}
buffer_store_dwordx4 v[50:53], v9, s[4:7], s17 offen''')
    A(f'''s_and_b32 s17, s15, 7
s_lshl_b32 s17, s17, 10
s_lshr_b32 s18, s15, 3
s_lshl_b32 s18, s18, 8
s_add_u32 s17, s17, s18
s_add_u32 s17, s17, {hex(WS_M)}
v_mov_b32 v54, -1
v_lshlrev_b32 v55, 2, v40''')
    for sl in range(3):
        A(f'''s_add_u32 s18, s17, {sl*8192}
buffer_store_dword v54, v55, s[4:7], s18 offen''')
    Lz = A.newlabel('cA_z')
    A(f'''v_mov_b32 v54, 0
v_add_u32 v56, {L_FL}, v55
v_cmp_gt_u32 vcc, 8, v40
s_and_saveexec_b64 s[22:23], vcc
ds_write_b32 v56, v54
s_mov_b64 exec, s[22:23]
s_cmp_lg_u32 s15, 0
s_cbranch_scc1 {Lz}
s_mov_b32 s18, {hex(WS_FLAG)}
buffer_store_dword v54, v55, s[4:7], s18 offen sc1''')
    A.label(Lz)
    A(f'''s_lshl_b32 s19, s15, 11
s_and_b32 s18, s20, 1
s_lshl_b32 s18, s18, 10
s_add_u32 s18, s18, s19
s_cmp_lt_u32 s20, 2
s_mov_b32 s19, {hex(WS_VMT-L_MA+62*65536)}
s_cselect_b32 s19, {hex(WS_KM-L_MA+62*65536)}, s19
s_add_u32 s18, s18, s19
s_add_u32 s19, s18, 0x10000
v_mov_b32 v50, -1
v_mov_b32 v51, -1
v_mov_b32 v52, -1
v_mov_b32 v53, -1
buffer_store_dwordx4 v[50:53], v{LA}, s[4:7], s18 offen sc1
buffer_store_dwordx4 v[50:53], v{LA}, s[4:7], s19 offen sc1''')
    A(f'''s_waitcnt vmcnt(0)
s_mov_b64 exec, 1
v_mov_b32 v50, 1
v_mov_b32 v51, 36
global_atomic_add v51, v50, s[12:13]
s_mov_b64 exec, -1''')
    A(f'''s_load_dwordx2 s[32:33], s[0:1], {KA_MEM0}
v_lshrrev_b32 v50, 1, v41
v_lshlrev_b32 v50, 10, v50
v_lshl_add_u32 v50, v42, 8, v50
v_and_b32 v51, 1, v41
v_lshl_add_u32 v50, v51, 5, v50
s_and_b32 s18, s20, 1
s_lshl_b32 s18, s18, 7
s_lshr_b32 s19, s20, 1
s_lshl_b32 s19, s19, 3
s_add_u32 s18, s18, s19
v_add_u32 v30, s18, v50
s_waitcnt lgkmcnt(0)''')
    srd(A, 8, 32, 8192)
    for kk in range(2):
        for pos in range(8):
            A(f'buffer_load_ushort v{32+kk*8+pos}, v30, s[8:11], 0 offen offset:{(32*kk+8*(pos>>2)+(pos&3))*2}')
    A(f'''s_waitcnt vmcnt(0)
s_lshl_b32 s18, s20, 11
v_add_u32 v31, s18, v{LA}''')
    for kk in range(2):
        for p in range(4):
            A(f'v_lshl_or_b32 v{48+p}, v{32+kk*8+2*p+1}, 16, v{32+kk*8+2*p}')
        A(f'ds_write_b128 v31, v[48:51] offset:{kk*1024}\ns_waitcnt lgkmcnt(0)')
    def load_v(sreg):
        for T in range(2):
            A(f'buffer_load_dwordx4 {vr(VX+T*4,4)}, v{VXA}, s[4:7], {sreg} offen offset:{T*64}')
    A(f'''s_mov_b32 s34, 0
s_mov_b32 s44, 0x3e02939f
s_mov_b32 s45, 0x3e02939f
s_mov_b32 s68, 0x3f803f80
s_mov_b32 s69, 0x3f803f80
s_cmp_eq_u32 s20, 1
s_cselect_b32 s87, 1, 0x7fff
s_lshl_b32 s50, s20, 2
s_add_u32 s50, s50, {L_FL}
s_waitcnt vmcnt(0) lgkmcnt(0)
s_barrier
s_barrier
s_setprio 3''')
    def rdT(kap, st): return [f'ds_read_b128 {vr(STG+st*8+eta*4,4)}, v{WB} offset:{kap*2048+eta*1024}' for eta in range(2)]
    def rdA(kap): return [f'ds_read_b128 {vr(AF+(kap%3)*4,4)}, v{LA} offset:{kap*1024}']
    def p1(kap):
        a = AF+(kap%3)*4
        return [smf_s(ACC, a, kap*8, True, IDX), smf_s(ACC+4, a, 64+kap*8, True, IDX),
                smf_s(ACC+8, a, T2W+kap*8, False, IDX), smf_s(ACC+12, a, STG+(kap%2)*8, False, IDX)]
    def emit(l):
        for x in l: A(x)
    def pre():
        emit(rdT(0,0)+rdT(1,1))
        for i in range(8): A(f'v_mov_b64 {vr(ACC+2*i,2)}, 0')
    pre()
    if MARK: MARK(A, 6, 30)
    stamp_init(A)
    Lloop = A.newlabel('cA_loop'); Lfin = A.newlabel('cA_fin')
    A.raw('.p2align 6')
    A.label(Lloop)
    A('s_waitcnt lgkmcnt(0)\ns_barrier')
    stamp(A, 0)
    def rdK(ks):
        b = STG+(ks%2)*8
        if ks == 0: return [f'ds_read_b128 {vr(b,4)}, v{KXR}', f'ds_read_b128 {vr(b+4,4)}, v{KXR} offset:4096']
        return [f'v_xor_b32 v{b+4}, {ks*64}, v{KXR}', f'ds_read_b128 {vr(b,4)}, v{b+4}', f'ds_read_b128 {vr(b+4,4)}, v{b+4} offset:4096']
    q = []
    def iss(tag, l):
        for x in l:
            A(x)
            if x.startswith('ds_'): q.append(tag)
    def need(tag):
        if tag not in q: return
        last = max(i for i,t in enumerate(q) if t == tag)
        n = len(q)-1-last
        A(f's_waitcnt lgkmcnt({n})')
        del q[:last+1]
    iss('A0', rdA(0)); iss('A1', rdA(1)); iss('A2', rdA(2))
    A(f's_add_u32 s35, s34, 1\ns_lshl_b32 s43, s34, 18')
    pend = []
    def gapfill():
        if pend:
            t, x = pend.pop(0); iss(t, [x])
    for kap in range(8):
        if kap == B2POS:
            while pend: gapfill()
            stamp(A, 1)
            A('s_barrier')
            stamp(A, 2)
            if STAMPS: q.clear()
            iss('A4', rdA(4))
            if B2POS == 3: iss('A5', rdA(5))
            if not X_NOK: load_v('s43')
        m = p1(kap)
        need(f'A{kap}')
        A(m[0]); gapfill(); A(m[1]); gapfill(); A(m[2]); gapfill()
        need(f'T{kap}')
        A(m[3])
        if kap+2 < 8: pend += [(f'T{kap+2}', x) for x in rdT(kap+2, kap%2)]
        if kap == 0: pend += [('A3', x) for x in rdA(3)]
        if B2POS <= kap <= 4: pend += [(f'A{kap+3}', x) for x in rdA(kap+3)]
        if kap == 6: pend += [('K0', x) for x in rdK(0)]
        gapfill()
    while pend: gapfill()
    A(f'v_mov_b32 v30, s35\nv_mov_b32 v31, s50\ns_nop 1')
    for T in range(4):
        a = ACC+T*4
        A(f'v_add_f32 v{a}, v{a}, v{a+1}\nv_add_f32 v{a+2}, v{a+2}, v{a+3}')
    A(f"""v_cvt_pk_bf16_f32 v{ACC+0}, v{ACC+0}, v{ACC+4}
v_cvt_pk_bf16_f32 v{ACC+1}, v{ACC+8}, v{ACC+12}
v_cvt_pk_bf16_f32 v{ACC+2}, v{ACC+2}, v{ACC+6}
v_cvt_pk_bf16_f32 v{ACC+3}, v{ACC+10}, v{ACC+14}
ds_write_b64 v{QKW}, {vr(ACC+0,2)}
ds_write_b64 v{QKW}, {vr(ACC+2,2)} offset:{QS}
ds_write_b32 v31, v30
v_xor_b32 v{STG+12}, 64, v{KXR}
ds_read_b128 {vr(STG+8,4)}, v{STG+12}
ds_read_b128 {vr(STG+12,4)}, v{STG+12} offset:4096
v_mov_b32 v31, {L_FL}
s_cmp_eq_u32 s34, 63
s_cbranch_scc1 {Lfin}""")
    stamp(A, 3)
    Lf = A.newlabel('cA_fl')
    A.label(Lf)
    A(f"""ds_read_b128 {vr(AF,4)}, v31
ds_read_b128 {vr(ACC,4)}, v{QKR}
ds_read_b128 {vr(ACC+4,4)}, v{QKR} offset:{8*QS}
ds_read_b128 {vr(ACC+8,4)}, v{QKR} offset:64
ds_read_b128 {vr(ACC+12,4)}, v{QKR} offset:{8*QS+64}
s_waitcnt lgkmcnt(4)
v_min3_u32 v{AF}, v{AF}, v{AF+1}, v{AF+2}
v_min_u32 v{AF}, v{AF}, v{AF+3}
v_cmp_gt_u32 vcc, s35, v{AF}
s_cbranch_vccnz {Lf}""")
    stamp(A, 4)
    S = AF; M = 30; T1 = 31
    def rdQK(ks):
        b = ACC+(ks%2)*8
        return [f'ds_read_b128 {vr(b,4)}, v{QKR} offset:{ks*64}', f'ds_read_b128 {vr(b+4,4)}, v{QKR} offset:{8*QS+ks*64}']
    def smm(ks):
        b = ACC+(ks%2)*8; k = STG+(ks%2)*8
        r = []
        for t in range(3):
            a = vr(b+4,4) if t == 0 else vr(k+(t-1)*4,4)
            r.append(f'v_mfma_f32_16x16x32_bf16 {vr(S+t*4,4)}, {a}, {vr(b,4)}, {"0" if ks==0 else vr(S+t*4,4)}')
        return r
    A('s_waitcnt lgkmcnt(2)')
    emit(smm(0)); emit(rdQK(2)+rdK(2))
    A('s_waitcnt lgkmcnt(4)')
    emit(smm(1)); emit(rdQK(3)+rdK(3))
    A('s_waitcnt lgkmcnt(4)')
    emit(smm(2))
    A('s_waitcnt lgkmcnt(0)')
    emit(smm(3))
    PX = ACC; PM = ACC+4; VM = ACC+6; ONE = ACC+12; O = STG; LL = STG+8; LR = STG+12
    A(f"""s_nop 2
v_mov_b32 v{VM+1}, 0
v_mov_b32 v{VM+3}, 0
v_mov_b32 v{PM+1}, 0
v_mov_b64 {vr(ONE,2)}, s[68:69]
v_mov_b64 {vr(ONE+2,2)}, s[68:69]
v_max3_f32 v{M}, v{S}, v{S+2}, v{S+4}
v_max3_f32 v{T1}, v{S+5}, v{S+6}, v{S+7}
v_max3_f32 v{M}, v{M}, v{S+8}, v{S+9}
v_max3_f32 v{T1}, v{T1}, v{S+10}, v{S+11}
v_max_f32 v{M}, v{M}, v{T1}
v_mov_b32 v{T1}, v{M}
s_nop 1
v_permlane32_swap_b32 v{T1}, v{M}
v_max_f32 v{M}, v{M}, v{T1}
v_mov_b32 v{T1}, v{M}
s_nop 1
v_permlane16_swap_b32 v{T1}, v{M}
v_max_f32 v{M}, v{M}, v{T1}
v_mul_f32 v{M}, s44, v{M}""")
    for i in [2,3,4,5]:
        A(f'v_pk_fma_f32 {vr(S+2*i,2)}, {vr(S+2*i,2)}, s[44:45], {vr(M,2)} op_sel_hi:[1,1,0] neg_lo:[0,0,1] neg_hi:[0,0,1]')
    A(f'v_fma_f32 v{S}, v{S}, s44, -v{M}\nv_fma_f32 v{S+2}, v{S+2}, s44, -v{M}')
    for i in [4,5,6,7,8,9,10,11,0,2]:
        A(f'v_exp_f32 v{S+i}, v{S+i}')
    stamp(A, 5)
    A('s_barrier')
    stamp(A, 6)
    A(f"""ds_read_b32 v{VM}, v{VMR}
ds_read_b32 v{VM+2}, v{VMR} offset:16
v_cvt_pk_bf16_f32 v{PX}, v{S+4}, v{S+5}
v_cvt_pk_bf16_f32 v{PX+1}, v{S+6}, v{S+7}
v_cvt_pk_bf16_f32 v{PX+2}, v{S+8}, v{S+9}
v_cvt_pk_bf16_f32 v{PX+3}, v{S+10}, v{S+11}
v_cvt_pk_bf16_f32 v{PM}, v{S}, v{S+2}
s_waitcnt vmcnt(0)
v_mfma_f32_16x16x32_bf16 {vr(LL,4)}, {vr(ONE,4)}, {vr(PX,4)}, 0
v_mfma_f32_16x16x32_bf16 {vr(O,4)}, {vr(VX,4)}, {vr(PX,4)}, 0
v_mfma_f32_16x16x32_bf16 {vr(O+4,4)}, {vr(VX+4,4)}, {vr(PX,4)}, 0
v_mfma_f32_16x16x16_bf16 {vr(LL,4)}, {vr(ONE,2)}, {vr(PM,2)}, {vr(LL,4)}
s_waitcnt lgkmcnt(0)
v_mfma_f32_16x16x16_bf16 {vr(O,4)}, {vr(VM,2)}, {vr(PM,2)}, {vr(O,4)}
v_mfma_f32_16x16x16_bf16 {vr(O+4,4)}, {vr(VM+2,2)}, {vr(PM,2)}, {vr(O+4,4)}
s_nop 5
v_rcp_f32 v{LR}, v{LL}
s_nop 0""")
    for i in range(4):
        A(f'v_pk_mul_f32 {vr(O+2*i,2)}, {vr(O+2*i,2)}, {vr(LR,2)} op_sel_hi:[1,0]')
    for r in range(4):
        A(f'v_cvt_pk_bf16_f32 v{S+r}, v{O+r}, v{O+4+r}')
    A(f"""ds_write_b128 v{OW}, {vr(S,4)}
s_waitcnt lgkmcnt(0)""")
    stamp(A, 7)
    A('s_barrier')
    stamp(A, 8)
    A(f's_mov_b32 s34, s35\nv_xor_b32 v{KXR}, 0x2000, v{KXR}')
    pre()
    stamp(A, 9)
    A(f's_branch {Lloop}')
    A.label(Lfin)
    A(f"""s_waitcnt lgkmcnt(0)
s_barrier
s_branch {Lexit}""")

def emit_B(A, Lexit):
    IDX = 2; LA = 1
    WB = 0; PST = 3; PLD = 4; MST = 5; T16 = 6; OR = 7; KXA = 8; VMW = 9
    MBR = 12
    VACC = 16
    OA = 24
    D = 32
    AF = 32; STG = 48
    V0W = 64
    A(f'''v_subrev_u32 v46, 256, v0
v_lshlrev_b32 v{T16}, 4, v46''')
    A(f'''s_lshl_b32 s16, s15, 13
s_add_u32 s16, s16, {hex(WS_P)}
s_and_b32 s17, s15, 7
s_lshl_b32 s17, s17, 10
s_lshr_b32 s18, s15, 3
s_lshl_b32 s18, s18, 8
s_add_u32 s17, s17, s18
s_add_u32 s17, s17, {hex(WS_M)}''')
    A(f'''s_lshl_b32 s18, s20, 14
s_add_u32 s18, s18, {L_WB}
v_lshlrev_b32 v{WB}, 4, v40
v_add_u32 v{WB}, s18, v{WB}
s_lshl_b32 s18, s20, 16
s_lshl_b32 s19, s15, 6
s_add_u32 s18, s18, s19
s_add_u32 s18, s18, {hex(WS_P)}
v_and_b32 v50, 3, v41
v_lshlrev_b32 v50, 4, v50
v_lshl_add_u32 v50, v42, 11, v50
v_lshrrev_b32 v51, 2, v41
v_lshl_add_u32 v50, v51, 13, v50
v_add_u32 v{PST}, s18, v50
s_lshl_b32 s18, s20, 11
v_lshlrev_b32 v50, 4, v40
v_add_u32 v{PLD}, s18, v50
s_mov_b32 s59, s16
s_lshl_b32 s18, s20, 1
v_add_u32 v50, s18, v42
v_bfe_u32 v51, v41, 1, 1
v_lshl_add_u32 v50, v50, 1, v51
v_lshlrev_b32 v50, 4, v50
v_and_b32 v51, 1, v41
v_lshl_add_u32 v50, v51, 3, v50
v_add_u32 v{MST}, s17, v50
v_lshrrev_b32 v50, 1, v41
v_mul_u32_u24 v50, {QS}, v50
v_lshl_add_u32 v50, v42, 5, v50
v_and_b32 v51, 1, v41
v_lshl_add_u32 v50, v51, 4, v50
v_add_u32 v{OR}, {L_O}, v50
v_lshlrev_b32 v50, 1, v42
v_xor_b32 v50, v50, v41
v_lshlrev_b32 v50, 4, v50
v_lshl_add_u32 v50, v42, 8, v50
s_lshl_b32 s18, s15, 19
s_and_b32 s19, s20, 1
s_lshl_b32 s19, s19, 12
s_add_u32 s18, s18, s19
s_add_u32 s18, s18, {hex(WS_K)}
v_add_u32 v{KXA}, s18, v50
v_lshlrev_b32 v50, 2, v42
{VMW1 if VMAP else VMW0}
s_add_u32 s18, s18, {L_VM}
v_add_u32 v{VMW}, s18, v50
s_load_dwordx2 s[26:27], s[0:1], {KA_WV}
s_load_dwordx2 s[28:29], s[0:1], {KA_WO}
s_load_dwordx2 s[32:33], s[0:1], {KA_MEM0}
{VOFF1 if VMAP else VOFF0}
v_add_u32 v10, s18, v10            ; v voffset
v_lshlrev_b32 v50, 14, v44
v_lshl_add_u32 v50, v43, 12, v50
v_lshl_add_u32 v50, v41, 4, v50
s_lshl_b32 s18, s15, 17
s_lshl_b32 s19, s20, 8
s_add_u32 s18, s18, s19
v_add_u32 v11, s18, v50
v_lshrrev_b32 v50, 1, v41
v_lshlrev_b32 v50, 10, v50
v_lshl_add_u32 v50, v42, 8, v50
v_and_b32 v51, 1, v41
v_lshl_add_u32 v50, v51, 5, v50
s_and_b32 s18, s20, 1
s_lshl_b32 s18, s18, 7
s_lshr_b32 s19, s20, 1
s_lshl_b32 s19, s19, 3
s_add_u32 s18, s18, s19
v_add_u32 v12, s18, v50
s_waitcnt lgkmcnt(0)''')
    srd(A, 60, 26, 4*1024*1024)
    srd(A, 64, 28, 4*1024*1024)
    srd(A, 8, 32, 8192)
    batches = []
    for q in range(4):
        kp, eta = q//2, q%2
        buf = V0W + (q%2)*32
        def iss(kp=kp, eta=eta, buf=buf):
            for j in range(8):
                A(f"""s_mov_b32 s18, {(64*kp+32*eta+CP[j])*1024}
buffer_load_dwordx4 {vr(buf+j*4,4)}, v11, s[64:67], s18 offen""")
        def proc(kp=kp, eta=eta, buf=buf):
            for t in range(8):
                for p in range(4):
                    A(f'v_perm_b32 v12, v{buf+(2*p+1)*4+t//2}, v{buf+(2*p)*4+t//2}, {"s31" if t%2 else "s30"}\nv_accvgpr_write_b32 a{(t*2+kp)*8+eta*4+p}, v12')
        batches.append((iss, 8, proc))
    for kap in range(8):
        buf = 16 + (kap%3)*16
        def iss(kap=kap, buf=buf):
            for eta in range(2):
                for j in range(8):
                    A(f"""s_mov_b32 s18, {drow(kap,eta,j)*8192}
buffer_load_dword v{buf+eta*8+j}, v10, s[60:63], s18 offen""")
        def proc(kap=kap, buf=buf):
            for eta in range(2):
                for p in range(4):
                    A(f'v_perm_b32 v{V0W+kap*8+eta*4+p}, v{buf+eta*8+2*p+1}, v{buf+eta*8+2*p}, s30')
                for p in range(4):
                    A(f'v_perm_b32 v{12+p}, v{buf+eta*8+2*p+1}, v{buf+eta*8+2*p}, s31')
                A(f'ds_write_b128 v{WB}, v[12:15] offset:{kap*2048+eta*1024}\ns_nop 1')
        batches.append((iss, 16, proc))
    n = len(batches)
    order = []
    issued = set()
    def issue(i):
        if i < n and i not in issued:
            batches[i][0](); issued.add(i); order.append(i)
    issue(0); issue(1); issue(4); issue(5)
    for i in range(n):
        pos = order.index(i)
        out_after = sum(batches[j][1] for j in order[pos+1:])
        A(f's_waitcnt vmcnt({out_after})')
        batches[i][2]()
        if i < 2: issue(i+2)
        elif i == 2: issue(6)
        elif i >= 4: issue(i+3)
    if MARK: MARK(A, 2, 20, 4)
    confirm(A, 16)
    A(f"""s_and_b32 s53, s20, 1
s_lshl_b32 s53, s53, 12
s_add_u32 s53, s53, {L_KX}""")
    def dma_k(sreg, tmp):
        A(f"""s_mov_b32 m0, s53
v_xor_b32 v{tmp}, 128, v{KXA}
buffer_load_dwordx4 v{KXA}, s[4:7], {sreg} offen lds
buffer_load_dwordx4 v{KXA}, s[4:7], {sreg} offen offset:1024 lds
buffer_load_dwordx4 v{tmp}, s[4:7], {sreg} offen offset:2048 lds
buffer_load_dwordx4 v{tmp}, s[4:7], {sreg} offen offset:3072 lds""")
    A(f"""v_add_u32 v{T16}, {L_MA}, v{T16}
v_bfe_u32 v16, v{LA}, 4, 4
v_bfe_u32 v17, v{LA}, 8, 2
s_lshl_b32 s18, s20, 2
s_add_u32 s18, s18, 8
v_add_u32 v18, s18, v17
v_mul_u32_u24 v18, {QS}, v18
v_lshl_add_u32 v18, v16, 4, v18
v_add_u32 v18, {L_QK}, v18
s_lshl_b32 s18, s20, 10
s_add_u32 s18, s18, {L_VM-2048-L_MA}
v_add_u32 v19, s18, v{LA}
s_cmp_lt_u32 s20, 2
s_cselect_b64 vcc, -1, 0
v_cndmask_b32 v11, v19, v18, vcc
s_lshl_b32 s19, s15, 11
s_and_b32 s18, s20, 1
s_lshl_b32 s18, s18, 10
s_add_u32 s18, s18, s19
s_cmp_lt_u32 s20, 2
s_mov_b32 s57, {hex(WS_VMT-L_MA)}
s_cselect_b32 s57, {hex(WS_KM-L_MA)}, s57
s_add_u32 s57, s57, s18
s_cmp_eq_u32 s20, 1
s_cselect_b32 s87, 2, 0x7fff
s_waitcnt vmcnt(0) lgkmcnt(0)
s_barrier""")
    kv_ready(A, 0, 16)
    if MARK: MARK(A, 3, 20, 4)
    Ld0 = A.newlabel('cB_d0')
    A(f"""s_mov_b32 s18, 0
s_cmp_lt_u32 s20, 2
s_cbranch_scc1 {Ld0}""")
    dma_k('s18', 16)
    A.label(Ld0)
    A('s_waitcnt vmcnt(0)')
    Lcw = A.newlabel('cb_wait'); Lcs = A.newlabel('cb_spin')
    A(f"""s_cmp_lg_u32 s20, 0
s_cbranch_scc1 {Lcw}
s_mov_b64 exec, 1
v_mov_b32 v17, 36""")
    A.label(Lcs)
    A(f"""global_load_dword v16, v17, s[12:13] sc1
s_waitcnt vmcnt(0)
v_readfirstlane_b32 s18, v16
s_cmp_lt_u32 s18, 128
s_cbranch_scc1 {Lcs}
s_mov_b64 exec, -1""")
    A.label(Lcw)
    A(f"""s_barrier
s_mov_b32 s34, 0
s_mov_b32 s35, 8192
s_mov_b32 s36, 0
s_lshl_b32 s50, s15, 13
s_add_u32 s50, s50, {hex(WS_VT - L_MA*4)}
s_and_b32 s51, s20, 1
s_lshl_b32 s51, s51, 12
s_add_u32 s50, s50, s51
s_mov_b32 s46, 0x000f000f
s_mov_b32 s47, 0
s_mov_b32 s89, 0x3f80
s_lshl_b32 s60, s20, 2
s_add_u32 s60, s60, {L_FL}""")
    if TIMING: A('s_memtime s[62:63]\ns_waitcnt lgkmcnt(0)')
    def emit(l):
        for x in l: A(x)
    TS = [STG, STG+8, OA]
    def rdT(kap): return [f'ds_read_b128 {vr(TS[kap%3]+eta*4,4)}, v{WB} offset:{kap*2048+eta*1024}' for eta in range(2)]
    def rdA(kap): return [f'ds_read_b128 {vr(AF+(kap%4)*4,4)}, v{LA} offset:{kap*1024}']
    def p2(kap):
        a = AF+(kap%4)*4
        return [smf_s(VACC, a, V0W+kap*8, False, IDX), smf_s(VACC+4, a, TS[kap%3], False, IDX)]
    stamp_init(A)
    Lloop = A.newlabel('cB_loop'); Lfin = A.newlabel('cB_fin')
    A('s_waitcnt lgkmcnt(0)')
    A.raw('.p2align 6')
    A.label(Lloop)
    A('s_barrier')
    stamp(A, 0)
    Lnob = A.newlabel('cB_nob'); Lpb = A.newlabel('cB_pb'); Lok = A.newlabel('cB_okb')
    A(f"""s_cmp_eq_u32 s34, 0
s_cbranch_scc1 {Lnob}
ds_read_b128 {vr(OA,4)}, v11""")
    A.label(Lpb)
    A(f"""s_waitcnt vmcnt(0)
v_max3_u32 v{VACC}, v{MBR}, v{MBR+1}, v{MBR+2}
v_max_u32 v{VACC}, v{VACC}, v{MBR+3}
v_cmp_eq_u32 vcc, -1, v{VACC}
s_cbranch_vccz {Lok}""")
    spin(A, Lexit)
    A(f"""buffer_load_dwordx4 {vr(MBR,4)}, v{T16}, s[4:7], s40 offen sc1
s_branch {Lpb}""")
    A.label(Lok)
    A(f"""ds_write_b128 v{T16}, {vr(MBR,4)} offset:4096
s_waitcnt lgkmcnt(0)""")
    A.label(Lnob)
    stamp(A, 1)
    A('s_barrier')
    stamp(A, 2)
    Lnk = A.newlabel('cB_nk'); Lnw = A.newlabel('cB_nw')
    A('s_add_u32 s41, s34, 1')
    emit(rdA(0)+rdA(1)+rdA(2)+rdA(3)+rdT(0)+rdT(1))
    A(f"""s_and_b32 s37, s34, 1
s_lshl_b32 s37, s37, 18
s_bfe_u32 s38, s34, 0x10001
s_add_u32 s52, s37, s59
s_add_u32 s51, s52, 1024
s_xor_b32 s53, s53, 0x2000""")
    Lnp = A.newlabel('cB_np'); Lpa = A.newlabel('cB_pa')
    A(f"""s_cmp_eq_u32 s34, 0
s_cbranch_scc1 {Lnp}
s_lshl_b32 s58, s34, 16
s_add_u32 s58, s58, s57
s_sub_u32 s58, s58, 0x10000
v_min_u32 v{OA}, -2, v{OA}
v_min_u32 v{OA+2}, -2, v{OA+2}
{'s_nop 0' if X_NOPUB else f'buffer_store_dwordx4 {vr(OA,4)}, v{LA}, s[4:7], s58 offen sc1'}""")
    A.label(Lnp)
    A(f"""s_cmp_lt_u32 s34, s87
s_cbranch_scc1 {Lpa}
s_mov_b64 exec, 1
s_sub_u32 s58, s34, 1
v_mov_b32 v{MBR+2}, s58
v_mov_b32 v{MBR+3}, 8
buffer_store_byte v{MBR+2}, v{MBR+3}, s[4:7], s81 offen sc1
s_mov_b64 exec, -1""")
    A.label(Lpa)
    Lnw2 = A.newlabel('cB_nw2')
    A(f"""s_cmp_ge_u32 s34, {0 if X_NOK else 63}
s_cbranch_scc1 {Lnw2}""")
    kv_ready(A, 's41', MBR+1)
    Lk2 = A.newlabel('cB_k2')
    A(f"""s_cmp_lt_u32 s20, 2
s_cbranch_scc0 {Lk2}
v_lshlrev_b32 v{MBR}, 2, v{LA}
s_lshl_b32 s54, s41, 18
s_add_u32 s54, s54, s50
s_mov_b32 m0, {L_MISC+256}
s_nop 0
buffer_load_dword v{MBR}, s[4:7], s54 offen lds
s_branch {Lnw2}""")
    A.label(Lk2)
    A('s_lshl_b32 s42, s41, 13')
    dma_k('s42', MBR)
    A.label(Lnw2)
    for i in range(4): A(f'v_mov_b64 {vr(VACC+2*i,2)}, 0')
    emit(rdT(2))
    if BDELAY:
        Lvf = A.newlabel('cB_vf')
        A(f'v_mov_b32 v{MBR}, s60')
        A.label(Lvf)
        A(f"""ds_read_b32 v{MBR+1}, v{MBR}
s_waitcnt lgkmcnt(0)
v_cmp_gt_u32 vcc, s41, v{MBR+1}
s_cbranch_vccnz {Lvf}""")
    else:
        A('s_waitcnt lgkmcnt(0)')
    stamp(A, 3)
    q = []
    def iss(tag, l):
        for x in l:
            A(x); q.append(tag)
    def need(tag):
        if tag not in q: return
        last = max(i for i,t in enumerate(q) if t == tag)
        A(f's_waitcnt lgkmcnt({len(q)-1-last})')
        del q[:last+1]
    for kap in range(8):
        m = p2(kap)
        need(f'A{kap}'); A(m[0])
        need(f'T{kap}'); A(m[1])
        if kap+3 < 8: iss(f'T{kap+3}', rdT(kap+3))
        if kap+4 < 8: iss(f'A{kap+4}', rdA(kap+4))
    A('s_nop 7')
    for T in range(2):
        a = VACC+T*4
        A(f"""v_add_f32 v{a}, v{a}, v{a+1}
v_add_f32 v{a+2}, v{a+2}, v{a+3}
v_cvt_pk_bf16_f32 v{a}, v{a}, v{a+2}
ds_write_b32 v{VMW}, v{a} offset:{16*T}""")
    A(f"""v_mov_b64 {vr(OA,2)}, 0
v_mov_b64 {vr(OA+2,2)}, 0
s_waitcnt lgkmcnt(0)""")
    stamp(A, 4)
    A(f"""s_barrier
s_cmp_eq_u32 s34, 63
s_cbranch_scc1 {Lfin}
v_mfma_f32_32x32x16_bf16 {vr(D,16)}, {vr(OA,4)}, {vr(OA,4)}, 0
v_mfma_f32_32x32x16_bf16 {vr(D+16,16)}, {vr(OA,4)}, {vr(OA,4)}, 0""")
    X = VACC
    A(f"""v_bfe_u32 v{MBR}, v{LA}, 5, 3
v_and_b32 v{MBR+1}, 16, v{LA}
v_lshlrev_b32_e64 v{MBR+1}, v{MBR+1}, s89""")
    for p in range(4):
        A(f"""v_cmp_eq_u32 vcc, {p}, v{MBR}
s_nop 1
v_cndmask_b32 v{X+p}, 0, v{MBR+1}, vcc""")
    A(f"""v_mov_b32 v{MBR+2}, -1
v_mov_b32 v{MBR+3}, -1
s_mov_b32 s41, s37
s_add_u32 s40, s35, {hex(WS_M - L_MA)}
s_setprio 3
s_barrier""")
    stamp(A, 5)
    A(f"""ds_read_b128 {vr(OA,4)}, v{OR}
ds_read_b128 {vr(OA+4,4)}, v{OR} offset:128
s_waitcnt lgkmcnt(0)""")
    def dpost_l(tq):
        a = D+tq*16
        r = []
        for t in range(4):
            r += [f'v_add_f32 v{a+4*t}, v{a+4*t}, v{a+4*t+1}', f'v_add_f32 v{a+4*t+2}, v{a+4*t+2}, v{a+4*t+3}']
        r += [f'v_cvt_pk_bf16_f32 v{a}, v{a}, v{a+4}', f'v_cvt_pk_bf16_f32 v{a+1}, v{a+8}, v{a+12}',
              f'v_cvt_pk_bf16_f32 v{a+2}, v{a+2}, v{a+6}', f'v_cvt_pk_bf16_f32 v{a+3}, v{a+10}, v{a+14}',
              f'v_and_or_b32 v{a}, v{a}, -2, s38',
              f'buffer_store_dwordx4 {vr(a,4)}, v{PST}, s[4:7], s41 offen']
        return r
    def pd(t):
        return [smf_s(D+t*4, OA, (t*2+0)*8, True, IDX), smf_s(D+t*4, OA+4, (t*2+1)*8, True, IDX)]
    def weave(mf, fill):
        fill = list(fill)
        for m in mf:
            A(m)
            if fill: A(fill.pop(0))
        for f in fill: A(f)
    weave(pd(0)+pd(1)+pd(2)+pd(3), [])
    p0 = dpost_l(0)
    weave(pd(4), p0[:2])
    emit(p0[2:])
    weave(pd(5)+pd(6)+pd(7), ['s_add_u32 s41, s41, 32768'])
    A('s_nop 1')
    emit(dpost_l(1))
    stamp(A, 6)
    PP = OA
    LpP = A.newlabel('cB_pollP'); LokP = A.newlabel('cB_okP')
    def ldP():
        A(f"""buffer_load_dwordx4 {vr(PP,4)}, v{PLD}, s[4:7], s52 offen sc1
buffer_load_dwordx4 {vr(PP+4,4)}, v{PLD}, s[4:7], s51 offen sc1""")
    if PDELAY: A(f's_sleep {PDELAY}')
    if PDELAY2:
        Lp2 = A.newlabel('cB_pd2')
        A(f's_bitcmp0_b32 s15, 2\ns_cbranch_scc1 {Lp2}\ns_sleep {PDELAY2}')
        A.label(Lp2)
    def gap(n):
        while n > 0:
            k = min(n, 16); A(f's_nop {k-1}'); n -= k
    if not PIPE_P:
        ldP()
        A.label(LpP)
        A(f"""s_waitcnt vmcnt(0)
v_xor_b32 v{MBR}, s38, v{PP}
v_xor_b32 v{MBR+1}, s38, v{PP+4}
v_or_b32 v{MBR}, v{MBR}, v{MBR+1}
v_and_b32 v{MBR}, 1, v{MBR}
v_cmp_ne_u32 vcc, 0, v{MBR}
s_cbranch_vccz {LokP}""")
        spin(A, Lexit)
        ldP()
        A(f's_branch {LpP}')
        A.label(LokP)
        stamp(A, 7)
        A(f"""v_mfma_f32_16x16x32_bf16 {vr(X+4,4)}, {vr(X,4)}, {vr(PP,4)}, 0
v_mfma_f32_16x16x32_bf16 {vr(X+4,4)}, {vr(X,4)}, {vr(PP+4,4)}, {vr(X+4,4)}""")
    else:
        PQ = D+24
        def ldP2(r):
            A(f"""buffer_load_dwordx4 {vr(r,4)}, v{PLD}, s[4:7], s52 offen sc1
buffer_load_dwordx4 {vr(r+4,4)}, v{PLD}, s[4:7], s51 offen sc1""")
        def chkP(r, Lok):
            A(f"""v_xor_b32 v{MBR}, s38, v{r}
v_xor_b32 v{MBR+1}, s38, v{r+4}
v_or_b32 v{MBR}, v{MBR}, v{MBR+1}
v_and_b32 v{MBR}, 1, v{MBR}
v_cmp_ne_u32 vcc, 0, v{MBR}
s_cbranch_vccz {Lok}""")
        LokP1 = A.newlabel('cB_okP1'); LokP2 = A.newlabel('cB_okP2')
        ldP2(PP); gap(PGAP); ldP2(PQ)
        A.label(LpP)
        A('s_waitcnt vmcnt(2)')
        chkP(PP, LokP)
        ldP2(PP)
        A('s_waitcnt vmcnt(2)')
        chkP(PQ, LokP1)
        ldP2(PQ)
        spin(A, Lexit)
        A(f's_branch {LpP}')
        A.label(LokP1)
        A(f"""v_mfma_f32_16x16x32_bf16 {vr(X+4,4)}, {vr(X,4)}, {vr(PQ,4)}, 0
v_mfma_f32_16x16x32_bf16 {vr(X+4,4)}, {vr(X,4)}, {vr(PQ+4,4)}, {vr(X+4,4)}
s_branch {LokP2}""")
        A.label(LokP)
        A(f"""v_mfma_f32_16x16x32_bf16 {vr(X+4,4)}, {vr(X,4)}, {vr(PP,4)}, 0
v_mfma_f32_16x16x32_bf16 {vr(X+4,4)}, {vr(X,4)}, {vr(PP+4,4)}, {vr(X+4,4)}""")
        A.label(LokP2)
    A(f"""s_mov_b32 s56, s36
s_mov_b32 s36, s35
s_add_u32 s34, s34, 1
s_nop 4""")
    for sh in (4, 8):
        for r in range(4):
            A(f'v_add_f32_dpp v{X+4+r}, v{X+4+r}, v{X+4+r} row_ror:{sh} row_mask:0xf bank_mask:0xf')
    M0 = D
    A(f"""s_mov_b64 exec, s[46:47]
v_cvt_pk_bf16_f32 v{MBR}, v{X+4}, v{X+5}
v_cvt_pk_bf16_f32 v{MBR+1}, v{X+6}, v{X+7}
v_min_u32 v{MBR}, -2, v{MBR}
v_min_u32 v{MBR+1}, -2, v{MBR+1}
buffer_store_dwordx2 {vr(MBR,2)}, v{MST}, s[4:7], s35 offen
buffer_store_dwordx2 {vr(MBR+2,2)}, v{MST}, s[4:7], s56 offen
s_mov_b64 exec, -1
s_add_u32 s35, s35, 8192
s_cmp_eq_u32 s35, 24576
s_cselect_b32 s35, 0, s35
s_add_u32 s56, s40, 4096""")
    stamp(A, 8)
    if MDELAY: A(f's_sleep {MDELAY}')
    LpM = A.newlabel('cB_pollM'); LokM = A.newlabel('cB_okM')
    def ldM(r): A(f'buffer_load_dwordx4 {vr(r,4)}, v{T16}, s[4:7], s40 offen sc1')
    def chkM(r, Lok):
        A(f"""v_max3_u32 v{M0+8}, v{r}, v{r+1}, v{r+2}
v_max_u32 v{M0+8}, v{M0+8}, v{r+3}
v_cmp_eq_u32 vcc, -1, v{M0+8}
s_cbranch_vccz {Lok}""")
    if not PIPE_M:
        ldM(M0)
        A.label(LpM)
        A('s_waitcnt vmcnt(0)')
        chkM(M0, LokM)
        spin(A, Lexit)
        ldM(M0)
        A(f's_branch {LpM}')
        A.label(LokM)
        stamp(A, 9)
        A(f'ds_write_b128 v{T16}, {vr(M0,4)}')
    else:
        M1 = M0+4
        Lok1 = A.newlabel('cB_okM1'); Lok2 = A.newlabel('cB_okM2')
        ldM(M0); gap(PGAP); ldM(M1)
        A.label(LpM)
        A('s_waitcnt vmcnt(1)')
        chkM(M0, LokM)
        ldM(M0)
        A('s_waitcnt vmcnt(1)')
        chkM(M1, Lok1)
        ldM(M1)
        spin(A, Lexit)
        A(f's_branch {LpM}')
        A.label(Lok1)
        A(f'ds_write_b128 v{T16}, {vr(M1,4)}\ns_branch {Lok2}')
        A.label(LokM)
        A(f'ds_write_b128 v{T16}, {vr(M0,4)}')
        A.label(Lok2)
    A(f"""buffer_load_dwordx4 {vr(MBR,4)}, v{T16}, s[4:7], s56 offen sc1
s_mov_b32 s40, s56
s_setprio 0
s_waitcnt lgkmcnt(0)
s_branch {Lloop}""")
    A.label(Lfin)
    if TIMING:
        A(f"""s_memtime s[64:65]
s_waitcnt lgkmcnt(0)
s_sub_u32 s64, s64, s62
v_mov_b32 v16, s64
s_lshl_b32 s18, s15, 2
s_add_u32 s18, s18, 64
v_mov_b32 v17, s18
s_mov_b64 exec, 1
global_store_dword v17, v16, s[12:13]
s_mov_b64 exec, -1""")
    A(f"""ds_read_b128 {vr(OA,4)}, v11
s_lshl_b32 s58, s34, 16
s_add_u32 s58, s58, s57
s_waitcnt lgkmcnt(0)
v_min_u32 v{OA}, -2, v{OA}
v_min_u32 v{OA+2}, -2, v{OA+2}
buffer_store_dwordx4 {vr(OA,4)}, v{LA}, s[4:7], s58 offen sc1
s_waitcnt vmcnt(0)
s_barrier
s_cmp_lg_u32 s20, 1
s_cbranch_scc1 {Lexit}
s_mov_b64 exec, 1
v_mov_b32 v16, 64
v_mov_b32 v17, 8
buffer_store_byte v16, v17, s[4:7], s81 offen sc1
s_mov_b64 exec, -1""")
```

```python
from asmlib import *
WS_P2 = 0x6000000
WS_FLAG = 0x5800000
NSET = 7
TSLEEP = 12
T_K = 0
T_Q = 8192
T_O = 32768
OS = 272
T_G = T_O + 32*OS
W0 = 128
ACC = 64
KF = 16

def emit_tail_body(A):
    A(f'''s_lshr_b32 s16, s15, 5           ; set
s_and_b32 s17, s15, 31           ; h
s_load_dwordx2 s[24:25], s[0:1], {KA_WO}
s_load_dwordx2 s[26:27], s[0:1], {KA_X}
s_load_dwordx2 s[28:29], s[0:1], {KA_GW}
s_load_dwordx2 s[32:33], s[0:1], {KA_DSKIP}
s_load_dwordx2 s[34:35], s[0:1], {KA_OUT}
v_and_b32 v1, 63, v0             ; lane
v_and_b32 v2, 15, v1             ; c
v_lshrrev_b32 v3, 4, v1          ; g
s_mov_b32 s30, 0x05040100
s_mov_b32 s31, 0x07060302
s_waitcnt lgkmcnt(0)''')
    srd(A, 8, 24, 4*1024*1024)
    srd(A, 36, 26, 2048*1024)
    srd(A, 40, 34, 2048*1024)
    srd(A, 44, 28, 1024)
    srd(A, 48, 32, 1024)
    A(f'''v_lshlrev_b32 v4, 13, v3
v_lshl_add_u32 v4, v2, 4, v4
s_lshl_b32 s18, s17, 17
s_lshl_b32 s19, s14, 8
s_add_u32 s18, s18, s19
v_add_u32 v4, s18, v4''')
    for ks in range(4):
        for j in range(8):
            A(f'''s_mov_b32 s18, {(32*ks+j)*1024}
buffer_load_dwordx4 {vr(KF+j*4,4)}, v4, s[8:11], s18 offen''')
        A('s_waitcnt vmcnt(0)')
        for t in range(8):
            for p in range(4):
                A(f'v_perm_b32 v60, v{KF+(2*p+1)*4+t//2}, v{KF+(2*p)*4+t//2}, {"s31" if t%2 else "s30"}\nv_accvgpr_write_b32 a{(t*4+ks)*4+p}, v60')
    A(f'''s_and_b32 s18, s14, 1
s_lshl_b32 s18, s18, 2
v_add_u32 v4, s18, v3
v_lshlrev_b32 v4, 1, v4
v_xor_b32 v4, v4, v2
v_lshlrev_b32 v4, 4, v4
v_lshl_add_u32 v4, v3, 8, v4
s_lshl_b32 s18, s17, 19
s_lshl_b32 s19, s14, 11
s_add_u32 s18, s18, s19
v_add_u32 v4, s18, v4''')
    A(f'''v_and_b32 v5, 3, v2
v_lshrrev_b32 v6, 3, v2
v_lshl_add_u32 v5, v6, 2, v5
v_lshlrev_b32 v5, 1, v5
v_xor_b32 v5, v5, v3
v_lshlrev_b32 v5, 4, v5
v_lshl_add_u32 v5, v2, 8, v5''')
    A(f'''v_lshlrev_b32 v6, 7, v2
v_lshl_add_u32 v6, v3, 4, v6
s_lshl_b32 s18, s17, 13
s_lshr_b32 s19, s14, 1
s_lshl_b32 s20, s19, 12
s_add_u32 s18, s18, s20
s_add_u32 s18, s18, {hex(WS_VT)}
v_add_u32 v6, s18, v6''')
    A(f'''v_and_b32 v7, 7, v2
v_lshlrev_b32 v7, 8, v7
v_lshl_add_u32 v7, v3, 4, v7
s_lshl_b32 s18, s17, 11
s_add_u32 s18, s18, {hex(WS_KM)}
v_add_u32 v7, s18, v7''')
    A(f'''v_and_b32 v8, 1, v3
v_lshlrev_b32 v8, 3, v8
v_lshl_add_u32 v8, v2, 5, v8
s_lshl_b32 s18, s17, 11
s_lshl_b32 s20, s19, 10
s_add_u32 s18, s18, s20
s_add_u32 s18, s18, {hex(WS_VMT)}
v_add_u32 v8, s18, v8''')
    A(f'''s_and_b32 s20, s14, 1
s_lshl_b32 s20, s20, 4
v_add_u32 v9, s20, v2
v_mul_u32_u24 v9, {OS}, v9
v_lshl_add_u32 v9, v3, 4, v9
s_lshl_b32 s18, s19, 7
s_add_u32 s18, s18, {T_O}
v_add_u32 v9, s18, v9''')
    A(f'''v_mul_u32_u24 v10, {OS}, v2
v_lshl_add_u32 v10, v3, 4, v10
v_add_u32 v10, {T_O}, v10''')
    A(f'''v_lshlrev_b32 v11, 17, v3
v_lshl_add_u32 v11, v2, 4, v11
s_lshl_b32 s18, s14, 13
s_lshl_b32 s20, s17, 8
s_add_u32 s18, s18, s20
s_add_u32 s18, s18, {hex(WS_P2)}
v_add_u32 v11, s18, v11''')
    A(f'''s_and_b32 s20, s14, 1
s_lshl_b32 s20, s20, 4
v_add_u32 v12, s20, v2
v_lshlrev_b32 v13, 2, v3
v_sub_u32 v12, v12, v13
v_lshlrev_b32 v13, 4, v1         ; v13 = lane*16
v_and_b32 v14, 1, v2
v_lshlrev_b32 v14, 4, v14
v_mov_b32 v15, 0x3f80
v_lshlrev_b32 v14, v14, v15
s_mov_b32 s52, 0x3e02939f        ; SC
s_mov_b32 s53, 0xff800000        ; -inf
s_lshl_b32 s54, s14, 11
s_and_b32 s55, s14, 1
s_lshl_b32 s55, s55, 12          ; qt*4096
s_mov_b32 s56, s16               ; segment
s_mov_b32 s57, 0''')
    A('s_mov_b32 s93, 0\ns_mov_b32 s68, 0')
    def wait0(addr_setup, load, cmp):
        Lw = A.newlabel('tl_w'); Lo = A.newlabel('tl_wo')
        A(f"""s_cmp_lg_u32 s14, 0
s_cbranch_scc1 {Lo}""")
        A(addr_setup)
        A.label(Lw)
        A(f"""{load}
s_waitcnt vmcnt(0)
{cmp}
s_add_u32 s93, s93, 1
s_cmp_lt_u32 s93, 0x80000
s_cselect_b64 vcc, vcc, 0
s_cbranch_vccz {Lo}
s_sleep {TSLEEP}
s_branch {Lw}""")
        A.label(Lo)
        A('s_waitcnt vmcnt(0)\ns_barrier')
    wait0('v_mov_b32 v56, 56', 'global_load_dword v57, v56, s[12:13] sc1', 'v_cmp_gt_u32 vcc, 32, v57')
    wait0(f"""v_min_u32 v56, 5, v1
s_lshl_b32 s63, s17, 7
s_add_u32 s63, s63, {hex(WS_QF)}""", 'buffer_load_ubyte v57, v56, s[4:7], s63 offen sc1', 'v_cmp_ne_u32 vcc, 32, v57')
    KM = 16; VMf = 32; XR = 40; GW = 44; XC = 48; YC = 50; DS = 52
    AVX = 0; APP = 32; AOF = 64
    def xloads(segreg, buf):
        A(f"""s_lshl_b32 s58, {segreg}, 13
s_add_u32 s59, s58, {hex(WS_K)}
s_add_u32 m0, s54, {buf*16384}
s_lshl_b32 s60, {segreg}, 18
buffer_load_dwordx4 v4, s[4:7], s59 offen lds
buffer_load_dwordx4 v4, s[4:7], s59 offen offset:1024 lds
s_add_u32 m0, s54, {buf*16384+T_Q}
s_nop 0
buffer_load_dwordx4 v4, s[4:7], s58 offen lds
buffer_load_dwordx4 v4, s[4:7], s58 offen offset:1024 lds""")
    def red_issue(segreg, cntreg, gate=True):
        if gate: wait0(f"""s_lshl_b32 s63, s16, 5
v_and_b32 v56, 31, v1
v_add_u32 v56, s63, v56
s_mov_b32 s63, {hex(WS_FLAG)}""", 'buffer_load_ubyte v57, v56, s[4:7], s63 offen sc1', f'v_cmp_gt_u32 vcc, {cntreg}, v57')
        A(f"""s_lshl_b32 s63, s17, 15
s_lshl_b32 s64, {segreg}, 20
s_add_u32 s63, s63, s64
s_lshl_b32 s64, s14, 13
s_add_u32 s63, s63, s64
s_add_u32 s63, s63, {hex(WS_P2)}
s_add_u32 s64, s63, 4096""")
        for i in range(4):
            A(f'buffer_load_dwordx4 {vr(ACC+i*4,4)}, v13, s[4:7], s63 offen offset:{i*1024} sc1')
        for i in range(4):
            A(f'buffer_load_dwordx4 {vr(ACC+16+i*4,4)}, v13, s[4:7], s64 offen offset:{i*1024} sc1')
        A(f"""s_lshl_b32 s65, {segreg}, 5
s_add_u32 s65, s65, s17
s_lshl_b32 s65, s65, 10
buffer_load_dwordx4 {vr(XR,4)}, v13, s[36:39], s65 offen
buffer_load_dwordx4 {vr(GW,4)}, v13, s[44:47], 0 offen
buffer_load_dwordx2 {vr(XC,2)}, v15, s[36:39], s65 offen
s_lshr_b32 s66, s65, 7
s_add_u32 s66, s66, {hex(WS_Y)}
v_lshlrev_b32 v56, 11, v15
buffer_load_dwordx2 {vr(YC,2)}, v56, s[4:7], s66 offen sc1
buffer_load_dwordx2 {vr(DS,2)}, v15, s[48:51], 0 offen""")
    def red_compute():
        SEL = 16; DD = 20; TT = 24
        A('v_lshrrev_b32 v57, 1, v2')
        for p in range(4):
            A(f"""v_cmp_eq_u32 vcc, {p}, v57
s_nop 1
v_cndmask_b32 v{SEL+p}, 0, v14, vcc""")
        A('s_nop 1')
        for i in range(8):
            A(f'v_mfma_f32_16x16x32_bf16 {vr(DD,4)}, {vr(SEL,4)}, {vr(ACC+4*i,4)}, {"0" if i==0 else vr(DD,4)}')
        for i in range(4):
            A(f"""v_lshlrev_b32 v{TT}, 16, v{XR+i}
v_and_b32 v{TT+1}, 0xffff0000, v{XR+i}
v_lshlrev_b32 v{TT+2}, 16, v{GW+i}
v_and_b32 v{TT+3}, 0xffff0000, v{GW+i}
v_mul_f32 v{TT}, v{TT}, v{TT+2}
v_mul_f32 v{TT+1}, v{TT+1}, v{TT+3}
v_cvt_pk_bf16_f32 v{TT}, v{TT}, v{TT+1}
v_lshlrev_b32 v{TT+1}, 16, v{TT}
v_and_b32 v{TT}, 0xffff0000, v{TT}
v_add_f32 v{TT}, v{TT}, v{TT+1}""")
            A(f'v_mov_b32 v{TT+4}, v{TT}' if i == 0 else f'v_add_f32 v{TT+4}, v{TT+4}, v{TT}')
        G = TT+4
        A(f"""s_nop 1
v_add_f32_dpp v{G}, v{G}, v{G} quad_perm:[1,0,3,2] row_mask:0xf bank_mask:0xf
s_nop 1
v_add_f32_dpp v{G}, v{G}, v{G} quad_perm:[2,3,0,1] row_mask:0xf bank_mask:0xf
s_nop 1
v_add_f32_dpp v{G}, v{G}, v{G} row_ror:4 row_mask:0xf bank_mask:0xf
s_nop 1
v_add_f32_dpp v{G}, v{G}, v{G} row_ror:8 row_mask:0xf bank_mask:0xf
v_mov_b32 v{TT}, v{G}
s_nop 1
v_permlane32_swap_b32 v{TT}, v{G}
v_add_f32 v{G}, v{G}, v{TT}
v_mov_b32 v{TT}, v{G}
s_nop 1
v_permlane16_swap_b32 v{TT}, v{G}
v_add_f32 v{G}, v{G}, v{TT}
v_cvt_pk_bf16_f32 v{G}, v{G}, v{G}
v_lshlrev_b32 v{G}, 16, v{G}
v_mul_f32 v{G}, 0xbfb8aa3b, v{G}
v_exp_f32 v{G}, v{G}
s_nop 0
v_add_f32 v{G}, 1.0, v{G}
v_rcp_f32 v{G}, v{G}
s_nop 0
v_cvt_pk_bf16_f32 v{G}, v{G}, v{G}
v_lshlrev_b32 v{G}, 16, v{G}
v_sub_f32 v{G+1}, 1.0, v{G}
v_cvt_pk_bf16_f32 v{G+1}, v{G+1}, v{G+1}
v_lshlrev_b32 v{G+1}, 16, v{G+1}""")
        for i in range(2):
            A(f"""v_cvt_pk_bf16_f32 v{TT}, v{DD+2*i}, v{DD+2*i+1}
v_lshlrev_b32 v{TT+1}, 16, v{TT}
v_and_b32 v{TT}, 0xffff0000, v{TT}
v_mul_f32 v{TT+1}, v{G}, v{TT+1}
v_mul_f32 v{TT}, v{G}, v{TT}
v_cvt_pk_bf16_f32 v{DD+2*i}, v{TT+1}, v{TT}
v_lshlrev_b32 v{TT}, 16, v{XC+i}
v_and_b32 v{TT+1}, 0xffff0000, v{XC+i}
v_lshlrev_b32 v{TT+2}, 16, v{DS+i}
v_and_b32 v{TT+3}, 0xffff0000, v{DS+i}
v_mul_f32 v{TT}, v{TT}, v{TT+2}
v_mul_f32 v{TT+1}, v{TT+1}, v{TT+3}
v_cvt_pk_bf16_f32 v{TT}, v{TT}, v{TT+1}
v_lshlrev_b32 v{TT+1}, 16, v{TT}
v_and_b32 v{TT}, 0xffff0000, v{TT}
v_lshlrev_b32 v{TT+2}, 16, v{YC+i}
v_and_b32 v{TT+3}, 0xffff0000, v{YC+i}
v_add_f32 v{TT+1}, v{TT+1}, v{TT+2}
v_add_f32 v{TT}, v{TT}, v{TT+3}
v_cvt_pk_bf16_f32 v{TT}, v{TT+1}, v{TT}
v_lshlrev_b32 v{TT+1}, 16, v{TT}
v_and_b32 v{TT}, 0xffff0000, v{TT}
v_mul_f32 v{TT+1}, v{G+1}, v{TT+1}
v_mul_f32 v{TT}, v{G+1}, v{TT}
v_cvt_pk_bf16_f32 v{TT}, v{TT+1}, v{TT}
v_lshlrev_b32 v{TT+1}, 16, v{TT}
v_and_b32 v{TT}, 0xffff0000, v{TT}
v_lshlrev_b32 v{TT+2}, 16, v{DD+2*i}
v_and_b32 v{TT+3}, 0xffff0000, v{DD+2*i}
v_add_f32 v{TT+1}, v{TT+1}, v{TT+2}
v_add_f32 v{TT}, v{TT}, v{TT+3}
v_cvt_pk_bf16_f32 v{XR+i}, v{TT+1}, v{TT}""")
        A(f"""s_mov_b32 exec_hi, 0
buffer_store_dwordx2 {vr(XR,2)}, v15, s[40:43], s65 offen
s_mov_b32 exec_hi, -1""")
    A(f"""v_and_b32 v15, 1, v3
v_lshlrev_b32 v15, 3, v15
v_lshl_add_u32 v15, v2, 4, v15
s_lshl_b32 s66, s14, 8
v_add_u32 v15, s66, v15""")
    A(f"""s_add_u32 s62, s16, 56
s_cmp_eq_u32 s16, 0
s_cselect_b32 s62, 63, s62
s_lshl_b32 s62, s62, 20
v_mov_b32 v16, -1
v_mov_b32 v17, -1
v_mov_b32 v18, -1
v_mov_b32 v19, -1""")
    for mt in range(2):
        for r in range(4):
            A(f"""s_add_u32 s63, s62, {(16*mt+r)*32768}
buffer_store_dwordx4 v[16:19], v11, s[4:7], s63 offen sc1""")
    xloads('s56', 0)
    wait0('v_mov_b32 v56, 44', 'global_load_dword v57, v56, s[12:13] sc1', 'v_cmp_gt_u32 vcc, 128, v57')
    Lloop = A.newlabel('tl_loop'); Lfin = A.newlabel('tl_fin'); Lfast = A.newlabel('tl_fast')
    A.label(Lloop)
    for buf in range(2):
        Lnc = A.newlabel('tl_nc'); Lq1 = A.newlabel('tl_q1')
        A(f"""s_cmp_eq_u32 s68, 0
s_cbranch_scc1 {Lnc}
s_cmp_lg_u32 s14, 0
s_cbranch_scc1 {Lq1}
s_lshl_b32 s63, s17, 7
s_add_u32 s63, s63, {hex(WS_QF)}
v_mov_b32 v56, 8
buffer_load_ubyte v57, v56, s[4:7], s63 offen sc1
v_mov_b32 v56, {T_G}
s_waitcnt vmcnt(0)
ds_write_b32 v56, v57
s_waitcnt lgkmcnt(0)""")
        A.label(Lq1)
        A(f"""s_barrier
v_mov_b32 v56, {T_G}
ds_read_b32 v57, v56
s_waitcnt lgkmcnt(0)
v_readfirstlane_b32 s63, v57
s_cmp_gt_u32 s63, s56
s_cbranch_scc1 {Lnc}
s_sub_u32 s67, s56, {NSET}""")
        red_issue('s67', 's57')
        A('s_waitcnt vmcnt(0)')
        red_compute()
        A('s_mov_b32 s68, 0')
        A.label(Lnc)
        wait0(f"""s_add_u32 s64, s56, 1
s_sub_u32 s63, s56, 1
s_cmp_ge_u32 s56, 62
s_cselect_b32 s64, s63, s64
s_lshl_b32 s63, s17, 7
s_add_u32 s63, s63, {hex(WS_QF)}
v_mov_b32 v56, 8""", 'buffer_load_ubyte v57, v56, s[4:7], s63 offen sc1', 'v_cmp_gt_u32 vcc, s64, v57')
        A('s_lshl_b32 s61, s56, 16')
        A('s_lshl_b32 s60, s56, 18')
        for et in range(2):
            for T in range(2):
                A(f'buffer_load_dwordx4 {vr(40+(et*2+T)*4,4)}, v6, s[4:7], s60 offen offset:{et*2048+T*64}')
        Lkl = A.newlabel('tl_kl'); Lko = A.newlabel('tl_ko')
        A.label(Lkl)
        for ks in range(4):
            A(f'buffer_load_dwordx4 {vr(KM+ks*4,4)}, v7, s[4:7], s61 offen offset:{ks*64} sc1')
        for et in range(2):
            for T in range(2):
                A(f'buffer_load_dwordx2 {vr(VMf+(et*2+T)*2,2)}, v8, s[4:7], s61 offen offset:{et*512+T*16} sc1')
        A(f"""s_cmp_lt_u32 s56, 62
s_cbranch_scc1 {Lko}
s_waitcnt vmcnt(0)
v_max3_u32 v56, v{KM}, v{KM+4}, v{KM+8}
v_max3_u32 v56, v56, v{KM+12}, v{VMf}
v_max3_u32 v56, v56, v{VMf+2}, v{VMf+4}
v_max_u32 v56, v56, v{VMf+6}
v_cmp_eq_u32 vcc, -1, v56
s_add_u32 s93, s93, 1
s_cmp_lt_u32 s93, 0x80000
s_cselect_b64 vcc, vcc, 0
s_cbranch_vccz {Lko}
s_sleep 2
s_branch {Lkl}""")
        A.label(Lko)
        A('s_barrier')
        S = ACC; QF = ACC+16; KX = ACC+32
        A(f'v_add_u32 v56, s55, v5')
        for ks in range(4):
            if ks:
                A(f'v_xor_b32 v57, {ks*64}, v5\nv_xor_b32 v58, {ks*64}, v56')
            ak = 'v57' if ks else 'v5'; aq = 'v58' if ks else 'v56'
            A(f"""ds_read_b128 {vr(QF+ks*4,4)}, {aq} offset:{buf*16384+T_Q}
ds_read_b128 {vr(KX+ks*4,4)}, {ak} offset:{buf*16384+T_K}
ds_read_b128 {vr(KX+16+ks*4,4)}, {ak} offset:{buf*16384+T_K+4096}""")
        for ks in range(4):
            A(f's_waitcnt lgkmcnt({9-3*ks})')
            for t in (1,2):
                A(f'v_mfma_f32_16x16x32_bf16 {vr(S+t*4,4)}, {vr(KX+(t-1)*16+ks*4,4)}, {vr(QF+ks*4,4)}, {"0" if ks==0 else vr(S+t*4,4)}')
        A('s_waitcnt vmcnt(4)')
        for ks in range(4):
            A(f'v_mfma_f32_16x16x32_bf16 {vr(S,4)}, {vr(KM+ks*4,4)}, {vr(QF+ks*4,4)}, {"0" if ks==0 else vr(S,4)}')
        A(f'v_mov_b32 v57, s53')
        for kt in range(2):
            for r in range(4):
                A(f"""v_cmp_le_i32 vcc, {16*kt+r}, v12
s_nop 1
v_cndmask_b32 v{S+4+4*kt+r}, v57, v{S+4+4*kt+r}, vcc""")
        A(f"""v_cmp_gt_u32 vcc, 2, v3
s_nop 1""")
        for r in range(4):
            A(f'v_cndmask_b32 v{S+r}, v57, v{S+r}, vcc')
        M = S+12; T1 = S+13; L = S+14; T2 = S+15
        A(f"""v_max3_f32 v{M}, v{S}, v{S+1}, v{S+2}
v_max3_f32 v{T1}, v{S+3}, v{S+4}, v{S+5}
v_max3_f32 v{M}, v{M}, v{S+6}, v{S+7}
v_max3_f32 v{T1}, v{T1}, v{S+8}, v{S+9}
v_max3_f32 v{M}, v{M}, v{S+10}, v{S+11}
v_max_f32 v{M}, v{M}, v{T1}
v_mov_b32 v{T1}, v{M}
s_nop 1
v_permlane32_swap_b32 v{T1}, v{M}
v_max_f32 v{M}, v{M}, v{T1}
v_mov_b32 v{T1}, v{M}
s_nop 1
v_permlane16_swap_b32 v{T1}, v{M}
v_max_f32 v{M}, v{M}, v{T1}
v_mul_f32 v{M}, s52, v{M}""")
        for i in range(12):
            A(f'v_fma_f32 v{S+i}, v{S+i}, s52, -v{M}')
        for i in range(12):
            A(f'v_exp_f32 v{S+i}, v{S+i}')
        A(f"""s_nop 0
v_add_f32 v{L}, v{S}, v{S+1}
v_add_f32 v{T1}, v{S+2}, v{S+3}
v_add_f32 v{T2}, v{S+4}, v{S+5}
v_add_f32 v{M}, v{S+6}, v{S+7}
v_add_f32 v{L}, v{L}, v{T1}
v_add_f32 v{T1}, v{S+8}, v{S+9}
v_add_f32 v{T2}, v{T2}, v{M}
v_add_f32 v{M}, v{S+10}, v{S+11}
v_add_f32 v{L}, v{L}, v{T1}
v_add_f32 v{T2}, v{T2}, v{M}
v_add_f32 v{L}, v{L}, v{T2}
v_mov_b32 v{T1}, v{L}
s_nop 1
v_permlane32_swap_b32 v{T1}, v{L}
v_add_f32 v{L}, v{L}, v{T1}
v_mov_b32 v{T1}, v{L}
s_nop 1
v_permlane16_swap_b32 v{T1}, v{L}
v_add_f32 v{L}, v{L}, v{T1}
v_rcp_f32 v{L}, v{L}
s_nop 0""")
        for i in range(12):
            A(f'v_mul_f32 v{S+i}, v{S+i}, v{L}')
        PX = QF; PM = QF+4; O = KX
        A(f"""v_cvt_pk_bf16_f32 v{PX}, v{S+4}, v{S+5}
v_cvt_pk_bf16_f32 v{PX+1}, v{S+6}, v{S+7}
v_cvt_pk_bf16_f32 v{PX+2}, v{S+8}, v{S+9}
v_cvt_pk_bf16_f32 v{PX+3}, v{S+10}, v{S+11}
v_cvt_pk_bf16_f32 v{PM}, v{S}, v{S+1}
v_cvt_pk_bf16_f32 v{PM+1}, v{S+2}, v{S+3}
s_waitcnt vmcnt(0)""")
        for i in range(4):
            A(f'v_mfma_f32_16x16x32_bf16 {vr(O+i*4,4)}, {vr(40+i*4,4)}, {vr(PX,4)}, 0')
        for i in range(4):
            A(f'v_mfma_f32_16x16x16_bf16 {vr(O+i*4,4)}, {vr(VMf+i*2,2)}, {vr(PM,2)}, {vr(O+i*4,4)}')
        Lnx = A.newlabel('tl_nx')
        A(f"""s_add_u32 s67, s56, {NSET}
s_cmp_ge_u32 s67, 64
s_cbranch_scc1 {Lnx}""")
        xloads('s67', 1-buf)
        A.label(Lnx)
        A('s_nop 4')
        for et in range(2):
            for r in range(4):
                A(f'v_cvt_pk_bf16_f32 v{S+et*4+r}, v{O+et*8+r}, v{O+et*8+4+r}')
            A(f'ds_write_b128 v9, {vr(S+et*4,4)} offset:{et*64}')
        A("""s_waitcnt lgkmcnt(0)
s_barrier""")
        for mt in range(2):
            for ks in range(4):
                A(f'ds_read_b128 {vr(16+(mt*4+ks)*4,4)}, v10 offset:{mt*16*OS+ks*64}')
        A(f's_lshl_b32 s62, s56, 20')
        for mt in range(2):
            for ks in range(4):
                A(f's_waitcnt lgkmcnt({7-(mt*4+ks)})')
                for t in range(8):
                    acc = vr(ACC+(mt*8+t)*4,4)
                    A(f'v_mfma_f32_16x16x32_bf16 {acc}, {vr(16+(mt*4+ks)*4,4)}, {ar((t*4+ks)*4,4)}, {"0" if ks==0 else acc}')
        A('s_nop 7')
        for mt in range(2):
            for r in range(4):
                b = 16 + ((mt*4+r)%4)*4
                for p in range(4):
                    A(f'v_cvt_pk_bf16_f32 v{b+p}, v{ACC+(mt*8+2*p)*4+r}, v{ACC+(mt*8+2*p+1)*4+r}')
                A(f"""s_add_u32 s63, s62, {(16*mt+r)*32768}
v_min_u32 v{b}, -2, v{b}
buffer_store_dwordx4 {vr(b,4)}, v11, s[4:7], s63 offen sc1""")
        A(f"""s_add_u32 s57, s57, 1
s_add_u32 s63, s56, {NSET}
s_cmp_ge_u32 s63, 64
s_cselect_b32 s63, s68, 1
s_cmp_eq_u32 s63, 0
s_cbranch_scc1 {Lfast}
s_waitcnt vmcnt(0)
s_barrier""")
        Lnp = A.newlabel('tl_np')
        A(f"""s_cmp_lg_u32 s14, 0
s_cbranch_scc1 {Lnp}
s_mov_b64 exec, 1
v_mov_b32 v56, s57
v_mov_b32 v57, s15
s_mov_b32 s63, {hex(WS_FLAG)}
buffer_store_byte v56, v57, s[4:7], s63 offen sc1
s_mov_b64 exec, -1""")
        A.label(Lnp)
        Lnd = A.newlabel('tl_nd')
        A(f"""s_cmp_eq_u32 s68, 0
s_cbranch_scc1 {Lnd}
s_sub_u32 s67, s56, {NSET}
s_sub_u32 s69, s57, 1""")
        red_issue('s67', 's69')
        A('s_waitcnt vmcnt(0)')
        red_compute()
        A.label(Lnd)
        A('s_mov_b32 s68, 1')
        A(f"""s_add_u32 s56, s56, {NSET}
s_cmp_ge_u32 s56, 64
s_cbranch_scc1 {Lfin}""")
    A(f's_branch {Lloop}')
    A.label(Lfin)
    A(f's_sub_u32 s67, s56, {NSET}\ns_sub_u32 s69, s57, 1')
    red_issue('s67', 's69')
    Lpl = A.newlabel('tl_pl'); Lpo = A.newlabel('tl_po')
    A(f's_branch {Lpl}')
    A.label(Lfast)
    A('s_nop 1')
    red_issue('s56', None, gate=False)
    A.label(Lpl)
    A(f"""s_waitcnt vmcnt(0)
v_max3_u32 v56, v{ACC}, v{ACC+4}, v{ACC+8}
v_max3_u32 v56, v56, v{ACC+12}, v{ACC+16}
v_max3_u32 v56, v56, v{ACC+20}, v{ACC+24}
v_max_u32 v56, v56, v{ACC+28}
v_cmp_eq_u32 vcc, -1, v56
s_add_u32 s93, s93, 1
s_cmp_lt_u32 s93, 0x80000
s_cselect_b64 vcc, vcc, 0
s_cbranch_vccz {Lpo}
s_sleep 2""")
    for i in range(4):
        A(f'buffer_load_dwordx4 {vr(ACC+i*4,4)}, v13, s[4:7], s63 offen offset:{i*1024} sc1')
    for i in range(4):
        A(f'buffer_load_dwordx4 {vr(ACC+16+i*4,4)}, v13, s[4:7], s64 offen offset:{i*1024} sc1')
    A(f's_branch {Lpl}')
    A.label(Lpo)
    red_compute()
    A('s_waitcnt vmcnt(0)')
```

```python
import sys
sys.path.insert(0, 'gen')
from gen import build
import k_mega8, k_chain8, k_tail3
def mk(out):
    build([('mega_kernel', k_mega8.emit_mega, 256, 512, 163840, 256, 100, 128)], out)
if __name__ == '__main__':
    mk('k8.s')
    k_mega8.PROF = True; mk('k8p.s')
    k_mega8.PROF = False
    k_chain8.STAMPS = True; mk('k8s.s'); k_chain8.STAMPS = False
    k_mega8.CTIMING = True
    mk('k8t.s')
    k_mega8.CTIMING = False
    def var(name, **kw):
        old = {k: getattr(k_chain8, k) for k in kw}
        for k,v in kw.items(): setattr(k_chain8, k, v)
        mk(f'work/{name}.s')
        for k,v in old.items(): setattr(k_chain8, k, v)
    var('k8a', B2POS=3)
    var('k8b', BDELAY=True)
    var('k8c', PDELAY=5, MDELAY=4)
    var('k8d', PDELAY=3, MDELAY=2)
    var('k8e', PDELAY=2, PDELAY2=3, MDELAY=3)
```

```python
from asmlib import *
import k_elect
L_WA = 0
L_WB = 65536
L_MA = 131072
L_QK = 139264
QS = 288
L_O  = L_QK
L_MISC = L_QK + 16*QS
L_VM = L_MISC + 1024
L_KX = 147456
L_FL = L_MISC + 64
WS_FLAG = 0x5800000
SPINBOUND = True
PDELAY = 3
PDELAY2 = 1
MDELAY = 3
MARK = None
TIMING = False
DIVERT = None
X_NOPUB = False
X_NOK = False
PIPE_P = False
VMAP = 0
VOFF1 = """s_lshr_b32 s18, s20, 1
s_lshl_b32 s18, s18, 7
s_and_b32 s19, s20, 1
s_lshl_b32 s19, s19, 2
s_add_u32 s18, s18, s19
v_lshl_add_u32 v10, v41, 3, v45"""
VOFF0 = """s_lshl_b32 s18, s20, 6
v_lshl_add_u32 v10, v41, 2, v45"""
VMW1 = """v_lshl_add_u32 v50, v41, 6, v50
s_lshr_b32 s18, s20, 1
s_lshl_b32 s18, s18, 10
s_and_b32 s19, s20, 1
s_lshl_b32 s19, s19, 5
s_add_u32 s18, s18, s19"""
VMW0 = """v_lshl_add_u32 v50, v41, 5, v50
s_lshl_b32 s18, s20, 9"""
BDELAY = False
B2POS = 2
FLAG_BO = False
STEPT = False
TPRE = False
APRIO = 3
BPRIO = 0
OASPLIT = False
REDT = False
FLAG_B1 = False
PIPE_M = False
PGAP = 20
CP = [0,1,8,9,2,3,10,11]
def drow(kap, eta, j):
    return 256*eta + 32*(kap%4) + 4*(kap//4) + 8*(CP[j]>>2) + (CP[j]&3)

STAMPS = False
def stamp(A, i):
    if STAMPS:
        A(f"""s_memtime s[94:95]
s_waitcnt lgkmcnt(0)
s_sub_u32 s96, s94, s97
s_add_u32 s{70+i}, s{70+i}, s96
s_mov_b32 s97, s94""")
def stamp_init(A):
    if STAMPS:
        A('s_memtime s[94:95]\ns_waitcnt lgkmcnt(0)\ns_mov_b32 s97, s94')
        for i in range(10): A(f's_mov_b32 s{70+i}, 0')
def stamp_dump(A):
    if STAMPS:
        A(f"""s_lshl_b32 s18, s15, 3
s_add_u32 s18, s18, s14
s_lshl_b32 s18, s18, 6
s_add_u32 s18, s18, {hex(WS_KD)}
v_mov_b32 v17, 0
s_mov_b64 exec, 1""")
        for i in range(10):
            A(f"""v_mov_b32 v16, s{70+i}
buffer_store_dword v16, v17, s[4:7], s18 offen offset:{4*i}""")
def spin(A, Lexit):
    if SPINBOUND:
        A(f'''s_add_u32 s48, s48, 1
s_cmp_gt_u32 s48, 0x200000
s_cbranch_scc1 {Lexit}''')

def kv_decode(A, vreg):
    A(f"""v_readfirstlane_b32 s82, v{vreg}
s_nop 3
s_and_b32 s84, s82, 0xff
s_bfe_u32 s85, s82, 0x80010
s_min_u32 s84, s84, s85
s_lshl_b32 s84, s84, 1
s_bfe_u32 s83, s82, 0x80008
s_lshr_b32 s82, s82, 24
s_min_u32 s82, s82, s83
s_lshl_b32 s82, s82, 1
s_add_u32 s82, s82, 1
s_min_u32 s80, s84, s82""")

def kv_ready(A, target, t0):
    Lc = A.newlabel('kv_chk'); Lo = A.newlabel('kv_ok')
    A.label(Lc)
    A(f"""s_cmp_gt_u32 s80, {target}
s_cbranch_scc1 {Lo}
v_mov_b32 v{t0}, s81
buffer_load_dword v{t0+1}, v{t0}, s[4:7], 0 offen sc1
s_waitcnt vmcnt(0)""")
    kv_decode(A, t0+1)
    A(f"""s_cmp_gt_u32 s80, {target}
s_cbranch_scc1 {Lo}
s_sleep 4
s_add_u32 s88, s88, 1
s_cmp_lt_u32 s88, 0x80000
s_cbranch_scc1 {Lc}""")
    A.label(Lo)

def confirm(A, t):
    Lok = A.newlabel('cf_ok')
    A(f"""s_cmp_eq_u32 s75, 0
s_cbranch_scc1 {Lok}""")
    k_elect.emit_resolve(A, t)
    A(f"""s_mov_b32 s75, 0
s_cmp_lt_u32 s15, 32
s_cbranch_scc1 {Lok}
s_waitcnt vmcnt(0) lgkmcnt(0)
v_mbcnt_lo_u32_b32 v0, -1, 0
v_mbcnt_hi_u32_b32 v0, -1, v0
s_lshl_b32 s24, s14, 6
v_add_u32 v0, s24, v0
s_branch {DIVERT}""")
    A.label(Lok)

def smf_s(acc, a, b, isagpr, idx):
    bs = ar(b,8) if isagpr else vr(b,8)
    return f'v_smfmac_f32_16x16x64_bf16 {vr(acc,4)}, {vr(a,4)}, {bs}, v{idx}'

def run_batches(A, batches, depth_of):
    n = len(batches); issued = [0]
    def issue_upto(k):
        while issued[0] <= k and issued[0] < n:
            batches[issued[0]][0](); issued[0] += 1
    issue_upto(depth_of(0)-1)
    for i in range(n):
        out_after = sum(batches[j][1] for j in range(i+1, issued[0]))
        A(f's_waitcnt vmcnt({out_after})')
        batches[i][2]()
        issue_upto(min(i+depth_of(i+1), n-1))

def emit_chain8(A):
    LB = A.newlabel('c8_B'); Lexit = A.newlabel('c8_exit')
    A(f'''v_and_b32 v40, 63, v0
v_and_b32 v41, 15, v40            ; c
v_lshrrev_b32 v42, 4, v40         ; g
v_and_b32 v43, 1, v42             ; b
v_lshrrev_b32 v44, 1, v42         ; g/2
s_mov_b32 s30, 0x05040100
s_mov_b32 s31, 0x07060302
s_and_b32 s13+0, s13, s13'''.replace('s_and_b32 s13+0, s13, s13','s_and_b32 s20, s14, 3') + f'''
s_mov_b32 s48, 0
s_mov_b32 s80, 0
s_mov_b32 s88, 0
s_lshl_b32 s81, s15, 7
s_add_u32 s81, s81, {hex(WS_QF)}
v_mov_b32 v46, 0x4444
v_mov_b32 v47, 0xeeee
v_and_b32 v45, 1, v41
v_cmp_eq_u32 vcc, 0, v45
s_nop 1
v_cndmask_b32 v2, v47, v46, vcc   ; IDX
v_lshlrev_b32 v1, 4, v40
v_add_u32 v1, {L_MA}, v1          ; V_LA = L_MA + lane*16
v_lshlrev_b32 v45, 20, v44
v_lshl_add_u32 v45, v43, 16, v45
s_lshl_b32 s19, s15, 8
v_add_u32 v45, s19, v45           ; weight row base + h*256
s_cmp_ge_u32 s14, 4
s_cbranch_scc1 {LB}''')
    emit_A(A, Lexit)
    A.label(LB)
    emit_B(A, Lexit)
    A.label(Lexit)
    stamp_dump(A)
    A('s_waitcnt vmcnt(0)')

def emit_A(A, Lexit):
    IDX = 2; LA = 1
    WB = 0; QKW = 3; QKR = 4; OW = 5; KXR = 6; VXA = 7; VMR = 8; PUBR = 9
    VX = 10
    AF = 18
    STG = 32
    ACC = 48
    T2W = 64
    Lq0 = A.newlabel('cA_q0')
    A(f'''s_cmp_lg_u32 s20, 0
s_cbranch_scc1 {Lq0}''')
    confirm(A, 50)
    A(f'''s_mov_b64 exec, 1
v_mov_b32 v50, 0
v_mov_b32 v51, 0
v_mov_b32 v52, 0
v_mov_b32 v53, 0
buffer_store_dwordx4 v[50:53], v50, s[4:7], s81 offen sc1
s_waitcnt vmcnt(0)
v_mov_b32 v51, 1
v_mov_b32 v50, 56
global_atomic_add v50, v51, s[12:13]
s_mov_b64 exec, -1''')
    A.label(Lq0)
    A('v_lshlrev_b32 v9, 4, v0')
    A(f'''s_lshl_b32 s18, s20, 14
v_lshlrev_b32 v{WB}, 4, v40
v_add_u32 v{WB}, s18, v{WB}
s_lshr_b32 s18, s20, 1
s_lshl_b32 s18, s18, 3
v_lshlrev_b32 v50, 1, v42
v_add_u32 v50, s18, v50
v_mul_u32_u24 v50, {QS}, v50
s_and_b32 s18, s20, 1
s_lshl_b32 s18, s18, 7
s_add_u32 s18, s18, {L_QK}
v_lshl_add_u32 v50, v41, 3, v50
v_add_u32 v{QKW}, s18, v50
v_lshrrev_b32 v50, 1, v41
v_mul_u32_u24 v50, {QS}, v50
v_lshl_add_u32 v50, v42, 4, v50
v_add_u32 v{QKR}, {L_QK}, v50
v_lshrrev_b32 v50, 1, v41
v_mul_u32_u24 v50, {QS}, v50
v_lshl_add_u32 v50, v42, 4, v50
s_lshl_b32 s18, s20, 6
s_add_u32 s18, s18, {L_O}
v_add_u32 v{OW}, s18, v50
v_and_b32 v50, 3, v41
v_lshrrev_b32 v51, 3, v41
v_lshl_add_u32 v50, v51, 2, v50
v_lshlrev_b32 v50, 1, v50
v_xor_b32 v50, v50, v42
v_lshlrev_b32 v50, 4, v50
v_lshl_add_u32 v50, v41, 8, v50
v_add_u32 v{KXR}, {L_KX}, v50
v_lshlrev_b32 v50, 7, v41
v_lshl_add_u32 v50, v42, 4, v50
s_lshl_b32 s18, s15, 13
s_lshl_b32 s19, s20, 11
s_add_u32 s18, s18, s19
s_add_u32 s18, s18, {hex(WS_VT)}
v_add_u32 v{VXA}, s18, v50''')
    A(f'''v_lshlrev_b32 v50, 2, v42
v_lshl_add_u32 v50, v41, 5, v50
s_lshl_b32 s18, s20, 9
s_add_u32 s18, s18, {L_VM}
v_add_u32 v{VMR}, s18, v50''')
    A(f'''s_lshr_b32 s18, s20, 1
s_lshl_b32 s18, s18, 3
s_add_u32 s18, s18, {KA_WQ}
s_load_dwordx2 s[24:25], s[0:1], s18
s_and_b32 s18, s20, 1
s_lshl_b32 s18, s18, 7
v_lshl_add_u32 v30, v41, 3, v45
v_add_u32 v30, s18, v30
s_waitcnt lgkmcnt(0)''')
    srd(A, 8, 24, 4*1024*1024)
    bufs = [32, 48, 12]
    batches = []
    for q in range(16):
        kap, eta = q//2, q%2
        buf = bufs[q%3]
        def iss(kap=kap, eta=eta, buf=buf):
            for j in range(8):
                A(f"""s_mov_b32 s18, {drow(kap,eta,j)*8192}
buffer_load_dwordx2 {vr(buf+j*2,2)}, v30, s[8:11], s18 offen""")
        def proc(kap=kap, eta=eta, buf=buf):
            for T in range(4):
                for p in range(4):
                    hi = buf+(2*p+1)*2+T//2; lo = buf+(2*p)*2+T//2
                    sel = "s31" if T%2 else "s30"
                    if T < 2:
                        A(f'v_perm_b32 v31, v{hi}, v{lo}, {sel}\nv_accvgpr_write_b32 a{(T*8+kap)*8+eta*4+p}, v31')
                    elif T == 2:
                        A(f'v_perm_b32 v{T2W+kap*8+eta*4+p}, v{hi}, v{lo}, {sel}')
                    else:
                        A(f'v_perm_b32 v{28+(p%2)}, v{hi}, v{lo}, {sel}')
                        if p % 2 == 1:
                            A(f'ds_write_b64 v{WB}, v[28:29] offset:{kap*2048+eta*1024+(p//2)*8}\ns_nop 0')
        batches.append((iss, 8, proc))
    run_batches(A, batches, lambda i: 3)
    if MARK: MARK(A, 5, 30)
    confirm(A, 32)
    A(f'''v_bfe_u32 v40, v{LA}, 4, 6
v_and_b32 v41, 15, v40
v_lshrrev_b32 v42, 4, v40''')
    A(f'''s_lshl_b32 s16, s15, 13
s_add_u32 s16, s16, {hex(WS_P)}
v_mov_b32 v50, 1
v_mov_b32 v51, 1
v_mov_b32 v52, 1
v_mov_b32 v53, 1''')
    for ring in range(2):
        for i in range(2):
            A(f'''s_add_u32 s17, s16, {ring*0x40000+i*4096}
buffer_store_dwordx4 v[50:53], v9, s[4:7], s17 offen''')
    A(f'''s_and_b32 s17, s15, 7
s_lshl_b32 s17, s17, 10
s_lshr_b32 s18, s15, 3
s_lshl_b32 s18, s18, 8
s_add_u32 s17, s17, s18
s_add_u32 s17, s17, {hex(WS_M)}
v_mov_b32 v54, -1
v_lshlrev_b32 v55, 2, v40''')
    for sl in range(3):
        A(f'''s_add_u32 s18, s17, {sl*8192}
buffer_store_dword v54, v55, s[4:7], s18 offen''')
    Lz = A.newlabel('cA_z')
    A(f'''v_mov_b32 v54, 0
v_add_u32 v56, {L_FL}, v55
v_cmp_gt_u32 vcc, 16, v40
s_and_saveexec_b64 s[22:23], vcc
ds_write_b32 v56, v54
s_mov_b64 exec, s[22:23]
s_cmp_lg_u32 s15, 0
s_cbranch_scc1 {Lz}
s_mov_b32 s18, {hex(WS_FLAG)}
buffer_store_dword v54, v55, s[4:7], s18 offen sc1''')
    A.label(Lz)
    A(f'''s_lshl_b32 s19, s15, 11
s_and_b32 s18, s20, 1
s_lshl_b32 s18, s18, 10
s_add_u32 s18, s18, s19
s_cmp_lt_u32 s20, 2
s_mov_b32 s19, {hex(WS_VMT-L_MA+60*65536)}
s_cselect_b32 s19, {hex(WS_KM-L_MA+60*65536)}, s19
s_add_u32 s18, s18, s19
s_add_u32 s19, s18, 0x10000
v_mov_b32 v50, -1
v_mov_b32 v51, -1
v_mov_b32 v52, -1
v_mov_b32 v53, -1
buffer_store_dwordx4 v[50:53], v{LA}, s[4:7], s18 offen sc1
buffer_store_dwordx4 v[50:53], v{LA}, s[4:7], s19 offen sc1
s_add_u32 s18, s18, 0x20000
s_add_u32 s19, s19, 0x20000
buffer_store_dwordx4 v[50:53], v{LA}, s[4:7], s18 offen sc1
buffer_store_dwordx4 v[50:53], v{LA}, s[4:7], s19 offen sc1''')
    A(f'''s_waitcnt vmcnt(0)
s_mov_b64 exec, 1
v_mov_b32 v50, 1
v_mov_b32 v51, 36
global_atomic_add v51, v50, s[12:13]
s_mov_b64 exec, -1''')
    A(f'''s_load_dwordx2 s[32:33], s[0:1], {KA_MEM0}
v_lshrrev_b32 v50, 1, v41
v_lshlrev_b32 v50, 10, v50
v_lshl_add_u32 v50, v42, 8, v50
v_and_b32 v51, 1, v41
v_lshl_add_u32 v50, v51, 5, v50
s_and_b32 s18, s20, 1
s_lshl_b32 s18, s18, 7
s_lshr_b32 s19, s20, 1
s_lshl_b32 s19, s19, 3
s_add_u32 s18, s18, s19
v_add_u32 v30, s18, v50
s_waitcnt lgkmcnt(0)''')
    srd(A, 8, 32, 8192)
    for kk in range(2):
        for pos in range(8):
            A(f'buffer_load_ushort v{32+kk*8+pos}, v30, s[8:11], 0 offen offset:{(32*kk+8*(pos>>2)+(pos&3))*2}')
    A(f'''s_waitcnt vmcnt(0)
s_lshl_b32 s18, s20, 11
v_add_u32 v31, s18, v{LA}''')
    for kk in range(2):
        for p in range(4):
            A(f'v_lshl_or_b32 v{48+p}, v{32+kk*8+2*p+1}, 16, v{32+kk*8+2*p}')
        A(f'ds_write_b128 v31, v[48:51] offset:{kk*1024}\ns_waitcnt lgkmcnt(0)')
    def load_v(sreg):
        for T in range(2):
            A(f'buffer_load_dwordx4 {vr(VX+T*4,4)}, v{VXA}, s[4:7], {sreg} offen offset:{T*64}')
    A(f'''s_mov_b32 s34, 0
s_mov_b32 s44, 0x3e02939f
s_mov_b32 s45, 0x3e02939f
s_mov_b32 s68, 0x3f803f80
s_mov_b32 s69, 0x3f803f80
s_cmp_eq_u32 s20, 1
s_cselect_b32 s87, 1, 0x7fff
s_lshl_b32 s50, s20, 2
s_add_u32 s50, s50, {L_FL}
s_waitcnt vmcnt(0) lgkmcnt(0)
s_barrier
s_barrier
s_setprio {APRIO}''')
    def rdT(kap, st): return [f'ds_read_b128 {vr(STG+st*8+eta*4,4)}, v{WB} offset:{kap*2048+eta*1024}' for eta in range(2)]
    def rdA(kap): return [f'ds_read_b128 {vr(AF+(kap%3)*4,4)}, v{LA} offset:{kap*1024}']
    def p1(kap):
        a = AF+(kap%3)*4
        return [smf_s(ACC, a, kap*8, True, IDX), smf_s(ACC+4, a, 64+kap*8, True, IDX),
                smf_s(ACC+8, a, T2W+kap*8, False, IDX), smf_s(ACC+12, a, STG+(kap%2)*8, False, IDX)]
    def emit(l):
        for x in l: A(x)
    def pre():
        emit(rdT(0,0)+rdT(1,1))
        for i in range(8): A(f'v_mov_b64 {vr(ACC+2*i,2)}, 0')
    pre()
    if MARK: MARK(A, 6, 30)
    stamp_init(A)
    Lloop = A.newlabel('cA_loop'); Lfin = A.newlabel('cA_fin')
    A.raw('.p2align 6')
    A.label(Lloop)
    if not FLAG_B1:
        A('s_waitcnt lgkmcnt(0)\ns_barrier')
        stamp(A, 0)
    def rdK(ks):
        b = STG+(ks%2)*8
        if ks == 0: return [f'ds_read_b128 {vr(b,4)}, v{KXR}', f'ds_read_b128 {vr(b+4,4)}, v{KXR} offset:4096']
        return [f'v_xor_b32 v{b+4}, {ks*64}, v{KXR}', f'ds_read_b128 {vr(b,4)}, v{b+4}', f'ds_read_b128 {vr(b+4,4)}, v{b+4} offset:4096']
    q = []
    def iss(tag, l):
        for x in l:
            A(x)
            if x.startswith('ds_'): q.append(tag)
    def need(tag):
        if tag not in q: return
        last = max(i for i,t in enumerate(q) if t == tag)
        n = len(q)-1-last
        A(f's_waitcnt lgkmcnt({n})')
        del q[:last+1]
    if FLAG_B1:
        Lb1 = A.newlabel('cA_b1')
        A(f'v_mov_b32 v31, {L_FL+32}\ns_setprio 0')
        A.label(Lb1)
        A(f'ds_read_b128 {vr(VX,4)}, v31')
    iss('A0', rdA(0)); iss('A1', rdA(1)); iss('A2', rdA(2))
    if FLAG_B1:
        A(f"""s_waitcnt lgkmcnt(3)
v_min3_u32 v{VX}, v{VX}, v{VX+1}, v{VX+2}
v_min_u32 v{VX}, v{VX}, v{VX+3}
v_cmp_gt_u32 vcc, s34, v{VX}
s_cbranch_vccnz {Lb1}
s_setprio 3""")
    A(f's_add_u32 s35, s34, 1\ns_lshl_b32 s43, s34, 18')
    pend = []
    def gapfill():
        if pend:
            t, x = pend.pop(0); iss(t, [x])
    for kap in range(8):
        if kap == B2POS:
            while pend: gapfill()
            stamp(A, 1)
            A('s_barrier')
            stamp(A, 2)
            if STAMPS: q.clear()
            iss('A4', rdA(4))
            if B2POS == 3: iss('A5', rdA(5))
            if not X_NOK: load_v('s43')
        m = p1(kap)
        need(f'A{kap}')
        A(m[0]); gapfill(); A(m[1]); gapfill(); A(m[2]); gapfill()
        need(f'T{kap}')
        A(m[3])
        if kap+2 < 8: pend += [(f'T{kap+2}', x) for x in rdT(kap+2, kap%2)]
        if kap == 0: pend += [('A3', x) for x in rdA(3)]
        if B2POS <= kap <= 4: pend += [(f'A{kap+3}', x) for x in rdA(kap+3)]
        if kap == 6: pend += [('K0', x) for x in rdK(0)]
        gapfill()
    while pend: gapfill()
    A(f'v_mov_b32 v30, s35\nv_mov_b32 v31, s50\ns_nop 1')
    for T in range(4):
        a = ACC+T*4
        A(f'v_add_f32 v{a}, v{a}, v{a+1}\nv_add_f32 v{a+2}, v{a+2}, v{a+3}')
    A(f"""v_cvt_pk_bf16_f32 v{ACC+0}, v{ACC+0}, v{ACC+4}
v_cvt_pk_bf16_f32 v{ACC+1}, v{ACC+8}, v{ACC+12}
v_cvt_pk_bf16_f32 v{ACC+2}, v{ACC+2}, v{ACC+6}
v_cvt_pk_bf16_f32 v{ACC+3}, v{ACC+10}, v{ACC+14}
ds_write_b64 v{QKW}, {vr(ACC+0,2)}
ds_write_b64 v{QKW}, {vr(ACC+2,2)} offset:{QS}
ds_write_b32 v31, v30
v_xor_b32 v{STG+12}, 64, v{KXR}
ds_read_b128 {vr(STG+8,4)}, v{STG+12}
ds_read_b128 {vr(STG+12,4)}, v{STG+12} offset:4096
v_mov_b32 v31, {L_FL}
s_cmp_eq_u32 s34, 63
s_cbranch_scc1 {Lfin}""")
    stamp(A, 3)
    Lf = A.newlabel('cA_fl')
    A.label(Lf)
    A(f"""ds_read_b128 {vr(AF,4)}, v31
ds_read_b128 {vr(ACC,4)}, v{QKR}
ds_read_b128 {vr(ACC+4,4)}, v{QKR} offset:{8*QS}
ds_read_b128 {vr(ACC+8,4)}, v{QKR} offset:64
ds_read_b128 {vr(ACC+12,4)}, v{QKR} offset:{8*QS+64}
s_waitcnt lgkmcnt(4)
v_min3_u32 v{AF}, v{AF}, v{AF+1}, v{AF+2}
v_min_u32 v{AF}, v{AF}, v{AF+3}
v_cmp_gt_u32 vcc, s35, v{AF}
s_cbranch_vccnz {Lf}""")
    stamp(A, 4)
    S = AF; M = 30; T1 = 31
    def rdQK(ks):
        b = ACC+(ks%2)*8
        return [f'ds_read_b128 {vr(b,4)}, v{QKR} offset:{ks*64}', f'ds_read_b128 {vr(b+4,4)}, v{QKR} offset:{8*QS+ks*64}']
    def smm(ks):
        b = ACC+(ks%2)*8; k = STG+(ks%2)*8
        r = []
        for t in range(3):
            a = vr(b+4,4) if t == 0 else vr(k+(t-1)*4,4)
            r.append(f'v_mfma_f32_16x16x32_bf16 {vr(S+t*4,4)}, {a}, {vr(b,4)}, {"0" if ks==0 else vr(S+t*4,4)}')
        return r
    A('s_waitcnt lgkmcnt(2)')
    emit(smm(0)); emit(rdQK(2)+rdK(2))
    A('s_waitcnt lgkmcnt(4)')
    emit(smm(1)); emit(rdQK(3)+rdK(3))
    A('s_waitcnt lgkmcnt(4)')
    emit(smm(2))
    A('s_waitcnt lgkmcnt(0)')
    emit(smm(3))
    PX = ACC; PM = ACC+4; VM = ACC+6; ONE = ACC+12; O = STG; LL = STG+8; LR = STG+12
    A(f"""s_nop 2
v_mov_b32 v{VM+1}, 0
v_mov_b32 v{VM+3}, 0
v_mov_b32 v{PM+1}, 0
v_mov_b64 {vr(ONE,2)}, s[68:69]
v_mov_b64 {vr(ONE+2,2)}, s[68:69]
v_max3_f32 v{M}, v{S}, v{S+2}, v{S+4}
v_max3_f32 v{T1}, v{S+5}, v{S+6}, v{S+7}
v_max3_f32 v{M}, v{M}, v{S+8}, v{S+9}
v_max3_f32 v{T1}, v{T1}, v{S+10}, v{S+11}
v_max_f32 v{M}, v{M}, v{T1}
v_mov_b32 v{T1}, v{M}
s_nop 1
v_permlane32_swap_b32 v{T1}, v{M}
v_max_f32 v{M}, v{M}, v{T1}
v_mov_b32 v{T1}, v{M}
s_nop 1
v_permlane16_swap_b32 v{T1}, v{M}
v_max_f32 v{M}, v{M}, v{T1}
v_mul_f32 v{M}, s44, v{M}""")
    for i in [2,3,4,5]:
        A(f'v_pk_fma_f32 {vr(S+2*i,2)}, {vr(S+2*i,2)}, s[44:45], {vr(M,2)} op_sel_hi:[1,1,0] neg_lo:[0,0,1] neg_hi:[0,0,1]')
    A(f'v_fma_f32 v{S}, v{S}, s44, -v{M}\nv_fma_f32 v{S+2}, v{S+2}, s44, -v{M}')
    for i in [4,5,6,7,8,9,10,11,0,2]:
        A(f'v_exp_f32 v{S+i}, v{S+i}')
    stamp(A, 5)
    A('s_barrier')
    stamp(A, 6)
    A(f"""ds_read_b32 v{VM}, v{VMR}
ds_read_b32 v{VM+2}, v{VMR} offset:16
v_cvt_pk_bf16_f32 v{PX}, v{S+4}, v{S+5}
v_cvt_pk_bf16_f32 v{PX+1}, v{S+6}, v{S+7}
v_cvt_pk_bf16_f32 v{PX+2}, v{S+8}, v{S+9}
v_cvt_pk_bf16_f32 v{PX+3}, v{S+10}, v{S+11}
v_cvt_pk_bf16_f32 v{PM}, v{S}, v{S+2}
s_waitcnt vmcnt(0)
v_mfma_f32_16x16x32_bf16 {vr(LL,4)}, {vr(ONE,4)}, {vr(PX,4)}, 0
v_mfma_f32_16x16x32_bf16 {vr(O,4)}, {vr(VX,4)}, {vr(PX,4)}, 0
v_mfma_f32_16x16x32_bf16 {vr(O+4,4)}, {vr(VX+4,4)}, {vr(PX,4)}, 0
v_mfma_f32_16x16x16_bf16 {vr(LL,4)}, {vr(ONE,2)}, {vr(PM,2)}, {vr(LL,4)}
s_waitcnt lgkmcnt(0)
v_mfma_f32_16x16x16_bf16 {vr(O,4)}, {vr(VM,2)}, {vr(PM,2)}, {vr(O,4)}
v_mfma_f32_16x16x16_bf16 {vr(O+4,4)}, {vr(VM+2,2)}, {vr(PM,2)}, {vr(O+4,4)}
s_nop 5
v_rcp_f32 v{LR}, v{LL}
s_nop 0""")
    for i in range(4):
        A(f'v_pk_mul_f32 {vr(O+2*i,2)}, {vr(O+2*i,2)}, {vr(LR,2)} op_sel_hi:[1,0]')
    for r in range(4):
        A(f'v_cvt_pk_bf16_f32 v{S+r}, v{O+r}, v{O+4+r}')
    if FLAG_BO:
        A(f"""v_mov_b32 v30, s35
v_mov_b32 v31, s50
ds_write_b128 v{OW}, {vr(S,4)}
ds_write_b32 v31, v30 offset:16""")
    else:
        A(f"""ds_write_b128 v{OW}, {vr(S,4)}
s_waitcnt lgkmcnt(0)""")
        stamp(A, 7)
        A('s_barrier')
        stamp(A, 8)
    if STEPT:
        Lst = A.newlabel('cA_st')
        A(f"""s_cmp_lg_u32 s15, 0
s_cbranch_scc1 {Lst}
s_cmp_lg_u32 s14, 0
s_cbranch_scc1 {Lst}
s_memrealtime s[94:95]
s_memtime s[96:97]
s_lshl_b32 s58, s34, 3
s_add_u32 s58, s58, {hex(WS_KD)}
s_waitcnt lgkmcnt(0)
s_mov_b64 exec, 1
v_mov_b32 v30, s94
v_mov_b32 v31, s96
v_mov_b32 v18, 0
buffer_store_dwordx2 v[30:31], v18, s[4:7], s58 offen
s_mov_b64 exec, -1""")
        A.label(Lst)
    A(f's_mov_b32 s34, s35\nv_xor_b32 v{KXR}, 0x2000, v{KXR}')
    pre()
    stamp(A, 9)
    A(f's_branch {Lloop}')
    A.label(Lfin)
    A(f"""s_waitcnt lgkmcnt(0)
s_barrier
s_branch {Lexit}""")

def emit_B(A, Lexit):
    IDX = 2; LA = 1
    WB = 0; PST = 3; PLD = 4; MST = 5; T16 = 6; OR = 7; KXA = 8; VMW = 9
    MBR = 12
    VACC = 16
    OA = 24
    D = 32
    AF = 32; STG = 48
    V0W = 64
    A(f'''v_subrev_u32 v46, 256, v0
v_lshlrev_b32 v{T16}, 4, v46''')
    A(f'''s_lshl_b32 s16, s15, 13
s_add_u32 s16, s16, {hex(WS_P)}
s_and_b32 s17, s15, 7
s_lshl_b32 s17, s17, 10
s_lshr_b32 s18, s15, 3
s_lshl_b32 s18, s18, 8
s_add_u32 s17, s17, s18
s_add_u32 s17, s17, {hex(WS_M)}''')
    A(f'''s_lshl_b32 s18, s20, 14
s_add_u32 s18, s18, {L_WB}
v_lshlrev_b32 v{WB}, 4, v40
v_add_u32 v{WB}, s18, v{WB}
s_lshl_b32 s18, s20, 16
s_lshl_b32 s19, s15, 6
s_add_u32 s18, s18, s19
s_add_u32 s18, s18, {hex(WS_P)}
v_and_b32 v50, 3, v41
v_lshlrev_b32 v50, 4, v50
v_lshl_add_u32 v50, v42, 11, v50
v_lshrrev_b32 v51, 2, v41
v_lshl_add_u32 v50, v51, 13, v50
v_add_u32 v{PST}, s18, v50
s_lshl_b32 s18, s20, 11
v_lshlrev_b32 v50, 4, v40
v_add_u32 v{PLD}, s18, v50
s_mov_b32 s59, s16
s_lshl_b32 s18, s20, 1
v_add_u32 v50, s18, v42
v_bfe_u32 v51, v41, 1, 1
v_lshl_add_u32 v50, v50, 1, v51
v_lshlrev_b32 v50, 4, v50
v_and_b32 v51, 1, v41
v_lshl_add_u32 v50, v51, 3, v50
v_add_u32 v{MST}, s17, v50
v_lshrrev_b32 v50, 1, v41
v_mul_u32_u24 v50, {QS}, v50
v_lshl_add_u32 v50, v42, 5, v50
v_and_b32 v51, 1, v41
v_lshl_add_u32 v50, v51, 4, v50
v_add_u32 v{OR}, {L_O}, v50
v_lshlrev_b32 v50, 1, v42
v_xor_b32 v50, v50, v41
v_lshlrev_b32 v50, 4, v50
v_lshl_add_u32 v50, v42, 8, v50
s_lshl_b32 s18, s15, 19
s_and_b32 s19, s20, 1
s_lshl_b32 s19, s19, 12
s_add_u32 s18, s18, s19
s_add_u32 s18, s18, {hex(WS_K)}
v_add_u32 v{KXA}, s18, v50
v_lshlrev_b32 v50, 2, v42
{VMW1 if VMAP else VMW0}
s_add_u32 s18, s18, {L_VM}
v_add_u32 v{VMW}, s18, v50
s_load_dwordx2 s[26:27], s[0:1], {KA_WV}
s_load_dwordx2 s[28:29], s[0:1], {KA_WO}
s_load_dwordx2 s[32:33], s[0:1], {KA_MEM0}
{VOFF1 if VMAP else VOFF0}
v_add_u32 v10, s18, v10            ; v voffset
v_lshlrev_b32 v50, 14, v44
v_lshl_add_u32 v50, v43, 12, v50
v_lshl_add_u32 v50, v41, 4, v50
s_lshl_b32 s18, s15, 17
s_lshl_b32 s19, s20, 8
s_add_u32 s18, s18, s19
v_add_u32 v11, s18, v50
v_lshrrev_b32 v50, 1, v41
v_lshlrev_b32 v50, 10, v50
v_lshl_add_u32 v50, v42, 8, v50
v_and_b32 v51, 1, v41
v_lshl_add_u32 v50, v51, 5, v50
s_and_b32 s18, s20, 1
s_lshl_b32 s18, s18, 7
s_lshr_b32 s19, s20, 1
s_lshl_b32 s19, s19, 3
s_add_u32 s18, s18, s19
v_add_u32 v12, s18, v50
s_waitcnt lgkmcnt(0)''')
    srd(A, 60, 26, 4*1024*1024)
    srd(A, 64, 28, 4*1024*1024)
    srd(A, 8, 32, 8192)
    batches = []
    for q in range(4):
        kp, eta = q//2, q%2
        buf = V0W + (q%2)*32
        def iss(kp=kp, eta=eta, buf=buf):
            for j in range(8):
                A(f"""s_mov_b32 s18, {(64*kp+32*eta+CP[j])*1024}
buffer_load_dwordx4 {vr(buf+j*4,4)}, v11, s[64:67], s18 offen""")
        def proc(kp=kp, eta=eta, buf=buf):
            for t in range(8):
                for p in range(4):
                    A(f'v_perm_b32 v12, v{buf+(2*p+1)*4+t//2}, v{buf+(2*p)*4+t//2}, {"s31" if t%2 else "s30"}\nv_accvgpr_write_b32 a{(t*2+kp)*8+eta*4+p}, v12')
        batches.append((iss, 8, proc))
    for kap in range(8):
        buf = 16 + (kap%3)*16
        def iss(kap=kap, buf=buf):
            for eta in range(2):
                for j in range(8):
                    A(f"""s_mov_b32 s18, {drow(kap,eta,j)*8192}
buffer_load_dword v{buf+eta*8+j}, v10, s[60:63], s18 offen""")
        def proc(kap=kap, buf=buf):
            for eta in range(2):
                for p in range(4):
                    A(f'v_perm_b32 v{V0W+kap*8+eta*4+p}, v{buf+eta*8+2*p+1}, v{buf+eta*8+2*p}, s30')
                for p in range(4):
                    A(f'v_perm_b32 v{12+p}, v{buf+eta*8+2*p+1}, v{buf+eta*8+2*p}, s31')
                A(f'ds_write_b128 v{WB}, v[12:15] offset:{kap*2048+eta*1024}\ns_nop 1')
        batches.append((iss, 16, proc))
    n = len(batches)
    order = []
    issued = set()
    def issue(i):
        if i < n and i not in issued:
            batches[i][0](); issued.add(i); order.append(i)
    issue(0); issue(1); issue(4); issue(5)
    for i in range(n):
        pos = order.index(i)
        out_after = sum(batches[j][1] for j in order[pos+1:])
        A(f's_waitcnt vmcnt({out_after})')
        batches[i][2]()
        if i < 2: issue(i+2)
        elif i == 2: issue(6)
        elif i >= 4: issue(i+3)
    if MARK: MARK(A, 2, 20, 4)
    confirm(A, 16)
    A(f"""s_and_b32 s53, s20, 1
s_lshl_b32 s53, s53, 12
s_add_u32 s53, s53, {L_KX}""")
    def dma_k(sreg, tmp):
        A(f"""s_mov_b32 m0, s53
v_xor_b32 v{tmp}, 128, v{KXA}
buffer_load_dwordx4 v{KXA}, s[4:7], {sreg} offen lds
buffer_load_dwordx4 v{KXA}, s[4:7], {sreg} offen offset:1024 lds
buffer_load_dwordx4 v{tmp}, s[4:7], {sreg} offen offset:2048 lds
buffer_load_dwordx4 v{tmp}, s[4:7], {sreg} offen offset:3072 lds""")
    A(f"""v_add_u32 v{T16}, {L_MA}, v{T16}
v_bfe_u32 v16, v{LA}, 4, 4
v_bfe_u32 v17, v{LA}, 8, 2
s_lshl_b32 s18, s20, 2
s_add_u32 s18, s18, 8
v_add_u32 v18, s18, v17
v_mul_u32_u24 v18, {QS}, v18
v_lshl_add_u32 v18, v16, 4, v18
v_add_u32 v18, {L_QK}, v18
s_lshl_b32 s18, s20, 10
s_add_u32 s18, s18, {L_VM-2048-L_MA}
v_add_u32 v19, s18, v{LA}
s_cmp_lt_u32 s20, 2
s_cselect_b64 vcc, -1, 0
v_cndmask_b32 v11, v19, v18, vcc
s_lshl_b32 s19, s15, 11
s_and_b32 s18, s20, 1
s_lshl_b32 s18, s18, 10
s_add_u32 s18, s18, s19
s_cmp_lt_u32 s20, 2
s_mov_b32 s57, {hex(WS_VMT-L_MA)}
s_cselect_b32 s57, {hex(WS_KM-L_MA)}, s57
s_add_u32 s57, s57, s18
s_cmp_eq_u32 s20, 1
s_cselect_b32 s87, 2, 0x7fff
s_waitcnt vmcnt(0) lgkmcnt(0)
s_barrier""")
    kv_ready(A, 0, 16)
    if MARK: MARK(A, 3, 20, 4)
    Ld0 = A.newlabel('cB_d0')
    A(f"""s_mov_b32 s18, 0
s_cmp_lt_u32 s20, 2
s_cbranch_scc1 {Ld0}""")
    dma_k('s18', 16)
    A.label(Ld0)
    A('s_waitcnt vmcnt(0)')
    Lcw = A.newlabel('cb_wait'); Lcs = A.newlabel('cb_spin')
    A(f"""s_cmp_lg_u32 s20, 0
s_cbranch_scc1 {Lcw}
s_mov_b64 exec, 1
v_mov_b32 v17, 36""")
    A.label(Lcs)
    A(f"""global_load_dword v16, v17, s[12:13] sc1
s_waitcnt vmcnt(0)
v_readfirstlane_b32 s18, v16
s_cmp_lt_u32 s18, 128
s_cbranch_scc1 {Lcs}
s_mov_b64 exec, -1""")
    A.label(Lcw)
    A(f"""s_barrier
s_mov_b32 s34, 0
s_mov_b32 s35, 8192
s_mov_b32 s36, 0
s_lshl_b32 s50, s15, 13
s_add_u32 s50, s50, {hex(WS_VT - L_MA*4)}
s_and_b32 s51, s20, 1
s_lshl_b32 s51, s51, 12
s_add_u32 s50, s50, s51
s_mov_b32 s46, 0x000f000f
s_mov_b32 s47, 0
s_mov_b32 s89, 0x3f80
s_lshl_b32 s60, s20, 2
s_add_u32 s60, s60, {L_FL}""")
    if TIMING: A('s_memtime s[62:63]\ns_waitcnt lgkmcnt(0)')
    def emit(l):
        for x in l: A(x)
    TS = [STG, STG+8, OA]
    def rdT(kap): return [f'ds_read_b128 {vr(TS[kap%3]+eta*4,4)}, v{WB} offset:{kap*2048+eta*1024}' for eta in range(2)]
    def rdA(kap): return [f'ds_read_b128 {vr(AF+(kap%4)*4,4)}, v{LA} offset:{kap*1024}']
    def p2(kap):
        a = AF+(kap%4)*4
        return [smf_s(VACC, a, V0W+kap*8, False, IDX), smf_s(VACC+4, a, TS[kap%3], False, IDX)]
    stamp_init(A)
    Lloop = A.newlabel('cB_loop'); Lfin = A.newlabel('cB_fin')
    if TPRE: emit(rdT(0)+rdT(1))
    A('s_waitcnt lgkmcnt(0)')
    A.raw('.p2align 6')
    A.label(Lloop)
    if not FLAG_B1:
        A('s_barrier')
        stamp(A, 0)
    Lnob = A.newlabel('cB_nob'); Lpb = A.newlabel('cB_pb'); Lok = A.newlabel('cB_okb')
    A(f"""s_cmp_eq_u32 s34, 0
s_cbranch_scc1 {Lnob}
ds_read_b128 {vr(OA,4)}, v11""")
    A.label(Lpb)
    A(f"""s_waitcnt vmcnt(0)
v_max3_u32 v{VACC}, v{MBR}, v{MBR+1}, v{MBR+2}
v_max_u32 v{VACC}, v{VACC}, v{MBR+3}
v_cmp_eq_u32 vcc, -1, v{VACC}
s_cbranch_vccz {Lok}""")
    spin(A, Lexit)
    A(f"""buffer_load_dwordx4 {vr(MBR,4)}, v{T16}, s[4:7], s40 offen sc1
s_branch {Lpb}""")
    A.label(Lok)
    A(f"""ds_write_b128 v{T16}, {vr(MBR,4)} offset:4096
s_waitcnt lgkmcnt(0)""")
    A.label(Lnob)
    stamp(A, 1)
    A('s_barrier')
    stamp(A, 2)
    Lnk = A.newlabel('cB_nk'); Lnw = A.newlabel('cB_nw')
    A('s_add_u32 s41, s34, 1')
    emit(rdA(0)+rdA(1)+rdA(2)+rdA(3)+([] if TPRE else rdT(0)+rdT(1)))
    A(f"""s_and_b32 s37, s34, 1
s_lshl_b32 s37, s37, 18
s_bfe_u32 s38, s34, 0x10001
s_add_u32 s52, s37, s59
s_add_u32 s51, s52, 1024
s_xor_b32 s53, s53, 0x2000""")
    Lnp = A.newlabel('cB_np'); Lpa = A.newlabel('cB_pa')
    A(f"""s_cmp_eq_u32 s34, 0
s_cbranch_scc1 {Lnp}
s_lshl_b32 s58, s34, 16
s_add_u32 s58, s58, s57
s_sub_u32 s58, s58, 0x10000
v_min_u32 v{OA}, -2, v{OA}
v_min_u32 v{OA+2}, -2, v{OA+2}
{'s_nop 0' if X_NOPUB else f'buffer_store_dwordx4 {vr(OA,4)}, v{LA}, s[4:7], s58 offen sc1'}""")
    A.label(Lnp)
    A(f"""s_cmp_lt_u32 s34, s87
s_cbranch_scc1 {Lpa}
s_mov_b64 exec, 1
s_sub_u32 s58, s34, 1
v_mov_b32 v{MBR+2}, s58
v_mov_b32 v{MBR+3}, 8
buffer_store_byte v{MBR+2}, v{MBR+3}, s[4:7], s81 offen sc1
s_mov_b64 exec, -1""")
    A.label(Lpa)
    Lnw2 = A.newlabel('cB_nw2')
    A(f"""s_cmp_ge_u32 s34, {0 if X_NOK else 63}
s_cbranch_scc1 {Lnw2}""")
    Lka = A.newlabel('cB_ka')
    A(f"""s_cmp_ge_u32 s80, 64
s_cbranch_scc1 {Lka}
s_cmp_eq_u32 s34, 0
s_cbranch_scc1 {Lka}""")
    kv_decode(A, 10)
    A.label(Lka)
    kv_ready(A, 's41', MBR+1)
    Lk2 = A.newlabel('cB_k2')
    A(f"""s_cmp_lt_u32 s20, 2
s_cbranch_scc0 {Lk2}
v_lshlrev_b32 v{MBR}, 2, v{LA}
s_lshl_b32 s54, s41, 18
s_add_u32 s54, s54, s50
s_mov_b32 m0, {L_MISC+256}
s_nop 0
buffer_load_dword v{MBR}, s[4:7], s54 offen lds
s_branch {Lnw2}""")
    A.label(Lk2)
    A('s_lshl_b32 s42, s41, 13')
    dma_k('s42', MBR)
    A.label(Lnw2)
    Lkb = A.newlabel('cB_kb')
    A(f"""s_cmp_ge_u32 s80, 64
s_cbranch_scc1 {Lkb}
v_mov_b32 v{MBR+1}, s81
buffer_load_dword v10, v{MBR+1}, s[4:7], 0 offen sc1""")
    A.label(Lkb)
    for i in range(4): A(f'v_mov_b64 {vr(VACC+2*i,2)}, 0')
    emit(rdT(2))
    if BDELAY:
        Lvf = A.newlabel('cB_vf')
        A(f'v_mov_b32 v{MBR}, s60')
        A.label(Lvf)
        A(f"""ds_read_b32 v{MBR+1}, v{MBR}
s_waitcnt lgkmcnt(0)
v_cmp_gt_u32 vcc, s41, v{MBR+1}
s_cbranch_vccnz {Lvf}""")
    else:
        A('s_waitcnt lgkmcnt(0)')
    stamp(A, 3)
    q = []
    def iss(tag, l):
        for x in l:
            A(x); q.append(tag)
    def need(tag):
        if tag not in q: return
        last = max(i for i,t in enumerate(q) if t == tag)
        A(f's_waitcnt lgkmcnt({len(q)-1-last})')
        del q[:last+1]
    for kap in range(8):
        m = p2(kap)
        need(f'A{kap}'); A(m[0])
        need(f'T{kap}'); A(m[1])
        if kap+3 < 8: iss(f'T{kap+3}', rdT(kap+3))
        if kap+4 < 8: iss(f'A{kap+4}', rdA(kap+4))
    A('s_nop 7')
    for T in range(2):
        a = VACC+T*4
        A(f"""v_add_f32 v{a}, v{a}, v{a+1}
v_add_f32 v{a+2}, v{a+2}, v{a+3}
v_cvt_pk_bf16_f32 v{a}, v{a}, v{a+2}
ds_write_b32 v{VMW}, v{a} offset:{16*T}""")
    A(f"""v_mov_b64 {vr(OA,2)}, 0
v_mov_b64 {vr(OA+2,2)}, 0
s_waitcnt lgkmcnt(0)""")
    stamp(A, 4)
    A(f"""s_barrier
s_cmp_eq_u32 s34, 63
s_cbranch_scc1 {Lfin}
v_mfma_f32_32x32x16_bf16 {vr(D,16)}, {vr(OA,4)}, {vr(OA,4)}, 0
v_mfma_f32_32x32x16_bf16 {vr(D+16,16)}, {vr(OA,4)}, {vr(OA,4)}, 0""")
    X = VACC
    A(f"""v_bfe_u32 v{MBR}, v{LA}, 5, 3
v_and_b32 v{MBR+1}, 16, v{LA}
v_lshlrev_b32_e64 v{MBR+1}, v{MBR+1}, s89""")
    for p in range(4):
        A(f"""v_cmp_eq_u32 vcc, {p}, v{MBR}
s_nop 1
v_cndmask_b32 v{X+p}, 0, v{MBR+1}, vcc""")
    A(f"""v_mov_b32 v{MBR+2}, -1
v_mov_b32 v{MBR+3}, -1
s_mov_b32 s41, s37
s_add_u32 s40, s35, {hex(WS_M - L_MA)}
s_nop 0""")
    if FLAG_BO:
        Lbo = A.newlabel('cB_bo')
        A(f's_add_u32 s61, s34, 1\nv_mov_b32 v10, {L_FL+16}')
        A.label(Lbo)
        A(f"""ds_read_b128 {vr(X+4,4)}, v10
ds_read_b128 {vr(OA,4)}, v{OR}
ds_read_b128 {vr(OA+4,4)}, v{OR} offset:128
s_waitcnt lgkmcnt(2)
v_min3_u32 v{X+4}, v{X+4}, v{X+5}, v{X+6}
v_min_u32 v{X+4}, v{X+4}, v{X+7}
v_cmp_gt_u32 vcc, s61, v{X+4}
s_cbranch_vccnz {Lbo}
s_setprio 3
s_waitcnt lgkmcnt(0)""")
    else:
        A('s_setprio 3\ns_barrier')
        stamp(A, 5)
        A(f"""ds_read_b128 {vr(OA,4)}, v{OR}
ds_read_b128 {vr(OA+4,4)}, v{OR} offset:128
s_waitcnt lgkmcnt({1 if OASPLIT else 0})""")
    def dpost_l(tq):
        a = D+tq*16
        r = []
        for t in range(4):
            r += [f'v_add_f32 v{a+4*t}, v{a+4*t}, v{a+4*t+1}', f'v_add_f32 v{a+4*t+2}, v{a+4*t+2}, v{a+4*t+3}']
        r += [f'v_cvt_pk_bf16_f32 v{a}, v{a}, v{a+4}', f'v_cvt_pk_bf16_f32 v{a+1}, v{a+8}, v{a+12}',
              f'v_cvt_pk_bf16_f32 v{a+2}, v{a+2}, v{a+6}', f'v_cvt_pk_bf16_f32 v{a+3}, v{a+10}, v{a+14}',
              f'v_and_or_b32 v{a}, v{a}, -2, s38',
              f'buffer_store_dwordx4 {vr(a,4)}, v{PST}, s[4:7], s41 offen']
        return r
    def pd(t):
        return [smf_s(D+t*4, OA, (t*2+0)*8, True, IDX), smf_s(D+t*4, OA+4, (t*2+1)*8, True, IDX)]
    def weave(mf, fill):
        fill = list(fill)
        for m in mf:
            A(m)
            if fill: A(fill.pop(0))
        for f in fill: A(f)
    if OASPLIT:
        A(pd(0)[0]); A(pd(1)[0]); A('s_waitcnt lgkmcnt(0)'); A(pd(0)[1]); A(pd(1)[1])
        weave(pd(2)+pd(3), [])
    else:
        weave(pd(0)+pd(1)+pd(2)+pd(3), [])
    p0 = dpost_l(0)
    weave(pd(4), p0[:2])
    emit(p0[2:])
    weave(pd(5)+pd(6)+pd(7), ['s_add_u32 s41, s41, 32768'])
    A('s_nop 1')
    emit(dpost_l(1))
    stamp(A, 6)
    PP = OA
    LpP = A.newlabel('cB_pollP'); LokP = A.newlabel('cB_okP')
    def ldP():
        A(f"""buffer_load_dwordx4 {vr(PP,4)}, v{PLD}, s[4:7], s52 offen sc1
buffer_load_dwordx4 {vr(PP+4,4)}, v{PLD}, s[4:7], s51 offen sc1""")
    if PDELAY: A(f's_sleep {PDELAY}')
    if PDELAY2:
        Lp2 = A.newlabel('cB_pd2')
        A(f's_bitcmp0_b32 s15, 2\ns_cbranch_scc1 {Lp2}\ns_sleep {PDELAY2}')
        A.label(Lp2)
    def gap(n):
        while n > 0:
            k = min(n, 16); A(f's_nop {k-1}'); n -= k
    if not PIPE_P:
        ldP()
        A.label(LpP)
        A(f"""s_waitcnt vmcnt(0)
v_xor_b32 v{MBR}, s38, v{PP}
v_xor_b32 v{MBR+1}, s38, v{PP+4}
v_or_b32 v{MBR}, v{MBR}, v{MBR+1}
v_and_b32 v{MBR}, 1, v{MBR}
v_cmp_ne_u32 vcc, 0, v{MBR}
s_cbranch_vccz {LokP}""")
        spin(A, Lexit)
        ldP()
        A(f's_branch {LpP}')
        A.label(LokP)
        stamp(A, 7)
        A(f"""v_mfma_f32_16x16x32_bf16 {vr(X+4,4)}, {vr(X,4)}, {vr(PP,4)}, 0
v_mfma_f32_16x16x32_bf16 {vr(X+4,4)}, {vr(X,4)}, {vr(PP+4,4)}, {vr(X+4,4)}""")
    else:
        PQ = D+24
        def ldP2(r):
            A(f"""buffer_load_dwordx4 {vr(r,4)}, v{PLD}, s[4:7], s52 offen sc1
buffer_load_dwordx4 {vr(r+4,4)}, v{PLD}, s[4:7], s51 offen sc1""")
        def chkP(r, Lok):
            A(f"""v_xor_b32 v{MBR}, s38, v{r}
v_xor_b32 v{MBR+1}, s38, v{r+4}
v_or_b32 v{MBR}, v{MBR}, v{MBR+1}
v_and_b32 v{MBR}, 1, v{MBR}
v_cmp_ne_u32 vcc, 0, v{MBR}
s_cbranch_vccz {Lok}""")
        LokP1 = A.newlabel('cB_okP1'); LokP2 = A.newlabel('cB_okP2')
        ldP2(PP); gap(PGAP); ldP2(PQ)
        A.label(LpP)
        A('s_waitcnt vmcnt(2)')
        chkP(PP, LokP)
        ldP2(PP)
        A('s_waitcnt vmcnt(2)')
        chkP(PQ, LokP1)
        ldP2(PQ)
        spin(A, Lexit)
        A(f's_branch {LpP}')
        A.label(LokP1)
        A(f"""v_mfma_f32_16x16x32_bf16 {vr(X+4,4)}, {vr(X,4)}, {vr(PQ,4)}, 0
v_mfma_f32_16x16x32_bf16 {vr(X+4,4)}, {vr(X,4)}, {vr(PQ+4,4)}, {vr(X+4,4)}
s_branch {LokP2}""")
        A.label(LokP)
        A(f"""v_mfma_f32_16x16x32_bf16 {vr(X+4,4)}, {vr(X,4)}, {vr(PP,4)}, 0
v_mfma_f32_16x16x32_bf16 {vr(X+4,4)}, {vr(X,4)}, {vr(PP+4,4)}, {vr(X+4,4)}""")
        A.label(LokP2)
    A(f"""s_mov_b32 s56, s36
s_mov_b32 s36, s35
s_add_u32 s34, s34, 1
s_nop 4""")
    for sh in (4, 8):
        for r in range(4):
            A(f'v_add_f32_dpp v{X+4+r}, v{X+4+r}, v{X+4+r} row_ror:{sh} row_mask:0xf bank_mask:0xf')
    M0 = D
    A(f"""s_mov_b64 exec, s[46:47]
v_cvt_pk_bf16_f32 v{MBR}, v{X+4}, v{X+5}
v_cvt_pk_bf16_f32 v{MBR+1}, v{X+6}, v{X+7}
v_min_u32 v{MBR}, -2, v{MBR}
v_min_u32 v{MBR+1}, -2, v{MBR+1}
buffer_store_dwordx2 {vr(MBR,2)}, v{MST}, s[4:7], s35 offen
buffer_store_dwordx2 {vr(MBR+2,2)}, v{MST}, s[4:7], s56 offen
s_mov_b64 exec, -1
s_add_u32 s35, s35, 8192
s_cmp_eq_u32 s35, 24576
s_cselect_b32 s35, 0, s35
s_add_u32 s56, s40, 4096""")
    stamp(A, 8)
    if TPRE: emit(rdT(0)+rdT(1))
    if MDELAY: A(f's_sleep {MDELAY}')
    LpM = A.newlabel('cB_pollM'); LokM = A.newlabel('cB_okM')
    def ldM(r): A(f'buffer_load_dwordx4 {vr(r,4)}, v{T16}, s[4:7], s40 offen sc1')
    def chkM(r, Lok):
        A(f"""v_max3_u32 v{M0+8}, v{r}, v{r+1}, v{r+2}
v_max_u32 v{M0+8}, v{M0+8}, v{r+3}
v_cmp_eq_u32 vcc, -1, v{M0+8}
s_cbranch_vccz {Lok}""")
    if not PIPE_M:
        ldM(M0)
        A.label(LpM)
        A('s_waitcnt vmcnt(0)')
        chkM(M0, LokM)
        spin(A, Lexit)
        ldM(M0)
        A(f's_branch {LpM}')
        A.label(LokM)
        stamp(A, 9)
        A(f'ds_write_b128 v{T16}, {vr(M0,4)}')
    else:
        M1 = M0+4
        Lok1 = A.newlabel('cB_okM1'); Lok2 = A.newlabel('cB_okM2')
        ldM(M0); gap(PGAP); ldM(M1)
        A.label(LpM)
        A('s_waitcnt vmcnt(1)')
        chkM(M0, LokM)
        ldM(M0)
        A('s_waitcnt vmcnt(1)')
        chkM(M1, Lok1)
        ldM(M1)
        spin(A, Lexit)
        A(f's_branch {LpM}')
        A.label(Lok1)
        A(f'ds_write_b128 v{T16}, {vr(M1,4)}\ns_branch {Lok2}')
        A.label(LokM)
        A(f'ds_write_b128 v{T16}, {vr(M0,4)}')
        A.label(Lok2)
    A(f"""{f'v_mov_b32 v{M0+8}, s34' if FLAG_B1 else 's_nop 0'}
{f'v_mov_b32 v{M0+9}, s60' if FLAG_B1 else 's_nop 0'}
{f'ds_write_b32 v{M0+9}, v{M0+8} offset:32' if FLAG_B1 else 's_nop 0'}
buffer_load_dwordx4 {vr(MBR,4)}, v{T16}, s[4:7], s56 offen sc1
s_mov_b32 s40, s56
s_setprio {BPRIO}
s_waitcnt lgkmcnt(0)
s_branch {Lloop}""")
    A.label(Lfin)
    if TIMING:
        A(f"""s_memtime s[64:65]
s_waitcnt lgkmcnt(0)
s_sub_u32 s64, s64, s62
v_mov_b32 v16, s64
s_lshl_b32 s18, s15, 2
s_add_u32 s18, s18, 64
v_mov_b32 v17, s18
s_mov_b64 exec, 1
global_store_dword v17, v16, s[12:13]
s_mov_b64 exec, -1""")
    A(f"""ds_read_b128 {vr(OA,4)}, v11
s_lshl_b32 s58, s34, 16
s_add_u32 s58, s58, s57
s_waitcnt lgkmcnt(0)
v_min_u32 v{OA}, -2, v{OA}
v_min_u32 v{OA+2}, -2, v{OA+2}
buffer_store_dwordx4 {vr(OA,4)}, v{LA}, s[4:7], s58 offen sc1
s_waitcnt vmcnt(0)
s_barrier
s_cmp_lg_u32 s20, 1
s_cbranch_scc1 {Lexit}
s_mov_b64 exec, 1
v_mov_b32 v16, 64
v_mov_b32 v17, 8
buffer_store_byte v16, v17, s[4:7], s81 offen sc1
s_mov_b64 exec, -1""")
```

```python
from asmlib import *
import k_chain, k_chain8, k_qkv3, k_ssm, k_tail3, k_elect
PROF = False
NOTAIL = False
TOUCH = True
WSLEEP = 0
CTIMING = False
def mark(A, i, t=120, wv=0):
    if not PROF: return
    L = A.newlabel('mk')
    A(f"""s_cmp_lg_u32 s14, {wv}
s_cbranch_scc1 {L}
s_memrealtime s[94:95]
s_lshl_b32 s96, s2, 6
s_add_u32 s96, s96, {hex(WS_KD)}
s_waitcnt lgkmcnt(0)
s_mov_b64 exec, 1
v_mov_b32 v{t}, s94
v_mov_b32 v{t+1}, 0
buffer_store_dword v{t}, v{t+1}, s[4:7], s96 offen offset:{4*i}
s_waitcnt vmcnt(0)
s_mov_b64 exec, -1""")
    A.label(L)
def emit_mega(A, name='mega_kernel'):
    kernel_header(A, name)
    Lend = A.newlabel('mg_end'); Lworker = A.newlabel('mg_worker')
    A(f"""s_cmp_ge_u32 s2, 256
s_cbranch_scc1 {Lend}
s_load_dwordx2 s[22:23], s[0:1], {KA_WS}
s_load_dwordx2 s[12:13], s[0:1], {KA_DBG}
v_lshrrev_b32 v16, 6, v0
s_nop 0
v_readfirstlane_b32 s14, v16
s_waitcnt lgkmcnt(0)""")
    srd(A, 4, 22, WS_SIZE)
    k_chain.MERGED = True
    mark(A, 0)
    k_chain8.MARK = mark if PROF else None
    k_chain8.TIMING = CTIMING
    if TOUCH:
        A(f"""s_lshr_b32 s24, s2, 6
s_lshl_b32 s24, s24, 3
s_add_u32 s24, s24, {KA_WQ}
s_load_dwordx2 s[26:27], s[0:1], s24
s_and_b32 s25, s2, 63
s_lshl_b32 s25, s25, 16
v_lshlrev_b32 v124, 4, v0
s_waitcnt lgkmcnt(0)""")
        srd(A, 28, 26, 4*1024*1024)
        for i in range(8):
            A(f's_add_u32 s24, s25, {i*8192}\nbuffer_load_dwordx4 v[{92+4*i}:{95+4*i}], v124, s[28:31], s24 offen')
    k_elect.emit_ticket(A)
    Lchain = A.newlabel('mg_chain'); Lres = A.newlabel('mg_res')
    A(f"""s_mov_b32 s75, 1
s_mov_b32 s15, s79
s_cmp_eq_u32 s78, {k_elect.PREF}
s_cselect_b32 s24, s79, 0xffff
s_cmp_lt_u32 s24, 32
s_cbranch_scc1 {Lchain}""")
    A.label(Lres)
    Lr0 = A.newlabel('mg_r0')
    A(f's_cmp_lg_u32 s14, 0\ns_cbranch_scc1 {Lr0}')
    k_elect.emit_resolve(A)
    A(f"""v_mov_b32 v24, s15
v_mov_b32 v25, s90
v_mov_b32 v22, {k_elect.L_E+16}
ds_write_b64 v22, v[24:25]
s_waitcnt lgkmcnt(0)""")
    A.label(Lr0)
    A(f"""s_barrier
v_mov_b32 v22, {k_elect.L_E+16}
ds_read_b64 v[24:25], v22
s_waitcnt lgkmcnt(0)
v_readfirstlane_b32 s15, v24
v_readfirstlane_b32 s90, v25
s_barrier""")
    A(f"""s_mov_b32 s75, 0
s_cmp_ge_u32 s15, 32
s_cbranch_scc1 {Lworker}""")
    A.label(Lchain)
    mark(A, 1)
    Ldiv = A.newlabel('mg_div')
    k_chain8.DIVERT = Ldiv
    k_chain8.emit_chain8(A)
    mark(A, 7, 30)
    A('s_endpgm')
    A.label(Ldiv)
    A('s_barrier')
    A.label(Lworker)
    A(f"""s_cmp_ge_u32 s90, 224
s_cbranch_scc1 {Lend}
s_cmp_ge_u32 s14, 4
s_cbranch_scc1 {Lend}""")
    mark(A, 1)
    for _ in range(WSLEEP): A('s_sleep 127')
    Lssm0 = A.newlabel('mg_ssm0'); Lssm = A.newlabel('mg_ssm'); Ltail = A.newlabel('mg_tail')
    A(f"""s_cmp_ge_u32 s90, 192
s_cbranch_scc1 {Lssm0}
s_mov_b32 s15, s90""")
    k_qkv3.emit_qkv_body(A)
    mark(A, 2)
    A(f"""s_cmp_ge_u32 s90, 64
s_cbranch_scc1 {Ltail}
s_add_u32 s91, s90, 64
s_mov_b32 s92, 1
s_branch {Lssm}""")
    A.label(Lssm0)
    A(f"""s_sub_u32 s91, s90, 192
s_lshl_b32 s91, s91, 1
s_mov_b32 s92, 2""")
    A.label(Lssm)
    A('s_mov_b32 s15, s91')
    k_ssm.emit_ssm_body(A, st=' sc1')
    Ls = A.newlabel('mg_sd')
    A(f"""s_cmp_lg_u32 s14, 0
s_cbranch_scc1 {Ls}
s_mov_b64 exec, 1
v_mov_b32 v20, 1
v_mov_b32 v21, 44
global_atomic_add v21, v20, s[12:13]
s_mov_b64 exec, -1""")
    A.label(Ls)
    A(f"""s_add_u32 s91, s91, 1
s_sub_u32 s92, s92, 1
s_cmp_lg_u32 s92, 0
s_cbranch_scc1 {Lssm}""")
    A.label(Ltail)
    mark(A, 3)
    A(f"""s_lshr_b32 s15, s90, 5
s_lshl_b32 s15, s15, 2
s_lshr_b32 s15, 0x3456021, s15
s_and_b32 s15, s15, 7
s_lshl_b32 s15, s15, 5
s_and_b32 s91, s90, 31
s_add_u32 s15, s15, s91""")
    if not NOTAIL: k_tail3.emit_tail_body(A)
    mark(A, 4)
    A.label(Lend)
    A('s_endpgm')
```

```python
from asmlib import *
VW = 128
VACC = 64
VX = 80
VDMA = 8
VRD = 16
VST = 32
VPK = 24
def emit_qkv_body(A, publish=True):
    A(f'''s_lshr_b32 s68, s15, 1          ; ct
s_and_b32 s69, s15, 1           ; par
s_lshr_b32 s70, s68, 5          ; mat
s_and_b32 s71, s68, 31          ; h
s_lshl_b32 s72, s70, 3
s_add_u32 s72, s72, {KA_WQ}
s_load_dwordx2 s[8:9], s[0:1], {KA_X}
s_load_dwordx2 s[10:11], s[0:1], s72
v_and_b32 v1, 63, v0
v_and_b32 v3, 15, v1
v_lshrrev_b32 v4, 4, v1
s_waitcnt lgkmcnt(0)''')
    srd(A, 16, 8, 2048*1024)
    srd(A, 20, 10, 4*1024*1024)
    A(f'''v_lshlrev_b32 v5, 16, v4
s_lshl_b32 s28, s71, 8
s_lshl_b32 s29, s14, 6
s_add_u32 s28, s28, s29
v_lshl_add_u32 v5, v3, 2, v5
v_add_u32 v5, s28, v5
s_mov_b32 s30, 0x05040100
s_mov_b32 s31, 0x07060302
s_lshl_b32 s32, s14, 3''')
    for rr in range(8):
        A(f'''s_add_u32 s33, s32, {rr}
s_and_b32 s33, s33, 15
v_xor_b32 v{VDMA+rr}, s33, v1
v_lshlrev_b32 v{VDMA+rr}, 4, v{VDMA+rr}''')
    for q in range(4):
        A(f'''v_add_u32 v6, {4*q}, v4
v_xor_b32 v6, v6, v3
v_lshlrev_b32 v6, 4, v6
v_lshl_add_u32 v{VRD+q}, v3, 10, v6
v_add_u32 v{VRD+4+q}, 0x10000, v{VRD+q}''')
    A(f'''s_mov_b32 s34, s69
s_lshl_b32 s36, s32, 10''')
    def dma(buf, segreg):
        A(f'''s_lshl_b32 s35, {segreg}, 15
s_add_u32 s35, s35, s36''')
        for rr in range(8):
            A(f'''s_add_u32 m0, s36, {buf*32768 + rr*1024}
s_add_u32 s37, s35, {rr*1024}
buffer_load_dwordx4 v{VDMA+rr}, s[16:19], s37 offen lds''')
    dma(0, 's34')
    A(f"""v_lshlrev_b32 v5, 13, v4
v_lshl_add_u32 v5, v3, 4, v5
s_lshl_b32 s28, s71, 8
v_add_u32 v5, s28, v5
s_lshl_b32 s38, s14, 20          ; 128w*8192
s_lshl_b32 s39, s14, 15
s_add_u32 s39, s39, 32768""")
    for i in range(32):
        A(f"""s_add_u32 m0, s39, {i*1024}
s_add_u32 s40, s38, {i*4*8192}
buffer_load_dwordx4 v5, s[20:23], s40 offen lds""")
    A(f"""v_lshrrev_b32 v34, 2, v3
v_lshl_add_u32 v34, v4, 3, v34
v_lshlrev_b32 v34, 8, v34
v_and_b32 v35, 3, v3
v_lshl_add_u32 v34, v35, 4, v34
s_add_u32 s40, s29, 32768
v_add_u32 v34, s40, v34
v_add_u32 v35, 0x10000, v34
s_waitcnt vmcnt(0)
s_barrier""")
    for i in range(16):
        for T in range(2):
            for hh in range(2):
                A(f'ds_read_b64_tr_b16 {ar((i*2+T)*4+2*hh,2)}, v{34+i//8} offset:{(i%8)*8192+T*8+hh*1024}')
        if i % 3 == 2: A('s_waitcnt lgkmcnt(0)')
    A("""s_waitcnt lgkmcnt(0)
s_barrier""")
    A('s_add_u32 s42, s34, 2')
    dma(1, 's42')
    A('s_add_u32 s42, s34, 4')
    dma(2, 's42')
    A(f'''s_lshl_b32 s73, s71, 7
s_add_u32 s75, s70, 2
s_cmp_ge_u32 s75, 3
s_cselect_b32 s74, 3, 0
s_sub_u32 s75, s75, s74
s_lshl_b32 s75, s75, 1
s_add_u32 s73, s73, s75
s_add_u32 s73, s73, s69
s_add_u32 s73, s73, {hex(WS_QF)}
v_mov_b32 v7, s73''')
    if publish:
        Lzi = A.newlabel('qkv_zi'); Lzo = A.newlabel('qkv_zo')
        A(f'''s_cmp_lg_u32 s14, 0
s_cbranch_scc1 {Lzo}
v_mov_b32 v6, 56''')
        A.label(Lzi)
        A(f'''global_load_dword v33, v6, s[12:13] sc1
s_waitcnt vmcnt(0)
v_readfirstlane_b32 s75, v33
s_cmp_ge_u32 s75, 32
s_cbranch_scc1 {Lzo}
s_sleep 8
s_branch {Lzi}''')
        A.label(Lzo)
    Lv = A.newlabel('qkv_v'); Ldone = A.newlabel('qkv_done')
    A(f'''s_cmp_eq_u32 s70, 2
s_cbranch_scc1 {Lv}''')
    ST = ' sc1' if publish else ''
    nseg = 32
    for isv in (0, 1):
        if isv == 0:
            A(f'''s_lshl_b32 s39, s70, 24
s_lshl_b32 s40, s71, 19
s_add_u32 s39, s39, s40
s_add_u32 s39, s39, s29
v_lshlrev_b32 v{VST}, 8, v3
v_lshl_add_u32 v{VST}, v4, 4, v{VST}
v_add_u32 v{VST}, s39, v{VST}''')
        else:
            A.label(Lv)
            A(f'''s_lshl_b32 s39, s71, 13
s_lshl_b32 s40, s14, 11
s_add_u32 s39, s39, s40
s_add_u32 s39, s39, {hex(WS_VT)}
v_lshrrev_b32 v{VST}, 2, v3
v_lshlrev_b32 v{VST}, 3, v{VST}
v_and_b32 v34, 3, v3
v_add_u32 v{VST}, v{VST}, v34
v_lshlrev_b32 v{VST}, 6, v{VST}
v_lshl_add_u32 v{VST}, v4, 4, v{VST}
v_add_u32 v{VST}, s39, v{VST}''')
        Lloop = A.newlabel('qkv_loop')
        A('s_mov_b32 s41, 0\ns_mov_b32 s74, -3')
        A.label(Lloop)
        for buf in range(4):
            A('''s_waitcnt vmcnt(22)
s_barrier''')
            if publish:
                Lnp = A.newlabel('qkv_np')
                A(f'''s_cmp_lg_u32 s14, 0
s_cbranch_scc1 {Lnp}
s_cmp_lt_i32 s74, 3
s_cbranch_scc1 {Lnp}
v_mov_b32 v6, s74
s_mov_b64 exec, 1
buffer_store_byte v6, v7, s[4:7], 0 offen sc1
s_mov_b64 exec, -1''')
                A.label(Lnp)
                A('s_add_u32 s74, s74, 1')
            A(f'''s_add_u32 s42, s34, 6
s_min_u32 s42, s42, 63''')
            dma((buf+3)%4, 's42')
            def rd(i, st):
                for mt in range(2):
                    A(f'ds_read_b128 {vr(VX+st*8+mt*4,4)}, v{VRD+(buf//2)*4+i%4} offset:{(i//4)*256+mt*16384+(buf%2)*32768}')
            rd(0, 0)
            for i in range(16):
                st = i % 2
                if i < 15:
                    rd(i+1, 1-st)
                    A('s_waitcnt lgkmcnt(2)')
                else:
                    A('s_waitcnt lgkmcnt(0)')
                for mt in range(2):
                    for T in range(2):
                        acc = vr(VACC+(mt*2+T)*4, 4)
                        c = '0' if i == 0 else acc
                        wf = ar((i*2+T)*4, 4); xf = vr(VX+st*8+mt*4, 4)
                        if isv: A(f'v_mfma_f32_16x16x32_bf16 {acc}, {xf}, {wf}, {c}')
                        else:   A(f'v_mfma_f32_16x16x32_bf16 {acc}, {wf}, {xf}, {c}')
            A('s_nop 7')
            if isv == 0:
                A('s_lshl_b32 s43, s34, 13')
                for mt in range(2):
                    for r in range(4):
                        A(f'v_cvt_pk_bf16_f32 v{VPK+mt*4+r}, v{VACC+(mt*2+r//2)*4+2*(r%2)}, v{VACC+(mt*2+r//2)*4+2*(r%2)+1}')
                    if mt: A('s_add_u32 s43, s43, 4096')
                    A(f'buffer_store_dwordx4 {vr(VPK+mt*4,4)}, v{VST}, s[4:7], s43 offen{ST}')
            else:
                A('s_lshl_b32 s43, s34, 18')
                for T in range(2):
                    for mt in range(2):
                        for rp in range(2):
                            A(f'v_cvt_pk_bf16_f32 v{VPK+T*4+mt*2+rp}, v{VACC+(mt*2+T)*4+2*rp}, v{VACC+(mt*2+T)*4+2*rp+1}')
                    A(f'buffer_store_dwordx4 {vr(VPK+T*4,4)}, v{VST}, s[4:7], s43 offen offset:{T*256}{ST}')
            A('s_add_u32 s34, s34, 2')
            if publish and buf < 2:
                Le = A.newlabel('qkv_eg')
                A(f'''s_cmp_lg_u32 s41, 0
s_cbranch_scc1 {Le}
s_waitcnt vmcnt(0)
s_barrier
s_cmp_lg_u32 s14, 0
s_cbranch_scc1 {Le}
v_mov_b32 v6, {buf+1}
s_mov_b64 exec, 1
buffer_store_byte v6, v7, s[4:7], 0 offen sc1
s_mov_b64 exec, -1''')
                A.label(Le)
        A(f'''s_add_u32 s41, s41, 1
s_cmp_lt_u32 s41, {nseg//4}
s_cbranch_scc1 {Lloop}''')
        if isv == 0:
            A(f's_branch {Ldone}')
    A.label(Ldone)
    A('''s_waitcnt vmcnt(0)
s_barrier''')
    if publish:
        Lnp = A.newlabel('qkv_np')
        A(f'''s_cmp_lg_u32 s14, 0
s_cbranch_scc1 {Lnp}
v_mov_b32 v6, 32
s_mov_b64 exec, 1
buffer_store_byte v6, v7, s[4:7], 0 offen sc1
s_mov_b64 exec, -1''')
        A.label(Lnp)
```

```python
from asmlib import *
WS_P2 = 0x6000000
WS_FLAG = 0x5800000
NSET = 7
TSLEEP = 12
T_K = 0
T_Q = 8192
T_O = 32768
OS = 272
T_G = T_O + 32*OS
W0 = 128
ACC = 64
KF = 16

def emit_tail_body(A):
    A(f'''s_lshr_b32 s16, s15, 5           ; set
s_and_b32 s17, s15, 31           ; h
s_load_dwordx2 s[24:25], s[0:1], {KA_WO}
s_load_dwordx2 s[26:27], s[0:1], {KA_X}
s_load_dwordx2 s[28:29], s[0:1], {KA_GW}
s_load_dwordx2 s[32:33], s[0:1], {KA_DSKIP}
s_load_dwordx2 s[34:35], s[0:1], {KA_OUT}
v_and_b32 v1, 63, v0             ; lane
v_and_b32 v2, 15, v1             ; c
v_lshrrev_b32 v3, 4, v1          ; g
s_mov_b32 s30, 0x05040100
s_mov_b32 s31, 0x07060302
s_waitcnt lgkmcnt(0)''')
    srd(A, 8, 24, 4*1024*1024)
    srd(A, 36, 26, 2048*1024)
    srd(A, 40, 34, 2048*1024)
    srd(A, 44, 28, 1024)
    srd(A, 48, 32, 1024)
    A(f'''v_lshlrev_b32 v4, 13, v3
v_lshl_add_u32 v4, v2, 4, v4
s_lshl_b32 s18, s17, 17
s_lshl_b32 s19, s14, 8
s_add_u32 s18, s18, s19
v_add_u32 v4, s18, v4''')
    for ks in range(4):
        for j in range(8):
            A(f'''s_mov_b32 s18, {(32*ks+j)*1024}
buffer_load_dwordx4 {vr(KF+j*4,4)}, v4, s[8:11], s18 offen''')
        A('s_waitcnt vmcnt(0)')
        for t in range(8):
            for p in range(4):
                A(f'v_perm_b32 v60, v{KF+(2*p+1)*4+t//2}, v{KF+(2*p)*4+t//2}, {"s31" if t%2 else "s30"}\nv_accvgpr_write_b32 a{(t*4+ks)*4+p}, v60')
    A(f'''s_and_b32 s18, s14, 1
s_lshl_b32 s18, s18, 2
v_add_u32 v4, s18, v3
v_lshlrev_b32 v4, 1, v4
v_xor_b32 v4, v4, v2
v_lshlrev_b32 v4, 4, v4
v_lshl_add_u32 v4, v3, 8, v4
s_lshl_b32 s18, s17, 19
s_lshl_b32 s19, s14, 11
s_add_u32 s18, s18, s19
v_add_u32 v4, s18, v4''')
    A(f'''v_and_b32 v5, 3, v2
v_lshrrev_b32 v6, 3, v2
v_lshl_add_u32 v5, v6, 2, v5
v_lshlrev_b32 v5, 1, v5
v_xor_b32 v5, v5, v3
v_lshlrev_b32 v5, 4, v5
v_lshl_add_u32 v5, v2, 8, v5''')
    A(f'''v_lshlrev_b32 v6, 7, v2
v_lshl_add_u32 v6, v3, 4, v6
s_lshl_b32 s18, s17, 13
s_lshr_b32 s19, s14, 1
s_lshl_b32 s20, s19, 12
s_add_u32 s18, s18, s20
s_add_u32 s18, s18, {hex(WS_VT)}
v_add_u32 v6, s18, v6''')
    A(f'''v_and_b32 v7, 7, v2
v_lshlrev_b32 v7, 8, v7
v_lshl_add_u32 v7, v3, 4, v7
s_lshl_b32 s18, s17, 11
s_add_u32 s18, s18, {hex(WS_KM)}
v_add_u32 v7, s18, v7''')
    A(f'''v_and_b32 v8, 1, v3
v_lshlrev_b32 v8, 3, v8
v_lshl_add_u32 v8, v2, 5, v8
s_lshl_b32 s18, s17, 11
s_lshl_b32 s20, s19, 10
s_add_u32 s18, s18, s20
s_add_u32 s18, s18, {hex(WS_VMT)}
v_add_u32 v8, s18, v8''')
    A(f'''s_and_b32 s20, s14, 1
s_lshl_b32 s20, s20, 4
v_add_u32 v9, s20, v2
v_mul_u32_u24 v9, {OS}, v9
v_lshl_add_u32 v9, v3, 4, v9
s_lshl_b32 s18, s19, 7
s_add_u32 s18, s18, {T_O}
v_add_u32 v9, s18, v9''')
    A(f'''v_mul_u32_u24 v10, {OS}, v2
v_lshl_add_u32 v10, v3, 4, v10
v_add_u32 v10, {T_O}, v10''')
    A(f'''v_lshlrev_b32 v11, 17, v3
v_lshl_add_u32 v11, v2, 4, v11
s_lshl_b32 s18, s14, 13
s_lshl_b32 s20, s17, 8
s_add_u32 s18, s18, s20
s_add_u32 s18, s18, {hex(WS_P2)}
v_add_u32 v11, s18, v11''')
    A(f'''s_and_b32 s20, s14, 1
s_lshl_b32 s20, s20, 4
v_add_u32 v12, s20, v2
v_lshlrev_b32 v13, 2, v3
v_sub_u32 v12, v12, v13
v_lshlrev_b32 v13, 4, v1         ; v13 = lane*16
v_and_b32 v14, 1, v2
v_lshlrev_b32 v14, 4, v14
v_mov_b32 v15, 0x3f80
v_lshlrev_b32 v14, v14, v15
s_mov_b32 s52, 0x3e02939f        ; SC
s_mov_b32 s53, 0xff800000        ; -inf
s_lshl_b32 s54, s14, 11
s_and_b32 s55, s14, 1
s_lshl_b32 s55, s55, 12          ; qt*4096
s_mov_b32 s56, s16               ; segment
s_mov_b32 s57, 0''')
    A('s_mov_b32 s93, 0')
    def wait0(addr_setup, load, cmp):
        Lw = A.newlabel('tl_w'); Lo = A.newlabel('tl_wo')
        A(f"""s_cmp_lg_u32 s14, 0
s_cbranch_scc1 {Lo}""")
        A(addr_setup)
        A.label(Lw)
        A(f"""{load}
s_waitcnt vmcnt(0)
{cmp}
s_add_u32 s93, s93, 1
s_cmp_lt_u32 s93, 0x80000
s_cselect_b64 vcc, vcc, 0
s_cbranch_vccz {Lo}
s_sleep {TSLEEP}
s_branch {Lw}""")
        A.label(Lo)
        A('s_waitcnt vmcnt(0)\ns_barrier')
    wait0('v_mov_b32 v56, 56', 'global_load_dword v57, v56, s[12:13] sc1', 'v_cmp_gt_u32 vcc, 32, v57')
    wait0(f"""v_min_u32 v56, 5, v1
s_lshl_b32 s63, s17, 7
s_add_u32 s63, s63, {hex(WS_QF)}""", 'buffer_load_ubyte v57, v56, s[4:7], s63 offen sc1', 'v_cmp_ne_u32 vcc, 32, v57')
    KM = 16; VMf = 32; XR = 40; GW = 44; XC = 48; YC = 50; DS = 52
    AVX = 0; APP = 32; AOF = 64
    def xloads(segreg, buf):
        A(f"""s_lshl_b32 s58, {segreg}, 13
s_add_u32 s59, s58, {hex(WS_K)}
s_add_u32 m0, s54, {buf*16384}
s_lshl_b32 s60, {segreg}, 18
buffer_load_dwordx4 v4, s[4:7], s59 offen lds
buffer_load_dwordx4 v4, s[4:7], s59 offen offset:1024 lds
s_add_u32 m0, s54, {buf*16384+T_Q}
s_nop 0
buffer_load_dwordx4 v4, s[4:7], s58 offen lds
buffer_load_dwordx4 v4, s[4:7], s58 offen offset:1024 lds""")
    def red_issue(segreg, cntreg, gate=True):
        if gate: wait0(f"""s_lshl_b32 s63, s16, 5
v_and_b32 v56, 31, v1
v_add_u32 v56, s63, v56
s_mov_b32 s63, {hex(WS_FLAG)}""", 'buffer_load_ubyte v57, v56, s[4:7], s63 offen sc1', f'v_cmp_gt_u32 vcc, {cntreg}, v57')
        A(f"""s_lshl_b32 s63, s17, 15
s_lshl_b32 s64, {segreg}, 20
s_add_u32 s63, s63, s64
s_lshl_b32 s64, s14, 13
s_add_u32 s63, s63, s64
s_add_u32 s63, s63, {hex(WS_P2)}
s_add_u32 s64, s63, 4096""")
        for i in range(4):
            A(f'buffer_load_dwordx4 {vr(ACC+i*4,4)}, v13, s[4:7], s63 offen offset:{i*1024} sc1')
        for i in range(4):
            A(f'buffer_load_dwordx4 {vr(ACC+16+i*4,4)}, v13, s[4:7], s64 offen offset:{i*1024} sc1')
        A(f"""s_lshl_b32 s65, {segreg}, 5
s_add_u32 s65, s65, s17
s_lshl_b32 s65, s65, 10
buffer_load_dwordx4 {vr(XR,4)}, v13, s[36:39], s65 offen
buffer_load_dwordx4 {vr(GW,4)}, v13, s[44:47], 0 offen
buffer_load_dwordx2 {vr(XC,2)}, v15, s[36:39], s65 offen
s_lshr_b32 s66, s65, 7
s_add_u32 s66, s66, {hex(WS_Y)}
v_lshlrev_b32 v56, 11, v15
buffer_load_dwordx2 {vr(YC,2)}, v56, s[4:7], s66 offen sc1
buffer_load_dwordx2 {vr(DS,2)}, v15, s[48:51], 0 offen""")
    def red_compute():
        SEL = 16; DD = 20; TT = 24
        A('v_lshrrev_b32 v57, 1, v2')
        for p in range(4):
            A(f"""v_cmp_eq_u32 vcc, {p}, v57
s_nop 1
v_cndmask_b32 v{SEL+p}, 0, v14, vcc""")
        A('s_nop 1')
        for i in range(8):
            A(f'v_mfma_f32_16x16x32_bf16 {vr(DD,4)}, {vr(SEL,4)}, {vr(ACC+4*i,4)}, {"0" if i==0 else vr(DD,4)}')
        for i in range(4):
            A(f"""v_lshlrev_b32 v{TT}, 16, v{XR+i}
v_and_b32 v{TT+1}, 0xffff0000, v{XR+i}
v_lshlrev_b32 v{TT+2}, 16, v{GW+i}
v_and_b32 v{TT+3}, 0xffff0000, v{GW+i}
v_mul_f32 v{TT}, v{TT}, v{TT+2}
v_mul_f32 v{TT+1}, v{TT+1}, v{TT+3}
v_cvt_pk_bf16_f32 v{TT}, v{TT}, v{TT+1}
v_lshlrev_b32 v{TT+1}, 16, v{TT}
v_and_b32 v{TT}, 0xffff0000, v{TT}
v_add_f32 v{TT}, v{TT}, v{TT+1}""")
            A(f'v_mov_b32 v{TT+4}, v{TT}' if i == 0 else f'v_add_f32 v{TT+4}, v{TT+4}, v{TT}')
        G = TT+4
        A(f"""s_nop 1
v_add_f32_dpp v{G}, v{G}, v{G} quad_perm:[1,0,3,2] row_mask:0xf bank_mask:0xf
s_nop 1
v_add_f32_dpp v{G}, v{G}, v{G} quad_perm:[2,3,0,1] row_mask:0xf bank_mask:0xf
s_nop 1
v_add_f32_dpp v{G}, v{G}, v{G} row_ror:4 row_mask:0xf bank_mask:0xf
s_nop 1
v_add_f32_dpp v{G}, v{G}, v{G} row_ror:8 row_mask:0xf bank_mask:0xf
v_mov_b32 v{TT}, v{G}
s_nop 1
v_permlane32_swap_b32 v{TT}, v{G}
v_add_f32 v{G}, v{G}, v{TT}
v_mov_b32 v{TT}, v{G}
s_nop 1
v_permlane16_swap_b32 v{TT}, v{G}
v_add_f32 v{G}, v{G}, v{TT}
v_cvt_pk_bf16_f32 v{G}, v{G}, v{G}
v_lshlrev_b32 v{G}, 16, v{G}
v_mul_f32 v{G}, 0xbfb8aa3b, v{G}
v_exp_f32 v{G}, v{G}
s_nop 0
v_add_f32 v{G}, 1.0, v{G}
v_rcp_f32 v{G}, v{G}
s_nop 0
v_cvt_pk_bf16_f32 v{G}, v{G}, v{G}
v_lshlrev_b32 v{G}, 16, v{G}
v_sub_f32 v{G+1}, 1.0, v{G}
v_cvt_pk_bf16_f32 v{G+1}, v{G+1}, v{G+1}
v_lshlrev_b32 v{G+1}, 16, v{G+1}""")
        for i in range(2):
            A(f"""v_cvt_pk_bf16_f32 v{TT}, v{DD+2*i}, v{DD+2*i+1}
v_lshlrev_b32 v{TT+1}, 16, v{TT}
v_and_b32 v{TT}, 0xffff0000, v{TT}
v_mul_f32 v{TT+1}, v{G}, v{TT+1}
v_mul_f32 v{TT}, v{G}, v{TT}
v_cvt_pk_bf16_f32 v{DD+2*i}, v{TT+1}, v{TT}
v_lshlrev_b32 v{TT}, 16, v{XC+i}
v_and_b32 v{TT+1}, 0xffff0000, v{XC+i}
v_lshlrev_b32 v{TT+2}, 16, v{DS+i}
v_and_b32 v{TT+3}, 0xffff0000, v{DS+i}
v_mul_f32 v{TT}, v{TT}, v{TT+2}
v_mul_f32 v{TT+1}, v{TT+1}, v{TT+3}
v_cvt_pk_bf16_f32 v{TT}, v{TT}, v{TT+1}
v_lshlrev_b32 v{TT+1}, 16, v{TT}
v_and_b32 v{TT}, 0xffff0000, v{TT}
v_lshlrev_b32 v{TT+2}, 16, v{YC+i}
v_and_b32 v{TT+3}, 0xffff0000, v{YC+i}
v_add_f32 v{TT+1}, v{TT+1}, v{TT+2}
v_add_f32 v{TT}, v{TT}, v{TT+3}
v_cvt_pk_bf16_f32 v{TT}, v{TT+1}, v{TT}
v_lshlrev_b32 v{TT+1}, 16, v{TT}
v_and_b32 v{TT}, 0xffff0000, v{TT}
v_mul_f32 v{TT+1}, v{G+1}, v{TT+1}
v_mul_f32 v{TT}, v{G+1}, v{TT}
v_cvt_pk_bf16_f32 v{TT}, v{TT+1}, v{TT}
v_lshlrev_b32 v{TT+1}, 16, v{TT}
v_and_b32 v{TT}, 0xffff0000, v{TT}
v_lshlrev_b32 v{TT+2}, 16, v{DD+2*i}
v_and_b32 v{TT+3}, 0xffff0000, v{DD+2*i}
v_add_f32 v{TT+1}, v{TT+1}, v{TT+2}
v_add_f32 v{TT}, v{TT}, v{TT+3}
v_cvt_pk_bf16_f32 v{XR+i}, v{TT+1}, v{TT}""")
        A(f"""s_mov_b32 exec_hi, 0
buffer_store_dwordx2 {vr(XR,2)}, v15, s[40:43], s65 offen
s_mov_b32 exec_hi, -1""")
    A(f"""v_and_b32 v15, 1, v3
v_lshlrev_b32 v15, 3, v15
v_lshl_add_u32 v15, v2, 4, v15
s_lshl_b32 s66, s14, 8
v_add_u32 v15, s66, v15""")
    A(f"""s_add_u32 s62, s16, 56
s_cmp_eq_u32 s16, 0
s_cselect_b32 s62, 63, s62
s_lshl_b32 s62, s62, 20
v_mov_b32 v16, -1
v_mov_b32 v17, -1
v_mov_b32 v18, -1
v_mov_b32 v19, -1""")
    for mt in range(2):
        for r in range(4):
            A(f"""s_add_u32 s63, s62, {(16*mt+r)*32768}
buffer_store_dwordx4 v[16:19], v11, s[4:7], s63 offen sc1""")
    xloads('s56', 0)
    A('s_mov_b32 s68, 0\ns_mov_b32 s69, s16\ns_mov_b32 s70, 0\ns_mov_b32 s71, 0')
    def refresh():
        Lq1 = A.newlabel('tl_rf')
        A(f"""s_cmp_lg_u32 s14, 0
s_cbranch_scc1 {Lq1}
s_lshl_b32 s63, s17, 7
s_add_u32 s63, s63, {hex(WS_QF)}
v_mov_b32 v56, 8
buffer_load_ubyte v58, v56, s[4:7], s63 offen sc1
v_mov_b32 v56, 44
s_cmp_lg_u32 s71, 0
s_cbranch_scc1 {Lq1}_s
global_load_dword v59, v56, s[12:13] sc1""")
        A.label(Lq1+'_s')
        A(f"""v_mov_b32 v56, {T_G}
s_waitcnt vmcnt(0)
ds_write_b64 v56, v[58:59]
s_waitcnt lgkmcnt(0)""")
        A.label(Lq1)
        A(f"""s_waitcnt vmcnt(0)
s_barrier
v_mov_b32 v56, {T_G}
ds_read_b64 v[58:59], v56
s_waitcnt lgkmcnt(0)
v_readfirstlane_b32 s70, v58
v_readfirstlane_b32 s63, v59
s_cmp_ge_u32 s63, 128
s_cselect_b32 s71, 1, s71
s_barrier""")
    def do_reduces(limit):
        Lr = A.newlabel('tl_dr'); Lo = A.newlabel('tl_dro'); Ls = A.newlabel('tl_drs')
        A.label(Lr)
        A(f"""s_cmp_ge_u32 s68, {limit}
s_cbranch_scc1 {Lo}
s_cmp_lg_u32 s71, 0
s_cbranch_scc1 {Ls}""")
        wait0('v_mov_b32 v56, 44', 'global_load_dword v57, v56, s[12:13] sc1', 'v_cmp_gt_u32 vcc, 128, v57')
        A('s_mov_b32 s71, 1')
        A.label(Ls)
        A('s_add_u32 s68, s68, 1')
        red_issue('s69', 's68')
        A('s_waitcnt vmcnt(0)')
        red_compute()
        A(f's_add_u32 s69, s69, {NSET}\ns_branch {Lr}')
        A.label(Lo)
    Lloop = A.newlabel('tl_loop'); Lfin = A.newlabel('tl_fin'); Lfast = A.newlabel('tl_fast')
    A.label(Lloop)
    for buf in range(2):
        Lgo = A.newlabel('tl_go'); Lsp = A.newlabel('tl_sp')
        A(f"""s_add_u32 s72, s56, 1
s_sub_u32 s63, s56, 1
s_cmp_ge_u32 s56, 60
s_cselect_b32 s72, s63, s72        ; need s70 >= s72
s_cmp_ge_u32 s70, s72
s_cbranch_scc1 {Lgo}""")
        refresh()
        A(f"""s_cmp_ge_u32 s70, s72
s_cbranch_scc1 {Lgo}""")
        do_reduces('s57')
        A.label(Lsp)
        refresh()
        A(f"""s_cmp_ge_u32 s70, s72
s_cbranch_scc1 {Lgo}
s_add_u32 s93, s93, 1
s_cmp_ge_u32 s93, 0x80000
s_cbranch_scc1 {Lgo}
s_sleep {TSLEEP}
s_branch {Lsp}""")
        A.label(Lgo)
        A('s_lshl_b32 s61, s56, 16')
        A('s_lshl_b32 s60, s56, 18')
        for et in range(2):
            for T in range(2):
                A(f'buffer_load_dwordx4 {vr(40+(et*2+T)*4,4)}, v6, s[4:7], s60 offen offset:{et*2048+T*64}')
        Lkl = A.newlabel('tl_kl'); Lko = A.newlabel('tl_ko')
        A.label(Lkl)
        for ks in range(4):
            A(f'buffer_load_dwordx4 {vr(KM+ks*4,4)}, v7, s[4:7], s61 offen offset:{ks*64} sc1')
        for et in range(2):
            for T in range(2):
                A(f'buffer_load_dwordx2 {vr(VMf+(et*2+T)*2,2)}, v8, s[4:7], s61 offen offset:{et*512+T*16} sc1')
        A(f"""s_cmp_lt_u32 s56, 60
s_cbranch_scc1 {Lko}
s_waitcnt vmcnt(0)
v_max3_u32 v56, v{KM}, v{KM+4}, v{KM+8}
v_max3_u32 v56, v56, v{KM+12}, v{VMf}
v_max3_u32 v56, v56, v{VMf+2}, v{VMf+4}
v_max_u32 v56, v56, v{VMf+6}
v_cmp_eq_u32 vcc, -1, v56
s_add_u32 s93, s93, 1
s_cmp_lt_u32 s93, 0x80000
s_cselect_b64 vcc, vcc, 0
s_cbranch_vccz {Lko}
s_sleep 2
s_branch {Lkl}""")
        A.label(Lko)
        A('s_waitcnt vmcnt(12)\ns_barrier')
        S = ACC; QF = ACC+16; KX = ACC+32
        A(f'v_add_u32 v56, s55, v5')
        for ks in range(4):
            if ks:
                A(f'v_xor_b32 v57, {ks*64}, v5\nv_xor_b32 v58, {ks*64}, v56')
            ak = 'v57' if ks else 'v5'; aq = 'v58' if ks else 'v56'
            A(f"""ds_read_b128 {vr(QF+ks*4,4)}, {aq} offset:{buf*16384+T_Q}
ds_read_b128 {vr(KX+ks*4,4)}, {ak} offset:{buf*16384+T_K}
ds_read_b128 {vr(KX+16+ks*4,4)}, {ak} offset:{buf*16384+T_K+4096}""")
        for ks in range(4):
            A(f's_waitcnt lgkmcnt({9-3*ks})')
            for t in (1,2):
                A(f'v_mfma_f32_16x16x32_bf16 {vr(S+t*4,4)}, {vr(KX+(t-1)*16+ks*4,4)}, {vr(QF+ks*4,4)}, {"0" if ks==0 else vr(S+t*4,4)}')
        A('s_waitcnt vmcnt(4)')
        for ks in range(4):
            A(f'v_mfma_f32_16x16x32_bf16 {vr(S,4)}, {vr(KM+ks*4,4)}, {vr(QF+ks*4,4)}, {"0" if ks==0 else vr(S,4)}')
        A(f'v_mov_b32 v57, s53')
        for kt in range(2):
            for r in range(4):
                A(f"""v_cmp_le_i32 vcc, {16*kt+r}, v12
s_nop 1
v_cndmask_b32 v{S+4+4*kt+r}, v57, v{S+4+4*kt+r}, vcc""")
        A(f"""v_cmp_gt_u32 vcc, 2, v3
s_nop 1""")
        for r in range(4):
            A(f'v_cndmask_b32 v{S+r}, v57, v{S+r}, vcc')
        M = S+12; T1 = S+13; L = S+14; T2 = S+15
        A(f"""v_max3_f32 v{M}, v{S}, v{S+1}, v{S+2}
v_max3_f32 v{T1}, v{S+3}, v{S+4}, v{S+5}
v_max3_f32 v{M}, v{M}, v{S+6}, v{S+7}
v_max3_f32 v{T1}, v{T1}, v{S+8}, v{S+9}
v_max3_f32 v{M}, v{M}, v{S+10}, v{S+11}
v_max_f32 v{M}, v{M}, v{T1}
v_mov_b32 v{T1}, v{M}
s_nop 1
v_permlane32_swap_b32 v{T1}, v{M}
v_max_f32 v{M}, v{M}, v{T1}
v_mov_b32 v{T1}, v{M}
s_nop 1
v_permlane16_swap_b32 v{T1}, v{M}
v_max_f32 v{M}, v{M}, v{T1}
v_mul_f32 v{M}, s52, v{M}""")
        for i in range(12):
            A(f'v_fma_f32 v{S+i}, v{S+i}, s52, -v{M}')
        for i in range(12):
            A(f'v_exp_f32 v{S+i}, v{S+i}')
        A(f"""s_nop 0
v_add_f32 v{L}, v{S}, v{S+1}
v_add_f32 v{T1}, v{S+2}, v{S+3}
v_add_f32 v{T2}, v{S+4}, v{S+5}
v_add_f32 v{M}, v{S+6}, v{S+7}
v_add_f32 v{L}, v{L}, v{T1}
v_add_f32 v{T1}, v{S+8}, v{S+9}
v_add_f32 v{T2}, v{T2}, v{M}
v_add_f32 v{M}, v{S+10}, v{S+11}
v_add_f32 v{L}, v{L}, v{T1}
v_add_f32 v{T2}, v{T2}, v{M}
v_add_f32 v{L}, v{L}, v{T2}
v_mov_b32 v{T1}, v{L}
s_nop 1
v_permlane32_swap_b32 v{T1}, v{L}
v_add_f32 v{L}, v{L}, v{T1}
v_mov_b32 v{T1}, v{L}
s_nop 1
v_permlane16_swap_b32 v{T1}, v{L}
v_add_f32 v{L}, v{L}, v{T1}
v_rcp_f32 v{L}, v{L}
s_nop 0""")
        for i in range(12):
            A(f'v_mul_f32 v{S+i}, v{S+i}, v{L}')
        PX = QF; PM = QF+4; O = KX
        A(f"""v_cvt_pk_bf16_f32 v{PX}, v{S+4}, v{S+5}
v_cvt_pk_bf16_f32 v{PX+1}, v{S+6}, v{S+7}
v_cvt_pk_bf16_f32 v{PX+2}, v{S+8}, v{S+9}
v_cvt_pk_bf16_f32 v{PX+3}, v{S+10}, v{S+11}
v_cvt_pk_bf16_f32 v{PM}, v{S}, v{S+1}
v_cvt_pk_bf16_f32 v{PM+1}, v{S+2}, v{S+3}
s_waitcnt vmcnt(0)""")
        for i in range(4):
            A(f'v_mfma_f32_16x16x32_bf16 {vr(O+i*4,4)}, {vr(40+i*4,4)}, {vr(PX,4)}, 0')
        for i in range(4):
            A(f'v_mfma_f32_16x16x16_bf16 {vr(O+i*4,4)}, {vr(VMf+i*2,2)}, {vr(PM,2)}, {vr(O+i*4,4)}')
        Lnx = A.newlabel('tl_nx')
        A(f"""s_add_u32 s67, s56, {NSET}
s_cmp_ge_u32 s67, 64
s_cbranch_scc1 {Lnx}""")
        xloads('s67', 1-buf)
        A.label(Lnx)
        A('s_nop 4')
        for et in range(2):
            for r in range(4):
                A(f'v_cvt_pk_bf16_f32 v{S+et*4+r}, v{O+et*8+r}, v{O+et*8+4+r}')
            A(f'ds_write_b128 v9, {vr(S+et*4,4)} offset:{et*64}')
        A("""s_waitcnt lgkmcnt(0)
s_barrier""")
        for mt in range(2):
            for ks in range(4):
                A(f'ds_read_b128 {vr(16+(mt*4+ks)*4,4)}, v10 offset:{mt*16*OS+ks*64}')
        A(f's_lshl_b32 s62, s56, 20')
        for mt in range(2):
            for ks in range(4):
                A(f's_waitcnt lgkmcnt({7-(mt*4+ks)})')
                for t in range(8):
                    acc = vr(ACC+(mt*8+t)*4,4)
                    A(f'v_mfma_f32_16x16x32_bf16 {acc}, {vr(16+(mt*4+ks)*4,4)}, {ar((t*4+ks)*4,4)}, {"0" if ks==0 else acc}')
        A('s_nop 7')
        for mt in range(2):
            for r in range(4):
                b = 16 + ((mt*4+r)%4)*4
                for p in range(4):
                    A(f'v_cvt_pk_bf16_f32 v{b+p}, v{ACC+(mt*8+2*p)*4+r}, v{ACC+(mt*8+2*p+1)*4+r}')
                A(f"""s_add_u32 s63, s62, {(16*mt+r)*32768}
v_min_u32 v{b}, -2, v{b}
buffer_store_dwordx4 {vr(b,4)}, v11, s[4:7], s63 offen sc1""")
        A(f"""s_sub_u32 s64, s57, s68
s_add_u32 s57, s57, 1
s_add_u32 s63, s56, {NSET}
s_cmp_ge_u32 s63, 64
s_cselect_b32 s63, s64, 1
s_cmp_eq_u32 s63, 0
s_cbranch_scc1 {Lfast}
s_waitcnt vmcnt(0)
s_barrier""")
        Lnp = A.newlabel('tl_np')
        A(f"""s_cmp_lg_u32 s14, 0
s_cbranch_scc1 {Lnp}
s_mov_b64 exec, 1
v_mov_b32 v56, s57
v_mov_b32 v57, s15
s_mov_b32 s63, {hex(WS_FLAG)}
buffer_store_byte v56, v57, s[4:7], s63 offen sc1
s_mov_b64 exec, -1""")
        A.label(Lnp)
        Lnd = A.newlabel('tl_nd'); Lyd = A.newlabel('tl_yd')
        A(f"""s_cmp_lg_u32 s71, 0
s_cbranch_scc1 {Lyd}""")
        refresh()
        A(f"""s_cmp_eq_u32 s71, 0
s_cbranch_scc1 {Lnd}""")
        A.label(Lyd)
        A('s_sub_u32 s73, s57, 1')
        do_reduces('s73')
        A.label(Lnd)
        A(f"""s_add_u32 s56, s56, {NSET}
s_cmp_ge_u32 s56, 64
s_cbranch_scc1 {Lfin}""")
    A(f's_branch {Lloop}')
    A.label(Lfin)
    A('s_sub_u32 s73, s57, 1')
    do_reduces('s73')
    A(f's_sub_u32 s67, s56, {NSET}')
    red_issue('s67', None, gate=False)
    Lpl = A.newlabel('tl_pl'); Lpo = A.newlabel('tl_po')
    A(f's_branch {Lpl}')
    A.label(Lfast)
    A('s_nop 1')
    red_issue('s56', None, gate=False)
    A.label(Lpl)
    A(f"""s_waitcnt vmcnt(0)
v_max3_u32 v56, v{ACC}, v{ACC+4}, v{ACC+8}
v_max3_u32 v56, v56, v{ACC+12}, v{ACC+16}
v_max3_u32 v56, v56, v{ACC+20}, v{ACC+24}
v_max_u32 v56, v56, v{ACC+28}
v_cmp_eq_u32 vcc, -1, v56
s_add_u32 s93, s93, 1
s_cmp_lt_u32 s93, 0x80000
s_cselect_b64 vcc, vcc, 0
s_cbranch_vccz {Lpo}
s_sleep 2""")
    for i in range(4):
        A(f'buffer_load_dwordx4 {vr(ACC+i*4,4)}, v13, s[4:7], s63 offen offset:{i*1024} sc1')
    for i in range(4):
        A(f'buffer_load_dwordx4 {vr(ACC+16+i*4,4)}, v13, s[4:7], s64 offen offset:{i*1024} sc1')
    A(f's_branch {Lpl}')
    A.label(Lpo)
    red_compute()
    A('s_waitcnt vmcnt(0)')
```

```python
import sys
sys.path.insert(0, 'gen')
from gen import build
import k_mega8, k_chain8, k_tail3
def mk(out):
    build([('mega_kernel', k_mega8.emit_mega, 256, 512, 163840, 256, 100, 128)], out)
if __name__ == '__main__':
    mk('k8.s')
    k_mega8.PROF = True; mk('k8p.s')
    k_mega8.PROF = False
    k_chain8.STAMPS = True; mk('k8s.s'); k_chain8.STAMPS = False
    k_mega8.CTIMING = True
    mk('k8t.s')
    k_mega8.CTIMING = False
    def var(name, **kw):
        old = {k: getattr(k_chain8, k) for k in kw}
        for k,v in kw.items(): setattr(k_chain8, k, v)
        mk(f'work/{name}.s')
        for k,v in old.items(): setattr(k_chain8, k, v)
    k_chain8.STEPT = True
    var('v0')
    var('v1', TPRE=True)
    var('v2', APRIO=1)
    var('v3', APRIO=0)
    var('v4', BPRIO=3)
    var('v5', OASPLIT=True)
    var('v6', TPRE=True, OASPLIT=True)
    var('v7', APRIO=2, BPRIO=1)
```

```python
from asmlib import *
import k_elect
L_WA = 0
L_WB = 65536
L_MA = 131072
L_QK = 139264
QS = 288
L_O  = L_QK
L_MISC = L_QK + 16*QS
L_VM = L_MISC + 1024
L_KX = 147456
L_FL = L_MISC + 64
WS_FLAG = 0x5800000
SPINBOUND = True
PDELAY = 3
PDELAY2 = 1
MDELAY = 3
MARK = None
TIMING = False
DIVERT = None
X_NOPUB = False
X_NOK = False
PIPE_P = False
VMAP = 0
VOFF1 = """s_lshr_b32 s18, s20, 1
s_lshl_b32 s18, s18, 7
s_and_b32 s19, s20, 1
s_lshl_b32 s19, s19, 2
s_add_u32 s18, s18, s19
v_lshl_add_u32 v10, v41, 3, v45"""
VOFF0 = """s_lshl_b32 s18, s20, 6
v_lshl_add_u32 v10, v41, 2, v45"""
VMW1 = """v_lshl_add_u32 v50, v41, 6, v50
s_lshr_b32 s18, s20, 1
s_lshl_b32 s18, s18, 10
s_and_b32 s19, s20, 1
s_lshl_b32 s19, s19, 5
s_add_u32 s18, s18, s19"""
VMW0 = """v_lshl_add_u32 v50, v41, 5, v50
s_lshl_b32 s18, s20, 9"""
BDELAY = False
B2POS = 2
FLAG_BO = False
STEPT = False
TPRE = False
ONESTAGE = False
APRIO = 3
BPRIO = 0
OASPLIT = False
REDT = False
FLAG_B1 = False
PIPE_M = False
PGAP = 20
CP = [0,1,8,9,2,3,10,11]
def drow(kap, eta, j):
    return 256*eta + 32*(kap%4) + 4*(kap//4) + 8*(CP[j]>>2) + (CP[j]&3)

STAMPS = False
def stamp(A, i):
    if STAMPS:
        A(f"""s_memtime s[94:95]
s_waitcnt lgkmcnt(0)
s_sub_u32 s96, s94, s97
s_add_u32 s{70+i}, s{70+i}, s96
s_mov_b32 s97, s94""")
def stamp_init(A):
    if STAMPS:
        A('s_memtime s[94:95]\ns_waitcnt lgkmcnt(0)\ns_mov_b32 s97, s94')
        for i in range(10): A(f's_mov_b32 s{70+i}, 0')
def stamp_dump(A):
    if STAMPS:
        A(f"""s_lshl_b32 s18, s15, 3
s_add_u32 s18, s18, s14
s_lshl_b32 s18, s18, 6
s_add_u32 s18, s18, {hex(WS_KD)}
v_mov_b32 v17, 0
s_mov_b64 exec, 1""")
        for i in range(10):
            A(f"""v_mov_b32 v16, s{70+i}
buffer_store_dword v16, v17, s[4:7], s18 offen offset:{4*i}""")
def spin(A, Lexit):
    if SPINBOUND:
        A(f'''s_add_u32 s48, s48, 1
s_cmp_gt_u32 s48, 0x200000
s_cbranch_scc1 {Lexit}''')

def kv_decode(A, vreg):
    A(f"""v_readfirstlane_b32 s82, v{vreg}
s_nop 3
s_and_b32 s84, s82, 0xff
s_bfe_u32 s85, s82, 0x80010
s_min_u32 s84, s84, s85
s_lshl_b32 s84, s84, 1
s_bfe_u32 s83, s82, 0x80008
s_lshr_b32 s82, s82, 24
s_min_u32 s82, s82, s83
s_lshl_b32 s82, s82, 1
s_add_u32 s82, s82, 1
s_min_u32 s80, s84, s82""")

def kv_ready(A, target, t0):
    Lc = A.newlabel('kv_chk'); Lo = A.newlabel('kv_ok')
    A.label(Lc)
    A(f"""s_cmp_gt_u32 s80, {target}
s_cbranch_scc1 {Lo}
v_mov_b32 v{t0}, s81
buffer_load_dword v{t0+1}, v{t0}, s[4:7], 0 offen sc1
s_waitcnt vmcnt(0)""")
    kv_decode(A, t0+1)
    A(f"""s_cmp_gt_u32 s80, {target}
s_cbranch_scc1 {Lo}
s_sleep 4
s_add_u32 s88, s88, 1
s_cmp_lt_u32 s88, 0x80000
s_cbranch_scc1 {Lc}""")
    A.label(Lo)

def confirm(A, t):
    Lok = A.newlabel('cf_ok')
    A(f"""s_cmp_eq_u32 s75, 0
s_cbranch_scc1 {Lok}""")
    k_elect.emit_resolve(A, t)
    A(f"""s_mov_b32 s75, 0
s_cmp_lt_u32 s15, 32
s_cbranch_scc1 {Lok}
s_waitcnt vmcnt(0) lgkmcnt(0)
v_mbcnt_lo_u32_b32 v0, -1, 0
v_mbcnt_hi_u32_b32 v0, -1, v0
s_lshl_b32 s24, s14, 6
v_add_u32 v0, s24, v0
s_branch {DIVERT}""")
    A.label(Lok)

def smf_s(acc, a, b, isagpr, idx):
    bs = ar(b,8) if isagpr else vr(b,8)
    return f'v_smfmac_f32_16x16x64_bf16 {vr(acc,4)}, {vr(a,4)}, {bs}, v{idx}'

def run_batches(A, batches, depth_of):
    n = len(batches); issued = [0]
    def issue_upto(k):
        while issued[0] <= k and issued[0] < n:
            batches[issued[0]][0](); issued[0] += 1
    issue_upto(depth_of(0)-1)
    for i in range(n):
        out_after = sum(batches[j][1] for j in range(i+1, issued[0]))
        A(f's_waitcnt vmcnt({out_after})')
        batches[i][2]()
        issue_upto(min(i+depth_of(i+1), n-1))

def emit_chain8(A):
    LB = A.newlabel('c8_B'); Lexit = A.newlabel('c8_exit')
    A(f'''v_and_b32 v40, 63, v0
v_and_b32 v41, 15, v40            ; c
v_lshrrev_b32 v42, 4, v40         ; g
v_and_b32 v43, 1, v42             ; b
v_lshrrev_b32 v44, 1, v42         ; g/2
s_mov_b32 s30, 0x05040100
s_mov_b32 s31, 0x07060302
s_and_b32 s13+0, s13, s13'''.replace('s_and_b32 s13+0, s13, s13','s_and_b32 s20, s14, 3') + f'''
s_mov_b32 s48, 0
s_mov_b32 s80, 0
s_mov_b32 s88, 0
s_lshl_b32 s81, s15, 7
s_add_u32 s81, s81, {hex(WS_QF)}
v_mov_b32 v46, 0x4444
v_mov_b32 v47, 0xeeee
v_and_b32 v45, 1, v41
v_cmp_eq_u32 vcc, 0, v45
s_nop 1
v_cndmask_b32 v2, v47, v46, vcc   ; IDX
v_lshlrev_b32 v1, 4, v40
v_add_u32 v1, {L_MA}, v1          ; V_LA = L_MA + lane*16
v_lshlrev_b32 v45, 20, v44
v_lshl_add_u32 v45, v43, 16, v45
s_lshl_b32 s19, s15, 8
v_add_u32 v45, s19, v45           ; weight row base + h*256
s_cmp_ge_u32 s14, 4
s_cbranch_scc1 {LB}''')
    emit_A(A, Lexit)
    A.label(LB)
    emit_B(A, Lexit)
    A.label(Lexit)
    stamp_dump(A)
    A('s_waitcnt vmcnt(0)')

def emit_A(A, Lexit):
    IDX = 2; LA = 1
    WB = 0; QKW = 3; QKR = 4; OW = 5; KXR = 6; VXA = 7; VMR = 8; PUBR = 9
    VX = 10
    AF = 18
    STG = 32
    ACC = 48
    T2W = 64
    Lq0 = A.newlabel('cA_q0')
    A(f'''s_cmp_lg_u32 s20, 0
s_cbranch_scc1 {Lq0}''')
    confirm(A, 50)
    A(f'''s_mov_b64 exec, 1
v_mov_b32 v50, 0
v_mov_b32 v51, 0
v_mov_b32 v52, 0
v_mov_b32 v53, 0
buffer_store_dwordx4 v[50:53], v50, s[4:7], s81 offen sc1
s_waitcnt vmcnt(0)
v_mov_b32 v51, 1
v_mov_b32 v50, 56
global_atomic_add v50, v51, s[12:13]
s_mov_b64 exec, -1''')
    A.label(Lq0)
    A('v_lshlrev_b32 v9, 4, v0')
    A(f'''s_lshl_b32 s18, s20, 14
v_lshlrev_b32 v{WB}, 4, v40
v_add_u32 v{WB}, s18, v{WB}
s_lshr_b32 s18, s20, 1
s_lshl_b32 s18, s18, 3
v_lshlrev_b32 v50, 1, v42
v_add_u32 v50, s18, v50
v_mul_u32_u24 v50, {QS}, v50
s_and_b32 s18, s20, 1
s_lshl_b32 s18, s18, 7
s_add_u32 s18, s18, {L_QK}
v_lshl_add_u32 v50, v41, 3, v50
v_add_u32 v{QKW}, s18, v50
v_lshrrev_b32 v50, 1, v41
v_mul_u32_u24 v50, {QS}, v50
v_lshl_add_u32 v50, v42, 4, v50
v_add_u32 v{QKR}, {L_QK}, v50
v_lshrrev_b32 v50, 1, v41
v_mul_u32_u24 v50, {QS}, v50
v_lshl_add_u32 v50, v42, 4, v50
s_lshl_b32 s18, s20, 6
s_add_u32 s18, s18, {L_O}
v_add_u32 v{OW}, s18, v50
v_and_b32 v50, 3, v41
v_lshrrev_b32 v51, 3, v41
v_lshl_add_u32 v50, v51, 2, v50
v_lshlrev_b32 v50, 1, v50
v_xor_b32 v50, v50, v42
v_lshlrev_b32 v50, 4, v50
v_lshl_add_u32 v50, v41, 8, v50
v_add_u32 v{KXR}, {L_KX}, v50
v_lshlrev_b32 v50, 7, v41
v_lshl_add_u32 v50, v42, 4, v50
s_lshl_b32 s18, s15, 13
s_lshl_b32 s19, s20, 11
s_add_u32 s18, s18, s19
s_add_u32 s18, s18, {hex(WS_VT)}
v_add_u32 v{VXA}, s18, v50''')
    A(f'''v_lshlrev_b32 v50, 2, v42
v_lshl_add_u32 v50, v41, 5, v50
s_lshl_b32 s18, s20, 9
s_add_u32 s18, s18, {L_VM}
v_add_u32 v{VMR}, s18, v50''')
    A(f'''s_lshr_b32 s18, s20, 1
s_lshl_b32 s18, s18, 3
s_add_u32 s18, s18, {KA_WQ}
s_load_dwordx2 s[24:25], s[0:1], s18
s_and_b32 s18, s20, 1
s_lshl_b32 s18, s18, 7
v_lshl_add_u32 v30, v41, 3, v45
v_add_u32 v30, s18, v30
s_waitcnt lgkmcnt(0)''')
    srd(A, 8, 24, 4*1024*1024)
    bufs = [32, 48, 12]
    batches = []
    for q in range(16):
        kap, eta = q//2, q%2
        buf = bufs[q%3]
        def iss(kap=kap, eta=eta, buf=buf):
            for j in range(8):
                A(f"""s_mov_b32 s18, {drow(kap,eta,j)*8192}
buffer_load_dwordx2 {vr(buf+j*2,2)}, v30, s[8:11], s18 offen""")
        def proc(kap=kap, eta=eta, buf=buf):
            for T in range(4):
                for p in range(4):
                    hi = buf+(2*p+1)*2+T//2; lo = buf+(2*p)*2+T//2
                    sel = "s31" if T%2 else "s30"
                    if T < 2:
                        A(f'v_perm_b32 v31, v{hi}, v{lo}, {sel}\nv_accvgpr_write_b32 a{(T*8+kap)*8+eta*4+p}, v31')
                    elif T == 2:
                        A(f'v_perm_b32 v{T2W+kap*8+eta*4+p}, v{hi}, v{lo}, {sel}')
                    else:
                        A(f'v_perm_b32 v{28+(p%2)}, v{hi}, v{lo}, {sel}')
                        if p % 2 == 1:
                            A(f'ds_write_b64 v{WB}, v[28:29] offset:{kap*2048+eta*1024+(p//2)*8}\ns_nop 0')
        batches.append((iss, 8, proc))
    run_batches(A, batches, lambda i: 3)
    if MARK: MARK(A, 5, 30)
    confirm(A, 32)
    A(f'''v_bfe_u32 v40, v{LA}, 4, 6
v_and_b32 v41, 15, v40
v_lshrrev_b32 v42, 4, v40''')
    A(f'''s_lshl_b32 s16, s15, 13
s_add_u32 s16, s16, {hex(WS_P)}
v_mov_b32 v50, 1
v_mov_b32 v51, 1
v_mov_b32 v52, 1
v_mov_b32 v53, 1''')
    for ring in range(2):
        for i in range(2):
            A(f'''s_add_u32 s17, s16, {ring*0x40000+i*4096}
buffer_store_dwordx4 v[50:53], v9, s[4:7], s17 offen''')
    A(f'''s_and_b32 s17, s15, 7
s_lshl_b32 s17, s17, 10
s_lshr_b32 s18, s15, 3
s_lshl_b32 s18, s18, 8
s_add_u32 s17, s17, s18
s_add_u32 s17, s17, {hex(WS_M)}
v_mov_b32 v54, -1
v_lshlrev_b32 v55, 2, v40''')
    for sl in range(3):
        A(f'''s_add_u32 s18, s17, {sl*8192}
buffer_store_dword v54, v55, s[4:7], s18 offen''')
    Lz = A.newlabel('cA_z')
    A(f'''v_mov_b32 v54, 0
v_add_u32 v56, {L_FL}, v55
v_cmp_gt_u32 vcc, 16, v40
s_and_saveexec_b64 s[22:23], vcc
ds_write_b32 v56, v54
s_mov_b64 exec, s[22:23]
s_cmp_lg_u32 s15, 0
s_cbranch_scc1 {Lz}
s_mov_b32 s18, {hex(WS_FLAG)}
buffer_store_dword v54, v55, s[4:7], s18 offen sc1''')
    A.label(Lz)
    A(f'''s_lshl_b32 s19, s15, 11
s_and_b32 s18, s20, 1
s_lshl_b32 s18, s18, 10
s_add_u32 s18, s18, s19
s_cmp_lt_u32 s20, 2
s_mov_b32 s19, {hex(WS_VMT-L_MA+60*65536)}
s_cselect_b32 s19, {hex(WS_KM-L_MA+60*65536)}, s19
s_add_u32 s18, s18, s19
s_add_u32 s19, s18, 0x10000
v_mov_b32 v50, -1
v_mov_b32 v51, -1
v_mov_b32 v52, -1
v_mov_b32 v53, -1
buffer_store_dwordx4 v[50:53], v{LA}, s[4:7], s18 offen sc1
buffer_store_dwordx4 v[50:53], v{LA}, s[4:7], s19 offen sc1
s_add_u32 s18, s18, 0x20000
s_add_u32 s19, s19, 0x20000
buffer_store_dwordx4 v[50:53], v{LA}, s[4:7], s18 offen sc1
buffer_store_dwordx4 v[50:53], v{LA}, s[4:7], s19 offen sc1''')
    A(f'''s_waitcnt vmcnt(0)
s_mov_b64 exec, 1
v_mov_b32 v50, 1
v_mov_b32 v51, 36
global_atomic_add v51, v50, s[12:13]
s_mov_b64 exec, -1''')
    A(f'''s_load_dwordx2 s[32:33], s[0:1], {KA_MEM0}
v_lshrrev_b32 v50, 1, v41
v_lshlrev_b32 v50, 10, v50
v_lshl_add_u32 v50, v42, 8, v50
v_and_b32 v51, 1, v41
v_lshl_add_u32 v50, v51, 5, v50
s_and_b32 s18, s20, 1
s_lshl_b32 s18, s18, 7
s_lshr_b32 s19, s20, 1
s_lshl_b32 s19, s19, 3
s_add_u32 s18, s18, s19
v_add_u32 v30, s18, v50
s_waitcnt lgkmcnt(0)''')
    srd(A, 8, 32, 8192)
    for kk in range(2):
        for pos in range(8):
            A(f'buffer_load_ushort v{32+kk*8+pos}, v30, s[8:11], 0 offen offset:{(32*kk+8*(pos>>2)+(pos&3))*2}')
    A(f'''s_waitcnt vmcnt(0)
s_lshl_b32 s18, s20, 11
v_add_u32 v31, s18, v{LA}''')
    for kk in range(2):
        for p in range(4):
            A(f'v_lshl_or_b32 v{48+p}, v{32+kk*8+2*p+1}, 16, v{32+kk*8+2*p}')
        A(f'ds_write_b128 v31, v[48:51] offset:{kk*1024}\ns_waitcnt lgkmcnt(0)')
    def load_v(sreg):
        for T in range(2):
            A(f'buffer_load_dwordx4 {vr(VX+T*4,4)}, v{VXA}, s[4:7], {sreg} offen offset:{T*64}')
    A(f'''s_mov_b32 s34, 0
s_mov_b32 s44, 0x3e02939f
s_mov_b32 s45, 0x3e02939f
s_mov_b32 s68, 0x3f803f80
s_mov_b32 s69, 0x3f803f80
s_cmp_eq_u32 s20, 1
s_cselect_b32 s87, 1, 0x7fff
s_lshl_b32 s50, s20, 2
s_add_u32 s50, s50, {L_FL}
s_waitcnt vmcnt(0) lgkmcnt(0)
s_barrier
s_barrier
s_setprio {APRIO}''')
    def rdT(kap, st): return [f'ds_read_b128 {vr(STG+st*8+eta*4,4)}, v{WB} offset:{kap*2048+eta*1024}' for eta in range(2)]
    def rdA(kap): return [f'ds_read_b128 {vr(AF+(kap%3)*4,4)}, v{LA} offset:{kap*1024}']
    def p1(kap):
        a = AF+(kap%3)*4
        return [smf_s(ACC, a, kap*8, True, IDX), smf_s(ACC+4, a, 64+kap*8, True, IDX),
                smf_s(ACC+8, a, T2W+kap*8, False, IDX), smf_s(ACC+12, a, STG+(kap%2)*8, False, IDX)]
    def emit(l):
        for x in l: A(x)
    def pre():
        emit(rdT(0,0)+rdT(1,1))
        for i in range(8): A(f'v_mov_b64 {vr(ACC+2*i,2)}, 0')
    pre()
    if MARK: MARK(A, 6, 30)
    stamp_init(A)
    Lloop = A.newlabel('cA_loop'); Lfin = A.newlabel('cA_fin')
    A.raw('.p2align 6')
    A.label(Lloop)
    if not FLAG_B1:
        A('s_waitcnt lgkmcnt(0)\ns_barrier')
        stamp(A, 0)
    def rdK(ks):
        b = STG+(ks%2)*8
        if ks == 0: return [f'ds_read_b128 {vr(b,4)}, v{KXR}', f'ds_read_b128 {vr(b+4,4)}, v{KXR} offset:4096']
        return [f'v_xor_b32 v{b+4}, {ks*64}, v{KXR}', f'ds_read_b128 {vr(b,4)}, v{b+4}', f'ds_read_b128 {vr(b+4,4)}, v{b+4} offset:4096']
    q = []
    def iss(tag, l):
        for x in l:
            A(x)
            if x.startswith('ds_'): q.append(tag)
    def need(tag):
        if tag not in q: return
        last = max(i for i,t in enumerate(q) if t == tag)
        n = len(q)-1-last
        A(f's_waitcnt lgkmcnt({n})')
        del q[:last+1]
    if FLAG_B1:
        Lb1 = A.newlabel('cA_b1')
        A(f'v_mov_b32 v31, {L_FL+32}\ns_setprio 0')
        A.label(Lb1)
        A(f'ds_read_b128 {vr(VX,4)}, v31')
    iss('A0', rdA(0)); iss('A1', rdA(1)); iss('A2', rdA(2))
    if FLAG_B1:
        A(f"""s_waitcnt lgkmcnt(3)
v_min3_u32 v{VX}, v{VX}, v{VX+1}, v{VX+2}
v_min_u32 v{VX}, v{VX}, v{VX+3}
v_cmp_gt_u32 vcc, s34, v{VX}
s_cbranch_vccnz {Lb1}
s_setprio 3""")
    A(f's_add_u32 s35, s34, 1\ns_lshl_b32 s43, s34, 18')
    pend = []
    def gapfill():
        if pend:
            t, x = pend.pop(0); iss(t, [x])
    for kap in range(8):
        if kap == B2POS:
            while pend: gapfill()
            stamp(A, 1)
            if not ONESTAGE: A('s_barrier')
            stamp(A, 2)
            if STAMPS: q.clear()
            iss('A4', rdA(4))
            if B2POS == 3: iss('A5', rdA(5))
            if not X_NOK: load_v('s43')
        m = p1(kap)
        need(f'A{kap}')
        A(m[0]); gapfill(); A(m[1]); gapfill(); A(m[2]); gapfill()
        need(f'T{kap}')
        A(m[3])
        if kap+2 < 8: pend += [(f'T{kap+2}', x) for x in rdT(kap+2, kap%2)]
        if kap == 0: pend += [('A3', x) for x in rdA(3)]
        if B2POS <= kap <= 4: pend += [(f'A{kap+3}', x) for x in rdA(kap+3)]
        if kap == 6: pend += [('K0', x) for x in rdK(0)]
        gapfill()
    while pend: gapfill()
    A(f'v_mov_b32 v30, s35\nv_mov_b32 v31, s50\ns_nop 1')
    for T in range(4):
        a = ACC+T*4
        A(f'v_add_f32 v{a}, v{a}, v{a+1}\nv_add_f32 v{a+2}, v{a+2}, v{a+3}')
    A(f"""v_cvt_pk_bf16_f32 v{ACC+0}, v{ACC+0}, v{ACC+4}
v_cvt_pk_bf16_f32 v{ACC+1}, v{ACC+8}, v{ACC+12}
v_cvt_pk_bf16_f32 v{ACC+2}, v{ACC+2}, v{ACC+6}
v_cvt_pk_bf16_f32 v{ACC+3}, v{ACC+10}, v{ACC+14}
ds_write_b64 v{QKW}, {vr(ACC+0,2)}
ds_write_b64 v{QKW}, {vr(ACC+2,2)} offset:{QS}
ds_write_b32 v31, v30
v_xor_b32 v{STG+12}, 64, v{KXR}
ds_read_b128 {vr(STG+8,4)}, v{STG+12}
ds_read_b128 {vr(STG+12,4)}, v{STG+12} offset:4096
v_mov_b32 v31, {L_FL}
s_cmp_eq_u32 s34, 63
s_cbranch_scc1 {Lfin}""")
    stamp(A, 3)
    Lf = A.newlabel('cA_fl')
    A.label(Lf)
    A(f"""ds_read_b128 {vr(AF,4)}, v31
ds_read_b128 {vr(ACC,4)}, v{QKR}
ds_read_b128 {vr(ACC+4,4)}, v{QKR} offset:{8*QS}
ds_read_b128 {vr(ACC+8,4)}, v{QKR} offset:64
ds_read_b128 {vr(ACC+12,4)}, v{QKR} offset:{8*QS+64}
s_waitcnt lgkmcnt(4)
v_min3_u32 v{AF}, v{AF}, v{AF+1}, v{AF+2}
v_min_u32 v{AF}, v{AF}, v{AF+3}
v_cmp_gt_u32 vcc, s35, v{AF}
s_cbranch_vccnz {Lf}""")
    stamp(A, 4)
    S = AF; M = 30; T1 = 31
    def rdQK(ks):
        b = ACC+(ks%2)*8
        return [f'ds_read_b128 {vr(b,4)}, v{QKR} offset:{ks*64}', f'ds_read_b128 {vr(b+4,4)}, v{QKR} offset:{8*QS+ks*64}']
    def smm(ks):
        b = ACC+(ks%2)*8; k = STG+(ks%2)*8
        r = []
        for t in range(3):
            a = vr(b+4,4) if t == 0 else vr(k+(t-1)*4,4)
            r.append(f'v_mfma_f32_16x16x32_bf16 {vr(S+t*4,4)}, {a}, {vr(b,4)}, {"0" if ks==0 else vr(S+t*4,4)}')
        return r
    A('s_waitcnt lgkmcnt(2)')
    emit(smm(0)); emit(rdQK(2)+rdK(2))
    A('s_waitcnt lgkmcnt(4)')
    emit(smm(1)); emit(rdQK(3)+rdK(3))
    A('s_waitcnt lgkmcnt(4)')
    emit(smm(2))
    A('s_waitcnt lgkmcnt(0)')
    emit(smm(3))
    PX = ACC; PM = ACC+4; VM = ACC+6; ONE = ACC+12; O = STG; LL = STG+8; LR = STG+12
    A(f"""s_nop 2
v_mov_b32 v{VM+1}, 0
v_mov_b32 v{VM+3}, 0
v_mov_b32 v{PM+1}, 0
v_mov_b64 {vr(ONE,2)}, s[68:69]
v_mov_b64 {vr(ONE+2,2)}, s[68:69]
v_max3_f32 v{M}, v{S}, v{S+2}, v{S+4}
v_max3_f32 v{T1}, v{S+5}, v{S+6}, v{S+7}
v_max3_f32 v{M}, v{M}, v{S+8}, v{S+9}
v_max3_f32 v{T1}, v{T1}, v{S+10}, v{S+11}
v_max_f32 v{M}, v{M}, v{T1}
v_mov_b32 v{T1}, v{M}
s_nop 1
v_permlane32_swap_b32 v{T1}, v{M}
v_max_f32 v{M}, v{M}, v{T1}
v_mov_b32 v{T1}, v{M}
s_nop 1
v_permlane16_swap_b32 v{T1}, v{M}
v_max_f32 v{M}, v{M}, v{T1}
v_mul_f32 v{M}, s44, v{M}""")
    for i in [2,3,4,5]:
        A(f'v_pk_fma_f32 {vr(S+2*i,2)}, {vr(S+2*i,2)}, s[44:45], {vr(M,2)} op_sel_hi:[1,1,0] neg_lo:[0,0,1] neg_hi:[0,0,1]')
    A(f'v_fma_f32 v{S}, v{S}, s44, -v{M}\nv_fma_f32 v{S+2}, v{S+2}, s44, -v{M}')
    for i in [4,5,6,7,8,9,10,11,0,2]:
        A(f'v_exp_f32 v{S+i}, v{S+i}')
    stamp(A, 5)
    A('s_barrier')
    stamp(A, 6)
    A(f"""ds_read_b32 v{VM}, v{VMR}
ds_read_b32 v{VM+2}, v{VMR} offset:16
v_cvt_pk_bf16_f32 v{PX}, v{S+4}, v{S+5}
v_cvt_pk_bf16_f32 v{PX+1}, v{S+6}, v{S+7}
v_cvt_pk_bf16_f32 v{PX+2}, v{S+8}, v{S+9}
v_cvt_pk_bf16_f32 v{PX+3}, v{S+10}, v{S+11}
v_cvt_pk_bf16_f32 v{PM}, v{S}, v{S+2}
s_waitcnt vmcnt(0)
v_mfma_f32_16x16x32_bf16 {vr(LL,4)}, {vr(ONE,4)}, {vr(PX,4)}, 0
v_mfma_f32_16x16x32_bf16 {vr(O,4)}, {vr(VX,4)}, {vr(PX,4)}, 0
v_mfma_f32_16x16x32_bf16 {vr(O+4,4)}, {vr(VX+4,4)}, {vr(PX,4)}, 0
v_mfma_f32_16x16x16_bf16 {vr(LL,4)}, {vr(ONE,2)}, {vr(PM,2)}, {vr(LL,4)}
s_waitcnt lgkmcnt(0)
v_mfma_f32_16x16x16_bf16 {vr(O,4)}, {vr(VM,2)}, {vr(PM,2)}, {vr(O,4)}
v_mfma_f32_16x16x16_bf16 {vr(O+4,4)}, {vr(VM+2,2)}, {vr(PM,2)}, {vr(O+4,4)}
s_nop 5
v_rcp_f32 v{LR}, v{LL}
s_nop 0""")
    for i in range(4):
        A(f'v_pk_mul_f32 {vr(O+2*i,2)}, {vr(O+2*i,2)}, {vr(LR,2)} op_sel_hi:[1,0]')
    for r in range(4):
        A(f'v_cvt_pk_bf16_f32 v{S+r}, v{O+r}, v{O+4+r}')
    if FLAG_BO:
        A(f"""v_mov_b32 v30, s35
v_mov_b32 v31, s50
ds_write_b128 v{OW}, {vr(S,4)}
ds_write_b32 v31, v30 offset:16""")
    else:
        A(f"""ds_write_b128 v{OW}, {vr(S,4)}
s_waitcnt lgkmcnt(0)""")
        stamp(A, 7)
        A('s_barrier')
        stamp(A, 8)
    if STEPT:
        Lst = A.newlabel('cA_st')
        A(f"""s_cmp_lg_u32 s15, 0
s_cbranch_scc1 {Lst}
s_cmp_lg_u32 s14, 0
s_cbranch_scc1 {Lst}
s_memrealtime s[94:95]
s_memtime s[96:97]
s_lshl_b32 s58, s34, 3
s_add_u32 s58, s58, {hex(WS_KD)}
s_waitcnt lgkmcnt(0)
s_mov_b64 exec, 1
v_mov_b32 v30, s94
v_mov_b32 v31, s96
v_mov_b32 v18, 0
buffer_store_dwordx2 v[30:31], v18, s[4:7], s58 offen
s_mov_b64 exec, -1""")
        A.label(Lst)
    A(f's_mov_b32 s34, s35\nv_xor_b32 v{KXR}, 0x2000, v{KXR}')
    pre()
    stamp(A, 9)
    A(f's_branch {Lloop}')
    A.label(Lfin)
    A(f"""s_waitcnt lgkmcnt(0)
s_barrier
s_branch {Lexit}""")

def emit_B(A, Lexit):
    IDX = 2; LA = 1
    WB = 0; PST = 3; PLD = 4; MST = 5; T16 = 6; OR = 7; KXA = 8; VMW = 9
    MBR = 12
    VACC = 16
    OA = 24
    D = 32
    AF = 32; STG = 48
    V0W = 64
    A(f'''v_subrev_u32 v46, 256, v0
v_lshlrev_b32 v{T16}, 4, v46''')
    A(f'''s_lshl_b32 s16, s15, 13
s_add_u32 s16, s16, {hex(WS_P)}
s_and_b32 s17, s15, 7
s_lshl_b32 s17, s17, 10
s_lshr_b32 s18, s15, 3
s_lshl_b32 s18, s18, 8
s_add_u32 s17, s17, s18
s_add_u32 s17, s17, {hex(WS_M)}''')
    A(f'''s_lshl_b32 s18, s20, 14
s_add_u32 s18, s18, {L_WB}
v_lshlrev_b32 v{WB}, 4, v40
v_add_u32 v{WB}, s18, v{WB}
s_lshl_b32 s18, s20, 16
s_lshl_b32 s19, s15, 6
s_add_u32 s18, s18, s19
s_add_u32 s18, s18, {hex(WS_P)}
v_and_b32 v50, 3, v41
v_lshlrev_b32 v50, 4, v50
v_lshl_add_u32 v50, v42, 11, v50
v_lshrrev_b32 v51, 2, v41
v_lshl_add_u32 v50, v51, 13, v50
v_add_u32 v{PST}, s18, v50
s_lshl_b32 s18, s20, 11
v_lshlrev_b32 v50, 4, v40
v_add_u32 v{PLD}, s18, v50
s_mov_b32 s59, s16
s_lshl_b32 s18, s20, 1
v_add_u32 v50, s18, v42
v_bfe_u32 v51, v41, 1, 1
v_lshl_add_u32 v50, v50, 1, v51
v_lshlrev_b32 v50, 4, v50
v_and_b32 v51, 1, v41
v_lshl_add_u32 v50, v51, 3, v50
v_add_u32 v{MST}, s17, v50
v_lshrrev_b32 v50, 1, v41
v_mul_u32_u24 v50, {QS}, v50
v_lshl_add_u32 v50, v42, 5, v50
v_and_b32 v51, 1, v41
v_lshl_add_u32 v50, v51, 4, v50
v_add_u32 v{OR}, {L_O}, v50
v_lshlrev_b32 v50, 1, v42
v_xor_b32 v50, v50, v41
v_lshlrev_b32 v50, 4, v50
v_lshl_add_u32 v50, v42, 8, v50
s_lshl_b32 s18, s15, 19
s_and_b32 s19, s20, 1
s_lshl_b32 s19, s19, 12
s_add_u32 s18, s18, s19
s_add_u32 s18, s18, {hex(WS_K)}
v_add_u32 v{KXA}, s18, v50
v_lshlrev_b32 v50, 2, v42
{VMW1 if VMAP else VMW0}
s_add_u32 s18, s18, {L_VM}
v_add_u32 v{VMW}, s18, v50
s_load_dwordx2 s[26:27], s[0:1], {KA_WV}
s_load_dwordx2 s[28:29], s[0:1], {KA_WO}
s_load_dwordx2 s[32:33], s[0:1], {KA_MEM0}
{VOFF1 if VMAP else VOFF0}
v_add_u32 v10, s18, v10            ; v voffset
v_lshlrev_b32 v50, 14, v44
v_lshl_add_u32 v50, v43, 12, v50
v_lshl_add_u32 v50, v41, 4, v50
s_lshl_b32 s18, s15, 17
s_lshl_b32 s19, s20, 8
s_add_u32 s18, s18, s19
v_add_u32 v11, s18, v50
v_lshrrev_b32 v50, 1, v41
v_lshlrev_b32 v50, 10, v50
v_lshl_add_u32 v50, v42, 8, v50
v_and_b32 v51, 1, v41
v_lshl_add_u32 v50, v51, 5, v50
s_and_b32 s18, s20, 1
s_lshl_b32 s18, s18, 7
s_lshr_b32 s19, s20, 1
s_lshl_b32 s19, s19, 3
s_add_u32 s18, s18, s19
v_add_u32 v12, s18, v50
s_waitcnt lgkmcnt(0)''')
    srd(A, 60, 26, 4*1024*1024)
    srd(A, 64, 28, 4*1024*1024)
    srd(A, 8, 32, 8192)
    batches = []
    for q in range(4):
        kp, eta = q//2, q%2
        buf = V0W + (q%2)*32
        def iss(kp=kp, eta=eta, buf=buf):
            for j in range(8):
                A(f"""s_mov_b32 s18, {(64*kp+32*eta+CP[j])*1024}
buffer_load_dwordx4 {vr(buf+j*4,4)}, v11, s[64:67], s18 offen""")
        def proc(kp=kp, eta=eta, buf=buf):
            for t in range(8):
                for p in range(4):
                    A(f'v_perm_b32 v12, v{buf+(2*p+1)*4+t//2}, v{buf+(2*p)*4+t//2}, {"s31" if t%2 else "s30"}\nv_accvgpr_write_b32 a{(t*2+kp)*8+eta*4+p}, v12')
        batches.append((iss, 8, proc))
    for kap in range(8):
        buf = 16 + (kap%3)*16
        def iss(kap=kap, buf=buf):
            for eta in range(2):
                for j in range(8):
                    A(f"""s_mov_b32 s18, {drow(kap,eta,j)*8192}
buffer_load_dword v{buf+eta*8+j}, v10, s[60:63], s18 offen""")
        def proc(kap=kap, buf=buf):
            for eta in range(2):
                for p in range(4):
                    A(f'v_perm_b32 v{V0W+kap*8+eta*4+p}, v{buf+eta*8+2*p+1}, v{buf+eta*8+2*p}, s30')
                for p in range(4):
                    A(f'v_perm_b32 v{12+p}, v{buf+eta*8+2*p+1}, v{buf+eta*8+2*p}, s31')
                A(f'ds_write_b128 v{WB}, v[12:15] offset:{kap*2048+eta*1024}\ns_nop 1')
        batches.append((iss, 16, proc))
    n = len(batches)
    order = []
    issued = set()
    def issue(i):
        if i < n and i not in issued:
            batches[i][0](); issued.add(i); order.append(i)
    issue(0); issue(1); issue(4); issue(5)
    for i in range(n):
        pos = order.index(i)
        out_after = sum(batches[j][1] for j in order[pos+1:])
        A(f's_waitcnt vmcnt({out_after})')
        batches[i][2]()
        if i < 2: issue(i+2)
        elif i == 2: issue(6)
        elif i >= 4: issue(i+3)
    if MARK: MARK(A, 2, 20, 4)
    confirm(A, 16)
    A(f"""s_and_b32 s53, s20, 1
s_lshl_b32 s53, s53, 12
s_add_u32 s53, s53, {L_KX}""")
    def dma_k(sreg, tmp):
        A(f"""s_mov_b32 m0, s53
v_xor_b32 v{tmp}, 128, v{KXA}
buffer_load_dwordx4 v{KXA}, s[4:7], {sreg} offen lds
buffer_load_dwordx4 v{KXA}, s[4:7], {sreg} offen offset:1024 lds
buffer_load_dwordx4 v{tmp}, s[4:7], {sreg} offen offset:2048 lds
buffer_load_dwordx4 v{tmp}, s[4:7], {sreg} offen offset:3072 lds""")
    A(f"""v_add_u32 v{T16}, {L_MA}, v{T16}
v_bfe_u32 v16, v{LA}, 4, 4
v_bfe_u32 v17, v{LA}, 8, 2
s_lshl_b32 s18, s20, 2
s_add_u32 s18, s18, 8
v_add_u32 v18, s18, v17
v_mul_u32_u24 v18, {QS}, v18
v_lshl_add_u32 v18, v16, 4, v18
v_add_u32 v18, {L_QK}, v18
s_lshl_b32 s18, s20, 10
s_add_u32 s18, s18, {L_VM-2048-L_MA}
v_add_u32 v19, s18, v{LA}
s_cmp_lt_u32 s20, 2
s_cselect_b64 vcc, -1, 0
v_cndmask_b32 v11, v19, v18, vcc
s_lshl_b32 s19, s15, 11
s_and_b32 s18, s20, 1
s_lshl_b32 s18, s18, 10
s_add_u32 s18, s18, s19
s_cmp_lt_u32 s20, 2
s_mov_b32 s57, {hex(WS_VMT-L_MA)}
s_cselect_b32 s57, {hex(WS_KM-L_MA)}, s57
s_add_u32 s57, s57, s18
s_cmp_eq_u32 s20, 1
s_cselect_b32 s87, 2, 0x7fff
s_waitcnt vmcnt(0) lgkmcnt(0)
s_barrier""")
    kv_ready(A, 0, 16)
    if MARK: MARK(A, 3, 20, 4)
    Ld0 = A.newlabel('cB_d0')
    A(f"""s_mov_b32 s18, 0
s_cmp_lt_u32 s20, 2
s_cbranch_scc1 {Ld0}""")
    dma_k('s18', 16)
    A.label(Ld0)
    A('s_waitcnt vmcnt(0)')
    Lcw = A.newlabel('cb_wait'); Lcs = A.newlabel('cb_spin')
    A(f"""s_cmp_lg_u32 s20, 0
s_cbranch_scc1 {Lcw}
s_mov_b64 exec, 1
v_mov_b32 v17, 36""")
    A.label(Lcs)
    A(f"""global_load_dword v16, v17, s[12:13] sc1
s_waitcnt vmcnt(0)
v_readfirstlane_b32 s18, v16
s_cmp_lt_u32 s18, 128
s_cbranch_scc1 {Lcs}
s_mov_b64 exec, -1""")
    A.label(Lcw)
    A(f"""s_barrier
s_mov_b32 s34, 0
s_mov_b32 s35, 8192
s_mov_b32 s36, 0
s_lshl_b32 s50, s15, 13
s_add_u32 s50, s50, {hex(WS_VT - L_MA*4)}
s_and_b32 s51, s20, 1
s_lshl_b32 s51, s51, 12
s_add_u32 s50, s50, s51
s_mov_b32 s46, 0x000f000f
s_mov_b32 s47, 0
s_mov_b32 s89, 0x3f80
s_lshl_b32 s60, s20, 2
s_add_u32 s60, s60, {L_FL}""")
    if TIMING: A('s_memtime s[62:63]\ns_waitcnt lgkmcnt(0)')
    def emit(l):
        for x in l: A(x)
    TS = [STG, STG+8, OA]
    def rdT(kap): return [f'ds_read_b128 {vr(TS[kap%3]+eta*4,4)}, v{WB} offset:{kap*2048+eta*1024}' for eta in range(2)]
    def rdA(kap): return [f'ds_read_b128 {vr(AF+(kap%4)*4,4)}, v{LA} offset:{kap*1024}']
    def p2(kap):
        a = AF+(kap%4)*4
        return [smf_s(VACC, a, V0W+kap*8, False, IDX), smf_s(VACC+4, a, TS[kap%3], False, IDX)]
    stamp_init(A)
    Lloop = A.newlabel('cB_loop'); Lfin = A.newlabel('cB_fin')
    if TPRE: emit(rdT(0)+rdT(1))
    A('s_waitcnt lgkmcnt(0)')
    A.raw('.p2align 6')
    A.label(Lloop)
    if not FLAG_B1:
        A('s_barrier')
        stamp(A, 0)
    if not ONESTAGE:
        Lnob = A.newlabel('cB_nob'); Lpb = A.newlabel('cB_pb'); Lok = A.newlabel('cB_okb')
        A(f"""s_cmp_eq_u32 s34, 0
s_cbranch_scc1 {Lnob}
ds_read_b128 {vr(OA,4)}, v11""")
        A.label(Lpb)
        A(f"""s_waitcnt vmcnt(0)
v_max3_u32 v{VACC}, v{MBR}, v{MBR+1}, v{MBR+2}
v_max_u32 v{VACC}, v{VACC}, v{MBR+3}
v_cmp_eq_u32 vcc, -1, v{VACC}
s_cbranch_vccz {Lok}""")
        spin(A, Lexit)
        A(f"""buffer_load_dwordx4 {vr(MBR,4)}, v{T16}, s[4:7], s40 offen sc1
s_branch {Lpb}""")
        A.label(Lok)
        A(f"""ds_write_b128 v{T16}, {vr(MBR,4)} offset:4096
s_waitcnt lgkmcnt(0)""")
        A.label(Lnob)
        stamp(A, 1)
        A('s_barrier')
        stamp(A, 2)
    Lnk = A.newlabel('cB_nk'); Lnw = A.newlabel('cB_nw')
    A('s_add_u32 s41, s34, 1')
    emit(rdA(0)+rdA(1)+rdA(2)+rdA(3)+([] if TPRE else rdT(0)+rdT(1)))
    A(f"""s_and_b32 s37, s34, 1
s_lshl_b32 s37, s37, 18
s_bfe_u32 s38, s34, 0x10001
s_add_u32 s52, s37, s59
s_add_u32 s51, s52, 1024
s_xor_b32 s53, s53, 0x2000""")
    Lnp = A.newlabel('cB_np'); Lpa = A.newlabel('cB_pa')
    A(f"""s_cmp_eq_u32 s34, 0
s_cbranch_scc1 {Lnp}
s_lshl_b32 s58, s34, 16
s_add_u32 s58, s58, s57
s_sub_u32 s58, s58, 0x10000
v_min_u32 v{OA}, -2, v{OA}
v_min_u32 v{OA+2}, -2, v{OA+2}
{'s_nop 0' if X_NOPUB else f'buffer_store_dwordx4 {vr(OA,4)}, v{LA}, s[4:7], s58 offen sc1'}""")
    A.label(Lnp)
    A(f"""s_cmp_lt_u32 s34, s87
s_cbranch_scc1 {Lpa}
s_mov_b64 exec, 1
s_sub_u32 s58, s34, 1
v_mov_b32 v{MBR+2}, s58
v_mov_b32 v{MBR+3}, 8
buffer_store_byte v{MBR+2}, v{MBR+3}, s[4:7], s81 offen sc1
s_mov_b64 exec, -1""")
    A.label(Lpa)
    Lnw2 = A.newlabel('cB_nw2')
    A(f"""s_cmp_ge_u32 s34, {0 if X_NOK else 63}
s_cbranch_scc1 {Lnw2}""")
    Lka = A.newlabel('cB_ka')
    A(f"""s_cmp_ge_u32 s80, 64
s_cbranch_scc1 {Lka}
s_cmp_eq_u32 s34, 0
s_cbranch_scc1 {Lka}""")
    kv_decode(A, 10)
    A.label(Lka)
    kv_ready(A, 's41', MBR+1)
    Lk2 = A.newlabel('cB_k2')
    A(f"""s_cmp_lt_u32 s20, 2
s_cbranch_scc0 {Lk2}
v_lshlrev_b32 v{MBR}, 2, v{LA}
s_lshl_b32 s54, s41, 18
s_add_u32 s54, s54, s50
s_mov_b32 m0, {L_MISC+256}
s_nop 0
buffer_load_dword v{MBR}, s[4:7], s54 offen lds
s_branch {Lnw2}""")
    A.label(Lk2)
    A('s_lshl_b32 s42, s41, 13')
    dma_k('s42', MBR)
    A.label(Lnw2)
    Lkb = A.newlabel('cB_kb')
    A(f"""s_cmp_ge_u32 s80, 64
s_cbranch_scc1 {Lkb}
v_mov_b32 v{MBR+1}, s81
buffer_load_dword v10, v{MBR+1}, s[4:7], 0 offen sc1""")
    A.label(Lkb)
    for i in range(4): A(f'v_mov_b64 {vr(VACC+2*i,2)}, 0')
    emit(rdT(2))
    if BDELAY:
        Lvf = A.newlabel('cB_vf')
        A(f'v_mov_b32 v{MBR}, s60')
        A.label(Lvf)
        A(f"""ds_read_b32 v{MBR+1}, v{MBR}
s_waitcnt lgkmcnt(0)
v_cmp_gt_u32 vcc, s41, v{MBR+1}
s_cbranch_vccnz {Lvf}""")
    else:
        A('s_waitcnt lgkmcnt(0)')
    stamp(A, 3)
    q = []
    def iss(tag, l):
        for x in l:
            A(x); q.append(tag)
    def need(tag):
        if tag not in q: return
        last = max(i for i,t in enumerate(q) if t == tag)
        A(f's_waitcnt lgkmcnt({len(q)-1-last})')
        del q[:last+1]
    for kap in range(8):
        m = p2(kap)
        need(f'A{kap}'); A(m[0])
        need(f'T{kap}'); A(m[1])
        if kap+3 < 8: iss(f'T{kap+3}', rdT(kap+3))
        if kap+4 < 8: iss(f'A{kap+4}', rdA(kap+4))
    A('s_nop 7')
    for T in range(2):
        a = VACC+T*4
        A(f"""v_add_f32 v{a}, v{a}, v{a+1}
v_add_f32 v{a+2}, v{a+2}, v{a+3}
v_cvt_pk_bf16_f32 v{a}, v{a}, v{a+2}
ds_write_b32 v{VMW}, v{a} offset:{16*T}""")
    A(f"""v_mov_b64 {vr(OA,2)}, 0
v_mov_b64 {vr(OA+2,2)}, 0
s_waitcnt lgkmcnt(0)""")
    stamp(A, 4)
    A(f"""s_barrier
s_cmp_eq_u32 s34, 63
s_cbranch_scc1 {Lfin}
v_mfma_f32_32x32x16_bf16 {vr(D,16)}, {vr(OA,4)}, {vr(OA,4)}, 0
v_mfma_f32_32x32x16_bf16 {vr(D+16,16)}, {vr(OA,4)}, {vr(OA,4)}, 0""")
    X = VACC
    A(f"""v_bfe_u32 v{MBR}, v{LA}, 5, 3
v_and_b32 v{MBR+1}, 16, v{LA}
v_lshlrev_b32_e64 v{MBR+1}, v{MBR+1}, s89""")
    for p in range(4):
        A(f"""v_cmp_eq_u32 vcc, {p}, v{MBR}
s_nop 1
v_cndmask_b32 v{X+p}, 0, v{MBR+1}, vcc""")
    A(f"""v_mov_b32 v{MBR+2}, -1
v_mov_b32 v{MBR+3}, -1
s_mov_b32 s41, s37
s_add_u32 s40, s35, {hex(WS_M - L_MA)}
s_nop 0""")
    if FLAG_BO:
        Lbo = A.newlabel('cB_bo')
        A(f's_add_u32 s61, s34, 1\nv_mov_b32 v10, {L_FL+16}')
        A.label(Lbo)
        A(f"""ds_read_b128 {vr(X+4,4)}, v10
ds_read_b128 {vr(OA,4)}, v{OR}
ds_read_b128 {vr(OA+4,4)}, v{OR} offset:128
s_waitcnt lgkmcnt(2)
v_min3_u32 v{X+4}, v{X+4}, v{X+5}, v{X+6}
v_min_u32 v{X+4}, v{X+4}, v{X+7}
v_cmp_gt_u32 vcc, s61, v{X+4}
s_cbranch_vccnz {Lbo}
s_setprio 3
s_waitcnt lgkmcnt(0)""")
    else:
        A('s_setprio 3\ns_barrier')
        stamp(A, 5)
        A(f"""ds_read_b128 {vr(OA,4)}, v{OR}
ds_read_b128 {vr(OA+4,4)}, v{OR} offset:128
s_waitcnt lgkmcnt({1 if OASPLIT else 0})""")
    def dpost_l(tq):
        a = D+tq*16
        r = []
        for t in range(4):
            r += [f'v_add_f32 v{a+4*t}, v{a+4*t}, v{a+4*t+1}', f'v_add_f32 v{a+4*t+2}, v{a+4*t+2}, v{a+4*t+3}']
        r += [f'v_cvt_pk_bf16_f32 v{a}, v{a}, v{a+4}', f'v_cvt_pk_bf16_f32 v{a+1}, v{a+8}, v{a+12}',
              f'v_cvt_pk_bf16_f32 v{a+2}, v{a+2}, v{a+6}', f'v_cvt_pk_bf16_f32 v{a+3}, v{a+10}, v{a+14}',
              f'v_and_or_b32 v{a}, v{a}, -2, s38',
              f'buffer_store_dwordx4 {vr(a,4)}, v{PST}, s[4:7], s41 offen']
        return r
    def pd(t):
        return [smf_s(D+t*4, OA, (t*2+0)*8, True, IDX), smf_s(D+t*4, OA+4, (t*2+1)*8, True, IDX)]
    def weave(mf, fill):
        fill = list(fill)
        for m in mf:
            A(m)
            if fill: A(fill.pop(0))
        for f in fill: A(f)
    if OASPLIT:
        A(pd(0)[0]); A(pd(1)[0]); A('s_waitcnt lgkmcnt(0)'); A(pd(0)[1]); A(pd(1)[1])
        weave(pd(2)+pd(3), [])
    else:
        weave(pd(0)+pd(1)+pd(2)+pd(3), [])
    p0 = dpost_l(0)
    weave(pd(4), p0[:2])
    emit(p0[2:])
    weave(pd(5)+pd(6)+pd(7), ['s_add_u32 s41, s41, 32768'])
    A('s_nop 1')
    emit(dpost_l(1))
    stamp(A, 6)
    PP = OA
    LpP = A.newlabel('cB_pollP'); LokP = A.newlabel('cB_okP')
    def ldP():
        A(f"""buffer_load_dwordx4 {vr(PP,4)}, v{PLD}, s[4:7], s52 offen sc1
buffer_load_dwordx4 {vr(PP+4,4)}, v{PLD}, s[4:7], s51 offen sc1""")
    if PDELAY: A(f's_sleep {PDELAY}')
    if PDELAY2:
        Lp2 = A.newlabel('cB_pd2')
        A(f's_bitcmp0_b32 s15, 2\ns_cbranch_scc1 {Lp2}\ns_sleep {PDELAY2}')
        A.label(Lp2)
    def gap(n):
        while n > 0:
            k = min(n, 16); A(f's_nop {k-1}'); n -= k
    if not PIPE_P:
        ldP()
        A.label(LpP)
        A(f"""s_waitcnt vmcnt(0)
v_xor_b32 v{MBR}, s38, v{PP}
v_xor_b32 v{MBR+1}, s38, v{PP+4}
v_or_b32 v{MBR}, v{MBR}, v{MBR+1}
v_and_b32 v{MBR}, 1, v{MBR}
v_cmp_ne_u32 vcc, 0, v{MBR}
s_cbranch_vccz {LokP}""")
        spin(A, Lexit)
        ldP()
        A(f's_branch {LpP}')
        A.label(LokP)
        stamp(A, 7)
        A(f"""v_mfma_f32_16x16x32_bf16 {vr(X+4,4)}, {vr(X,4)}, {vr(PP,4)}, 0
v_mfma_f32_16x16x32_bf16 {vr(X+4,4)}, {vr(X,4)}, {vr(PP+4,4)}, {vr(X+4,4)}""")
    else:
        PQ = D+24
        def ldP2(r):
            A(f"""buffer_load_dwordx4 {vr(r,4)}, v{PLD}, s[4:7], s52 offen sc1
buffer_load_dwordx4 {vr(r+4,4)}, v{PLD}, s[4:7], s51 offen sc1""")
        def chkP(r, Lok):
            A(f"""v_xor_b32 v{MBR}, s38, v{r}
v_xor_b32 v{MBR+1}, s38, v{r+4}
v_or_b32 v{MBR}, v{MBR}, v{MBR+1}
v_and_b32 v{MBR}, 1, v{MBR}
v_cmp_ne_u32 vcc, 0, v{MBR}
s_cbranch_vccz {Lok}""")
        LokP1 = A.newlabel('cB_okP1'); LokP2 = A.newlabel('cB_okP2')
        ldP2(PP); gap(PGAP); ldP2(PQ)
        A.label(LpP)
        A('s_waitcnt vmcnt(2)')
        chkP(PP, LokP)
        ldP2(PP)
        A('s_waitcnt vmcnt(2)')
        chkP(PQ, LokP1)
        ldP2(PQ)
        spin(A, Lexit)
        A(f's_branch {LpP}')
        A.label(LokP1)
        A(f"""v_mfma_f32_16x16x32_bf16 {vr(X+4,4)}, {vr(X,4)}, {vr(PQ,4)}, 0
v_mfma_f32_16x16x32_bf16 {vr(X+4,4)}, {vr(X,4)}, {vr(PQ+4,4)}, {vr(X+4,4)}
s_branch {LokP2}""")
        A.label(LokP)
        A(f"""v_mfma_f32_16x16x32_bf16 {vr(X+4,4)}, {vr(X,4)}, {vr(PP,4)}, 0
v_mfma_f32_16x16x32_bf16 {vr(X+4,4)}, {vr(X,4)}, {vr(PP+4,4)}, {vr(X+4,4)}""")
        A.label(LokP2)
    A(f"""s_mov_b32 s56, s36
s_mov_b32 s36, s35
s_add_u32 s34, s34, 1
s_nop 4""")
    for sh in (4, 8):
        for r in range(4):
            A(f'v_add_f32_dpp v{X+4+r}, v{X+4+r}, v{X+4+r} row_ror:{sh} row_mask:0xf bank_mask:0xf')
    M0 = D
    A(f"""s_mov_b64 exec, s[46:47]
v_cvt_pk_bf16_f32 v{MBR}, v{X+4}, v{X+5}
v_cvt_pk_bf16_f32 v{MBR+1}, v{X+6}, v{X+7}
v_min_u32 v{MBR}, -2, v{MBR}
v_min_u32 v{MBR+1}, -2, v{MBR+1}
buffer_store_dwordx2 {vr(MBR,2)}, v{MST}, s[4:7], s35 offen
buffer_store_dwordx2 {vr(MBR+2,2)}, v{MST}, s[4:7], s56 offen
s_mov_b64 exec, -1
s_add_u32 s35, s35, 8192
s_cmp_eq_u32 s35, 24576
s_cselect_b32 s35, 0, s35
s_add_u32 s56, s40, 4096""")
    stamp(A, 8)
    if TPRE: emit(rdT(0)+rdT(1))
    if MDELAY: A(f's_sleep {MDELAY}')
    LpM = A.newlabel('cB_pollM'); LokM = A.newlabel('cB_okM')
    def ldM(r): A(f'buffer_load_dwordx4 {vr(r,4)}, v{T16}, s[4:7], s40 offen sc1')
    def chkM(r, Lok):
        A(f"""v_max3_u32 v{M0+8}, v{r}, v{r+1}, v{r+2}
v_max_u32 v{M0+8}, v{M0+8}, v{r+3}
v_cmp_eq_u32 vcc, -1, v{M0+8}
s_cbranch_vccz {Lok}""")
    if ONESTAGE:
        def ldM2():
            A(f'buffer_load_dwordx4 {vr(M0,4)}, v{T16}, s[4:7], s40 offen sc1\nbuffer_load_dwordx4 {vr(M0+4,4)}, v{T16}, s[4:7], s56 offen sc1')
        A(f'ds_read_b128 {vr(OA,4)}, v11')
        ldM2()
        A.label(LpM)
        A(f"""s_waitcnt vmcnt(0)
v_max3_u32 v{M0+8}, v{M0}, v{M0+1}, v{M0+2}
v_max3_u32 v{M0+9}, v{M0+3}, v{M0+4}, v{M0+5}
v_max3_u32 v{M0+8}, v{M0+8}, v{M0+6}, v{M0+7}
v_max_u32 v{M0+8}, v{M0+8}, v{M0+9}
v_cmp_eq_u32 vcc, -1, v{M0+8}
s_cbranch_vccz {LokM}""")
        spin(A, Lexit)
        ldM2()
        A(f's_branch {LpM}')
        A.label(LokM)
        A(f"""ds_write_b128 v{T16}, {vr(M0,4)}
ds_write_b128 v{T16}, {vr(M0+4,4)} offset:4096
s_setprio {BPRIO}
s_waitcnt lgkmcnt(0)
s_branch {Lloop}""")
    elif not PIPE_M:
        ldM(M0)
        A.label(LpM)
        A('s_waitcnt vmcnt(0)')
        chkM(M0, LokM)
        spin(A, Lexit)
        ldM(M0)
        A(f's_branch {LpM}')
        A.label(LokM)
        stamp(A, 9)
        A(f'ds_write_b128 v{T16}, {vr(M0,4)}')
    else:
        M1 = M0+4
        Lok1 = A.newlabel('cB_okM1'); Lok2 = A.newlabel('cB_okM2')
        ldM(M0); gap(PGAP); ldM(M1)
        A.label(LpM)
        A('s_waitcnt vmcnt(1)')
        chkM(M0, LokM)
        ldM(M0)
        A('s_waitcnt vmcnt(1)')
        chkM(M1, Lok1)
        ldM(M1)
        spin(A, Lexit)
        A(f's_branch {LpM}')
        A.label(Lok1)
        A(f'ds_write_b128 v{T16}, {vr(M1,4)}\ns_branch {Lok2}')
        A.label(LokM)
        A(f'ds_write_b128 v{T16}, {vr(M0,4)}')
        A.label(Lok2)
    A(f"""{f'v_mov_b32 v{M0+8}, s34' if FLAG_B1 else 's_nop 0'}
{f'v_mov_b32 v{M0+9}, s60' if FLAG_B1 else 's_nop 0'}
{f'ds_write_b32 v{M0+9}, v{M0+8} offset:32' if FLAG_B1 else 's_nop 0'}
buffer_load_dwordx4 {vr(MBR,4)}, v{T16}, s[4:7], s56 offen sc1
s_mov_b32 s40, s56
s_setprio {BPRIO}
s_waitcnt lgkmcnt(0)
s_branch {Lloop}""")
    A.label(Lfin)
    if TIMING:
        A(f"""s_memtime s[64:65]
s_waitcnt lgkmcnt(0)
s_sub_u32 s64, s64, s62
v_mov_b32 v16, s64
s_lshl_b32 s18, s15, 2
s_add_u32 s18, s18, 64
v_mov_b32 v17, s18
s_mov_b64 exec, 1
global_store_dword v17, v16, s[12:13]
s_mov_b64 exec, -1""")
    A(f"""ds_read_b128 {vr(OA,4)}, v11
s_lshl_b32 s58, s34, 16
s_add_u32 s58, s58, s57
s_waitcnt lgkmcnt(0)
v_min_u32 v{OA}, -2, v{OA}
v_min_u32 v{OA+2}, -2, v{OA+2}
buffer_store_dwordx4 {vr(OA,4)}, v{LA}, s[4:7], s58 offen sc1
s_waitcnt vmcnt(0)
s_barrier
s_cmp_lg_u32 s20, 1
s_cbranch_scc1 {Lexit}
s_mov_b64 exec, 1
v_mov_b32 v16, 64
v_mov_b32 v17, 8
buffer_store_byte v16, v17, s[4:7], s81 offen sc1
s_mov_b64 exec, -1""")
```

```python
from asmlib import *
import k_chain, k_chain8, k_qkv3, k_ssm, k_tail3, k_elect
PROF = False
NOTAIL = False
TOUCH = True
SKIPT = True
WSLEEP = 0
CTIMING = False
def mark(A, i, t=120, wv=0):
    if not PROF: return
    L = A.newlabel('mk')
    A(f"""s_cmp_lg_u32 s14, {wv}
s_cbranch_scc1 {L}
s_memrealtime s[94:95]
s_lshl_b32 s96, s2, 6
s_add_u32 s96, s96, {hex(WS_KD)}
s_waitcnt lgkmcnt(0)
s_mov_b64 exec, 1
v_mov_b32 v{t}, s94
v_mov_b32 v{t+1}, 0
buffer_store_dword v{t}, v{t+1}, s[4:7], s96 offen offset:{4*i}
s_waitcnt vmcnt(0)
s_mov_b64 exec, -1""")
    A.label(L)
def emit_mega(A, name='mega_kernel'):
    kernel_header(A, name)
    Lend = A.newlabel('mg_end'); Lworker = A.newlabel('mg_worker')
    A(f"""s_cmp_ge_u32 s2, 256
s_cbranch_scc1 {Lend}
s_load_dwordx2 s[22:23], s[0:1], {KA_WS}
s_load_dwordx2 s[12:13], s[0:1], {KA_DBG}
v_lshrrev_b32 v16, 6, v0
s_nop 0
v_readfirstlane_b32 s14, v16
s_waitcnt lgkmcnt(0)""")
    srd(A, 4, 22, WS_SIZE)
    k_chain.MERGED = True
    mark(A, 0)
    k_chain8.MARK = mark if PROF else None
    k_chain8.TIMING = CTIMING
    if TOUCH:
        Lnt = A.newlabel('mg_nt')
        if SKIPT:
            A(f"""s_getreg_b32 s24, hwreg(HW_REG_XCC_ID)
s_and_b32 s24, s24, 7
s_cmp_eq_u32 s24, {k_elect.PREF}
s_cbranch_scc1 {Lnt}""")
        A(f"""s_lshr_b32 s24, s2, 6
s_lshl_b32 s24, s24, 3
s_add_u32 s24, s24, {KA_WQ}
s_load_dwordx2 s[26:27], s[0:1], s24
s_and_b32 s25, s2, 63
s_lshl_b32 s25, s25, 16
v_lshlrev_b32 v124, 4, v0
s_waitcnt lgkmcnt(0)""")
        srd(A, 28, 26, 4*1024*1024)
        for i in range(8):
            A(f's_add_u32 s24, s25, {i*8192}\nbuffer_load_dwordx4 v[{92+4*i}:{95+4*i}], v124, s[28:31], s24 offen')
        A.label(Lnt)
    k_elect.emit_ticket(A)
    Lchain = A.newlabel('mg_chain'); Lres = A.newlabel('mg_res')
    A(f"""s_mov_b32 s75, 1
s_mov_b32 s15, s79
s_cmp_eq_u32 s78, {k_elect.PREF}
s_cselect_b32 s24, s79, 0xffff
s_cmp_lt_u32 s24, 32
s_cbranch_scc1 {Lchain}""")
    A.label(Lres)
    Lr0 = A.newlabel('mg_r0')
    A(f's_cmp_lg_u32 s14, 0\ns_cbranch_scc1 {Lr0}')
    k_elect.emit_resolve(A)
    A(f"""v_mov_b32 v24, s15
v_mov_b32 v25, s90
v_mov_b32 v22, {k_elect.L_E+16}
ds_write_b64 v22, v[24:25]
s_waitcnt lgkmcnt(0)""")
    A.label(Lr0)
    A(f"""s_barrier
v_mov_b32 v22, {k_elect.L_E+16}
ds_read_b64 v[24:25], v22
s_waitcnt lgkmcnt(0)
v_readfirstlane_b32 s15, v24
v_readfirstlane_b32 s90, v25
s_barrier""")
    A(f"""s_mov_b32 s75, 0
s_cmp_ge_u32 s15, 32
s_cbranch_scc1 {Lworker}""")
    A.label(Lchain)
    mark(A, 1)
    Ldiv = A.newlabel('mg_div')
    k_chain8.DIVERT = Ldiv
    k_chain8.emit_chain8(A)
    mark(A, 7, 30)
    A('s_endpgm')
    A.label(Ldiv)
    A('s_barrier')
    A.label(Lworker)
    A(f"""s_cmp_ge_u32 s90, 224
s_cbranch_scc1 {Lend}
s_cmp_ge_u32 s14, 4
s_cbranch_scc1 {Lend}""")
    mark(A, 1)
    for _ in range(WSLEEP): A('s_sleep 127')
    Lssm0 = A.newlabel('mg_ssm0'); Lssm = A.newlabel('mg_ssm'); Ltail = A.newlabel('mg_tail')
    A(f"""s_cmp_ge_u32 s90, 192
s_cbranch_scc1 {Lssm0}
s_mov_b32 s15, s90""")
    k_qkv3.emit_qkv_body(A)
    mark(A, 2)
    A(f"""s_cmp_ge_u32 s90, 64
s_cbranch_scc1 {Ltail}
s_add_u32 s91, s90, 64
s_mov_b32 s92, 1
s_branch {Lssm}""")
    A.label(Lssm0)
    A(f"""s_sub_u32 s91, s90, 192
s_lshl_b32 s91, s91, 1
s_mov_b32 s92, 2""")
    A.label(Lssm)
    A('s_mov_b32 s15, s91')
    k_ssm.emit_ssm_body(A, st=' sc1')
    Ls = A.newlabel('mg_sd')
    A(f"""s_cmp_lg_u32 s14, 0
s_cbranch_scc1 {Ls}
s_mov_b64 exec, 1
v_mov_b32 v20, 1
v_mov_b32 v21, 44
global_atomic_add v21, v20, s[12:13]
s_mov_b64 exec, -1""")
    A.label(Ls)
    A(f"""s_add_u32 s91, s91, 1
s_sub_u32 s92, s92, 1
s_cmp_lg_u32 s92, 0
s_cbranch_scc1 {Lssm}""")
    A.label(Ltail)
    mark(A, 3)
    A(f"""s_lshr_b32 s15, s90, 5
s_lshl_b32 s15, s15, 2
s_lshr_b32 s15, 0x3456021, s15
s_and_b32 s15, s15, 7
s_lshl_b32 s15, s15, 5
s_and_b32 s91, s90, 31
s_add_u32 s15, s15, s91""")
    if not NOTAIL: k_tail3.emit_tail_body(A)
    mark(A, 4)
    A.label(Lend)
    A('s_endpgm')
```

```python
import sys
sys.path.insert(0, 'gen')
from gen import build
import k_mega8, k_chain8, k_tail3
def mk(out):
    build([('mega_kernel', k_mega8.emit_mega, 256, 512, 163840, 256, 100, 128)], out)
if __name__ == '__main__':
    mk('k8.s')
    k_mega8.PROF = True; mk('k8p.s')
    k_mega8.PROF = False
    k_chain8.STAMPS = True; mk('k8s.s'); k_chain8.STAMPS = False
    k_mega8.CTIMING = True
    mk('k8t.s')
    k_mega8.CTIMING = False
    def var(name, **kw):
        old = {k: getattr(k_chain8, k) for k in kw}
        for k,v in kw.items(): setattr(k_chain8, k, v)
        mk(f'work/{name}.s')
        for k,v in old.items(): setattr(k_chain8, k, v)
    k_mega8.SKIPT = False; mk('k8a.s')
    k_mega8.TOUCH = False; mk('k8b.s')
```

```python
from asmlib import *
import k_elect
L_WA = 0
L_WB = 65536
L_MA = 131072
L_QK = 139264
QS = 288
L_O  = L_QK
L_MISC = L_QK + 16*QS
L_VM = L_MISC + 1024
L_KX = 147456
L_FL = L_MISC + 64
WS_FLAG = 0x5800000
SPINBOUND = True
PDELAY = 2
PDELAY2 = 1
MDELAY = 2
MARK = None
TIMING = False
DIVERT = None
X_NOPUB = False
X_NOK = False
PIPE_P = True
VMAP = 0
VOFF1 = """s_lshr_b32 s18, s20, 1
s_lshl_b32 s18, s18, 7
s_and_b32 s19, s20, 1
s_lshl_b32 s19, s19, 2
s_add_u32 s18, s18, s19
v_lshl_add_u32 v10, v41, 3, v45"""
VOFF0 = """s_lshl_b32 s18, s20, 6
v_lshl_add_u32 v10, v41, 2, v45"""
VMW1 = """v_lshl_add_u32 v50, v41, 6, v50
s_lshr_b32 s18, s20, 1
s_lshl_b32 s18, s18, 10
s_and_b32 s19, s20, 1
s_lshl_b32 s19, s19, 5
s_add_u32 s18, s18, s19"""
VMW0 = """v_lshl_add_u32 v50, v41, 5, v50
s_lshl_b32 s18, s20, 9"""
BDELAY = False
B2POS = 2
FLAG_BO = False
STEPT = False
TPRE = False
DW2 = False
ONESTAGE = False
APRIO = 3
BPRIO = 0
OASPLIT = True
REDT = False
FLAG_B1 = False
PIPE_M = True
PGAP = 40
CP = [0,1,8,9,2,3,10,11]
def drow(kap, eta, j):
    return 256*eta + 32*(kap%4) + 4*(kap//4) + 8*(CP[j]>>2) + (CP[j]&3)

STAMPS = False
def stamp(A, i):
    if STAMPS:
        A(f"""s_memtime s[94:95]
s_waitcnt lgkmcnt(0)
s_sub_u32 s96, s94, s97
s_add_u32 s{70+i}, s{70+i}, s96
s_mov_b32 s97, s94""")
def stamp_init(A):
    if STAMPS:
        A('s_memtime s[94:95]\ns_waitcnt lgkmcnt(0)\ns_mov_b32 s97, s94')
        for i in range(10): A(f's_mov_b32 s{70+i}, 0')
def stamp_dump(A):
    if STAMPS:
        A(f"""s_lshl_b32 s18, s15, 3
s_add_u32 s18, s18, s14
s_lshl_b32 s18, s18, 6
s_add_u32 s18, s18, {hex(WS_KD)}
v_mov_b32 v17, 0
s_mov_b64 exec, 1""")
        for i in range(10):
            A(f"""v_mov_b32 v16, s{70+i}
buffer_store_dword v16, v17, s[4:7], s18 offen offset:{4*i}""")
def spin(A, Lexit):
    if SPINBOUND:
        A(f'''s_add_u32 s48, s48, 1
s_cmp_gt_u32 s48, 0x200000
s_cbranch_scc1 {Lexit}''')

def kv_decode(A, vreg):
    A(f"""v_readfirstlane_b32 s82, v{vreg}
s_nop 3
s_and_b32 s84, s82, 0xff
s_bfe_u32 s85, s82, 0x80010
s_min_u32 s84, s84, s85
s_lshl_b32 s84, s84, 1
s_bfe_u32 s83, s82, 0x80008
s_lshr_b32 s82, s82, 24
s_min_u32 s82, s82, s83
s_lshl_b32 s82, s82, 1
s_add_u32 s82, s82, 1
s_min_u32 s80, s84, s82""")

def kv_ready(A, target, t0):
    Lc = A.newlabel('kv_chk'); Lo = A.newlabel('kv_ok')
    A.label(Lc)
    A(f"""s_cmp_gt_u32 s80, {target}
s_cbranch_scc1 {Lo}
v_mov_b32 v{t0}, s81
buffer_load_dword v{t0+1}, v{t0}, s[4:7], 0 offen sc1
s_waitcnt vmcnt(0)""")
    kv_decode(A, t0+1)
    A(f"""s_cmp_gt_u32 s80, {target}
s_cbranch_scc1 {Lo}
s_sleep 4
s_add_u32 s88, s88, 1
s_cmp_lt_u32 s88, 0x80000
s_cbranch_scc1 {Lc}""")
    A.label(Lo)

def confirm(A, t):
    Lok = A.newlabel('cf_ok')
    A(f"""s_cmp_eq_u32 s75, 0
s_cbranch_scc1 {Lok}""")
    k_elect.emit_resolve(A, t)
    A(f"""s_mov_b32 s75, 0
s_cmp_lt_u32 s15, 32
s_cbranch_scc1 {Lok}
s_waitcnt vmcnt(0) lgkmcnt(0)
v_mbcnt_lo_u32_b32 v0, -1, 0
v_mbcnt_hi_u32_b32 v0, -1, v0
s_lshl_b32 s24, s14, 6
v_add_u32 v0, s24, v0
s_branch {DIVERT}""")
    A.label(Lok)

def smf_s(acc, a, b, isagpr, idx):
    bs = ar(b,8) if isagpr else vr(b,8)
    return f'v_smfmac_f32_16x16x64_bf16 {vr(acc,4)}, {vr(a,4)}, {bs}, v{idx}'

def run_batches(A, batches, depth_of):
    n = len(batches); issued = [0]
    def issue_upto(k):
        while issued[0] <= k and issued[0] < n:
            batches[issued[0]][0](); issued[0] += 1
    issue_upto(depth_of(0)-1)
    for i in range(n):
        out_after = sum(batches[j][1] for j in range(i+1, issued[0]))
        A(f's_waitcnt vmcnt({out_after})')
        batches[i][2]()
        issue_upto(min(i+depth_of(i+1), n-1))

def emit_chain8(A):
    LB = A.newlabel('c8_B'); Lexit = A.newlabel('c8_exit')
    A(f'''v_and_b32 v40, 63, v0
v_and_b32 v41, 15, v40            ; c
v_lshrrev_b32 v42, 4, v40         ; g
v_and_b32 v43, 1, v42             ; b
v_lshrrev_b32 v44, 1, v42         ; g/2
s_mov_b32 s30, 0x05040100
s_mov_b32 s31, 0x07060302
s_and_b32 s13+0, s13, s13'''.replace('s_and_b32 s13+0, s13, s13','s_and_b32 s20, s14, 3') + f'''
s_mov_b32 s48, 0
s_mov_b32 s80, 0
s_mov_b32 s88, 0
s_lshl_b32 s81, s15, 7
s_add_u32 s81, s81, {hex(WS_QF)}
v_mov_b32 v46, 0x4444
v_mov_b32 v47, 0xeeee
v_and_b32 v45, 1, v41
v_cmp_eq_u32 vcc, 0, v45
s_nop 1
v_cndmask_b32 v2, v47, v46, vcc   ; IDX
v_lshlrev_b32 v1, 4, v40
v_add_u32 v1, {L_MA}, v1          ; V_LA = L_MA + lane*16
v_lshlrev_b32 v45, 20, v44
v_lshl_add_u32 v45, v43, 16, v45
s_lshl_b32 s19, s15, 8
v_add_u32 v45, s19, v45           ; weight row base + h*256
s_cmp_ge_u32 s14, 4
s_cbranch_scc1 {LB}''')
    emit_A(A, Lexit)
    A.label(LB)
    emit_B(A, Lexit)
    A.label(Lexit)
    stamp_dump(A)
    A('s_waitcnt vmcnt(0)')

def emit_A(A, Lexit):
    IDX = 2; LA = 1
    WB = 0; QKW = 3; QKR = 4; OW = 5; KXR = 6; VXA = 7; VMR = 8; PUBR = 9
    VX = 10
    AF = 18
    STG = 32
    ACC = 48
    T2W = 64
    Lq0 = A.newlabel('cA_q0')
    A(f'''s_cmp_lg_u32 s20, 0
s_cbranch_scc1 {Lq0}''')
    confirm(A, 50)
    A(f'''s_mov_b64 exec, 1
v_mov_b32 v50, 0
v_mov_b32 v51, 0
v_mov_b32 v52, 0
v_mov_b32 v53, 0
buffer_store_dwordx4 v[50:53], v50, s[4:7], s81 offen sc1
s_waitcnt vmcnt(0)
v_mov_b32 v51, 1
v_mov_b32 v50, 56
global_atomic_add v50, v51, s[12:13]
s_mov_b64 exec, -1''')
    A.label(Lq0)
    A('v_lshlrev_b32 v9, 4, v0')
    A(f'''s_lshl_b32 s18, s20, 14
v_lshlrev_b32 v{WB}, 4, v40
v_add_u32 v{WB}, s18, v{WB}
s_lshr_b32 s18, s20, 1
s_lshl_b32 s18, s18, 3
v_lshlrev_b32 v50, 1, v42
v_add_u32 v50, s18, v50
v_mul_u32_u24 v50, {QS}, v50
s_and_b32 s18, s20, 1
s_lshl_b32 s18, s18, 7
s_add_u32 s18, s18, {L_QK}
v_lshl_add_u32 v50, v41, 3, v50
v_add_u32 v{QKW}, s18, v50
v_lshrrev_b32 v50, 1, v41
v_mul_u32_u24 v50, {QS}, v50
v_lshl_add_u32 v50, v42, 4, v50
v_add_u32 v{QKR}, {L_QK}, v50
v_lshrrev_b32 v50, 1, v41
v_mul_u32_u24 v50, {QS}, v50
v_lshl_add_u32 v50, v42, 4, v50
s_lshl_b32 s18, s20, 6
s_add_u32 s18, s18, {L_O}
v_add_u32 v{OW}, s18, v50
v_and_b32 v50, 3, v41
v_lshrrev_b32 v51, 3, v41
v_lshl_add_u32 v50, v51, 2, v50
v_lshlrev_b32 v50, 1, v50
v_xor_b32 v50, v50, v42
v_lshlrev_b32 v50, 4, v50
v_lshl_add_u32 v50, v41, 8, v50
v_add_u32 v{KXR}, {L_KX}, v50
v_lshlrev_b32 v50, 7, v41
v_lshl_add_u32 v50, v42, 4, v50
s_lshl_b32 s18, s15, 13
s_lshl_b32 s19, s20, 11
s_add_u32 s18, s18, s19
s_add_u32 s18, s18, {hex(WS_VT)}
v_add_u32 v{VXA}, s18, v50''')
    A(f'''v_lshlrev_b32 v50, 2, v42
v_lshl_add_u32 v50, v41, 5, v50
s_lshl_b32 s18, s20, 9
s_add_u32 s18, s18, {L_VM}
v_add_u32 v{VMR}, s18, v50''')
    A(f'''s_lshr_b32 s18, s20, 1
s_lshl_b32 s18, s18, 3
s_add_u32 s18, s18, {KA_WQ}
s_load_dwordx2 s[24:25], s[0:1], s18
s_and_b32 s18, s20, 1
s_lshl_b32 s18, s18, 7
v_lshl_add_u32 v30, v41, 3, v45
v_add_u32 v30, s18, v30
s_waitcnt lgkmcnt(0)''')
    srd(A, 8, 24, 4*1024*1024)
    bufs = [32, 48, 12]
    batches = []
    for q in range(16):
        kap, eta = q//2, q%2
        buf = bufs[q%3]
        def iss(kap=kap, eta=eta, buf=buf):
            for j in range(8):
                A(f"""s_mov_b32 s18, {drow(kap,eta,j)*8192}
buffer_load_dwordx2 {vr(buf+j*2,2)}, v30, s[8:11], s18 offen""")
        def proc(kap=kap, eta=eta, buf=buf):
            for T in range(4):
                for p in range(4):
                    hi = buf+(2*p+1)*2+T//2; lo = buf+(2*p)*2+T//2
                    sel = "s31" if T%2 else "s30"
                    if T < 2:
                        A(f'v_perm_b32 v31, v{hi}, v{lo}, {sel}\nv_accvgpr_write_b32 a{(T*8+kap)*8+eta*4+p}, v31')
                    elif T == 2:
                        A(f'v_perm_b32 v{T2W+kap*8+eta*4+p}, v{hi}, v{lo}, {sel}')
                    else:
                        A(f'v_perm_b32 v{28+(p%2)}, v{hi}, v{lo}, {sel}')
                        if p % 2 == 1:
                            A(f'ds_write_b64 v{WB}, v[28:29] offset:{kap*2048+eta*1024+(p//2)*8}\ns_nop 0')
        batches.append((iss, 8, proc))
    run_batches(A, batches, lambda i: 3)
    if MARK: MARK(A, 5, 30)
    confirm(A, 32)
    A(f'''v_bfe_u32 v40, v{LA}, 4, 6
v_and_b32 v41, 15, v40
v_lshrrev_b32 v42, 4, v40''')
    A(f'''s_lshl_b32 s16, s15, 13
s_add_u32 s16, s16, {hex(WS_P)}
v_mov_b32 v50, 1
v_mov_b32 v51, 1
v_mov_b32 v52, 1
v_mov_b32 v53, 1''')
    for ring in range(2):
        for i in range(2):
            A(f'''s_add_u32 s17, s16, {ring*0x40000+i*4096}
buffer_store_dwordx4 v[50:53], v9, s[4:7], s17 offen''')
    A(f'''s_and_b32 s17, s15, 7
s_lshl_b32 s17, s17, 10
s_lshr_b32 s18, s15, 3
s_lshl_b32 s18, s18, 8
s_add_u32 s17, s17, s18
s_add_u32 s17, s17, {hex(WS_M)}
v_mov_b32 v54, -1
v_lshlrev_b32 v55, 2, v40''')
    for sl in range(3):
        A(f'''s_add_u32 s18, s17, {sl*8192}
buffer_store_dword v54, v55, s[4:7], s18 offen''')
    Lz = A.newlabel('cA_z')
    A(f'''v_mov_b32 v54, 0
v_add_u32 v56, {L_FL}, v55
v_cmp_gt_u32 vcc, 16, v40
s_and_saveexec_b64 s[22:23], vcc
ds_write_b32 v56, v54
s_mov_b64 exec, s[22:23]
s_cmp_lg_u32 s15, 0
s_cbranch_scc1 {Lz}
s_mov_b32 s18, {hex(WS_FLAG)}
buffer_store_dword v54, v55, s[4:7], s18 offen sc1''')
    A.label(Lz)
    A(f'''s_lshl_b32 s19, s15, 11
s_and_b32 s18, s20, 1
s_lshl_b32 s18, s18, 10
s_add_u32 s18, s18, s19
s_cmp_lt_u32 s20, 2
s_mov_b32 s19, {hex(WS_VMT-L_MA+60*65536)}
s_cselect_b32 s19, {hex(WS_KM-L_MA+60*65536)}, s19
s_add_u32 s18, s18, s19
s_add_u32 s19, s18, 0x10000
v_mov_b32 v50, -1
v_mov_b32 v51, -1
v_mov_b32 v52, -1
v_mov_b32 v53, -1
buffer_store_dwordx4 v[50:53], v{LA}, s[4:7], s18 offen sc1
buffer_store_dwordx4 v[50:53], v{LA}, s[4:7], s19 offen sc1
s_add_u32 s18, s18, 0x20000
s_add_u32 s19, s19, 0x20000
buffer_store_dwordx4 v[50:53], v{LA}, s[4:7], s18 offen sc1
buffer_store_dwordx4 v[50:53], v{LA}, s[4:7], s19 offen sc1''')
    A(f'''s_waitcnt vmcnt(0)
s_mov_b64 exec, 1
v_mov_b32 v50, 1
v_mov_b32 v51, 36
global_atomic_add v51, v50, s[12:13]
s_mov_b64 exec, -1''')
    A(f'''s_load_dwordx2 s[32:33], s[0:1], {KA_MEM0}
v_lshrrev_b32 v50, 1, v41
v_lshlrev_b32 v50, 10, v50
v_lshl_add_u32 v50, v42, 8, v50
v_and_b32 v51, 1, v41
v_lshl_add_u32 v50, v51, 5, v50
s_and_b32 s18, s20, 1
s_lshl_b32 s18, s18, 7
s_lshr_b32 s19, s20, 1
s_lshl_b32 s19, s19, 3
s_add_u32 s18, s18, s19
v_add_u32 v30, s18, v50
s_waitcnt lgkmcnt(0)''')
    srd(A, 8, 32, 8192)
    for kk in range(2):
        for pos in range(8):
            A(f'buffer_load_ushort v{32+kk*8+pos}, v30, s[8:11], 0 offen offset:{(32*kk+8*(pos>>2)+(pos&3))*2}')
    A(f'''s_waitcnt vmcnt(0)
s_lshl_b32 s18, s20, 11
v_add_u32 v31, s18, v{LA}''')
    for kk in range(2):
        for p in range(4):
            A(f'v_lshl_or_b32 v{48+p}, v{32+kk*8+2*p+1}, 16, v{32+kk*8+2*p}')
        A(f'ds_write_b128 v31, v[48:51] offset:{kk*1024}\ns_waitcnt lgkmcnt(0)')
    def load_v(sreg):
        for T in range(2):
            A(f'buffer_load_dwordx4 {vr(VX+T*4,4)}, v{VXA}, s[4:7], {sreg} offen offset:{T*64}')
    A(f'''s_mov_b32 s34, 0
s_mov_b32 s44, 0x3e02939f
s_mov_b32 s45, 0x3e02939f
s_mov_b32 s68, 0x3f803f80
s_mov_b32 s69, 0x3f803f80
s_cmp_eq_u32 s20, 1
s_cselect_b32 s87, 1, 0x7fff
s_lshl_b32 s50, s20, 2
s_add_u32 s50, s50, {L_FL}
s_waitcnt vmcnt(0) lgkmcnt(0)
s_barrier
s_barrier
s_setprio {APRIO}''')
    def rdT(kap, st): return [f'ds_read_b128 {vr(STG+st*8+eta*4,4)}, v{WB} offset:{kap*2048+eta*1024}' for eta in range(2)]
    def rdA(kap): return [f'ds_read_b128 {vr(AF+(kap%3)*4,4)}, v{LA} offset:{kap*1024}']
    def p1(kap):
        a = AF+(kap%3)*4
        return [smf_s(ACC, a, kap*8, True, IDX), smf_s(ACC+4, a, 64+kap*8, True, IDX),
                smf_s(ACC+8, a, T2W+kap*8, False, IDX), smf_s(ACC+12, a, STG+(kap%2)*8, False, IDX)]
    def emit(l):
        for x in l: A(x)
    def pre():
        emit(rdT(0,0)+rdT(1,1))
        for i in range(8): A(f'v_mov_b64 {vr(ACC+2*i,2)}, 0')
    pre()
    if MARK: MARK(A, 6, 30)
    stamp_init(A)
    Lloop = A.newlabel('cA_loop'); Lfin = A.newlabel('cA_fin')
    A.raw('.p2align 6')
    A.label(Lloop)
    if not FLAG_B1:
        A('s_waitcnt lgkmcnt(0)\ns_barrier')
        stamp(A, 0)
    def rdK(ks):
        b = STG+(ks%2)*8
        if ks == 0: return [f'ds_read_b128 {vr(b,4)}, v{KXR}', f'ds_read_b128 {vr(b+4,4)}, v{KXR} offset:4096']
        return [f'v_xor_b32 v{b+4}, {ks*64}, v{KXR}', f'ds_read_b128 {vr(b,4)}, v{b+4}', f'ds_read_b128 {vr(b+4,4)}, v{b+4} offset:4096']
    q = []
    def iss(tag, l):
        for x in l:
            A(x)
            if x.startswith('ds_'): q.append(tag)
    def need(tag):
        if tag not in q: return
        last = max(i for i,t in enumerate(q) if t == tag)
        n = len(q)-1-last
        A(f's_waitcnt lgkmcnt({n})')
        del q[:last+1]
    if FLAG_B1:
        Lb1 = A.newlabel('cA_b1')
        A(f'v_mov_b32 v31, {L_FL+32}\ns_setprio 0')
        A.label(Lb1)
        A(f'ds_read_b128 {vr(VX,4)}, v31')
    iss('A0', rdA(0)); iss('A1', rdA(1)); iss('A2', rdA(2))
    if FLAG_B1:
        A(f"""s_waitcnt lgkmcnt(3)
v_min3_u32 v{VX}, v{VX}, v{VX+1}, v{VX+2}
v_min_u32 v{VX}, v{VX}, v{VX+3}
v_cmp_gt_u32 vcc, s34, v{VX}
s_cbranch_vccnz {Lb1}
s_setprio 3""")
    A(f's_add_u32 s35, s34, 1\ns_lshl_b32 s43, s34, 18')
    pend = []
    def gapfill():
        if pend:
            t, x = pend.pop(0); iss(t, [x])
    for kap in range(8):
        if kap == B2POS:
            while pend: gapfill()
            stamp(A, 1)
            if not ONESTAGE: A('s_barrier')
            stamp(A, 2)
            if STAMPS: q.clear()
            iss('A4', rdA(4))
            if B2POS == 3: iss('A5', rdA(5))
            if not X_NOK: load_v('s43')
        m = p1(kap)
        need(f'A{kap}')
        A(m[0]); gapfill(); A(m[1]); gapfill(); A(m[2]); gapfill()
        need(f'T{kap}')
        A(m[3])
        if kap+2 < 8: pend += [(f'T{kap+2}', x) for x in rdT(kap+2, kap%2)]
        if kap == 0: pend += [('A3', x) for x in rdA(3)]
        if B2POS <= kap <= 4: pend += [(f'A{kap+3}', x) for x in rdA(kap+3)]
        if kap == 6: pend += [('K0', x) for x in rdK(0)]
        gapfill()
    while pend: gapfill()
    A(f'v_mov_b32 v30, s35\nv_mov_b32 v31, s50\ns_nop 1')
    for T in range(4):
        a = ACC+T*4
        A(f'v_add_f32 v{a}, v{a}, v{a+1}\nv_add_f32 v{a+2}, v{a+2}, v{a+3}')
    A(f"""v_cvt_pk_bf16_f32 v{ACC+0}, v{ACC+0}, v{ACC+4}
v_cvt_pk_bf16_f32 v{ACC+1}, v{ACC+8}, v{ACC+12}
v_cvt_pk_bf16_f32 v{ACC+2}, v{ACC+2}, v{ACC+6}
v_cvt_pk_bf16_f32 v{ACC+3}, v{ACC+10}, v{ACC+14}
ds_write_b64 v{QKW}, {vr(ACC+0,2)}
ds_write_b64 v{QKW}, {vr(ACC+2,2)} offset:{QS}
ds_write_b32 v31, v30
v_xor_b32 v{STG+12}, 64, v{KXR}
ds_read_b128 {vr(STG+8,4)}, v{STG+12}
ds_read_b128 {vr(STG+12,4)}, v{STG+12} offset:4096
v_mov_b32 v31, {L_FL}
s_cmp_eq_u32 s34, 63
s_cbranch_scc1 {Lfin}""")
    stamp(A, 3)
    Lf = A.newlabel('cA_fl')
    A.label(Lf)
    A(f"""ds_read_b128 {vr(AF,4)}, v31
ds_read_b128 {vr(ACC,4)}, v{QKR}
ds_read_b128 {vr(ACC+4,4)}, v{QKR} offset:{8*QS}
ds_read_b128 {vr(ACC+8,4)}, v{QKR} offset:64
ds_read_b128 {vr(ACC+12,4)}, v{QKR} offset:{8*QS+64}
s_waitcnt lgkmcnt(4)
v_min3_u32 v{AF}, v{AF}, v{AF+1}, v{AF+2}
v_min_u32 v{AF}, v{AF}, v{AF+3}
v_cmp_gt_u32 vcc, s35, v{AF}
s_cbranch_vccnz {Lf}""")
    stamp(A, 4)
    S = AF; M = 30; T1 = 31
    def rdQK(ks):
        b = ACC+(ks%2)*8
        return [f'ds_read_b128 {vr(b,4)}, v{QKR} offset:{ks*64}', f'ds_read_b128 {vr(b+4,4)}, v{QKR} offset:{8*QS+ks*64}']
    def smm(ks):
        b = ACC+(ks%2)*8; k = STG+(ks%2)*8
        r = []
        for t in range(3):
            a = vr(b+4,4) if t == 0 else vr(k+(t-1)*4,4)
            r.append(f'v_mfma_f32_16x16x32_bf16 {vr(S+t*4,4)}, {a}, {vr(b,4)}, {"0" if ks==0 else vr(S+t*4,4)}')
        return r
    A('s_waitcnt lgkmcnt(2)')
    emit(smm(0)); emit(rdQK(2)+rdK(2))
    A('s_waitcnt lgkmcnt(4)')
    emit(smm(1)); emit(rdQK(3)+rdK(3))
    A('s_waitcnt lgkmcnt(4)')
    emit(smm(2))
    A('s_waitcnt lgkmcnt(0)')
    emit(smm(3))
    PX = ACC; PM = ACC+4; VM = ACC+6; ONE = ACC+12; O = STG; LL = STG+8; LR = STG+12
    A(f"""s_nop 2
v_mov_b32 v{VM+1}, 0
v_mov_b32 v{VM+3}, 0
v_mov_b32 v{PM+1}, 0
v_mov_b64 {vr(ONE,2)}, s[68:69]
v_mov_b64 {vr(ONE+2,2)}, s[68:69]
v_max3_f32 v{M}, v{S}, v{S+2}, v{S+4}
v_max3_f32 v{T1}, v{S+5}, v{S+6}, v{S+7}
v_max3_f32 v{M}, v{M}, v{S+8}, v{S+9}
v_max3_f32 v{T1}, v{T1}, v{S+10}, v{S+11}
v_max_f32 v{M}, v{M}, v{T1}
v_mov_b32 v{T1}, v{M}
s_nop 1
v_permlane32_swap_b32 v{T1}, v{M}
v_max_f32 v{M}, v{M}, v{T1}
v_mov_b32 v{T1}, v{M}
s_nop 1
v_permlane16_swap_b32 v{T1}, v{M}
v_max_f32 v{M}, v{M}, v{T1}
v_mul_f32 v{M}, s44, v{M}""")
    for i in [2,3,4,5]:
        A(f'v_pk_fma_f32 {vr(S+2*i,2)}, {vr(S+2*i,2)}, s[44:45], {vr(M,2)} op_sel_hi:[1,1,0] neg_lo:[0,0,1] neg_hi:[0,0,1]')
    A(f'v_fma_f32 v{S}, v{S}, s44, -v{M}\nv_fma_f32 v{S+2}, v{S+2}, s44, -v{M}')
    for i in [4,5,6,7,8,9,10,11,0,2]:
        A(f'v_exp_f32 v{S+i}, v{S+i}')
    stamp(A, 5)
    A('s_barrier')
    stamp(A, 6)
    A(f"""ds_read_b32 v{VM}, v{VMR}
ds_read_b32 v{VM+2}, v{VMR} offset:16
v_cvt_pk_bf16_f32 v{PX}, v{S+4}, v{S+5}
v_cvt_pk_bf16_f32 v{PX+1}, v{S+6}, v{S+7}
v_cvt_pk_bf16_f32 v{PX+2}, v{S+8}, v{S+9}
v_cvt_pk_bf16_f32 v{PX+3}, v{S+10}, v{S+11}
v_cvt_pk_bf16_f32 v{PM}, v{S}, v{S+2}
s_waitcnt vmcnt(0)
v_mfma_f32_16x16x32_bf16 {vr(LL,4)}, {vr(ONE,4)}, {vr(PX,4)}, 0
v_mfma_f32_16x16x32_bf16 {vr(O,4)}, {vr(VX,4)}, {vr(PX,4)}, 0
v_mfma_f32_16x16x32_bf16 {vr(O+4,4)}, {vr(VX+4,4)}, {vr(PX,4)}, 0
v_mfma_f32_16x16x16_bf16 {vr(LL,4)}, {vr(ONE,2)}, {vr(PM,2)}, {vr(LL,4)}
s_waitcnt lgkmcnt(0)
v_mfma_f32_16x16x16_bf16 {vr(O,4)}, {vr(VM,2)}, {vr(PM,2)}, {vr(O,4)}
v_mfma_f32_16x16x16_bf16 {vr(O+4,4)}, {vr(VM+2,2)}, {vr(PM,2)}, {vr(O+4,4)}
s_nop 5
v_rcp_f32 v{LR}, v{LL}
s_nop 0""")
    for i in range(4):
        A(f'v_pk_mul_f32 {vr(O+2*i,2)}, {vr(O+2*i,2)}, {vr(LR,2)} op_sel_hi:[1,0]')
    for r in range(4):
        A(f'v_cvt_pk_bf16_f32 v{S+r}, v{O+r}, v{O+4+r}')
    if FLAG_BO:
        A(f"""v_mov_b32 v30, s35
v_mov_b32 v31, s50
ds_write_b128 v{OW}, {vr(S,4)}
ds_write_b32 v31, v30 offset:16""")
    else:
        A(f"""ds_write_b128 v{OW}, {vr(S,4)}
s_waitcnt lgkmcnt(0)""")
        stamp(A, 7)
        A('s_barrier')
        stamp(A, 8)
    if STEPT:
        Lst = A.newlabel('cA_st')
        A(f"""s_cmp_lg_u32 s15, 0
s_cbranch_scc1 {Lst}
s_cmp_lg_u32 s14, 0
s_cbranch_scc1 {Lst}
s_memrealtime s[94:95]
s_memtime s[96:97]
s_lshl_b32 s58, s34, 3
s_add_u32 s58, s58, {hex(WS_KD)}
s_waitcnt lgkmcnt(0)
s_mov_b64 exec, 1
v_mov_b32 v30, s94
v_mov_b32 v31, s96
v_mov_b32 v18, 0
buffer_store_dwordx2 v[30:31], v18, s[4:7], s58 offen
s_mov_b64 exec, -1""")
        A.label(Lst)
    A(f's_mov_b32 s34, s35\nv_xor_b32 v{KXR}, 0x2000, v{KXR}')
    pre()
    stamp(A, 9)
    A(f's_branch {Lloop}')
    A.label(Lfin)
    A(f"""s_waitcnt lgkmcnt(0)
s_barrier
s_branch {Lexit}""")

def emit_B(A, Lexit):
    IDX = 2; LA = 1
    WB = 0; PST = 3; PLD = 4; MST = 5; T16 = 6; OR = 7; KXA = 8; VMW = 9
    MBR = 12
    VACC = 16
    OA = 24
    D = 32
    AF = 32; STG = 48
    V0W = 64
    A(f'''v_subrev_u32 v46, 256, v0
v_lshlrev_b32 v{T16}, 4, v46''')
    A(f'''s_lshl_b32 s16, s15, 13
s_add_u32 s16, s16, {hex(WS_P)}
s_and_b32 s17, s15, 7
s_lshl_b32 s17, s17, 10
s_lshr_b32 s18, s15, 3
s_lshl_b32 s18, s18, 8
s_add_u32 s17, s17, s18
s_add_u32 s17, s17, {hex(WS_M)}''')
    A(f'''s_lshl_b32 s18, s20, 14
s_add_u32 s18, s18, {L_WB}
v_lshlrev_b32 v{WB}, 4, v40
v_add_u32 v{WB}, s18, v{WB}
s_lshl_b32 s18, s20, 16
s_lshl_b32 s19, s15, 6
s_add_u32 s18, s18, s19
s_add_u32 s18, s18, {hex(WS_P)}
v_and_b32 v50, 3, v41
v_lshlrev_b32 v50, 4, v50
v_lshl_add_u32 v50, v42, 11, v50
v_lshrrev_b32 v51, 2, v41
v_lshl_add_u32 v50, v51, 13, v50
v_add_u32 v{PST}, s18, v50
s_lshl_b32 s18, s20, 11
v_lshlrev_b32 v50, 4, v40
v_add_u32 v{PLD}, s18, v50
s_mov_b32 s59, s16
s_lshl_b32 s18, s20, 1
v_add_u32 v50, s18, v42
v_bfe_u32 v51, v41, 1, 1
v_lshl_add_u32 v50, v50, 1, v51
v_lshlrev_b32 v50, 4, v50
v_and_b32 v51, 1, v41
v_lshl_add_u32 v50, v51, 3, v50
v_add_u32 v{MST}, s17, v50
v_lshrrev_b32 v50, 1, v41
v_mul_u32_u24 v50, {QS}, v50
v_lshl_add_u32 v50, v42, 5, v50
v_and_b32 v51, 1, v41
v_lshl_add_u32 v50, v51, 4, v50
v_add_u32 v{OR}, {L_O}, v50
v_lshlrev_b32 v50, 1, v42
v_xor_b32 v50, v50, v41
v_lshlrev_b32 v50, 4, v50
v_lshl_add_u32 v50, v42, 8, v50
s_lshl_b32 s18, s15, 19
s_and_b32 s19, s20, 1
s_lshl_b32 s19, s19, 12
s_add_u32 s18, s18, s19
s_add_u32 s18, s18, {hex(WS_K)}
v_add_u32 v{KXA}, s18, v50
v_lshlrev_b32 v50, 2, v42
{VMW1 if VMAP else VMW0}
s_add_u32 s18, s18, {L_VM}
v_add_u32 v{VMW}, s18, v50
s_load_dwordx2 s[26:27], s[0:1], {KA_WV}
s_load_dwordx2 s[28:29], s[0:1], {KA_WO}
s_load_dwordx2 s[32:33], s[0:1], {KA_MEM0}
{VOFF1 if VMAP else VOFF0}
v_add_u32 v10, s18, v10            ; v voffset
v_lshlrev_b32 v50, 14, v44
v_lshl_add_u32 v50, v43, 12, v50
v_lshl_add_u32 v50, v41, 4, v50
s_lshl_b32 s18, s15, 17
s_lshl_b32 s19, s20, 8
s_add_u32 s18, s18, s19
v_add_u32 v11, s18, v50
v_lshrrev_b32 v50, 1, v41
v_lshlrev_b32 v50, 10, v50
v_lshl_add_u32 v50, v42, 8, v50
v_and_b32 v51, 1, v41
v_lshl_add_u32 v50, v51, 5, v50
s_and_b32 s18, s20, 1
s_lshl_b32 s18, s18, 7
s_lshr_b32 s19, s20, 1
s_lshl_b32 s19, s19, 3
s_add_u32 s18, s18, s19
v_add_u32 v12, s18, v50
s_waitcnt lgkmcnt(0)''')
    srd(A, 60, 26, 4*1024*1024)
    srd(A, 64, 28, 4*1024*1024)
    srd(A, 8, 32, 8192)
    batches = []
    for q in range(4):
        kp, eta = q//2, q%2
        buf = V0W + (q%2)*32
        def iss(kp=kp, eta=eta, buf=buf):
            for j in range(8):
                A(f"""s_mov_b32 s18, {(64*kp+32*eta+CP[j])*1024}
buffer_load_dwordx4 {vr(buf+j*4,4)}, v11, s[64:67], s18 offen""")
        def proc(kp=kp, eta=eta, buf=buf):
            for t in range(8):
                for p in range(4):
                    A(f'v_perm_b32 v12, v{buf+(2*p+1)*4+t//2}, v{buf+(2*p)*4+t//2}, {"s31" if t%2 else "s30"}\nv_accvgpr_write_b32 a{(t*2+kp)*8+eta*4+p}, v12')
        batches.append((iss, 8, proc))
    for kap in range(8):
        buf = 16 + (kap%3)*16
        def iss(kap=kap, buf=buf):
            for eta in range(2):
                for j in range(8):
                    A(f"""s_mov_b32 s18, {drow(kap,eta,j)*8192}
buffer_load_dword v{buf+eta*8+j}, v10, s[60:63], s18 offen""")
        def proc(kap=kap, buf=buf):
            for eta in range(2):
                for p in range(4):
                    A(f'v_perm_b32 v{V0W+kap*8+eta*4+p}, v{buf+eta*8+2*p+1}, v{buf+eta*8+2*p}, s30')
                for p in range(4):
                    A(f'v_perm_b32 v{12+p}, v{buf+eta*8+2*p+1}, v{buf+eta*8+2*p}, s31')
                A(f'ds_write_b128 v{WB}, v[12:15] offset:{kap*2048+eta*1024}\ns_nop 1')
        batches.append((iss, 16, proc))
    n = len(batches)
    order = []
    issued = set()
    def issue(i):
        if i < n and i not in issued:
            batches[i][0](); issued.add(i); order.append(i)
    issue(0); issue(1); issue(4); issue(5)
    for i in range(n):
        pos = order.index(i)
        out_after = sum(batches[j][1] for j in order[pos+1:])
        A(f's_waitcnt vmcnt({out_after})')
        batches[i][2]()
        if i < 2: issue(i+2)
        elif i == 2: issue(6)
        elif i >= 4: issue(i+3)
    if MARK: MARK(A, 2, 20, 4)
    confirm(A, 16)
    A(f"""s_and_b32 s53, s20, 1
s_lshl_b32 s53, s53, 12
s_add_u32 s53, s53, {L_KX}""")
    def dma_k(sreg, tmp):
        A(f"""s_mov_b32 m0, s53
v_xor_b32 v{tmp}, 128, v{KXA}
buffer_load_dwordx4 v{KXA}, s[4:7], {sreg} offen lds
buffer_load_dwordx4 v{KXA}, s[4:7], {sreg} offen offset:1024 lds
buffer_load_dwordx4 v{tmp}, s[4:7], {sreg} offen offset:2048 lds
buffer_load_dwordx4 v{tmp}, s[4:7], {sreg} offen offset:3072 lds""")
    A(f"""v_add_u32 v{T16}, {L_MA}, v{T16}
v_bfe_u32 v16, v{LA}, 4, 4
v_bfe_u32 v17, v{LA}, 8, 2
s_lshl_b32 s18, s20, 2
s_add_u32 s18, s18, 8
v_add_u32 v18, s18, v17
v_mul_u32_u24 v18, {QS}, v18
v_lshl_add_u32 v18, v16, 4, v18
v_add_u32 v18, {L_QK}, v18
s_lshl_b32 s18, s20, 10
s_add_u32 s18, s18, {L_VM-2048-L_MA}
v_add_u32 v19, s18, v{LA}
s_cmp_lt_u32 s20, 2
s_cselect_b64 vcc, -1, 0
v_cndmask_b32 v11, v19, v18, vcc
s_lshl_b32 s19, s15, 11
s_and_b32 s18, s20, 1
s_lshl_b32 s18, s18, 10
s_add_u32 s18, s18, s19
s_cmp_lt_u32 s20, 2
s_mov_b32 s57, {hex(WS_VMT-L_MA)}
s_cselect_b32 s57, {hex(WS_KM-L_MA)}, s57
s_add_u32 s57, s57, s18
s_cmp_eq_u32 s20, 1
s_cselect_b32 s87, 2, 0x7fff
s_waitcnt vmcnt(0) lgkmcnt(0)
s_barrier""")
    kv_ready(A, 0, 16)
    if MARK: MARK(A, 3, 20, 4)
    Ld0 = A.newlabel('cB_d0')
    A(f"""s_mov_b32 s18, 0
s_cmp_lt_u32 s20, 2
s_cbranch_scc1 {Ld0}""")
    dma_k('s18', 16)
    A.label(Ld0)
    A('s_waitcnt vmcnt(0)')
    Lcw = A.newlabel('cb_wait'); Lcs = A.newlabel('cb_spin')
    A(f"""s_cmp_lg_u32 s20, 0
s_cbranch_scc1 {Lcw}
s_mov_b64 exec, 1
v_mov_b32 v17, 36""")
    A.label(Lcs)
    A(f"""global_load_dword v16, v17, s[12:13] sc1
s_waitcnt vmcnt(0)
v_readfirstlane_b32 s18, v16
s_cmp_lt_u32 s18, 128
s_cbranch_scc1 {Lcs}
s_mov_b64 exec, -1""")
    A.label(Lcw)
    A(f"""s_barrier
s_mov_b32 s34, 0
s_mov_b32 s35, 8192
s_mov_b32 s36, 0
s_lshl_b32 s50, s15, 13
s_add_u32 s50, s50, {hex(WS_VT - L_MA*4)}
s_and_b32 s51, s20, 1
s_lshl_b32 s51, s51, 12
s_add_u32 s50, s50, s51
s_mov_b32 s46, 0x000f000f
s_mov_b32 s47, 0
s_mov_b32 s89, 0x3f80
s_lshl_b32 s60, s20, 2
s_add_u32 s60, s60, {L_FL}""")
    if TIMING: A('s_memtime s[62:63]\ns_waitcnt lgkmcnt(0)')
    def emit(l):
        for x in l: A(x)
    TS = [STG, STG+8, OA]
    def rdT(kap): return [f'ds_read_b128 {vr(TS[kap%3]+eta*4,4)}, v{WB} offset:{kap*2048+eta*1024}' for eta in range(2)]
    def rdA(kap): return [f'ds_read_b128 {vr(AF+(kap%4)*4,4)}, v{LA} offset:{kap*1024}']
    def p2(kap):
        a = AF+(kap%4)*4
        return [smf_s(VACC, a, V0W+kap*8, False, IDX), smf_s(VACC+4, a, TS[kap%3], False, IDX)]
    stamp_init(A)
    Lloop = A.newlabel('cB_loop'); Lfin = A.newlabel('cB_fin')
    if TPRE: emit(rdT(0)+rdT(1))
    A('s_waitcnt lgkmcnt(0)')
    A.raw('.p2align 6')
    A.label(Lloop)
    if not FLAG_B1:
        A('s_barrier')
        stamp(A, 0)
    if not ONESTAGE:
        Lnob = A.newlabel('cB_nob'); Lpb = A.newlabel('cB_pb'); Lok = A.newlabel('cB_okb')
        A(f"""s_cmp_eq_u32 s34, 0
s_cbranch_scc1 {Lnob}
ds_read_b128 {vr(OA,4)}, v11""")
        A.label(Lpb)
        A(f"""s_waitcnt vmcnt(0)
v_max3_u32 v{VACC}, v{MBR}, v{MBR+1}, v{MBR+2}
v_max_u32 v{VACC}, v{VACC}, v{MBR+3}
v_cmp_eq_u32 vcc, -1, v{VACC}
s_cbranch_vccz {Lok}""")
        spin(A, Lexit)
        A(f"""buffer_load_dwordx4 {vr(MBR,4)}, v{T16}, s[4:7], s40 offen sc1
s_branch {Lpb}""")
        A.label(Lok)
        A(f"""ds_write_b128 v{T16}, {vr(MBR,4)} offset:4096
s_waitcnt lgkmcnt(0)""")
        A.label(Lnob)
        stamp(A, 1)
        A('s_barrier')
        stamp(A, 2)
    Lnk = A.newlabel('cB_nk'); Lnw = A.newlabel('cB_nw')
    A('s_add_u32 s41, s34, 1')
    emit(rdA(0)+rdA(1)+rdA(2)+rdA(3)+([] if TPRE else rdT(0)+rdT(1)))
    A(f"""s_and_b32 s37, s34, 1
s_lshl_b32 s37, s37, 18
s_bfe_u32 s38, s34, 0x10001
s_add_u32 s52, s37, s59
s_add_u32 s51, s52, 1024
s_xor_b32 s53, s53, 0x2000""")
    Lnp = A.newlabel('cB_np'); Lpa = A.newlabel('cB_pa')
    A(f"""s_cmp_eq_u32 s34, 0
s_cbranch_scc1 {Lnp}
s_lshl_b32 s58, s34, 16
s_add_u32 s58, s58, s57
s_sub_u32 s58, s58, 0x10000
v_min_u32 v{OA}, -2, v{OA}
v_min_u32 v{OA+2}, -2, v{OA+2}
{'s_nop 0' if X_NOPUB else f'buffer_store_dwordx4 {vr(OA,4)}, v{LA}, s[4:7], s58 offen sc1'}""")
    A.label(Lnp)
    A(f"""s_cmp_lt_u32 s34, s87
s_cbranch_scc1 {Lpa}
s_mov_b64 exec, 1
s_sub_u32 s58, s34, 1
v_mov_b32 v{MBR+2}, s58
v_mov_b32 v{MBR+3}, 8
buffer_store_byte v{MBR+2}, v{MBR+3}, s[4:7], s81 offen sc1
s_mov_b64 exec, -1""")
    A.label(Lpa)
    Lnw2 = A.newlabel('cB_nw2')
    A(f"""s_cmp_ge_u32 s34, {0 if X_NOK else 63}
s_cbranch_scc1 {Lnw2}""")
    Lka = A.newlabel('cB_ka')
    A(f"""s_cmp_ge_u32 s80, 64
s_cbranch_scc1 {Lka}
s_cmp_eq_u32 s34, 0
s_cbranch_scc1 {Lka}""")
    kv_decode(A, 10)
    A.label(Lka)
    kv_ready(A, 's41', MBR+1)
    Lk2 = A.newlabel('cB_k2')
    A(f"""s_cmp_lt_u32 s20, 2
s_cbranch_scc0 {Lk2}
v_lshlrev_b32 v{MBR}, 2, v{LA}
s_lshl_b32 s54, s41, 18
s_add_u32 s54, s54, s50
s_mov_b32 m0, {L_MISC+256}
s_nop 0
buffer_load_dword v{MBR}, s[4:7], s54 offen lds
s_branch {Lnw2}""")
    A.label(Lk2)
    A('s_lshl_b32 s42, s41, 13')
    dma_k('s42', MBR)
    A.label(Lnw2)
    Lkb = A.newlabel('cB_kb')
    A(f"""s_cmp_ge_u32 s80, 64
s_cbranch_scc1 {Lkb}
v_mov_b32 v{MBR+1}, s81
buffer_load_dword v10, v{MBR+1}, s[4:7], 0 offen sc1""")
    A.label(Lkb)
    for i in range(4): A(f'v_mov_b64 {vr(VACC+2*i,2)}, 0')
    emit(rdT(2))
    if BDELAY:
        Lvf = A.newlabel('cB_vf')
        A(f'v_mov_b32 v{MBR}, s60')
        A.label(Lvf)
        A(f"""ds_read_b32 v{MBR+1}, v{MBR}
s_waitcnt lgkmcnt(0)
v_cmp_gt_u32 vcc, s41, v{MBR+1}
s_cbranch_vccnz {Lvf}""")
    else:
        A('s_waitcnt lgkmcnt(0)')
    stamp(A, 3)
    q = []
    def iss(tag, l):
        for x in l:
            A(x); q.append(tag)
    def need(tag):
        if tag not in q: return
        last = max(i for i,t in enumerate(q) if t == tag)
        A(f's_waitcnt lgkmcnt({len(q)-1-last})')
        del q[:last+1]
    for kap in range(8):
        m = p2(kap)
        need(f'A{kap}'); A(m[0])
        need(f'T{kap}'); A(m[1])
        if kap+3 < 8: iss(f'T{kap+3}', rdT(kap+3))
        if kap+4 < 8: iss(f'A{kap+4}', rdA(kap+4))
    A('s_nop 7')
    for T in range(2):
        a = VACC+T*4
        A(f"""v_add_f32 v{a}, v{a}, v{a+1}
v_add_f32 v{a+2}, v{a+2}, v{a+3}
v_cvt_pk_bf16_f32 v{a}, v{a}, v{a+2}
ds_write_b32 v{VMW}, v{a} offset:{16*T}""")
    A(f"""v_mov_b64 {vr(OA,2)}, 0
v_mov_b64 {vr(OA+2,2)}, 0
s_waitcnt lgkmcnt(0)""")
    stamp(A, 4)
    A(f"""s_barrier
s_cmp_eq_u32 s34, 63
s_cbranch_scc1 {Lfin}
v_mfma_f32_32x32x16_bf16 {vr(D,16)}, {vr(OA,4)}, {vr(OA,4)}, 0
v_mfma_f32_32x32x16_bf16 {vr(D+16,16)}, {vr(OA,4)}, {vr(OA,4)}, 0""")
    X = VACC
    A(f"""v_bfe_u32 v{MBR}, v{LA}, 5, 3
v_and_b32 v{MBR+1}, 16, v{LA}
v_lshlrev_b32_e64 v{MBR+1}, v{MBR+1}, s89""")
    for p in range(4):
        A(f"""v_cmp_eq_u32 vcc, {p}, v{MBR}
s_nop 1
v_cndmask_b32 v{X+p}, 0, v{MBR+1}, vcc""")
    A(f"""v_mov_b32 v{MBR+2}, -1
v_mov_b32 v{MBR+3}, -1
s_mov_b32 s41, s37
s_add_u32 s40, s35, {hex(WS_M - L_MA)}
s_nop 0""")
    if FLAG_BO:
        Lbo = A.newlabel('cB_bo')
        A(f's_add_u32 s61, s34, 1\nv_mov_b32 v10, {L_FL+16}')
        A.label(Lbo)
        A(f"""ds_read_b128 {vr(X+4,4)}, v10
ds_read_b128 {vr(OA,4)}, v{OR}
ds_read_b128 {vr(OA+4,4)}, v{OR} offset:128
s_waitcnt lgkmcnt(2)
v_min3_u32 v{X+4}, v{X+4}, v{X+5}, v{X+6}
v_min_u32 v{X+4}, v{X+4}, v{X+7}
v_cmp_gt_u32 vcc, s61, v{X+4}
s_cbranch_vccnz {Lbo}
s_setprio 3
s_waitcnt lgkmcnt(0)""")
    else:
        A('s_setprio 3\ns_barrier')
        stamp(A, 5)
        A(f"""ds_read_b128 {vr(OA,4)}, v{OR}
ds_read_b128 {vr(OA+4,4)}, v{OR} offset:128
s_waitcnt lgkmcnt({1 if OASPLIT else 0})""")
    def dpost_l(tq):
        a = D+tq*16
        r = []
        for t in range(4):
            r += [f'v_add_f32 v{a+4*t}, v{a+4*t}, v{a+4*t+1}', f'v_add_f32 v{a+4*t+2}, v{a+4*t+2}, v{a+4*t+3}']
        r += [f'v_cvt_pk_bf16_f32 v{a}, v{a}, v{a+4}', f'v_cvt_pk_bf16_f32 v{a+1}, v{a+8}, v{a+12}',
              f'v_cvt_pk_bf16_f32 v{a+2}, v{a+2}, v{a+6}', f'v_cvt_pk_bf16_f32 v{a+3}, v{a+10}, v{a+14}',
              f'v_and_or_b32 v{a}, v{a}, -2, s38',
              f'buffer_store_dwordx4 {vr(a,4)}, v{PST}, s[4:7], s41 offen']
        return r
    def pd(t):
        return [smf_s(D+t*4, OA, (t*2+0)*8, True, IDX), smf_s(D+t*4, OA+4, (t*2+1)*8, True, IDX)]
    def weave(mf, fill):
        fill = list(fill)
        for m in mf:
            A(m)
            if fill: A(fill.pop(0))
        for f in fill: A(f)
    if DW2:
        p0 = dpost_l(0); p1_ = dpost_l(1)
        weave(pd(0)+pd(1), [])
        weave(pd(2), p0[0:2]); weave(pd(3), p0[2:4]); weave(pd(4), p0[4:6])
        emit(p0[6:])
        weave(pd(5), ['s_add_u32 s41, s41, 32768'])
        weave(pd(6), p1_[0:2]); weave(pd(7), p1_[2:4])
        emit(p1_[4:6]); A('s_nop 4'); emit(p1_[6:])
    else:
        if OASPLIT:
            A(pd(0)[0]); A(pd(1)[0]); A('s_waitcnt lgkmcnt(0)'); A(pd(0)[1]); A(pd(1)[1])
            weave(pd(2)+pd(3), [])
        else:
            weave(pd(0)+pd(1)+pd(2)+pd(3), [])
        p0 = dpost_l(0)
        weave(pd(4), p0[:2])
        emit(p0[2:])
        weave(pd(5)+pd(6)+pd(7), ['s_add_u32 s41, s41, 32768'])
        A('s_nop 1')
        emit(dpost_l(1))
    stamp(A, 6)
    PP = OA
    LpP = A.newlabel('cB_pollP'); LokP = A.newlabel('cB_okP')
    def ldP():
        A(f"""buffer_load_dwordx4 {vr(PP,4)}, v{PLD}, s[4:7], s52 offen sc1
buffer_load_dwordx4 {vr(PP+4,4)}, v{PLD}, s[4:7], s51 offen sc1""")
    if PDELAY: A(f's_sleep {PDELAY}')
    if PDELAY2:
        Lp2 = A.newlabel('cB_pd2')
        A(f's_bitcmp0_b32 s15, 2\ns_cbranch_scc1 {Lp2}\ns_sleep {PDELAY2}')
        A.label(Lp2)
    def gap(n):
        while n > 0:
            k = min(n, 16); A(f's_nop {k-1}'); n -= k
    if not PIPE_P:
        ldP()
        A.label(LpP)
        A(f"""s_waitcnt vmcnt(0)
v_xor_b32 v{MBR}, s38, v{PP}
v_xor_b32 v{MBR+1}, s38, v{PP+4}
v_or_b32 v{MBR}, v{MBR}, v{MBR+1}
v_and_b32 v{MBR}, 1, v{MBR}
v_cmp_ne_u32 vcc, 0, v{MBR}
s_cbranch_vccz {LokP}""")
        spin(A, Lexit)
        ldP()
        A(f's_branch {LpP}')
        A.label(LokP)
        stamp(A, 7)
        A(f"""v_mfma_f32_16x16x32_bf16 {vr(X+4,4)}, {vr(X,4)}, {vr(PP,4)}, 0
v_mfma_f32_16x16x32_bf16 {vr(X+4,4)}, {vr(X,4)}, {vr(PP+4,4)}, {vr(X+4,4)}""")
    else:
        PQ = D+24
        def ldP2(r):
            A(f"""buffer_load_dwordx4 {vr(r,4)}, v{PLD}, s[4:7], s52 offen sc1
buffer_load_dwordx4 {vr(r+4,4)}, v{PLD}, s[4:7], s51 offen sc1""")
        def chkP(r, Lok):
            A(f"""v_xor_b32 v{MBR}, s38, v{r}
v_xor_b32 v{MBR+1}, s38, v{r+4}
v_or_b32 v{MBR}, v{MBR}, v{MBR+1}
v_and_b32 v{MBR}, 1, v{MBR}
v_cmp_ne_u32 vcc, 0, v{MBR}
s_cbranch_vccz {Lok}""")
        LokP1 = A.newlabel('cB_okP1'); LokP2 = A.newlabel('cB_okP2')
        ldP2(PP); gap(PGAP); ldP2(PQ)
        A.label(LpP)
        A('s_waitcnt vmcnt(2)')
        chkP(PP, LokP)
        ldP2(PP)
        A('s_waitcnt vmcnt(2)')
        chkP(PQ, LokP1)
        ldP2(PQ)
        spin(A, Lexit)
        A(f's_branch {LpP}')
        A.label(LokP1)
        A(f"""v_mfma_f32_16x16x32_bf16 {vr(X+4,4)}, {vr(X,4)}, {vr(PQ,4)}, 0
v_mfma_f32_16x16x32_bf16 {vr(X+4,4)}, {vr(X,4)}, {vr(PQ+4,4)}, {vr(X+4,4)}
s_branch {LokP2}""")
        A.label(LokP)
        A(f"""v_mfma_f32_16x16x32_bf16 {vr(X+4,4)}, {vr(X,4)}, {vr(PP,4)}, 0
v_mfma_f32_16x16x32_bf16 {vr(X+4,4)}, {vr(X,4)}, {vr(PP+4,4)}, {vr(X+4,4)}""")
        A.label(LokP2)
    A(f"""s_mov_b32 s56, s36
s_mov_b32 s36, s35
s_add_u32 s34, s34, 1
s_nop 4""")
    for sh in (4, 8):
        for r in range(4):
            A(f'v_add_f32_dpp v{X+4+r}, v{X+4+r}, v{X+4+r} row_ror:{sh} row_mask:0xf bank_mask:0xf')
    M0 = D
    A(f"""s_mov_b64 exec, s[46:47]
v_cvt_pk_bf16_f32 v{MBR}, v{X+4}, v{X+5}
v_cvt_pk_bf16_f32 v{MBR+1}, v{X+6}, v{X+7}
v_min_u32 v{MBR}, -2, v{MBR}
v_min_u32 v{MBR+1}, -2, v{MBR+1}
buffer_store_dwordx2 {vr(MBR,2)}, v{MST}, s[4:7], s35 offen
buffer_store_dwordx2 {vr(MBR+2,2)}, v{MST}, s[4:7], s56 offen
s_mov_b64 exec, -1
s_add_u32 s35, s35, 8192
s_cmp_eq_u32 s35, 24576
s_cselect_b32 s35, 0, s35
s_add_u32 s56, s40, 4096""")
    stamp(A, 8)
    if TPRE: emit(rdT(0)+rdT(1))
    if MDELAY: A(f's_sleep {MDELAY}')
    LpM = A.newlabel('cB_pollM'); LokM = A.newlabel('cB_okM')
    def ldM(r): A(f'buffer_load_dwordx4 {vr(r,4)}, v{T16}, s[4:7], s40 offen sc1')
    def chkM(r, Lok):
        A(f"""v_max3_u32 v{M0+8}, v{r}, v{r+1}, v{r+2}
v_max_u32 v{M0+8}, v{M0+8}, v{r+3}
v_cmp_eq_u32 vcc, -1, v{M0+8}
s_cbranch_vccz {Lok}""")
    if ONESTAGE:
        def ldM2():
            A(f'buffer_load_dwordx4 {vr(M0,4)}, v{T16}, s[4:7], s40 offen sc1\nbuffer_load_dwordx4 {vr(M0+4,4)}, v{T16}, s[4:7], s56 offen sc1')
        A(f'ds_read_b128 {vr(OA,4)}, v11')
        ldM2()
        A.label(LpM)
        A(f"""s_waitcnt vmcnt(0)
v_max3_u32 v{M0+8}, v{M0}, v{M0+1}, v{M0+2}
v_max3_u32 v{M0+9}, v{M0+3}, v{M0+4}, v{M0+5}
v_max3_u32 v{M0+8}, v{M0+8}, v{M0+6}, v{M0+7}
v_max_u32 v{M0+8}, v{M0+8}, v{M0+9}
v_cmp_eq_u32 vcc, -1, v{M0+8}
s_cbranch_vccz {LokM}""")
        spin(A, Lexit)
        ldM2()
        A(f's_branch {LpM}')
        A.label(LokM)
        A(f"""ds_write_b128 v{T16}, {vr(M0,4)}
ds_write_b128 v{T16}, {vr(M0+4,4)} offset:4096
s_setprio {BPRIO}
s_waitcnt lgkmcnt(0)
s_branch {Lloop}""")
    elif not PIPE_M:
        ldM(M0)
        A.label(LpM)
        A('s_waitcnt vmcnt(0)')
        chkM(M0, LokM)
        spin(A, Lexit)
        ldM(M0)
        A(f's_branch {LpM}')
        A.label(LokM)
        stamp(A, 9)
        A(f'ds_write_b128 v{T16}, {vr(M0,4)}')
    else:
        M1 = M0+4
        Lok1 = A.newlabel('cB_okM1'); Lok2 = A.newlabel('cB_okM2')
        ldM(M0); gap(PGAP); ldM(M1)
        A.label(LpM)
        A('s_waitcnt vmcnt(1)')
        chkM(M0, LokM)
        ldM(M0)
        A('s_waitcnt vmcnt(1)')
        chkM(M1, Lok1)
        ldM(M1)
        spin(A, Lexit)
        A(f's_branch {LpM}')
        A.label(Lok1)
        A(f'ds_write_b128 v{T16}, {vr(M1,4)}\ns_branch {Lok2}')
        A.label(LokM)
        A(f'ds_write_b128 v{T16}, {vr(M0,4)}')
        A.label(Lok2)
    A(f"""{f'v_mov_b32 v{M0+8}, s34' if FLAG_B1 else 's_nop 0'}
{f'v_mov_b32 v{M0+9}, s60' if FLAG_B1 else 's_nop 0'}
{f'ds_write_b32 v{M0+9}, v{M0+8} offset:32' if FLAG_B1 else 's_nop 0'}
buffer_load_dwordx4 {vr(MBR,4)}, v{T16}, s[4:7], s56 offen sc1
s_mov_b32 s40, s56
s_setprio {BPRIO}
s_waitcnt lgkmcnt(0)
s_branch {Lloop}""")
    A.label(Lfin)
    if TIMING:
        A(f"""s_memtime s[64:65]
s_waitcnt lgkmcnt(0)
s_sub_u32 s64, s64, s62
v_mov_b32 v16, s64
s_lshl_b32 s18, s15, 2
s_add_u32 s18, s18, 64
v_mov_b32 v17, s18
s_mov_b64 exec, 1
global_store_dword v17, v16, s[12:13]
s_mov_b64 exec, -1""")
    A(f"""ds_read_b128 {vr(OA,4)}, v11
s_lshl_b32 s58, s34, 16
s_add_u32 s58, s58, s57
s_waitcnt lgkmcnt(0)
v_min_u32 v{OA}, -2, v{OA}
v_min_u32 v{OA+2}, -2, v{OA+2}
buffer_store_dwordx4 {vr(OA,4)}, v{LA}, s[4:7], s58 offen sc1
s_waitcnt vmcnt(0)
s_barrier
s_cmp_lg_u32 s20, 1
s_cbranch_scc1 {Lexit}
s_mov_b64 exec, 1
v_mov_b32 v16, 64
v_mov_b32 v17, 8
buffer_store_byte v16, v17, s[4:7], s81 offen sc1
s_mov_b64 exec, -1""")
```

```python
import sys
sys.path.insert(0, 'gen')
from gen import build
import k_mega8, k_chain8, k_tail3
def mk(out):
    build([('mega_kernel', k_mega8.emit_mega, 256, 512, 163840, 256, 100, 128)], out)
if __name__ == '__main__':
    mk('k8.s')
    k_mega8.PROF = True; mk('k8p.s')
    k_mega8.PROF = False
    k_chain8.STAMPS = True; mk('k8s.s'); k_chain8.STAMPS = False
    k_mega8.CTIMING = True
    mk('k8t.s')
    k_mega8.CTIMING = False
    def var(name, **kw):
        old = {k: getattr(k_chain8, k) for k in kw}
        for k,v in kw.items(): setattr(k_chain8, k, v)
        mk(f'work/{name}.s')
        for k,v in old.items(): setattr(k_chain8, k, v)
    k_chain8.STEPT = True
    var('v0')
    var('v1', DW2=True)
    var('v2', OASPLIT=True)
    var('v3', TPRE=True)
    var('v4', APRIO=1)
    var('v5', B2POS=3)
    var('v6', DW2=True, PDELAY2=2)
    var('v7', DW2=True, PDELAY=3, PDELAY2=1)
```

```python
from asmlib import *
WS_P2 = 0x6000000
WS_FLAG = 0x5800000
NSET = 7
TSLEEP = 12
T_K = 0
T_Q = 8192
T_O = 32768
OS = 272
T_G = T_O + 32*OS
W0 = 128
ACC = 64
KF = 16

def nxt(dst, src):
    return f"""s_add_u32 s74, s16, 28
s_cmp_lt_u32 {src}, 24
s_cselect_b32 s75, 4, 7
s_add_u32 s75, {src}, s75
s_sub_u32 s76, {src}, 24
s_cmp_lt_u32 s76, 4
s_cselect_b32 {dst}, s74, s75"""

def emit_tail_body(A):
    A(f'''s_lshr_b32 s16, s15, 5           ; set
s_and_b32 s17, s15, 31           ; h
s_load_dwordx2 s[24:25], s[0:1], {KA_WO}
s_load_dwordx2 s[26:27], s[0:1], {KA_X}
s_load_dwordx2 s[28:29], s[0:1], {KA_GW}
s_load_dwordx2 s[32:33], s[0:1], {KA_DSKIP}
s_load_dwordx2 s[34:35], s[0:1], {KA_OUT}
v_and_b32 v1, 63, v0             ; lane
v_and_b32 v2, 15, v1             ; c
v_lshrrev_b32 v3, 4, v1          ; g
s_mov_b32 s30, 0x05040100
s_mov_b32 s31, 0x07060302
s_waitcnt lgkmcnt(0)''')
    srd(A, 8, 24, 4*1024*1024)
    srd(A, 36, 26, 2048*1024)
    srd(A, 40, 34, 2048*1024)
    srd(A, 44, 28, 1024)
    srd(A, 48, 32, 1024)
    A(f'''v_lshlrev_b32 v4, 13, v3
v_lshl_add_u32 v4, v2, 4, v4
s_lshl_b32 s18, s17, 17
s_lshl_b32 s19, s14, 8
s_add_u32 s18, s18, s19
v_add_u32 v4, s18, v4''')
    for ks in range(4):
        for j in range(8):
            A(f'''s_mov_b32 s18, {(32*ks+j)*1024}
buffer_load_dwordx4 {vr(KF+j*4,4)}, v4, s[8:11], s18 offen''')
        A('s_waitcnt vmcnt(0)')
        for t in range(8):
            for p in range(4):
                A(f'v_perm_b32 v60, v{KF+(2*p+1)*4+t//2}, v{KF+(2*p)*4+t//2}, {"s31" if t%2 else "s30"}\nv_accvgpr_write_b32 a{(t*4+ks)*4+p}, v60')
    A(f'''s_and_b32 s18, s14, 1
s_lshl_b32 s18, s18, 2
v_add_u32 v4, s18, v3
v_lshlrev_b32 v4, 1, v4
v_xor_b32 v4, v4, v2
v_lshlrev_b32 v4, 4, v4
v_lshl_add_u32 v4, v3, 8, v4
s_lshl_b32 s18, s17, 19
s_lshl_b32 s19, s14, 11
s_add_u32 s18, s18, s19
v_add_u32 v4, s18, v4''')
    A(f'''v_and_b32 v5, 3, v2
v_lshrrev_b32 v6, 3, v2
v_lshl_add_u32 v5, v6, 2, v5
v_lshlrev_b32 v5, 1, v5
v_xor_b32 v5, v5, v3
v_lshlrev_b32 v5, 4, v5
v_lshl_add_u32 v5, v2, 8, v5''')
    A(f'''v_lshlrev_b32 v6, 7, v2
v_lshl_add_u32 v6, v3, 4, v6
s_lshl_b32 s18, s17, 13
s_lshr_b32 s19, s14, 1
s_lshl_b32 s20, s19, 12
s_add_u32 s18, s18, s20
s_add_u32 s18, s18, {hex(WS_VT)}
v_add_u32 v6, s18, v6''')
    A(f'''v_and_b32 v7, 7, v2
v_lshlrev_b32 v7, 8, v7
v_lshl_add_u32 v7, v3, 4, v7
s_lshl_b32 s18, s17, 11
s_add_u32 s18, s18, {hex(WS_KM)}
v_add_u32 v7, s18, v7''')
    A(f'''v_and_b32 v8, 1, v3
v_lshlrev_b32 v8, 3, v8
v_lshl_add_u32 v8, v2, 5, v8
s_lshl_b32 s18, s17, 11
s_lshl_b32 s20, s19, 10
s_add_u32 s18, s18, s20
s_add_u32 s18, s18, {hex(WS_VMT)}
v_add_u32 v8, s18, v8''')
    A(f'''s_and_b32 s20, s14, 1
s_lshl_b32 s20, s20, 4
v_add_u32 v9, s20, v2
v_mul_u32_u24 v9, {OS}, v9
v_lshl_add_u32 v9, v3, 4, v9
s_lshl_b32 s18, s19, 7
s_add_u32 s18, s18, {T_O}
v_add_u32 v9, s18, v9''')
    A(f'''v_mul_u32_u24 v10, {OS}, v2
v_lshl_add_u32 v10, v3, 4, v10
v_add_u32 v10, {T_O}, v10''')
    A(f'''v_lshlrev_b32 v11, 17, v3
v_lshl_add_u32 v11, v2, 4, v11
s_lshl_b32 s18, s14, 13
s_lshl_b32 s20, s17, 8
s_add_u32 s18, s18, s20
s_add_u32 s18, s18, {hex(WS_P2)}
v_add_u32 v11, s18, v11''')
    A(f'''s_and_b32 s20, s14, 1
s_lshl_b32 s20, s20, 4
v_add_u32 v12, s20, v2
v_lshlrev_b32 v13, 2, v3
v_sub_u32 v12, v12, v13
v_lshlrev_b32 v13, 4, v1         ; v13 = lane*16
v_and_b32 v14, 1, v2
v_lshlrev_b32 v14, 4, v14
v_mov_b32 v15, 0x3f80
v_lshlrev_b32 v14, v14, v15
s_mov_b32 s52, 0x3e02939f        ; SC
s_mov_b32 s53, 0xff800000        ; -inf
s_lshl_b32 s54, s14, 11
s_and_b32 s55, s14, 1
s_lshl_b32 s55, s55, 12          ; qt*4096
s_sub_u32 s56, 7, s16
s_cmp_eq_u32 s16, 0
s_cselect_b32 s56, 0, s56        ; e: set0->0, 6->1, 5->2, 4->3
s_add_u32 s57, s16, 28
s_sub_u32 s58, s16, 1
s_cmp_lt_u32 s58, 3
s_cselect_b32 s56, s57, s56      ; segment
s_mov_b32 s57, 0''')
    A('s_mov_b32 s93, 0')
    def wait0(addr_setup, load, cmp):
        Lw = A.newlabel('tl_w'); Lo = A.newlabel('tl_wo')
        A(f"""s_cmp_lg_u32 s14, 0
s_cbranch_scc1 {Lo}""")
        A(addr_setup)
        A.label(Lw)
        A(f"""{load}
s_waitcnt vmcnt(0)
{cmp}
s_add_u32 s93, s93, 1
s_cmp_lt_u32 s93, 0x80000
s_cselect_b64 vcc, vcc, 0
s_cbranch_vccz {Lo}
s_sleep {TSLEEP}
s_branch {Lw}""")
        A.label(Lo)
        A('s_waitcnt vmcnt(0)\ns_barrier')
    wait0('v_mov_b32 v56, 56', 'global_load_dword v57, v56, s[12:13] sc1', 'v_cmp_gt_u32 vcc, 32, v57')
    wait0(f"""v_min_u32 v56, 5, v1
s_lshl_b32 s63, s17, 7
s_add_u32 s63, s63, {hex(WS_QF)}""", 'buffer_load_ubyte v57, v56, s[4:7], s63 offen sc1', 'v_cmp_ne_u32 vcc, 32, v57')
    KM = 16; VMf = 32; XR = 40; GW = 44; XC = 48; YC = 50; DS = 52
    AVX = 0; APP = 32; AOF = 64
    def xloads(segreg, buf):
        A(f"""s_lshl_b32 s58, {segreg}, 13
s_add_u32 s59, s58, {hex(WS_K)}
s_add_u32 m0, s54, {buf*16384}
s_lshl_b32 s60, {segreg}, 18
buffer_load_dwordx4 v4, s[4:7], s59 offen lds
buffer_load_dwordx4 v4, s[4:7], s59 offen offset:1024 lds
s_add_u32 m0, s54, {buf*16384+T_Q}
s_nop 0
buffer_load_dwordx4 v4, s[4:7], s58 offen lds
buffer_load_dwordx4 v4, s[4:7], s58 offen offset:1024 lds""")
    def red_issue(segreg, cntreg, gate=True):
        if gate: wait0(f"""s_lshl_b32 s63, s16, 5
v_and_b32 v56, 31, v1
v_add_u32 v56, s63, v56
s_mov_b32 s63, {hex(WS_FLAG)}""", 'buffer_load_ubyte v57, v56, s[4:7], s63 offen sc1', f'v_cmp_gt_u32 vcc, {cntreg}, v57')
        A(f"""s_lshl_b32 s63, s17, 15
s_lshl_b32 s64, {segreg}, 20
s_add_u32 s63, s63, s64
s_lshl_b32 s64, s14, 13
s_add_u32 s63, s63, s64
s_add_u32 s63, s63, {hex(WS_P2)}
s_add_u32 s64, s63, 4096""")
        for i in range(4):
            A(f'buffer_load_dwordx4 {vr(ACC+i*4,4)}, v13, s[4:7], s63 offen offset:{i*1024} sc1')
        for i in range(4):
            A(f'buffer_load_dwordx4 {vr(ACC+16+i*4,4)}, v13, s[4:7], s64 offen offset:{i*1024} sc1')
        A(f"""s_lshl_b32 s65, {segreg}, 5
s_add_u32 s65, s65, s17
s_lshl_b32 s65, s65, 10
buffer_load_dwordx4 {vr(XR,4)}, v13, s[36:39], s65 offen
buffer_load_dwordx4 {vr(GW,4)}, v13, s[44:47], 0 offen
buffer_load_dwordx2 {vr(XC,2)}, v15, s[36:39], s65 offen
s_lshr_b32 s66, s65, 7
s_add_u32 s66, s66, {hex(WS_Y)}
v_lshlrev_b32 v56, 11, v15
buffer_load_dwordx2 {vr(YC,2)}, v56, s[4:7], s66 offen sc1
buffer_load_dwordx2 {vr(DS,2)}, v15, s[48:51], 0 offen""")
    def red_compute():
        SEL = 16; DD = 20; TT = 24
        A('v_lshrrev_b32 v57, 1, v2')
        for p in range(4):
            A(f"""v_cmp_eq_u32 vcc, {p}, v57
s_nop 1
v_cndmask_b32 v{SEL+p}, 0, v14, vcc""")
        A('s_nop 1')
        for i in range(8):
            A(f'v_mfma_f32_16x16x32_bf16 {vr(DD,4)}, {vr(SEL,4)}, {vr(ACC+4*i,4)}, {"0" if i==0 else vr(DD,4)}')
        for i in range(4):
            A(f"""v_lshlrev_b32 v{TT}, 16, v{XR+i}
v_and_b32 v{TT+1}, 0xffff0000, v{XR+i}
v_lshlrev_b32 v{TT+2}, 16, v{GW+i}
v_and_b32 v{TT+3}, 0xffff0000, v{GW+i}
v_mul_f32 v{TT}, v{TT}, v{TT+2}
v_mul_f32 v{TT+1}, v{TT+1}, v{TT+3}
v_cvt_pk_bf16_f32 v{TT}, v{TT}, v{TT+1}
v_lshlrev_b32 v{TT+1}, 16, v{TT}
v_and_b32 v{TT}, 0xffff0000, v{TT}
v_add_f32 v{TT}, v{TT}, v{TT+1}""")
            A(f'v_mov_b32 v{TT+4}, v{TT}' if i == 0 else f'v_add_f32 v{TT+4}, v{TT+4}, v{TT}')
        G = TT+4
        A(f"""s_nop 1
v_add_f32_dpp v{G}, v{G}, v{G} quad_perm:[1,0,3,2] row_mask:0xf bank_mask:0xf
s_nop 1
v_add_f32_dpp v{G}, v{G}, v{G} quad_perm:[2,3,0,1] row_mask:0xf bank_mask:0xf
s_nop 1
v_add_f32_dpp v{G}, v{G}, v{G} row_ror:4 row_mask:0xf bank_mask:0xf
s_nop 1
v_add_f32_dpp v{G}, v{G}, v{G} row_ror:8 row_mask:0xf bank_mask:0xf
v_mov_b32 v{TT}, v{G}
s_nop 1
v_permlane32_swap_b32 v{TT}, v{G}
v_add_f32 v{G}, v{G}, v{TT}
v_mov_b32 v{TT}, v{G}
s_nop 1
v_permlane16_swap_b32 v{TT}, v{G}
v_add_f32 v{G}, v{G}, v{TT}
v_cvt_pk_bf16_f32 v{G}, v{G}, v{G}
v_lshlrev_b32 v{G}, 16, v{G}
v_mul_f32 v{G}, 0xbfb8aa3b, v{G}
v_exp_f32 v{G}, v{G}
s_nop 0
v_add_f32 v{G}, 1.0, v{G}
v_rcp_f32 v{G}, v{G}
s_nop 0
v_cvt_pk_bf16_f32 v{G}, v{G}, v{G}
v_lshlrev_b32 v{G}, 16, v{G}
v_sub_f32 v{G+1}, 1.0, v{G}
v_cvt_pk_bf16_f32 v{G+1}, v{G+1}, v{G+1}
v_lshlrev_b32 v{G+1}, 16, v{G+1}""")
        for i in range(2):
            A(f"""v_cvt_pk_bf16_f32 v{TT}, v{DD+2*i}, v{DD+2*i+1}
v_lshlrev_b32 v{TT+1}, 16, v{TT}
v_and_b32 v{TT}, 0xffff0000, v{TT}
v_mul_f32 v{TT+1}, v{G}, v{TT+1}
v_mul_f32 v{TT}, v{G}, v{TT}
v_cvt_pk_bf16_f32 v{DD+2*i}, v{TT+1}, v{TT}
v_lshlrev_b32 v{TT}, 16, v{XC+i}
v_and_b32 v{TT+1}, 0xffff0000, v{XC+i}
v_lshlrev_b32 v{TT+2}, 16, v{DS+i}
v_and_b32 v{TT+3}, 0xffff0000, v{DS+i}
v_mul_f32 v{TT}, v{TT}, v{TT+2}
v_mul_f32 v{TT+1}, v{TT+1}, v{TT+3}
v_cvt_pk_bf16_f32 v{TT}, v{TT}, v{TT+1}
v_lshlrev_b32 v{TT+1}, 16, v{TT}
v_and_b32 v{TT}, 0xffff0000, v{TT}
v_lshlrev_b32 v{TT+2}, 16, v{YC+i}
v_and_b32 v{TT+3}, 0xffff0000, v{YC+i}
v_add_f32 v{TT+1}, v{TT+1}, v{TT+2}
v_add_f32 v{TT}, v{TT}, v{TT+3}
v_cvt_pk_bf16_f32 v{TT}, v{TT+1}, v{TT}
v_lshlrev_b32 v{TT+1}, 16, v{TT}
v_and_b32 v{TT}, 0xffff0000, v{TT}
v_mul_f32 v{TT+1}, v{G+1}, v{TT+1}
v_mul_f32 v{TT}, v{G+1}, v{TT}
v_cvt_pk_bf16_f32 v{TT}, v{TT+1}, v{TT}
v_lshlrev_b32 v{TT+1}, 16, v{TT}
v_and_b32 v{TT}, 0xffff0000, v{TT}
v_lshlrev_b32 v{TT+2}, 16, v{DD+2*i}
v_and_b32 v{TT+3}, 0xffff0000, v{DD+2*i}
v_add_f32 v{TT+1}, v{TT+1}, v{TT+2}
v_add_f32 v{TT}, v{TT}, v{TT+3}
v_cvt_pk_bf16_f32 v{XR+i}, v{TT+1}, v{TT}""")
        A(f"""s_mov_b32 exec_hi, 0
buffer_store_dwordx2 {vr(XR,2)}, v15, s[40:43], s65 offen
s_mov_b32 exec_hi, -1""")
    A(f"""v_and_b32 v15, 1, v3
v_lshlrev_b32 v15, 3, v15
v_lshl_add_u32 v15, v2, 4, v15
s_lshl_b32 s66, s14, 8
v_add_u32 v15, s66, v15""")
    A(f"""s_add_u32 s62, s16, 56
s_cmp_eq_u32 s16, 0
s_cselect_b32 s62, 63, s62
s_lshl_b32 s62, s62, 20
v_mov_b32 v16, -1
v_mov_b32 v17, -1
v_mov_b32 v18, -1
v_mov_b32 v19, -1""")
    for mt in range(2):
        for r in range(4):
            A(f"""s_add_u32 s63, s62, {(16*mt+r)*32768}
buffer_store_dwordx4 v[16:19], v11, s[4:7], s63 offen sc1""")
    xloads('s56', 0)
    A('s_mov_b32 s68, 0\ns_mov_b32 s69, s56\ns_mov_b32 s70, 0\ns_mov_b32 s71, 0')
    def refresh():
        Lq1 = A.newlabel('tl_rf')
        A(f"""s_cmp_lg_u32 s14, 0
s_cbranch_scc1 {Lq1}
s_lshl_b32 s63, s17, 7
s_add_u32 s63, s63, {hex(WS_QF)}
v_mov_b32 v56, 8
buffer_load_ubyte v58, v56, s[4:7], s63 offen sc1
v_mov_b32 v56, 44
s_cmp_lg_u32 s71, 0
s_cbranch_scc1 {Lq1}_s
global_load_dword v59, v56, s[12:13] sc1""")
        A.label(Lq1+'_s')
        A(f"""v_mov_b32 v56, {T_G}
s_waitcnt vmcnt(0)
ds_write_b64 v56, v[58:59]
s_waitcnt lgkmcnt(0)""")
        A.label(Lq1)
        A(f"""s_waitcnt vmcnt(0)
s_barrier
v_mov_b32 v56, {T_G}
ds_read_b64 v[58:59], v56
s_waitcnt lgkmcnt(0)
v_readfirstlane_b32 s70, v58
v_readfirstlane_b32 s63, v59
s_cmp_ge_u32 s63, 128
s_cselect_b32 s71, 1, s71
s_barrier""")
    def do_reduces(limit):
        Lr = A.newlabel('tl_dr'); Lo = A.newlabel('tl_dro'); Ls = A.newlabel('tl_drs')
        A.label(Lr)
        A(f"""s_cmp_ge_u32 s68, {limit}
s_cbranch_scc1 {Lo}
s_cmp_lg_u32 s71, 0
s_cbranch_scc1 {Ls}""")
        wait0('v_mov_b32 v56, 44', 'global_load_dword v57, v56, s[12:13] sc1', 'v_cmp_gt_u32 vcc, 128, v57')
        A('s_mov_b32 s71, 1')
        A.label(Ls)
        A('s_add_u32 s68, s68, 1')
        red_issue('s69', 's68')
        A('s_waitcnt vmcnt(0)')
        red_compute()
        A(nxt('s69','s69'))
        A(f's_branch {Lr}')
        A.label(Lo)
    Lloop = A.newlabel('tl_loop'); Lfin = A.newlabel('tl_fin'); Lfast = A.newlabel('tl_fast')
    A.label(Lloop)
    for buf in range(2):
        Lgo = A.newlabel('tl_go'); Lsp = A.newlabel('tl_sp')
        A(f"""s_add_u32 s72, s56, 1
s_sub_u32 s63, s56, 1
s_cmp_ge_u32 s56, 60
s_cselect_b32 s72, s63, s72        ; need s70 >= s72
s_cmp_ge_u32 s70, s72
s_cbranch_scc1 {Lgo}""")
        refresh()
        A(f"""s_cmp_ge_u32 s70, s72
s_cbranch_scc1 {Lgo}""")
        do_reduces('s57')
        A.label(Lsp)
        refresh()
        A(f"""s_cmp_ge_u32 s70, s72
s_cbranch_scc1 {Lgo}
s_add_u32 s93, s93, 1
s_cmp_ge_u32 s93, 0x80000
s_cbranch_scc1 {Lgo}
s_sleep {TSLEEP}
s_branch {Lsp}""")
        A.label(Lgo)
        A('s_lshl_b32 s61, s56, 16')
        A('s_lshl_b32 s60, s56, 18')
        for et in range(2):
            for T in range(2):
                A(f'buffer_load_dwordx4 {vr(40+(et*2+T)*4,4)}, v6, s[4:7], s60 offen offset:{et*2048+T*64}')
        Lkl = A.newlabel('tl_kl'); Lko = A.newlabel('tl_ko')
        A.label(Lkl)
        for ks in range(4):
            A(f'buffer_load_dwordx4 {vr(KM+ks*4,4)}, v7, s[4:7], s61 offen offset:{ks*64} sc1')
        for et in range(2):
            for T in range(2):
                A(f'buffer_load_dwordx2 {vr(VMf+(et*2+T)*2,2)}, v8, s[4:7], s61 offen offset:{et*512+T*16} sc1')
        A(f"""s_cmp_lt_u32 s56, 60
s_cbranch_scc1 {Lko}
s_waitcnt vmcnt(0)
v_max3_u32 v56, v{KM}, v{KM+4}, v{KM+8}
v_max3_u32 v56, v56, v{KM+12}, v{VMf}
v_max3_u32 v56, v56, v{VMf+2}, v{VMf+4}
v_max_u32 v56, v56, v{VMf+6}
v_cmp_eq_u32 vcc, -1, v56
s_add_u32 s93, s93, 1
s_cmp_lt_u32 s93, 0x80000
s_cselect_b64 vcc, vcc, 0
s_cbranch_vccz {Lko}
s_sleep 2
s_branch {Lkl}""")
        A.label(Lko)
        A('s_waitcnt vmcnt(12)\ns_barrier')
        S = ACC; QF = ACC+16; KX = ACC+32
        A(f'v_add_u32 v56, s55, v5')
        for ks in range(4):
            if ks:
                A(f'v_xor_b32 v57, {ks*64}, v5\nv_xor_b32 v58, {ks*64}, v56')
            ak = 'v57' if ks else 'v5'; aq = 'v58' if ks else 'v56'
            A(f"""ds_read_b128 {vr(QF+ks*4,4)}, {aq} offset:{buf*16384+T_Q}
ds_read_b128 {vr(KX+ks*4,4)}, {ak} offset:{buf*16384+T_K}
ds_read_b128 {vr(KX+16+ks*4,4)}, {ak} offset:{buf*16384+T_K+4096}""")
        for ks in range(4):
            A(f's_waitcnt lgkmcnt({9-3*ks})')
            for t in (1,2):
                A(f'v_mfma_f32_16x16x32_bf16 {vr(S+t*4,4)}, {vr(KX+(t-1)*16+ks*4,4)}, {vr(QF+ks*4,4)}, {"0" if ks==0 else vr(S+t*4,4)}')
        A('s_waitcnt vmcnt(4)')
        for ks in range(4):
            A(f'v_mfma_f32_16x16x32_bf16 {vr(S,4)}, {vr(KM+ks*4,4)}, {vr(QF+ks*4,4)}, {"0" if ks==0 else vr(S,4)}')
        A(f'v_mov_b32 v57, s53')
        for kt in range(2):
            for r in range(4):
                A(f"""v_cmp_le_i32 vcc, {16*kt+r}, v12
s_nop 1
v_cndmask_b32 v{S+4+4*kt+r}, v57, v{S+4+4*kt+r}, vcc""")
        A(f"""v_cmp_gt_u32 vcc, 2, v3
s_nop 1""")
        for r in range(4):
            A(f'v_cndmask_b32 v{S+r}, v57, v{S+r}, vcc')
        M = S+12; T1 = S+13; L = S+14; T2 = S+15
        A(f"""v_max3_f32 v{M}, v{S}, v{S+1}, v{S+2}
v_max3_f32 v{T1}, v{S+3}, v{S+4}, v{S+5}
v_max3_f32 v{M}, v{M}, v{S+6}, v{S+7}
v_max3_f32 v{T1}, v{T1}, v{S+8}, v{S+9}
v_max3_f32 v{M}, v{M}, v{S+10}, v{S+11}
v_max_f32 v{M}, v{M}, v{T1}
v_mov_b32 v{T1}, v{M}
s_nop 1
v_permlane32_swap_b32 v{T1}, v{M}
v_max_f32 v{M}, v{M}, v{T1}
v_mov_b32 v{T1}, v{M}
s_nop 1
v_permlane16_swap_b32 v{T1}, v{M}
v_max_f32 v{M}, v{M}, v{T1}
v_mul_f32 v{M}, s52, v{M}""")
        for i in range(12):
            A(f'v_fma_f32 v{S+i}, v{S+i}, s52, -v{M}')
        for i in range(12):
            A(f'v_exp_f32 v{S+i}, v{S+i}')
        A(f"""s_nop 0
v_add_f32 v{L}, v{S}, v{S+1}
v_add_f32 v{T1}, v{S+2}, v{S+3}
v_add_f32 v{T2}, v{S+4}, v{S+5}
v_add_f32 v{M}, v{S+6}, v{S+7}
v_add_f32 v{L}, v{L}, v{T1}
v_add_f32 v{T1}, v{S+8}, v{S+9}
v_add_f32 v{T2}, v{T2}, v{M}
v_add_f32 v{M}, v{S+10}, v{S+11}
v_add_f32 v{L}, v{L}, v{T1}
v_add_f32 v{T2}, v{T2}, v{M}
v_add_f32 v{L}, v{L}, v{T2}
v_mov_b32 v{T1}, v{L}
s_nop 1
v_permlane32_swap_b32 v{T1}, v{L}
v_add_f32 v{L}, v{L}, v{T1}
v_mov_b32 v{T1}, v{L}
s_nop 1
v_permlane16_swap_b32 v{T1}, v{L}
v_add_f32 v{L}, v{L}, v{T1}
v_rcp_f32 v{L}, v{L}
s_nop 0""")
        for i in range(12):
            A(f'v_mul_f32 v{S+i}, v{S+i}, v{L}')
        PX = QF; PM = QF+4; O = KX
        A(f"""v_cvt_pk_bf16_f32 v{PX}, v{S+4}, v{S+5}
v_cvt_pk_bf16_f32 v{PX+1}, v{S+6}, v{S+7}
v_cvt_pk_bf16_f32 v{PX+2}, v{S+8}, v{S+9}
v_cvt_pk_bf16_f32 v{PX+3}, v{S+10}, v{S+11}
v_cvt_pk_bf16_f32 v{PM}, v{S}, v{S+1}
v_cvt_pk_bf16_f32 v{PM+1}, v{S+2}, v{S+3}
s_waitcnt vmcnt(0)""")
        for i in range(4):
            A(f'v_mfma_f32_16x16x32_bf16 {vr(O+i*4,4)}, {vr(40+i*4,4)}, {vr(PX,4)}, 0')
        for i in range(4):
            A(f'v_mfma_f32_16x16x16_bf16 {vr(O+i*4,4)}, {vr(VMf+i*2,2)}, {vr(PM,2)}, {vr(O+i*4,4)}')
        Lnx = A.newlabel('tl_nx')
        A(nxt('s67','s56'))
        A(f"""s_cmp_ge_u32 s67, 64
s_cbranch_scc1 {Lnx}""")
        xloads('s67', 1-buf)
        A.label(Lnx)
        A('s_nop 4')
        for et in range(2):
            for r in range(4):
                A(f'v_cvt_pk_bf16_f32 v{S+et*4+r}, v{O+et*8+r}, v{O+et*8+4+r}')
            A(f'ds_write_b128 v9, {vr(S+et*4,4)} offset:{et*64}')
        A("""s_waitcnt lgkmcnt(0)
s_barrier""")
        for mt in range(2):
            for ks in range(4):
                A(f'ds_read_b128 {vr(16+(mt*4+ks)*4,4)}, v10 offset:{mt*16*OS+ks*64}')
        A(f's_lshl_b32 s62, s56, 20')
        for mt in range(2):
            for ks in range(4):
                A(f's_waitcnt lgkmcnt({7-(mt*4+ks)})')
                for t in range(8):
                    acc = vr(ACC+(mt*8+t)*4,4)
                    A(f'v_mfma_f32_16x16x32_bf16 {acc}, {vr(16+(mt*4+ks)*4,4)}, {ar((t*4+ks)*4,4)}, {"0" if ks==0 else acc}')
        A('s_nop 7')
        for mt in range(2):
            for r in range(4):
                b = 16 + ((mt*4+r)%4)*4
                for p in range(4):
                    A(f'v_cvt_pk_bf16_f32 v{b+p}, v{ACC+(mt*8+2*p)*4+r}, v{ACC+(mt*8+2*p+1)*4+r}')
                A(f"""s_add_u32 s63, s62, {(16*mt+r)*32768}
v_min_u32 v{b}, -2, v{b}
buffer_store_dwordx4 {vr(b,4)}, v11, s[4:7], s63 offen sc1""")
        A(f"""s_sub_u32 s64, s57, s68
s_add_u32 s57, s57, 1
s_mov_b32 s63, s67
s_cmp_ge_u32 s63, 64
s_cselect_b32 s63, s64, 1
s_cmp_eq_u32 s63, 0
s_cbranch_scc1 {Lfast}
s_waitcnt vmcnt(0)
s_barrier""")
        Lnp = A.newlabel('tl_np')
        A(f"""s_cmp_lg_u32 s14, 0
s_cbranch_scc1 {Lnp}
s_mov_b64 exec, 1
v_mov_b32 v56, s57
v_mov_b32 v57, s15
s_mov_b32 s63, {hex(WS_FLAG)}
buffer_store_byte v56, v57, s[4:7], s63 offen sc1
s_mov_b64 exec, -1""")
        A.label(Lnp)
        Lnd = A.newlabel('tl_nd'); Lyd = A.newlabel('tl_yd')
        A(f"""s_cmp_lg_u32 s71, 0
s_cbranch_scc1 {Lyd}""")
        refresh()
        A(f"""s_cmp_eq_u32 s71, 0
s_cbranch_scc1 {Lnd}""")
        A.label(Lyd)
        A('s_sub_u32 s73, s57, 1')
        do_reduces('s73')
        A.label(Lnd)
        A(nxt('s56','s56'))
        A(f"""s_cmp_ge_u32 s56, 64
s_cbranch_scc1 {Lfin}""")
    A(f's_branch {Lloop}')
    A.label(Lfin)
    A('s_sub_u32 s73, s57, 1')
    do_reduces('s73')
    A(f's_sub_u32 s67, s56, {NSET}')
    red_issue('s67', None, gate=False)
    Lpl = A.newlabel('tl_pl'); Lpo = A.newlabel('tl_po')
    A(f's_branch {Lpl}')
    A.label(Lfast)
    A('s_nop 1')
    red_issue('s56', None, gate=False)
    A.label(Lpl)
    A(f"""s_waitcnt vmcnt(0)
v_max3_u32 v56, v{ACC}, v{ACC+4}, v{ACC+8}
v_max3_u32 v56, v56, v{ACC+12}, v{ACC+16}
v_max3_u32 v56, v56, v{ACC+20}, v{ACC+24}
v_max_u32 v56, v56, v{ACC+28}
v_cmp_eq_u32 vcc, -1, v56
s_add_u32 s93, s93, 1
s_cmp_lt_u32 s93, 0x80000
s_cselect_b64 vcc, vcc, 0
s_cbranch_vccz {Lpo}
s_sleep 2""")
    for i in range(4):
        A(f'buffer_load_dwordx4 {vr(ACC+i*4,4)}, v13, s[4:7], s63 offen offset:{i*1024} sc1')
    for i in range(4):
        A(f'buffer_load_dwordx4 {vr(ACC+16+i*4,4)}, v13, s[4:7], s64 offen offset:{i*1024} sc1')
    A(f's_branch {Lpl}')
    A.label(Lpo)
    red_compute()
    A('s_waitcnt vmcnt(0)')
```
